```python
import torch

def _softmax(x, axis=-1):
    return torch.softmax(x, dim=axis)

def _gelu(x):
    return torch.nn.functional.gelu(x, approximate='tanh')

def _silu(x):
    return torch.nn.functional.silu(x)

def _sigmoid(x):
    return torch.sigmoid(x)

def _layernorm(x, axis=-1, eps=1e-05):
    m = x.mean(dim=axis, keepdim=True)
    v = x.var(dim=axis, keepdim=True, unbiased=False)
    return (x - m) / torch.sqrt(v + eps)

def _scatter_add(tgt, idx, src, axis=0):
    return tgt.clone().index_add_(axis, idx, src)

def _segment_sum(src, seg, n):
    out = torch.zeros((n,) + src.shape[1:], dtype=src.dtype)
    return out.index_add_(0, seg, src)

def _pad(x, pw):
    flat = tuple((v for pair in reversed(pw) for v in pair))
    return torch.nn.functional.pad(x, flat)
kernel_name = 'concat_heads__memory_aug_recurrent_mem_tr__mha_block__prompt'

def setup_inputs():

    _w = lambda a: (lambda t: t.to(torch.bfloat16) if t.is_floating_point() else t)(torch.as_tensor(a))

    def _A_setup():
        B, S, Dm = (1, 2048, 640)
        H, Dh = (32, 128)
        M, seg = (8, 32)
        seg = min(seg, S)
        S = S // seg * seg
        return {'x': _w((lambda *s: torch.randn(*s, dtype=torch.bfloat16) * 0.05)(B, S, Dm)), 'mem0': _w((lambda *s: torch.randn(*s, dtype=torch.bfloat16) * 0.8)(B, M, Dm)), 'Wq': _w((lambda *s: torch.randn(*s, dtype=torch.bfloat16) * 1.6)(Dm, H, Dh) * Dm ** (-0.5)), 'Wk': _w((lambda *s: torch.randn(*s, dtype=torch.bfloat16) * 1.6)(Dm, H, Dh) * Dm ** (-0.5)), 'Wv': _w((lambda *s: torch.randn(*s, dtype=torch.bfloat16) * 0.8)(Dm, H, Dh) * Dm ** (-0.5)), 'Wo': _w((lambda *s: torch.randn(*s, dtype=torch.bfloat16) * 0.8)(H, Dh, Dm) * (H * Dh) ** (-0.5)), 'seg_len': seg}
    _A_in = _A_setup()

    def _B_setup():
        B, S, D, H = (1, 2048, 640, 32)
        return {'x': _w((lambda *s: torch.randn(*s, dtype=torch.bfloat16) * 0.2)(B, S, D)), 'wqkv': _w((lambda *s: torch.randn(*s, dtype=torch.bfloat16) * 0.2)(D, 3 * D)), 'wo': _w((lambda *s: torch.randn(*s, dtype=torch.bfloat16) * 0.05)(D, D))}
    _B_in = _B_setup()
    return {'A_x': _A_in['x'], 'A_mem0': _A_in['mem0'], 'A_Wq': _A_in['Wq'], 'A_Wk': _A_in['Wk'], 'A_Wv': _A_in['Wv'], 'A_Wo': _A_in['Wo'], 'A_seg_len': _A_in['seg_len'], 'B_x': _B_in['x'], 'B_wqkv': _B_in['wqkv'], 'B_wo': _B_in['wo']}

def reference(A_x, A_mem0, A_Wq, A_Wk, A_Wv, A_Wo, A_seg_len, B_x, B_wqkv, B_wo):

    def _A_ref(x, mem0, Wq, Wk, Wv, Wo, seg_len):
        B, S, Dm = x.shape
        H, Dh = (Wq.shape[1], Wq.shape[2])
        M = mem0.shape[1]
        scale = Dh ** (-0.5)
        n_seg = S // seg_len
        L = M + seg_len
        idx = torch.arange(L)
        mask = (idx[:, None] < M) | (idx[:, None] >= idx[None, :])
        mem = mem0
        outs = []
        for s in range(n_seg):
            xs = x[:, s * seg_len:(s + 1) * seg_len, :].clone()
            h = torch.concatenate([mem, xs], axis=1)
            q = torch.einsum('btd,dhe->bhte', h, Wq)
            k = torch.einsum('btd,dhe->bhte', h, Wk)
            v = torch.einsum('btd,dhe->bhte', h, Wv)
            scores = torch.einsum('bhqe,bhke->bhqk', q, k) * scale
            scores = torch.where(mask[None, None], scores, -1000000000.0)
            p = _softmax(scores, axis=-1)
            o = torch.einsum('bhqk,bhke->bhqe', p, v)
            o = torch.einsum('bhte,hed->btd', o, Wo)
            mem = o[:, :M, :].clone()
            outs.append(o[:, M:, :])
        return torch.concatenate(outs, axis=1)

    def _B_ref(x, wqkv, wo):
        B, S, D = x.shape
        H = 32
        Dh = D // H
        qkv = (lambda x, *d: x.permute(*d))((x @ wqkv).reshape(B, S, 3, H, Dh), 2, 0, 3, 1, 4)
        q, k, v = (qkv[0], qkv[1], qkv[2])
        scores = torch.einsum('bhqd,bhkd->bhqk', q, k) * Dh ** (-0.5)
        p = _softmax(scores, axis=-1)
        o = torch.einsum('bhqk,bhkd->bhqd', p, v)
        return (lambda x, *d: x.permute(*d))(o, 0, 2, 1, 3).reshape(B, S, D) @ wo
    a = _A_ref(A_x, A_mem0, A_Wq, A_Wk, A_Wv, A_Wo, A_seg_len)
    b = _B_ref(B_x, B_wqkv, B_wo)
    return torch.concatenate([a, b], axis=-1)
```

```python
import math, struct
from dsl import v, s
from layout import *
from proj import srd
WS = 's[8:11]'
SX, SR, SW, SLIM = 28, 29, 30, 33
def f32bits(x): return struct.unpack('<I', struct.pack('<f', x))[0]

def flag_wait(k, name, vaddr, nl, sneed, soff='0', tmp=13):
    L, D = k.lab(name), k.lab(name + 'd')
    k(f'''s_mov_b32 s39, 0
s_mov_b64 s[70:71], exec
s_mov_b32 exec_lo, {((1 << nl) - 1) & 0xffffffff:#x}
s_mov_b32 exec_hi, {((1 << nl) - 1) >> 32:#x}
{L}:
buffer_load_dword v{tmp}, v{vaddr}, {WS}, {soff} offen sc1
s_waitcnt vmcnt(0)
v_cmp_gt_u32 vcc, s{sneed}, v{tmp}
s_cbranch_vccz {D}
s_sleep 8
s_add_u32 s39, s39, 1
s_cmp_lt_u32 s39, s{SLIM}
s_cbranch_scc1 {L}
s_mov_b32 s{SLIM}, 0
{D}:
s_mov_b64 exec, s[70:71]''')

def att_role(k):
    QX_, KX_, VX_, QM, VM, NEG, DIAG = 16, 48, 80, 112, 128, 136, 140
    S0, S1, SM, PX, PM, PM2, O, T = 144, 148, 152, 156, 160, 162, 168, 200
    SH, SS, SC, SNC = 42, 40, 78, 79
    k(f'''
L_att:
s_lshl_b32 s34, s41, 3
s_add_u32 s34, s34, s{SW}
s_and_b32 s{SH}, s34, 31
s_lshr_b32 s{SS}, s34, 5
s_mov_b32 s{SC}, {f32bits(128**-0.5 * math.log2(math.e)):#x}
s_mov_b32 s{SNC}, {f32bits(-(128**-0.5) * math.log2(math.e)):#x}
v_lshlrev_b32 v2, 4, v1
s_lshl_b32 s34, s{SH}, 13
v_add_u32 v3, s34, v2
s_mul_i32 s34, s{SH}, 6144
v_add_u32 v4, s34, v2
s_lshr_b32 s34, s{SH}, 1
v_lshlrev_b32 v5, 4, v1
v_add_u32 v5, s34, v5
v_lshlrev_b32 v5, 2, v5
s_lshl_b32 s34, s{SH}, 2
s_add_u32 s34, s34, {F_KVM}
v_mov_b32 v10, s34
v_cmp_eq_u32 vcc, 3, v1
v_cndmask_b32 v5, v5, v10, vcc
; masks
v_cmp_gt_u32 vcc, 32, v1
v_mov_b32 v10, 0
v_mov_b32 v11, 0xf149f2ca
v_cndmask_b32 v{NEG}, v10, v11, vcc
v_mov_b32 v{NEG+1}, v{NEG}
v_mov_b32 v{NEG+2}, v{NEG}
v_mov_b32 v{NEG+3}, v{NEG}
v_lshrrev_b32 v12, 4, v1
v_lshlrev_b32 v12, 2, v12             ; 4g
v_and_b32 v13, 15, v1''')
    for i in range(4):
        k(f'v_add_u32 v14, {i}, v12\nv_cmp_gt_u32 vcc, v14, v13\nv_cndmask_b32 v{DIAG+i}, v10, v11, vcc')
    k(f'''L_att_task:
s_add_u32 s36, s{SS}, 1''')
    flag_wait(k, 'atw', 5, 4, 36)
    k(f'''s_lshl_b32 s34, s{SS}, 18
s_add_u32 s35, s34, {QX}
s_add_u32 s36, s34, {KX}
s_add_u32 s37, s34, {VX}
s_mul_i32 s38, s{SS}, 196608
s_add_u32 s38, s38, {KVMP}''')
    for base, sreg in ((QX_, 35), (KX_, 36)):
        for i in range(8):
            if i == 4: k(f's_add_u32 s{sreg}, s{sreg}, 4096')
            k(f'buffer_load_dwordx4 {v(base+4*i,4)}, v3, {WS}, s{sreg} offen offset:{(i%4)*1024} sc1')
    for i in range(4): k(f'buffer_load_dwordx4 {v(QM+4*i,4)}, v4, {WS}, s38 offen offset:{i*1024} sc1')
    for i in range(8):
        if i == 4: k('s_add_u32 s37, s37, 4096')
        k(f'buffer_load_dwordx4 {v(VX_+4*i,4)}, v3, {WS}, s37 offen offset:{(i%4)*1024} sc1')
    k('s_add_u32 s38, s38, 4096')
    for i in range(2): k(f'buffer_load_dwordx4 {v(VM+4*i,4)}, v4, {WS}, s38 offen offset:{i*1024} sc1')
    k(f's_lshl_b32 s44, s{SS}, 18\ns_add_u32 s44, s44, {OX}')
    for qt in range(2):
        k('s_waitcnt vmcnt(10)' if qt == 0 else '')
        q = lambda ks: v(QX_ + 16*qt + 4*ks, 4)
        for ks in range(4):
            k(f'v_mfma_f32_16x16x32_bf16 {v(S0,4)}, {v(KX_+4*ks,4)}, {q(ks)}, {(v(DIAG,4) if qt == 0 else "0") if ks == 0 else v(S0,4)}')
            if qt == 1: k(f'v_mfma_f32_16x16x32_bf16 {v(S1,4)}, {v(KX_+16+4*ks,4)}, {q(ks)}, {v(DIAG,4) if ks == 0 else v(S1,4)}')
            k(f'v_mfma_f32_16x16x32_bf16 {v(SM,4)}, {v(QM+4*ks,4)}, {q(ks)}, {v(NEG,4) if ks == 0 else v(SM,4)}')
        vals = list(range(S0, S0+4)) + (list(range(S1, S1+4)) if qt == 1 else []) + list(range(SM, SM+4))
        k(f'v_max3_f32 v{T}, v{vals[0]}, v{vals[1]}, v{vals[2]}')
        r = vals[3:]
        while len(r) >= 2: k(f'v_max3_f32 v{T}, v{T}, v{r[0]}, v{r[1]}'); r = r[2:]
        if r: k(f'v_max_f32 v{T}, v{T}, v{r[0]}')
        for sw in ('16', '32'):
            k(f'v_mov_b32 v{T+1}, v{T}\nv_permlane{sw}_swap_b32 v{T}, v{T+1}\nv_max_f32 v{T}, v{T}, v{T+1}')
        k(f'v_mul_f32 v{T}, s{SNC}, v{T}')
        for x in vals: k(f'v_fma_f32 v{x}, v{x}, s{SC}, v{T}')
        for x in vals: k(f'v_exp_f32 v{x}, v{x}')
        k(f'v_add_f32 v{T}, v{vals[0]}, v{vals[1]}')
        for x in vals[2:]: k(f'v_add_f32 v{T}, v{T}, v{x}')
        for sw in ('16', '32'):
            k(f'v_mov_b32 v{T+1}, v{T}\nv_permlane{sw}_swap_b32 v{T}, v{T+1}\nv_add_f32 v{T}, v{T}, v{T+1}')
        k(f'v_rcp_f32 v{T}, v{T}')
        for x in vals: k(f'v_mul_f32 v{x}, v{x}, v{T}')
        k(f'v_cvt_pk_bf16_f32 v{PX}, v{S0}, v{S0+1}\nv_cvt_pk_bf16_f32 v{PX+1}, v{S0+2}, v{S0+3}')
        if qt == 1: k(f'v_cvt_pk_bf16_f32 v{PX+2}, v{S1}, v{S1+1}\nv_cvt_pk_bf16_f32 v{PX+3}, v{S1+2}, v{S1+3}')
        else: k(f'v_mov_b32 v{PX+2}, 0\nv_mov_b32 v{PX+3}, 0')
        k(f'''v_cvt_pk_bf16_f32 v{PM}, v{SM}, v{SM+2}
v_cvt_pk_bf16_f32 v{PM+1}, v{SM+1}, v{SM+3}
v_mov_b32 v{T+2}, v{PM}
v_mov_b32 v{T+3}, v{PM+1}
v_mov_b32 v{PM2}, 0
v_mov_b32 v{PM2+1}, 0
v_permlane32_swap_b32 v{T+2}, v{PM2}
v_permlane32_swap_b32 v{T+3}, v{PM2+1}''')
        if qt == 0: k('s_waitcnt vmcnt(0)')
        for te in range(8): k(f'v_mfma_f32_16x16x32_bf16 {v(O+4*te,4)}, {v(VX_+4*te,4)}, {v(PX,4)}, 0')
        for te in range(8):
            u, t4 = te // 4, te % 4
            k(f'v_mfma_f32_16x16x16_bf16 {v(O+4*te,4)}, {v(VM+4*u+2*(t4//2),2)}, {v(PM if t4 % 2 == 0 else PM2,2)}, {v(O+4*te,4)}')
        for ks in range(4):
            d = 204 + 4*ks
            for h in range(2):
                te = 2*ks + h
                k(f'v_cvt_pk_bf16_f32 v{d+2*h}, v{O+4*te}, v{O+4*te+1}\nv_cvt_pk_bf16_f32 v{d+2*h+1}, v{O+4*te+2}, v{O+4*te+3}')
            k(f'buffer_store_dwordx4 {v(d,4)}, v3, {WS}, s44 offen offset:{ks*1024} sc1')
        k('s_add_u32 s44, s44, 4096')
    k(f'''s_waitcnt vmcnt(0)
s_lshl_b32 s34, s{SS}, 5
s_add_u32 s34, s34, s{SH}
s_lshl_b32 s34, s34, 2
s_add_u32 s34, s34, {F_O}
v_mov_b32 v10, s34
v_mov_b32 v11, 1
s_mov_b64 exec, 1
buffer_store_dword v11, v10, {WS}, 0 offen sc1
s_mov_b64 exec, -1
s_add_u32 s{SS}, s{SS}, 2
s_cmp_lt_u32 s{SS}, 64
s_cbranch_scc1 L_att_task
s_branch L_end''')

def out_role(k):
    W, XB, ACC = 16, 144, 208
    SS, SNJ = 40, 42
    RED = 0
    k(f'''
L_out:
s_cmp_ge_u32 s41, 20
s_cselect_b32 s{SS}, 1, 0
s_mul_i32 s34, s{SS}, 20
s_sub_u32 s{SNJ}, s41, s34
s_load_dwordx2 s[4:5], s[0:1], 40
s_load_dwordx2 s[6:7], s[0:1], 80
s_waitcnt lgkmcnt(0)''')
    srd(k, 16, 4, 4096*1280)
    srd(k, 20, 6, 2048*2560)
    k(f'''v_lshrrev_b32 v10, 2, v1
v_and_b32 v11, 3, v1
v_mul_u32_u24 v12, 1280, v10
v_lshl_add_u32 v12, v11, 4, v12
s_lshl_b32 s34, s{SW}, 9
s_mul_i32 s34, s34, 1280
s_lshl_b32 s35, s{SNJ}, 6
s_add_u32 s34, s34, s35
v_add_u32 v12, s34, v12
s_lshl_b32 s34, s{SW}, 13
v_lshl_add_u32 v13, v1, 4, s34
v_lshrrev_b32 v10, 4, v1              ; g
v_bfe_u32 v11, v1, 2, 2               ; rr
v_lshl_add_u32 v10, v10, 2, v11
v_lshlrev_b32 v10, 6, v10
v_and_b32 v11, 3, v1
v_lshl_add_u32 v10, v11, 3, v10
v_add_u32 v14, s34, v10''')
    for hh4 in range(4):
        for i in range(8):
            k(f's_mov_b32 s34, {(128*hh4 + 16*i)*1280}\nbuffer_load_dwordx4 {v(XB+4*i,4)}, v12, s[16:19], s34 offen')
        k('s_waitcnt vmcnt(0)')
        for i in range(8): k(f'ds_write_b128 v13, {v(XB+4*i,4)} offset:{i*1024}')
        k('s_waitcnt lgkmcnt(0)')
        for ct in range(2):
            for ks in range(4):
                for hh in range(2):
                    k(f'ds_read_b64_tr_b16 {v(W + 64*ct + 4*(4*hh4+ks) + 2*hh, 2)}, v14 offset:{(32*ks + 16*hh)*64 + ct*32}')
            k('s_waitcnt lgkmcnt(0)')
    k(f'''s_barrier
v_lshlrev_b32 v2, 4, v1
s_lshl_b32 s34, s{SW}, 15             ; 4 heads * 8192
v_add_u32 v3, s34, v2
s_lshl_b32 s34, s{SW}, 4
v_lshlrev_b32 v5, 2, v1
v_add_u32 v5, s34, v5
v_add_u32 v5, {F_O}, v5
s_lshl_b32 s34, s{SW}, 12
v_add_u32 v6, s34, v2
; reducers (waves 0,1): token = lane/4, quarter = lane%4
v_lshrrev_b32 v10, 2, v1
v_and_b32 v11, 3, v1
v_lshrrev_b32 v12, 1, v11             ; ct
v_and_b32 v13, 1, v11
v_lshlrev_b32 v13, 5, v13             ; (2*(qd%2))*16
v_add_u32 v13, v13, v10
v_lshlrev_b32 v13, 4, v13
v_lshl_add_u32 v13, v12, 11, v13      ; ct*2048
s_lshl_b32 s34, s{SW}, 10             ; qt*1024
v_add_u32 v7, s34, v13
s_lshl_b32 s34, s{SW}, 4
v_add_u32 v10, s34, v10
v_mul_u32_u24 v10, 2560, v10
v_lshl_add_u32 v10, v11, 4, v10
s_lshl_b32 s34, s{SNJ}, 6
v_add_u32 v8, s34, v10
s_mov_b32 s45, 1
s_mov_b32 s46, 0
L_out_seg:
s_lshl_b32 s37, s{SS}, 7''')
    flag_wait(k, 'otw', 5, 4, 45, soff='s37')
    k(f's_lshl_b32 s34, s{SS}, 18\ns_add_u32 s34, s34, {OX}')
    def ld(h):
        for i in range(8):
            off = h*8192 + i*1024
            if off % 4096 == 0: k(f's_add_u32 s35, s34, {off}')
            k(f'buffer_load_dwordx4 {v(XB+32*(h%2)+4*i,4)}, v3, {WS}, s35 offen offset:{off % 4096} sc1')
    ld(0); ld(1)
    for h in range(4):
        k(f's_waitcnt vmcnt({8 if h < 3 else 0})')
        for ks in range(4):
            for ct in range(2):
                for qt in range(2):
                    a = v(ACC + 8*ct + 4*qt, 4)
                    k(f'v_mfma_f32_16x16x32_bf16 {a}, {v(W+64*ct+4*(4*h+ks),4)}, {v(XB+32*(h%2)+16*qt+4*ks,4)}, {"0" if h == 0 and ks == 0 else a}')
        if h + 2 < 4: ld(h + 2)
    k('v_add_u32 v10, s46, v6')
    for ct in range(2):
        for qt in range(2): k(f'ds_write_b128 v10, {v(ACC+8*ct+4*qt,4)} offset:{ct*2048 + qt*1024}')
    k(f'''s_waitcnt lgkmcnt(0)
s_barrier
s_cmp_ge_u32 s{SW}, 2
s_cbranch_scc1 L_out_nx
v_add_u32 v10, s46, v7''')
    for c in range(2):
        for w in range(8): k(f'ds_read_b128 {v(XB+32*c+4*w,4)}, v10 offset:{w*4096 + c*256}')
        k('s_waitcnt lgkmcnt(0)')
        b = XB + 32*c
        for x, y in ((0, 4), (8, 12), (16, 20), (24, 28), (0, 8), (16, 24), (0, 16)):
            k(f'v_pk_add_f32 {v(b+x,2)}, {v(b+x,2)}, {v(b+y,2)}\nv_pk_add_f32 {v(b+x+2,2)}, {v(b+x+2,2)}, {v(b+y+2,2)}')
        k(f'v_cvt_pk_bf16_f32 v{224+2*c}, v{b}, v{b+1}\nv_cvt_pk_bf16_f32 v{225+2*c}, v{b+2}, v{b+3}')
    k(f'''s_mul_i32 s34, s{SS}, {32*2560}
buffer_store_dwordx4 v[224:227], v8, s[20:23], s34 offen
L_out_nx:
s_xor_b32 s46, s46, 0x8000
s_add_u32 s{SS}, s{SS}, 2
s_cmp_lt_u32 s{SS}, 64
s_cbranch_scc1 L_out_seg
s_branch L_end''')
```

```python
import math, struct
from dsl import v, s
from layout import *
from proj import srd
from attout import flag_wait
WS = 's[8:11]'
SX, SR, SW, SLIM = 28, 29, 30, 33
def f32bits(x): return struct.unpack('<I', struct.pack('<f', x))[0]
PW, ACC, XF, STG, WST = 16, 176, 192, 204, 232
XBUF = 41472

def stat_gemm(k, tag, colstride, wrow, xsrd, xsc, ntiles, typ, epilogue, nwaves):
    k('v_lshlrev_b32 v2, 4, v0')
    for i in range(5):
        k(f'''v_add_u32 v10, {512*i}, v0
v_mul_u32_u24 v11, 52429, v10
v_lshrrev_b32 v11, 22, v11
v_add_u32 v11, v11, v10
v_lshlrev_b32 v{3+i}, 4, v11''')
    k('s_mul_i32 s34, s47, 40960')
    for i in range(5):
        k(f'buffer_load_dwordx4 {v(STG+4*i,4)}, v2, {xsrd}, s34 offen{xsc}\ns_add_u32 s34, s34, 8192')
    k(f'''v_lshrrev_b32 v10, 4, v1
v_lshrrev_b32 v11, 1, v10             ; g2
v_and_b32 v10, 1, v10                 ; nh
v_bfe_u32 v14, v1, 2, 2               ; rr
v_lshl_add_u32 v11, v11, 3, v14
v_mul_u32_u24 v11, 320, v11
v_lshl_add_u32 v11, v10, 5, v11
v_and_b32 v10, 3, v1
v_lshl_add_u32 v11, v10, 3, v11
s_mul_i32 s34, s{SW}, {colstride}
v_add_u32 v14, s34, v11''')
    for i in range(3):
        k(f'''v_add_u32 v9, {512*i}, v0
v_mul_u32_u24 v13, 52429, v9
v_lshrrev_b32 v13, 20, v13
v_mul_u32_u24 v8, 20, v13
v_sub_u32 v8, v9, v8
v_mul_u32_u24 v13, {wrow}, v13
v_lshl_add_u32 v13, v8, 4, v13
v_add_u32 v{10+i}, s46, v13''')
    def ld(c):
        k(f's_mov_b32 s34, {64*c*wrow}')
        for i in range(3): k(f'buffer_load_dwordx4 {v(WST+12*(c%2)+4*i,4)}, v{10+i}, s[16:19], s34 offen')
    ld(0); ld(1)
    for c in range(10):
        buf = (c % 2)*24576
        k(f's_waitcnt vmcnt({3 if c < 9 else 0})')
        for i in range(3): k(f'ds_write_b128 v2, {v(WST+12*(c%2)+4*i,4)} offset:{buf + i*8192}')
        k('s_waitcnt lgkmcnt(0)')
        if c + 2 < 10: ld(c + 2)
        k('s_barrier')
        for ksl in range(4):
            for hh in range(2):
                k(f'ds_read_b64_tr_b16 {v(PW + 4*(4*c+ksl) + 2*hh, 2)}, v14 offset:{buf + ksl*16*320 + hh*4*320}')
        k('s_waitcnt lgkmcnt(0)')
    k(f'''s_barrier
v_and_b32 v10, 31, v1
v_mul_u32_u24 v10, 1296, v10
v_lshrrev_b32 v11, 5, v1
v_lshl_add_u32 v9, v11, 4, v10''')
    for i in range(5): k(f'ds_write_b128 v{3+i}, {v(STG+4*i,4)}')
    k('s_waitcnt lgkmcnt(0)\ns_add_u32 s34, s47, 1\ns_mul_i32 s34, s34, 40960')
    for i in range(5):
        k(f'buffer_load_dwordx4 {v(STG+4*i,4)}, v2, {xsrd}, s34 offen{xsc}\ns_add_u32 s34, s34, 8192')
    epilogue('setup')
    k(f'''s_mov_b32 s40, 0
s_waitcnt vmcnt(0)
s_barrier
L_{tag}_loop:
s_and_b32 s34, s40, 1
s_mul_i32 s35, s34, {XBUF}
v_add_u32 v10, s35, v9
s_xor_b32 s34, s34, 1
s_mul_i32 s35, s34, {XBUF}
s_cmp_ge_u32 s40, {ntiles-1}
s_cbranch_scc1 L_{tag}_nost''')
    for i in range(5): k(f'v_add_u32 v11, s35, v{3+i}\nds_write_b128 v11, {v(STG+4*i,4)}')
    k(f'''s_waitcnt lgkmcnt(0)
s_cmp_ge_u32 s40, {ntiles-2}
s_cbranch_scc1 L_{tag}_nost
s_add_u32 s34, s40, 2
s_add_u32 s34, s34, s47
s_mul_i32 s34, s34, 40960''')
    for i in range(5):
        k(f'buffer_load_dwordx4 {v(STG+4*i,4)}, v2, {xsrd}, s34 offen{xsc}')
        if i < 4: k('s_add_u32 s34, s34, 8192')
    k(f'L_{tag}_nost:')
    if nwaves < 8: k(f's_cmp_ge_u32 s{SW}, {nwaves}\ns_cbranch_scc1 L_{tag}_idle')
    variants = typ if isinstance(typ, (list, tuple)) else [typ]
    for vi, t in enumerate(variants):
        if len(variants) > 1 and vi == 0: k(f's_cmp_eq_u32 s42, 2\ns_cbranch_scc1 L_{tag}_v1')
        if vi == 1: k(f'L_{tag}_v1:')
        for i in range(2): k(f'ds_read_b128 {v(XF+4*i,4)}, v10 offset:{i*32}')
        for ks in range(40):
            if ks + 2 < 40: k(f'ds_read_b128 {v(XF+4*((ks+2)%3),4)}, v10 offset:{(ks+2)*32}')
            k(f's_waitcnt lgkmcnt({2 if ks + 2 < 40 else (1 if ks + 1 < 40 else 0)})')
            c = '0' if ks == 0 else v(ACC, 16)
            w, x = v(PW+4*ks, 4), v(XF+4*(ks % 3), 4)
            k(f'v_mfma_f32_32x32x16_bf16 {v(ACC,16)}, {w if t != "V" else x}, {x if t != "V" else w}, {c}')
        epilogue(t)
        if len(variants) > 1 and vi == 0: k(f's_branch L_{tag}_skip')
    k(f'''L_{tag}_skip:
s_waitcnt vmcnt({epilogue("nst")})
s_branch L_{tag}_bar
L_{tag}_idle:
s_waitcnt vmcnt(0)
L_{tag}_bar:
s_barrier
s_add_u32 s40, s40, 1
s_cmp_lt_u32 s40, {ntiles}
s_cbranch_scc1 L_{tag}_loop
s_waitcnt vmcnt(0)''')

def b_role(k):
    SC_, SM_ = 41, 42
    cB = f32bits(20**-0.5 * math.log2(math.e))
    k(f'''
L_brole:
s_load_dwordx2 s[4:5], s[0:1], 64
s_load_dwordx2 s[6:7], s[0:1], 56
s_waitcnt lgkmcnt(0)''')
    srd(k, 16, 4, 640*3840)
    srd(k, 20, 6, 2048*1280)
    k(f'''s_cmp_ge_u32 s{SC_}, 48
s_cbranch_scc1 L_b2
; B1: gs = c % 12 (m = gs / 4, head octet = gs % 4), token quarter = c / 12
s_mul_i32 s34, s{SC_}, 43
s_lshr_b32 s34, s34, 9
s_mul_i32 s35, s34, 12
s_sub_u32 s35, s{SC_}, s35
s_lshl_b32 s47, s34, 4
s_lshr_b32 s{SM_}, s35, 2
s_and_b32 s43, s35, 3
s_mul_i32 s46, s{SM_}, 1280
s_mul_i32 s34, s43, 320
s_add_u32 s46, s46, s34''')
    def ep1(t):
        if t == 'nst': return 2
        if t == 'setup':
            k(f'''s_lshl_b32 s34, s43, 3
s_add_u32 s34, s34, s{SW}             ; head
s_lshl_b32 s34, s34, 17
s_mov_b32 s35, {QB >> 20}
s_cmp_eq_u32 s{SM_}, 0
s_cselect_b32 s35, s35, {KB >> 20}
s_cmp_eq_u32 s{SM_}, 2
s_cselect_b32 s35, {VB >> 20}, s35
s_lshl_b32 s35, s35, 20
s_add_u32 s44, s34, s35
v_lshlrev_b32 v8, 4, v1
s_mov_b32 s48, {cB:#x}
s_cmp_eq_u32 s{SM_}, 0
s_cselect_b32 s48, s48, 1.0
s_cselect_b32 s49, 0, 0x3f80
s_mov_b32 s50, 0
s_mov_b32 s51, -1
v_and_b32 v12, 31, v1
v_cmp_gt_u32 vcc, 20, v12
s_mov_b64 s[52:53], vcc
v_cmp_eq_u32 vcc, 20, v12
v_mov_b32 v13, 0x3f803f80
v_cndmask_b32 v13, 0, v13, vcc''')
            return
        if t == 'K':
            for i in range(12): k(f'v_mul_f32 v{ACC+i}, s48, v{ACC+i}')
            for n in range(6): k(f'v_cvt_pk_bf16_f32 v{224+n}, v{ACC+2*n}, v{ACC+2*n+1}')
            k(f'''v_mov_b32 v12, s49
v_cndmask_b32 v228, v228, v12, s[50:51]
v_cndmask_b32 v229, v229, 0, s[50:51]
v_mov_b32 v230, 0
v_mov_b32 v231, 0''')
        else:
            for n in range(8): k(f'v_cvt_pk_bf16_f32 v{224+n}, v{ACC+2*n}, v{ACC+2*n+1}')
            for n in range(8): k(f'v_cndmask_b32 v{224+n}, v13, v{224+n}, s[52:53]')
        k(f'''s_add_u32 s34, s40, s47
s_lshl_b32 s34, s34, 11
s_add_u32 s34, s34, s44
buffer_store_dwordx4 v[224:227], v8, {WS}, s34 offen sc1
buffer_store_dwordx4 v[228:231], v8, {WS}, s34 offen offset:1024 sc1''')
    stat_gemm(k, 'b1', 40, 3840, 's[20:23]', '', 16, ['K', 'V'], ep1, 8)
    k(f'''s_barrier
s_cmp_lg_u32 s{SW}, 0
s_cbranch_scc1 L_b2
s_lshl_b32 s34, s{SC_}, 2
s_add_u32 s34, s34, {F_B1}
v_mov_b32 v10, s34
v_mov_b32 v11, 1
s_mov_b64 exec, 1
buffer_store_dword v11, v10, {WS}, 0 offen sc1
s_mov_b64 exec, -1''')
    Q, O, KV, SA, SB, P, M, T = 16, 48, 112, 144, 160, 176, 184, 188
    k(f'''L_b2:
v_lshlrev_b32 v10, 2, v1
v_add_u32 v10, {F_B1}, v10
s_mov_b32 s36, 1''')
    flag_wait(k, 'b1w', 10, 48, 36)
    k(f'''s_lshr_b32 s43, s{SC_}, 1             ; head
s_and_b32 s44, s{SC_}, 1
s_lshl_b32 s34, s43, 17
v_lshlrev_b32 v2, 4, v1
v_add_u32 v3, s34, v2
s_lshl_b32 s35, s44, 5
s_lshl_b32 s36, s{SW}, 2
s_add_u32 s35, s35, s36
s_lshl_b32 s36, s35, 11
s_add_u32 s36, s36, {QB}''')
    for qb in range(4):
        for ks in range(2): k(f'buffer_load_dwordx4 {v(Q+8*qb+4*ks,4)}, v3, {WS}, s36 offen offset:{ks*1024} sc1')
        if qb < 3: k('s_add_u32 s36, s36, 2048')
    k(f'''s_mov_b32 s45, s35
s_lshl_b32 s46, s{SW}, 11             ; w*2048
v_add_u32 v4, s46, v3''')
    def dma(chunk_sreg):
        k(f'''s_and_b32 s34, s{chunk_sreg}, 1
s_lshl_b32 s34, s34, 15
s_add_u32 s34, s34, s46
s_mov_b32 m0, s34
s_lshl_b32 s35, s{chunk_sreg}, 14
s_add_u32 s36, s35, {KB}
buffer_load_dwordx4 v4, {WS}, s36 offen sc1 lds
buffer_load_dwordx4 v4, {WS}, s36 offen offset:1024 sc1 lds
s_add_u32 m0, s34, 16384
s_add_u32 s36, s35, {VB}
buffer_load_dwordx4 v4, {WS}, s36 offen sc1 lds
buffer_load_dwordx4 v4, {WS}, s36 offen offset:1024 sc1 lds''')
    k('s_mov_b32 s40, 0')
    dma(40)
    for i in range(64): k(f'v_mov_b32 v{O+i}, 0')
    for i in range(4): k(f'v_mov_b32 v{M+i}, 0')
    k(f'''s_mov_b32 s50, 0
s_mov_b32 s51, -1                     ; lanes 32..63
s_mov_b32 s52, 0xff800000
s_mov_b32 s53, 0xff800000
L_b2_chunk:
s_waitcnt vmcnt(0)
s_barrier
s_cmp_ge_u32 s40, 7
s_cbranch_scc1 L_b2_nodma
s_add_u32 s37, s40, 1''')
    dma(37)
    k(f'''L_b2_nodma:
s_and_b32 s34, s40, 1
s_lshl_b32 s34, s34, 15
v_add_u32 v5, s34, v2
s_mov_b32 s47, 0''')
    def kvread(setn, kbl):
        for ks in range(2): k(f'ds_read_b128 {v(KV+16*setn+4*ks,4)}, v5 offset:{kbl*2048 + ks*1024}')
        for kk in range(2): k(f'ds_read_b128 {v(KV+16*setn+8+4*kk,4)}, v5 offset:{16384 + kbl*2048 + kk*1024}')
    def smfma(dst, setn, qb):
        k(f'v_mfma_f32_32x32x16_bf16 {v(dst,16)}, {v(KV+16*setn,4)}, {v(Q+8*qb,4)}, 0')
        k(f'v_mfma_f32_32x32x16_bf16 {v(dst,16)}, {v(KV+16*setn+4,4)}, {v(Q+8*qb+4,4)}, {v(dst,16)}')
    rare = []
    kvread(0, 0)
    k('s_waitcnt lgkmcnt(0)')
    smfma(SA, 0, 0)
    k('L_b2_pair:')
    for par in range(2):
        for qb in range(4):
            cur, nxt = (SA, SB) if qb % 2 == 0 else (SB, SA)
            if qb == 0:
                if par == 0: kvread(1, 1)
                else:
                    k('v_add_u32 v5, 4096, v5')
                    lab = k.lab('b2nr')
                    k(f's_cmp_eq_u32 s47, 3\ns_cbranch_scc1 {lab}')
                    kvread(0, 0)
                    k(f'{lab}:')
            if qb < 3: smfma(nxt, par, qb + 1)
            else:
                if par == 0:
                    k('s_waitcnt lgkmcnt(0)'); smfma(nxt, 1, 0)
                else:
                    lab = k.lab('b2ns')
                    k(f's_waitcnt lgkmcnt(0)\ns_cmp_eq_u32 s47, 3\ns_cbranch_scc1 {lab}')
                    smfma(nxt, 0, 0)
                    k(f'{lab}:')
            k(f'v_max3_f32 v{T}, v{cur}, v{cur+1}, v{cur+2}')
            for n in range(6): k(f'v_max3_f32 v{T}, v{T}, v{cur+3+2*n}, v{cur+4+2*n}')
            k(f'v_max_f32 v{T}, v{T}, v{cur+15}')
            R, B = k.lab('b2r'), k.lab('b2b')
            k(f'v_cmp_lt_f32 vcc, s52, v{T}\ns_cbranch_vccnz {R}\n{B}:')
            rare.append((R, B, cur, qb))
            for i in range(16): k(f'v_exp_f32 v{cur+i}, v{cur+i}')
            for n in range(8): k(f'v_cvt_pk_bf16_f32 v{P+n}, v{cur+2*n}, v{cur+2*n+1}')
            for kk in range(2):
                k(f'v_mfma_f32_32x32x16_bf16 {v(O+16*qb,16)}, {v(KV+16*par+8+4*kk,4)}, {v(P+4*kk,4)}, {v(O+16*qb,16)}')
        if par == 0: k('s_mov_b32 s52, 0x41200000\ns_mov_b32 s53, 0')
    k(f'''s_add_u32 s47, s47, 1
s_cmp_lt_u32 s47, 4
s_cbranch_scc1 L_b2_pair
s_add_u32 s40, s40, 1
s_cmp_lt_u32 s40, 8
s_cbranch_scc1 L_b2_chunk
s_branch L_b2_done''')
    for R, B, cur, qb in rare:
        k(f'''{R}:
v_mov_b32 v{T+1}, v{T}
v_permlane32_swap_b32 v{T}, v{T+1}
v_max_f32 v{T}, v{T}, v{T+1}
v_max_f32 v{T}, s53, v{T}
v_add_f32 v{T}, v{M+qb}, v{T}
v_cvt_pk_bf16_f32 v{T+1}, v{T}, v{T}
v_lshlrev_b32 v{T}, 16, v{T+1}
v_sub_f32 v{T+2}, v{T}, v{M+qb}
v_mov_b32 v{M+qb}, v{T}
v_and_b32 v{T+1}, 0xffff, v{T+1}
v_xor_b32 v{T+1}, 0x8000, v{T+1}
v_cndmask_b32 v{Q+8*qb+4}, v{Q+8*qb+4}, v{T+1}, s[50:51]''')
        for i in range(16): k(f'v_sub_f32 v{cur+i}, v{cur+i}, v{T+2}')
        k(f'v_sub_f32 v{T+2}, 0, v{T+2}\nv_exp_f32 v{T+2}, v{T+2}')
        for i in range(16): k(f'v_mul_f32 v{O+16*qb+i}, v{O+16*qb+i}, v{T+2}')
        k(f's_branch {B}')
    k(f'''L_b2_done:
v_and_b32 v10, 31, v1
v_lshrrev_b32 v11, 5, v1
v_mul_u32_u24 v10, 1280, v10
v_lshl_add_u32 v10, v11, 3, v10
s_mul_i32 s34, s43, 40
s_mul_i32 s35, s45, {32*1280}
s_add_u32 s34, s34, s35
s_add_u32 s34, s34, {OB}''')
    for qb in range(4):
        o = O + 16*qb
        k(f'''v_mov_b32 v{T}, v{o+8}
v_mov_b32 v{T+1}, v{o+8}
v_permlane32_swap_b32 v{T}, v{T+1}
v_rcp_f32 v{T+1}, v{T+1}''')
        for a in range(3):
            for b in range(4): k(f'v_mul_f32 v{o+4*a+b}, v{o+4*a+b}, v{T+1}')
            k(f'v_cvt_pk_bf16_f32 v{P+2*a}, v{o+4*a}, v{o+4*a+1}\nv_cvt_pk_bf16_f32 v{P+2*a+1}, v{o+4*a+2}, v{o+4*a+3}')
        k(f'''buffer_store_dwordx2 {v(P,2)}, v10, {WS}, s34 offen
buffer_store_dwordx2 {v(P+2,2)}, v10, {WS}, s34 offen offset:16
s_mov_b32 exec_hi, 0
buffer_store_dwordx2 {v(P+4,2)}, v10, {WS}, s34 offen offset:32
s_mov_b32 exec_hi, -1
s_add_u32 s34, s34, {32*1280}''')
    k(f'''s_waitcnt vmcnt(0)
s_barrier
s_cmp_lg_u32 s{SW}, 0
s_cbranch_scc1 L_b3
buffer_wbl2 sc1
s_waitcnt vmcnt(0)
s_lshl_b32 s34, s{SC_}, 2
s_add_u32 s34, s34, {F_B2}
v_mov_b32 v10, s34
v_mov_b32 v11, 1
s_mov_b64 exec, 1
buffer_store_dword v11, v10, {WS}, 0 offen sc1
s_mov_b64 exec, -1
L_b3:
s_load_dwordx2 s[4:5], s[0:1], 72
s_load_dwordx2 s[6:7], s[0:1], 80
s_waitcnt lgkmcnt(0)''')
    srd(k, 16, 4, 640*1280)
    srd(k, 24, 6, 2048*2560)
    k(f'''s_mov_b32 s20, s8
s_mov_b32 s21, s9
s_add_u32 s20, s20, {OB}
s_addc_u32 s21, s21, 0
s_mov_b32 s22, {2048*1280}
s_mov_b32 s23, 0x20000
v_lshlrev_b32 v10, 2, v1
v_add_u32 v10, {F_B2}, v10
s_mov_b32 s36, 1''')
    flag_wait(k, 'b2w', 10, 64, 36)
    k(f'''s_and_b32 s43, s{SC_}, 3
s_lshr_b32 s34, s{SC_}, 2
s_lshl_b32 s47, s34, 2
s_mul_i32 s46, s43, 320''')
    def ep3(t):
        if t == 'nst': return 4
        if t == 'setup':
            k(f'''v_and_b32 v12, 31, v1
v_lshrrev_b32 v13, 5, v1
v_mul_u32_u24 v12, 2560, v12
v_lshl_add_u32 v12, v13, 3, v12
s_mul_i32 s34, s43, 320
s_lshl_b32 s35, s{SW}, 6
s_add_u32 s34, s34, s35
s_add_u32 s34, s34, 1280
v_add_u32 v8, s34, v12''')
            return
        for n in range(8): k(f'v_cvt_pk_bf16_f32 v{224+n}, v{ACC+2*n}, v{ACC+2*n+1}')
        k(f's_add_u32 s34, s40, s47\ns_mul_i32 s34, s34, {32*2560}')
        for a in range(4): k(f'buffer_store_dwordx2 {v(224+2*a,2)}, v8, s[24:27], s34 offen offset:{16*a}')
    stat_gemm(k, 'b3', 64, 1280, 's[20:23]', ' sc1', 4, 'O', ep3, 5)
    k('s_branch L_end')
```

```python
import re

def v(n, c=1):
    return f'v{n}' if c == 1 else f'v[{n}:{n+c-1}]'
def s(n, c=1):
    return f's{n}' if c == 1 else f's[{n}:{n+c-1}]'

_REG = re.compile(r'^(-?\|?)?(?:abs\()?([vsa])(?:(\d+)|\[(\d+):(\d+)\])')
def regs_of(tok):
    tok = tok.strip()
    t = tok.lstrip('-').strip('|')
    if t in ('vcc', 'vcc_lo', 'vcc_hi'): return {('s', 106), ('s', 107)}
    if t in ('exec', 'exec_lo', 'exec_hi'): return {('s', 126), ('s', 127)}
    if t == 'm0': return {('s', 124)}
    m = re.match(r'^([vsa])(\d+)$', t)
    if m: return {(m.group(1), int(m.group(2)))}
    m = re.match(r'^([vsa])\[(\d+):(\d+)\]$', t)
    if m: return {(m.group(1), i) for i in range(int(m.group(2)), int(m.group(3)) + 1)}
    return set()

VCC = {('s', 106), ('s', 107)}
EXEC = {('s', 126), ('s', 127)}
TRANS = ('v_exp_f32', 'v_log_f32', 'v_rcp_f32', 'v_rsq_f32', 'v_sqrt_f32', 'v_sin_f32', 'v_cos_f32', 'v_rcp_iflag_f32')

def is_trans(mn):
    return any(mn == t or mn.startswith(t + '_') for t in TRANS)

class Ins:
    __slots__ = ('text', 'mn', 'ops', 'w', 'r', 'kind', 'passes', 'srcA', 'srcB', 'srcC', 'label', 'target', 'nop', 'dpp', 'stdata', 'sgpr_addr', 'lanesel', 'const_s')
    def __init__(self, text):
        self.text = text
        self.label = None; self.target = None; self.nop = 0; self.passes = 0
        self.w = set(); self.r = set(); self.srcA = set(); self.srcB = set(); self.srcC = set()
        self.dpp = False; self.stdata = set(); self.sgpr_addr = set(); self.lanesel = set(); self.const_s = set()
        t = text.split(';')[0].strip()
        if t.endswith(':'):
            self.kind = 'label'; self.label = t[:-1]; self.mn = ''; self.ops = []; return
        if not t or t.startswith('.'):
            self.kind = 'dir'; self.mn = ''; self.ops = []; return
        parts = t.split(None, 1)
        mn = parts[0]; self.mn = mn
        rest = parts[1] if len(parts) > 1 else ''
        ops = []
        depth = 0; cur = ''
        for ch in rest:
            if ch in '[(': depth += 1
            if ch in '])': depth -= 1
            if ch == ',' and depth == 0:
                ops.append(cur.strip()); cur = ''
            else: cur += ch
        if cur.strip(): ops.append(cur.strip())
        mods = ''
        if ops:
            last = ops[-1].split()
            ops[-1] = last[0]; mods = ' '.join(last[1:])
        self.ops = ops
        R = [regs_of(o) for o in ops]
        if mn.startswith('s_'):
            self.kind = 'salu'
            if mn == 's_nop': self.nop = int(ops[0], 0) + 1; self.kind = 'nop'; return
            if mn.startswith('s_cbranch') or mn == 's_branch':
                self.kind = 'branch'; self.target = ops[0]
                if 'vcc' in mn: self.r |= VCC
                if 'exec' in mn: self.r |= EXEC
                return
            if mn in ('s_waitcnt', 's_barrier', 's_endpgm', 's_setprio', 's_sleep'): self.kind = 'misc'; return
            if mn.startswith('s_cmp') or mn.startswith('s_bitcmp'):
                for x in R: self.r |= x
                return
            if mn.startswith('s_load') or mn.startswith('s_memtime') or mn.startswith('s_memrealtime') or mn.startswith('s_getreg') or mn.startswith('s_getpc'):
                self.kind = 'smem' if not (mn.startswith('s_getreg') or mn.startswith('s_getpc')) else 'salu'
                self.w |= R[0]
                for x in R[1:]: self.r |= x
                return
            self.w |= R[0]
            for x in R[1:]: self.r |= x
            if 'saveexec' in mn: self.w |= EXEC; self.r |= EXEC
            if mn in ('s_addk_i32', 's_mulk_i32', 's_cmov_b32'): self.r |= R[0]
            return
        if mn.startswith('v_mfma') or mn.startswith('v_smfmac'):
            self.kind = 'mfma'
            self.w |= R[0]; self.srcA = R[1]; self.srcB = R[2]
            if mn.startswith('v_smfmac'):
                self.srcC = set(R[0]); self.srcB = R[2] | R[3]
                self.passes = 8 if '32x32' in mn else 4
            else:
                self.srcC = R[3]
                self.passes = 8 if '32x32' in mn else 4
            self.r = self.srcA | self.srcB | self.srcC
            return
        if mn.startswith('buffer_') or mn.startswith('global_'):
            self.kind = 'vmem'
            if mn in ('buffer_inv', 'buffer_wbl2'): return
            lds = ' lds' in (' ' + mods)
            if mn.startswith('buffer_load'):
                if lds:
                    self.r |= R[0]; self.sgpr_addr = R[1] | R[2]; self.r |= {('s', 124)}
                else:
                    self.w |= R[0]; self.r |= R[1]; self.sgpr_addr = R[2] | R[3]
                    if 'd16' in mn: self.r |= R[0]
            elif mn.startswith('buffer_store') or mn.startswith('buffer_atomic'):
                self.r |= R[0] | R[1]; self.sgpr_addr = R[2] | R[3]
                if mn.startswith('buffer_atomic') and 'sc0' in mods: self.w |= R[0]
                if mn.endswith('x3') or mn.endswith('x4'): self.stdata = R[0]
            else:
                raise ValueError('unhandled vmem ' + text)
            self.r |= self.sgpr_addr
            return
        if mn.startswith('ds_'):
            self.kind = 'ds'
            if mn.startswith('ds_read') or '_rtn_' in mn or mn.startswith('ds_bpermute') or mn.startswith('ds_swizzle') or mn.startswith('ds_permute'):
                self.w |= R[0]
                for x in R[1:]: self.r |= x
            else:
                for x in R: self.r |= x
            return
        if mn.startswith('v_'):
            self.kind = 'valu'
            self.dpp = ('quad_perm' in mods or 'row_' in mods or 'wave_' in mods or mn.endswith('_dpp'))
            if mn.startswith('v_cmp'):
                self.w |= R[0]
                for x in R[1:]: self.r |= x
            elif mn.startswith('v_readfirstlane') or mn.startswith('v_readlane'):
                self.w |= R[0]; self.r |= R[1]
                if len(R) > 2: self.lanesel = R[2]; self.r |= R[2]
            elif mn.startswith('v_writelane'):
                self.w |= R[0]; self.r |= R[0] | R[1]
                self.lanesel = R[2]; self.r |= R[2]
            elif 'permlane' in mn and 'swap' in mn:
                self.w |= R[0] | R[1]; self.r |= R[0] | R[1]
            elif mn.startswith('v_add_co') or mn.startswith('v_sub_co') or mn.startswith('v_addc_co'):
                self.w |= R[0] | R[1]
                for x in R[2:]: self.r |= x
            else:
                self.w |= R[0]
                for x in R[1:]: self.r |= x
                if mn.startswith('v_fmac') or self.dpp or mn.startswith('v_pk_fmac') or mn.startswith('v_dot2c'): self.r |= R[0]
                if mn.startswith('v_cndmask') and not any(o.startswith('s[') or o == 'vcc' for o in ops[3:4]): self.r |= VCC
            self.const_s = {x for x in self.r if x[0] == 's'}
            return
        raise ValueError('cannot classify: ' + text)

def vg(rs): return {x for x in rs if x[0] in 'va'}
def sg(rs): return {x for x in rs if x[0] == 's'}

def need(p, c):
    n = 0
    pw = p.w
    if p.kind == 'valu':
        pv = vg(pw); ps = sg(pw)
        if pv:
            if c.kind == 'mfma' and pv & c.r: n = max(n, 2)
            if c.kind == 'valu':
                if c.dpp and pv & c.r: n = max(n, 2)
                if 'permlane' in c.mn and pv & c.r: n = max(n, 2)
                if (c.mn.startswith('v_readfirstlane') or c.mn.startswith('v_readlane')) and pv & c.r: n = max(n, 1)
                if is_trans(p.mn) and pv & c.r and not is_trans(c.mn): n = max(n, 1)
                if is_trans(p.mn) and pv & c.r: n = max(n, 1)
            if is_trans(p.mn) and c.kind in ('vmem', 'ds') and pv & c.r: n = max(n, 1)
        if ps:
            if c.kind == 'vmem' and ps & c.sgpr_addr: n = max(n, 5)
            if c.kind == 'valu':
                if ps & c.lanesel: n = max(n, 4)
                if ps & c.const_s: n = max(n, 2)
            if c.kind in ('salu', 'smem') and ps & c.r: n = max(n, 4)
            if c.kind == 'branch' and ps & c.r: n = max(n, 0)
            if ps & EXEC:
                if c.kind == 'mfma': n = max(n, 4)
                if c.kind == 'valu' and c.dpp: n = max(n, 5)
    if p.kind == 'mfma':
        P = p.passes
        d = vg(pw)
        if c.kind == 'mfma':
            if d & c.srcC:
                if c.srcC == d and c.passes == p.passes and c.mn[:8] == p.mn[:8]: pass
                elif c.srcC == d and c.passes == p.passes: n = max(n, 2)
                else: n = max(n, {4: 6, 8: 10}[P])
            if d & (c.srcA | c.srcB): n = max(n, {4: 8, 8: 12}[P])
        elif c.kind in ('valu', 'vmem', 'ds'):
            if d & (c.r | c.w): n = max(n, {4: 8, 8: 12}[P])
        if c.kind == 'valu' and (p.srcC & vg(c.w)): n = max(n, {4: 3, 8: 7}[P])
    if p.kind == 'vmem' and p.stdata:
        if c.kind == 'valu' and p.stdata & c.w: n = max(n, 2)
        elif p.stdata & c.w: n = max(n, 1)
    if p.kind == 'salu':
        if ('s', 124) in pw and c.kind == 'vmem' and ('s', 124) in c.r: n = max(n, 1)
        if ('s', 124) in pw and c.kind == 'valu' and ('s', 124) in c.lanesel: n = max(n, 1)
        if pw & EXEC and c.kind == 'valu' and c.dpp: n = max(n, 1)
    return n

MAXW = 20
def pad_hazards(lines):
    ins = [Ins(t) for t in lines]
    total = 0
    def index():
        labels = {x.label: i for i, x in enumerate(ins) if x.kind == 'label'}
        srcs = {}
        for i, x in enumerate(ins):
            if x.kind == 'branch':
                if x.target not in labels: raise ValueError('undefined label ' + x.target)
                srcs.setdefault(labels[x.target], []).append(i)
        return srcs
    changed = True
    while changed:
        changed = False
        srcs = index()
        def preds(i):
            out = []
            if i > 0:
                q = ins[i-1]
                if not (q.kind == 'branch' and q.mn == 's_branch') and q.mn != 's_endpgm': out.append(i-1)
            if ins[i].kind == 'label': out += srcs.get(i, [])
            return out
        j = 0
        while j < len(ins):
            c = ins[j]
            if c.kind in ('label', 'dir', 'nop', 'misc'):
                j += 1; continue
            worst = 0
            stack = [(p, 0) for p in preds(j)]
            seen = {}
            while stack:
                i, dist = stack.pop()
                if dist >= MAXW or seen.get(i, 99) <= dist: continue
                seen[i] = dist
                p = ins[i]
                if p.kind in ('label', 'dir'):
                    stack += [(q, dist) for q in preds(i)]; continue
                if p.kind != 'nop':
                    r = need(p, c)
                    if r > dist: worst = max(worst, r - dist)
                step = p.nop if p.kind == 'nop' else 1
                stack += [(q, dist + step) for q in preds(i)]
            if worst:
                k = worst; add = []
                while k > 0:
                    m = min(k, 16); add.append(Ins(f's_nop {m-1}')); k -= m
                ins[j:j] = add
                total += worst
                changed = True
                srcs = index()
                j += len(add)
            j += 1
    return [x.text for x in ins], total

class Kern:
    def __init__(self): self.L = []; self.uid = 0
    def __call__(self, text):
        for t in text.split('\n'):
            t = t.rstrip()
            if t.strip(): self.L.append(t if t.strip().endswith(':') else '  ' + t.strip())
    def lab(self, base):
        self.uid += 1; return f'{base}_{self.uid}'
    def text(self):
        out, n = pad_hazards(self.L)
        return out, n
```

```python
import numpy as np
NAME = 'concat_heads__memory_aug_recurrent_mem_tr__mha_block__prompt_kernel'
WS_BYTES = 0x10000000
F_PROJ = 0x0000
F_KVM  = 0x0400
F_KV0  = 0x0600
F_O    = 0x1000
F_B1   = 0x4000
F_B2   = 0x4400
MEMR = 0x20000
QKVR = 0x80000
PART = 0x200000
CLR_BYTES = 0x400000
KX   = 0x1000000
VX   = 0x2000000
QX   = 0x3000000
OX   = 0x4000000
KVMP = 0x5000000
KB   = 0x6000000
VB   = 0x6400000
OB   = 0x6800000
QB   = 0x6C00000
SENT = 0xFFFFFFFF

def e_perm(ks, g, j):
    return 32*ks + 16*(g//2) + 8*(j//4) + 4*(g % 2) + j % 4
def key_perm(g, j):
    return 4*g + j if j < 4 else 16 + 4*g + (j - 4)
def eo_perm(ks, g, j):
    return 32*ks + 4*g + j if j < 4 else 32*ks + 16 + 4*g + (j - 4)

def kfrag(k):
    out = np.empty((2, 4, 64, 8), dtype=k.dtype)
    for kt in range(2):
        for ks in range(4):
            for l in range(64):
                g, n = l // 16, l % 16
                out[kt, ks, l] = [k[16*kt + n, e_perm(ks, g, j)] for j in range(8)]
    return out
def vfrag(vv):
    out = np.empty((8, 64, 8), dtype=vv.dtype)
    for te in range(8):
        for l in range(64):
            g, n = l // 16, l % 16
            out[te, l] = [vv[key_perm(g, j), 16*te + n] for j in range(8)]
    return out
_KIDX = None
def kfrag_all(k):
    tok = np.empty((2, 4, 64, 8), dtype=np.int64); e = np.empty_like(tok)
    for kt in range(2):
        for ks in range(4):
            for l in range(64):
                for j in range(8):
                    tok[kt, ks, l, j] = 16*kt + l % 16; e[kt, ks, l, j] = e_perm(ks, l // 16, j)
    return k[..., tok.ravel(), e.ravel()]
def vfrag_all(vv):
    tok = np.empty((8, 64, 8), dtype=np.int64); e = np.empty_like(tok)
    for te in range(8):
        for l in range(64):
            for j in range(8):
                tok[te, l, j] = key_perm(l // 16, j); e[te, l, j] = 16*te + l % 16
    return vv[..., tok.ravel(), e.ravel()]
def qkv_block_index():
    idx = np.empty((3072, 3), dtype=np.int64)
    for ks in range(4):
        for l in range(64):
            g, n = l // 16, l % 16
            for j in range(8):
                idx[ks*512 + l*8 + j] = (0 if n < 8 else 1, n % 8, e_perm(ks, g, j))
    for u in range(2):
        for l in range(64):
            gg, e16, lo = (l // 16) % 2, l % 16, l < 32
            for pr in range(2):
                te = 4*u + 2*pr + (1 if lo else 0)
                for j in range(4):
                    idx[2048 + u*512 + l*8 + pr*4 + j] = (2, 4*gg + (0, 2, 1, 3)[j], 16*te + e16)
    return idx
def mem_frag_index():
    idx = np.empty((5120, 2), dtype=np.int64)
    for ks in range(10):
        for l in range(64):
            ga, r16 = l // 16, l % 16
            for j in range(8):
                q, p = j // 2, j % 2
                idx[ks*512 + l*8 + j] = (r16 % 8, 64*ks + 16*ga + 4*q + p + (2 if r16 >= 8 else 0))
    return idx
```

```python
from dsl import v, s
from layout import *
WS = 's[8:11]'
SX, SR, SW, SLIM = 28, 29, 30, 33
PW, ACC, XF, STG = 16, 176, 192, 204
XBUF = 41472

def srd(k, base, ptr, nbytes):
    k(f'''s_mov_b32 s{base}, s{ptr}
s_and_b32 s{base+1}, s{ptr+1}, 0xffff
s_mov_b32 s{base+2}, {nbytes:#x}
s_mov_b32 s{base+3}, 0x20000''')

def proj_role(k):
    SP, SM_, SHP, SSEG, SOUT, SFLAG = 41, 42, 43, 40, 44, 45
    k(f'''
L_proj:
s_lshr_b32 s{SM_}, s{SP}, 4
s_and_b32 s{SHP}, s{SP}, 15
s_lshl_b32 s34, s{SM_}, 3
s_add_u32 s34, s34, 16
s_load_dwordx2 s[4:5], s[0:1], s34
s_load_dwordx2 s[6:7], s[0:1], 0
s_waitcnt lgkmcnt(0)''')
    srd(k, 16, 4, 640*8192)
    srd(k, 20, 6, 2048*1280)
    k('v_lshlrev_b32 v2, 4, v0')
    for i in range(5):
        k(f'''v_add_u32 v10, {512*i}, v0
v_mul_u32_u24 v11, 52429, v10
v_lshrrev_b32 v11, 22, v11
v_add_u32 v11, v11, v10
v_lshlrev_b32 v{3+i}, 4, v11''')
    for i in range(5):
        k(f's_mov_b32 s34, {i*8192}\nbuffer_load_dwordx4 {v(STG+4*i,4)}, v2, s[20:23], s34 offen')
    k(f'''v_lshrrev_b32 v10, 5, v0
v_and_b32 v11, 31, v0
v_lshlrev_b32 v12, 13, v10
v_lshl_add_u32 v12, v11, 4, v12
s_lshl_b32 s34, s{SHP}, 9
v_add_u32 v12, s34, v12
v_and_b32 v13, 3, v10
v_lshlrev_b32 v13, 1, v13
v_lshrrev_b32 v14, 1, v11
v_add_u32 v13, v13, v14
v_and_b32 v13, 15, v13
v_lshlrev_b32 v13, 5, v13
v_and_b32 v14, 1, v11
v_lshl_add_u32 v13, v14, 4, v13
v_lshl_add_u32 v13, v10, 9, v13
v_lshrrev_b32 v10, 4, v1
v_lshrrev_b32 v11, 1, v10             ; g2
v_and_b32 v10, 1, v10                 ; nh
v_bfe_u32 v14, v1, 2, 2               ; rr
v_lshl_add_u32 v11, v11, 3, v14
v_lshlrev_b32 v11, 9, v11
v_lshl_add_u32 v10, v14, 1, v10
s_lshl_b32 s34, s{SW}, 1
v_add_u32 v10, s34, v10
v_and_b32 v10, 15, v10
v_lshl_add_u32 v11, v10, 5, v11
v_and_b32 v10, 3, v1
v_lshl_add_u32 v14, v10, 3, v11''')
    WST = 96
    for half in range(2):
        base = 96 if half == 0 else 176 + 48
        if half == 0:
            for c in range(5):
                for kk in range(4):
                    k(f's_mov_b32 s34, {(64*c + 16*kk)*8192}\nbuffer_load_dwordx4 {v(96+16*c+4*kk,4)}, v12, s[16:19], s34 offen')
            for c in range(5):
                buf = (c % 2)*32768
                k(f's_waitcnt vmcnt({16 - 4*c})')
                for kk in range(4): k(f'ds_write_b128 v13, {v(96+16*c+4*kk,4)} offset:{buf + kk*8192}')
                k('s_waitcnt lgkmcnt(0)\ns_barrier')
                for ksl in range(4):
                    for hh in range(2):
                        k(f'ds_read_b64_tr_b16 {v(PW + 4*(4*c+ksl) + 2*hh, 2)}, v14 offset:{buf + ksl*8192 + hh*2048}')
                k('s_waitcnt lgkmcnt(0)')
        else:
            order = list(range(5, 10))
            def ld(c):
                for kk in range(4):
                    k(f's_mov_b32 s34, {(64*c + 16*kk)*8192}\nbuffer_load_dwordx4 {v(224+16*(c%2)+4*kk,4)}, v12, s[16:19], s34 offen')
            ld(5); ld(6)
            for c in order:
                buf = (c % 2)*32768
                k(f's_waitcnt vmcnt({4 if c < 9 else 0})')
                for kk in range(4): k(f'ds_write_b128 v13, {v(224+16*(c%2)+4*kk,4)} offset:{buf + kk*8192}')
                k('s_waitcnt lgkmcnt(0)')
                if c + 2 <= 9: ld(c + 2)
                k('s_barrier')
                for ksl in range(4):
                    for hh in range(2):
                        k(f'ds_read_b64_tr_b16 {v(PW + 4*(4*c+ksl) + 2*hh, 2)}, v14 offset:{buf + ksl*8192 + hh*2048}')
                k('s_waitcnt lgkmcnt(0)')
    k('s_barrier')
    k(f'''s_lshr_b32 s34, s{SW}, 2
s_lshl_b32 s35, s{SHP}, 1
s_add_u32 s34, s34, s35               ; head
s_lshl_b32 s34, s34, 13
s_and_b32 s35, s{SW}, 3               ; e group
v_lshrrev_b32 v10, 5, v1              ; hi
v_and_b32 v11, 15, v1
v_lshl_add_u32 v11, v10, 4, v11
v_lshlrev_b32 v11, 4, v11
v_bfe_u32 v10, v1, 4, 1
s_cmp_eq_u32 s{SM_}, 2
s_cbranch_scc1 L_pj_ov
s_lshl_b32 s35, s35, 10
v_lshl_add_u32 v11, v10, 12, v11
s_branch L_pj_od
L_pj_ov:
s_lshl_b32 s35, s35, 11
v_lshl_add_u32 v11, v10, 10, v11
L_pj_od:
s_add_u32 s34, s34, s35
v_add_u32 v8, s34, v11
s_add_u32 s35, s{SM_}, 2
s_cmp_eq_u32 s{SM_}, 0
s_cselect_b32 s35, 3, s{SM_}
s_lshl_b32 s{SOUT}, s35, 24
s_lshl_b32 s{SFLAG}, s{SP}, 2
v_and_b32 v10, 31, v1
v_mul_u32_u24 v10, 1296, v10
v_lshrrev_b32 v11, 5, v1
v_lshl_add_u32 v9, v11, 4, v10
s_waitcnt vmcnt(0)''')
    for i in range(5): k(f'ds_write_b128 v{3+i}, {v(STG+4*i,4)}')
    k('s_waitcnt lgkmcnt(0)')
    for i in range(5):
        k(f's_mov_b32 s34, {40960 + i*8192}\nbuffer_load_dwordx4 {v(STG+4*i,4)}, v2, s[20:23], s34 offen')
    k(f's_mov_b32 s{SSEG}, 0\ns_waitcnt vmcnt(0)\ns_barrier\ns_cmp_eq_u32 s{SM_}, 2\ns_cbranch_scc1 L_pj_loopV')
    for typ in ('K', 'V'):
        k(f'''L_pj_loop{typ}:
s_and_b32 s34, s{SSEG}, 1
s_mul_i32 s35, s34, {XBUF}
v_add_u32 v10, s35, v9
s_xor_b32 s34, s34, 1
s_mul_i32 s35, s34, {XBUF}
s_cmp_ge_u32 s{SSEG}, 63
s_cbranch_scc1 L_pj_nost{typ}''')
        for i in range(5):
            k(f'v_add_u32 v11, s35, v{3+i}\nds_write_b128 v11, {v(STG+4*i,4)}')
        k(f'''s_waitcnt lgkmcnt(0)
s_cmp_ge_u32 s{SSEG}, 62
s_cbranch_scc1 L_pj_nost{typ}
s_add_u32 s34, s{SSEG}, 2
s_mul_i32 s34, s34, 40960''')
        for i in range(5):
            k(f'buffer_load_dwordx4 {v(STG+4*i,4)}, v2, s[20:23], s34 offen')
            if i < 4: k('s_add_u32 s34, s34, 8192')
        k(f'L_pj_nost{typ}:')
        for i in range(2): k(f'ds_read_b128 {v(XF+4*i,4)}, v10 offset:{i*32}')
        for ks in range(40):
            if ks + 2 < 40: k(f'ds_read_b128 {v(XF+4*((ks+2)%3),4)}, v10 offset:{(ks+2)*32}')
            k(f's_waitcnt lgkmcnt({2 if ks + 2 < 40 else (1 if ks + 1 < 40 else 0)})')
            c = '0' if ks == 0 else v(ACC, 16)
            w, x = v(PW+4*ks, 4), v(XF+4*(ks % 3), 4)
            k(f'v_mfma_f32_32x32x16_bf16 {v(ACC,16)}, {w if typ == "K" else x}, {x if typ == "K" else w}, {c}')
        dst = {}
        if typ == 'K':
            for a in range(4):
                for h in range(2): dst[(a, h)] = XF + 2*a + h if a < 4 else 0
        order = [(0, 0), (0, 1), (1, 0), (1, 1), (2, 0), (2, 1), (3, 0), (3, 1)] if typ == 'K' else [(0, 0), (0, 1), (2, 0), (2, 1), (1, 0), (1, 1), (3, 0), (3, 1)]
        for n, (a, h) in enumerate(order):
            k(f'v_cvt_pk_bf16_f32 v{224+n}, v{ACC+4*a+2*h}, v{ACC+4*a+2*h+1}')
        k(f'''s_lshl_b32 s34, s{SSEG}, 18
s_add_u32 s34, s34, s{SOUT}
buffer_store_dwordx4 v[224:227], v8, {WS}, s34 offen sc1
buffer_store_dwordx4 v[228:231], v8, {WS}, s34 offen offset:512 sc1
s_cmp_lt_u32 s{SSEG}, 2
s_cbranch_scc1 L_pj_now{typ}
s_cmp_eq_u32 s{SSEG}, 63
s_cbranch_scc1 L_pj_now{typ}
s_waitcnt vmcnt(2)
s_mov_b32 s35, s{SSEG}
s_branch L_pj_fl{typ}
L_pj_now{typ}:
s_waitcnt vmcnt(0)
s_add_u32 s35, s{SSEG}, 1
L_pj_fl{typ}:
s_barrier
s_cmp_lg_u32 s{SW}, 0
s_cbranch_scc1 L_pj_nf{typ}
v_mov_b32 v11, s{SFLAG}
v_mov_b32 v12, s35
s_mov_b64 exec, 1
buffer_store_dword v12, v11, {WS}, 0 offen sc1
s_mov_b64 exec, -1
L_pj_nf{typ}:
s_add_u32 s{SSEG}, s{SSEG}, 1
s_cmp_lt_u32 s{SSEG}, 64
s_cbranch_scc1 L_pj_loop{typ}
s_branch L_end''')
```

```python
import sys, math, struct
from dsl import Kern, v, s
from layout import *
from proj import proj_role
from attout import att_role, out_role
from brole import b_role

def f32bits(x): return struct.unpack('<I', struct.pack('<f', x))[0]

WS, DBG = 's[8:11]', 's[12:15]'
SX, SR, SW, SSLOW, SPAR, SLIM = 28, 29, 30, 31, 32, 33
SSTEP = 40
POLL_LIMIT = 1 << 17

def srd(k, base, ptr, nbytes):
    k(f'''s_mov_b32 s{base}, s{ptr}
s_and_b32 s{base+1}, s{ptr+1}, 0xffff
s_mov_b32 s{base+2}, {nbytes:#x}
s_mov_b32 s{base+3}, 0x20000''')

def poll(k, name, loads, check, cnt=39, sleep=0):
    L, D = k.lab(name), k.lab(name + 'd')
    k(f's_mov_b32 s{cnt}, 0\n{L}:')
    loads()
    k('s_waitcnt vmcnt(0)')
    check()
    k(f's_cbranch_vccz {D}')
    if sleep: k(f's_sleep {sleep}')
    k(f'''s_add_u32 s{cnt}, s{cnt}, 1
s_cmp_lt_u32 s{cnt}, s{SLIM}
s_cbranch_scc1 {L}
s_mov_b32 s{SLIM}, 0
{D}:''')

def umax_check(k, regs, tmp):
    r = list(regs)
    if len(r) == 1:
        k(f'v_cmp_eq_u32 vcc, -1, v{r[0]}'); return
    if len(r) == 2:
        k(f'v_max_u32 v{tmp}, v{r[0]}, v{r[1]}'); r = []
    else:
        k(f'v_max3_u32 v{tmp}, v{r[0]}, v{r[1]}, v{r[2]}'); r = r[3:]
    while len(r) >= 2:
        k(f'v_max3_u32 v{tmp}, v{tmp}, v{r[0]}, v{r[1]}'); r = r[2:]
    if r: k(f'v_max_u32 v{tmp}, v{tmp}, v{r[0]}')
    k(f'v_cmp_eq_u32 vcc, -1, v{tmp}')

def start_phase(k, keepflags=False):
    k(f'''
s_cmp_ge_u32 s2, 256
s_cbranch_scc1 L_end
s_load_dwordx4 s[4:7], s[0:1], 88
s_getreg_b32 s34, hwreg(HW_REG_XCC_ID)
s_and_b32 s34, s34, 15
v_and_b32 v1, 63, v0
v_lshrrev_b32 v2, 6, v0
v_readfirstlane_b32 s{SW}, v2
s_waitcnt lgkmcnt(0)''')
    srd(k, 8, 6, WS_BYTES)
    srd(k, 12, 4, 256)
    k(f'''
s_mov_b32 s{SLIM}, {POLL_LIMIT}
v_mov_b32 v9, 0
s_add_u32 s35, s2, 128
s_and_b32 s35, s35, 255
s_lshl_b32 s35, s35, 14
s_cmp_lt_u32 s35, 0x10000
s_cselect_b32 s36, 0, -1
v_mov_b32 v4, s36
v_mov_b32 v5, s36
v_mov_b32 v6, s36
v_mov_b32 v7, s36
v_lshlrev_b32 v2, 4, v0
s_add_u32 s36, s35, 8192
{'s_cmp_lt_u32 s35, 0x10000' if keepflags else ''}
{'s_cbranch_scc1 L_st_noclr' if keepflags else ''}
buffer_store_dwordx4 v[4:7], v2, {WS}, s35 offen sc1
buffer_store_dwordx4 v[4:7], v2, {WS}, s36 offen sc1
L_st_noclr:
s_waitcnt vmcnt(0)
s_barrier
s_cmp_lg_u32 s{SW}, 0
s_cbranch_scc1 L_st_wait
s_mov_b64 s[70:71], exec
s_mov_b64 exec, 1
s_cmp_lg_u32 s2, 0
s_cbranch_scc1 L_st_nocal
s_mov_b32 s36, 0
s_mov_b32 s37, 0''')
    for par in range(2):
        for i in range(3):
            k(f'''v_mov_b32 v8, {PART + par*8192 + i*256:#x}
s_memtime s[40:41]
s_waitcnt lgkmcnt(0)
buffer_load_dword v9, v8, {WS}, 0 offen sc1
s_waitcnt vmcnt(0)
s_memtime s[42:43]
s_waitcnt lgkmcnt(0)
s_sub_u32 s38, s42, s40
s_add_u32 s{36+par}, s{36+par}, s38''')
    k(f'''
s_cmp_lt_u32 s36, s37
s_cselect_b32 s38, 0, 1
s_cmp_ge_u32 s34, 4
s_cselect_b32 s39, 1, 0
s_xor_b32 s38, s38, s39
s_add_u32 s38, s38, 1
v_mov_b32 v9, s38
v_mov_b32 v8, 64
buffer_store_dword v9, v8, {DBG}, 0 offen sc1
s_waitcnt vmcnt(0)
L_st_nocal:
s_lshl_b32 s35, s34, 2
v_mov_b32 v8, s35
v_mov_b32 v9, 1
buffer_atomic_add v9, v8, {DBG}, 0 offen sc0
s_waitcnt vmcnt(0)
v_readfirstlane_b32 s{SR}, v9
s_mov_b64 exec, s[70:71]
v_lshlrev_b32 v8, 2, v1
s_mov_b32 s39, 0
L_st_poll:
buffer_load_dword v9, v8, {DBG}, 0 offen sc1
s_waitcnt vmcnt(0)
s_mov_b32 s36, 0
s_mov_b32 s37, 0
s_mov_b32 s{SSLOW}, 0''')
    for i in range(16):
        k(f'''v_readlane_b32 s38, v9, {i}
s_add_u32 s36, s36, s38
s_cmp_gt_u32 s34, {i}
s_cselect_b32 s35, s38, 0
s_add_u32 s37, s37, s35''')
        if i < 8:
            k(f's_cmp_eq_u32 s38, 32\ns_cselect_b32 s35, 0, 1\ns_or_b32 s{SSLOW}, s{SSLOW}, s35')
    k(f'''v_readlane_b32 s38, v9, 16
s_cmp_eq_u32 s36, 256
s_cselect_b32 s35, s38, 0
s_cmp_lg_u32 s35, 0
s_cbranch_scc1 L_st_got
s_sleep 4
s_add_u32 s39, s39, 1
s_cmp_lt_u32 s39, s{SLIM}
s_cbranch_scc1 L_st_poll
s_mov_b32 s{SLIM}, 0
s_mov_b32 s38, 1
L_st_got:
s_add_u32 s37, s37, s{SR}
s_sub_u32 s38, s38, 1
s_lshl_b32 s38, s38, 13
v_mov_b32 v4, s37
v_mov_b32 v5, s{SSLOW}
v_mov_b32 v6, s38
v_mov_b32 v7, s{SLIM}
v_mov_b32 v8, 0
ds_write_b128 v8, v[4:7]
s_waitcnt lgkmcnt(0)
L_st_wait:
s_barrier
v_mov_b32 v8, 0
ds_read_b128 v[4:7], v8
s_waitcnt lgkmcnt(0)
v_readfirstlane_b32 s37, v4
v_readfirstlane_b32 s{SSLOW}, v5
v_readfirstlane_b32 s{SPAR}, v6
v_readfirstlane_b32 s{SLIM}, v7
s_and_b32 s37, s37, 255
s_lshr_b32 s{SX}, s37, 5
s_and_b32 s{SR}, s37, 31
s_barrier''')

L_KV, L_MEMF, L_RED = 0, 65536, 65536 + 10240
V_MF = 10
V_MW = 11
VLANE16 = 2
V_A3 = 3
V_A4 = 4
V_A5 = 5
V_A6 = 6
V_A7 = 7
V_A9 = 9
V_IDX = 15
WO, KXR, VXR, QK, VM, S0, S1, SM = 16, 80, 112, 144, 160, 168, 172, 176
PX, PM, PM2, O, OB, OA, NEG = 180, 184, 186, 192, 224, 144, 240
W1, MF, DA, DB = 16, 176, 216, 220
S_HEAD, S_M, S_I, S_G, S_GI = 41, 42, 43, 44, 45
S_MEMN, S_MEMN4, S_MEMN8, S_MEMZ = 46, 47, 48, 49
S_QC, S_QC4, S_QZ = 50, 51, 52
S_PC, S_PZ = 53, 54
S_KP = 55
S_KXN, S_VXN = 56, 57
S_AVAIL = 58
S_KP4 = 59
M_LO8, M_EVEN, M_ODD = 72, 74, 76
S_C, S_NC = 78, 79

def chain_offsets(k, part):
    if 'q' in part:
        k(f"""s_and_b32 s34, s{SSTEP}, 3
s_mul_i32 s{S_QC}, s34, 196608
s_add_u32 s{S_QC}, s{S_QC}, {QKVR}""")
    if 'r' in part:
        k(f"""s_and_b32 s34, s{SSTEP}, 3
s_add_u32 s{S_QC4}, s{S_QC}, 4096
s_mul_i32 s{S_PC}, s34, {8*3*16384}
s_add_u32 s{S_PC}, s{S_PC}, {PART}
s_add_u32 s{S_PC}, s{S_PC}, s{SPAR}
s_add_u32 s35, s{SSTEP}, 2
s_and_b32 s35, s35, 3
s_mul_i32 s{S_QZ}, s35, 196608
s_add_u32 s{S_QZ}, s{S_QZ}, {QKVR}
s_mul_i32 s{S_PZ}, s35, {8*3*16384}
s_add_u32 s{S_PZ}, s{S_PZ}, {PART}
s_add_u32 s{S_PZ}, s{S_PZ}, s{SPAR}
s_mul_i32 s36, s{SX}, 10240
s_add_u32 s36, s36, {MEMR}
s_add_u32 s35, s{SSTEP}, 1
s_and_b32 s35, s35, 3
s_mul_i32 s{S_MEMN}, s35, 40960
s_add_u32 s{S_MEMN}, s{S_MEMN}, s36
s_add_u32 s{S_MEMN4}, s{S_MEMN}, 4096
s_add_u32 s{S_MEMN8}, s{S_MEMN}, 8192
s_add_u32 s35, s{SSTEP}, 3
s_and_b32 s35, s35, 3
s_mul_i32 s{S_MEMZ}, s35, 40960
s_add_u32 s{S_MEMZ}, s{S_MEMZ}, s36
s_mul_i32 s{S_KP}, s{SSTEP}, 196608
s_add_u32 s{S_KP}, s{S_KP}, {KVMP}
s_add_u32 s{S_KP4}, s{S_KP}, 4096
s_add_u32 s35, s{SSTEP}, 1
s_lshl_b32 s35, s35, 18
s_add_u32 s{S_KXN}, s35, {KX}
s_add_u32 s{S_VXN}, s35, {VX}""")

def kv_wait(k, need_sreg):
    D = k.lab('kvok')
    k(f's_cmp_ge_u32 s{S_AVAIL}, s{need_sreg}\ns_cbranch_scc1 {D}')
    L = k.lab('kvp')
    k(f"""s_mov_b32 s39, 0
{L}:
buffer_load_dword v13, v{V_A9}, {WS}, 0 offen sc1
s_waitcnt vmcnt(0)
v_readlane_b32 s34, v13, 0
v_readlane_b32 s35, v13, 1
s_min_u32 s{S_AVAIL}, s34, s35
s_cmp_ge_u32 s{S_AVAIL}, s{need_sreg}
s_cbranch_scc1 {D}
s_sleep 2
s_add_u32 s39, s39, 1
s_cmp_lt_u32 s39, s{SLIM}
s_cbranch_scc1 {L}
s_mov_b32 s{SLIM}, 0
{D}:""")

KVSC = ' sc1'
NOKV = False
def kv_loads(k, skx, svx):
    k(f's_add_u32 s34, s{skx}, 4096\ns_add_u32 s35, s{svx}, 4096')
    for i in range(8):
        k(f'buffer_load_dwordx4 {v(KXR+4*i,4)}, v{V_A4}, {WS}, s{skx if i < 4 else 34} offen offset:{(i%4)*1024}{KVSC}')
    for i in range(8):
        k(f'buffer_load_dwordx4 {v(VXR+4*i,4)}, v{V_A4}, {WS}, s{svx if i < 4 else 35} offen offset:{(i%4)*1024}{KVSC}')

def kv_dma(k, skx, svx):
    for part, sb in ((0, skx), (1, svx)):
        for hlf in range(2):
            k(f's_add_u32 m0, s60, {part*8192 + hlf*4096}')
            k(f's_add_u32 s34, s{sb}, {hlf*4096}')
            for i in range(4):
                k(f'buffer_load_dwordx4 v8, {WS}, s34 offen offset:{i*1024}{KVSC} lds')

def chain_prologue(k):
    k(f"""
L_chain:
; i = R % 12, gi = R / 12, hl = i / 3, m = i % 3
s_cmp_ge_u32 s{SR}, 12
s_cselect_b32 s{S_GI}, 1, 0
s_mul_i32 s34, s{S_GI}, 12
s_sub_u32 s{S_I}, s{SR}, s34
s_mul_i32 s34, s{S_I}, 11
s_lshr_b32 s34, s34, 5
s_mul_i32 s35, s34, 3
s_sub_u32 s{S_M}, s{S_I}, s35
s_lshl_b32 s{S_G}, s{SX}, 1
s_add_u32 s{S_G}, s{S_G}, s{S_GI}
s_lshl_b32 s35, s{S_G}, 2
s_add_u32 s{S_HEAD}, s35, s34
s_lshl_b32 s34, s{S_M}, 3
s_add_u32 s34, s34, 16
s_load_dwordx2 s[4:5], s[0:1], s34
s_load_dwordx2 s[6:7], s[0:1], 40
s_load_dwordx2 s[36:37], s[0:1], 8
s_waitcnt lgkmcnt(0)""")
    srd(k, 16, 4, 640*8192)
    srd(k, 20, 6, 4096*1280)
    srd(k, 24, 36, 8*1280)
    STG = 176
    k(f"""
v_lshlrev_b32 v{VLANE16}, 4, v1
s_mov_b32 s{M_LO8}, 0x00ff00ff
s_mov_b32 s{M_LO8+1}, 0x00ff00ff
s_mov_b32 s{M_EVEN}, 0x55555555
s_mov_b32 s{M_EVEN+1}, 0x55555555
s_mov_b32 s{M_ODD}, 0xaaaaaaaa
s_mov_b32 s{M_ODD+1}, 0xaaaaaaaa
s_mov_b32 s{S_C}, {f32bits(128**-0.5 * math.log2(math.e)):#x}
s_mov_b32 s{S_NC}, {f32bits(-(128**-0.5) * math.log2(math.e)):#x}
v_and_b32 v10, 8, v1
v_cmp_eq_u32 vcc, 0, v10
v_mov_b32 v10, 0xeeee
v_mov_b32 v11, 0x4444
v_cndmask_b32 v{V_IDX}, v10, v11, vcc
v_lshrrev_b32 v10, 4, v0
v_and_b32 v11, 15, v0
v_lshlrev_b32 v12, 13, v10
v_lshl_add_u32 v12, v11, 4, v12
s_lshl_b32 s34, s{S_HEAD}, 8
v_add_u32 v12, s34, v12""")
    for c in range(5):
        for kk in range(4):
            k(f's_mov_b32 s34, {(128*c + 32*kk)*8192}\nbuffer_load_dwordx4 {v(STG+16*c+4*kk,4)}, v12, s[16:19], s34 offen')
    k(f"""
; LDS write address: r*256 + ((c16/2 + f) % 8)*32 + (c16%2)*16, f = 2*(r%4) + ((r>>3)&1)
v_and_b32 v13, 3, v10
v_lshlrev_b32 v13, 1, v13
v_bfe_u32 v14, v10, 3, 1
v_add_u32 v13, v13, v14
v_lshrrev_b32 v14, 1, v11
v_add_u32 v13, v13, v14
v_and_b32 v13, 7, v13
v_lshlrev_b32 v13, 5, v13
v_and_b32 v14, 1, v11
v_lshl_add_u32 v13, v14, 4, v13
v_lshl_add_u32 v13, v10, 8, v13
; transposing read addresses (tiles 2sw, 2sw+1): (8g+rr)*256 + ((te + 2rr + (g&1)) % 8)*32 + 8*(i%4)
v_lshrrev_b32 v10, 4, v1
v_bfe_u32 v11, v1, 2, 2
v_lshl_add_u32 v14, v10, 3, v11
v_lshlrev_b32 v14, 8, v14
v_and_b32 v8, 3, v1
v_lshl_add_u32 v14, v8, 3, v14
v_and_b32 v10, 1, v10
v_lshl_add_u32 v10, v11, 1, v10
s_and_b32 s34, s{SW}, 3
s_lshl_b32 s34, s34, 1
v_add_u32 v10, s34, v10
v_add_u32 v11, 1, v10
v_and_b32 v10, 7, v10
v_and_b32 v11, 7, v11
v_lshl_add_u32 v8, v11, 5, v14
v_lshl_add_u32 v14, v10, 5, v14""")
    for c in range(5):
        buf = (c % 2)*32768
        k(f's_waitcnt vmcnt({16 - 4*c})')
        for kk in range(4):
            k(f'ds_write_b128 v13, {v(STG+16*c+4*kk,4)} offset:{buf + kk*8192}')
        k('s_waitcnt lgkmcnt(0)\ns_barrier')
        sk = k.lab('w1s')
        k(f's_cmp_lt_u32 s{SW}, 4\ns_cbranch_scc1 {sk}')
        for t, ad in ((0, 14), (1, 8)):
            for ksl in range(4):
                for hh in range(2):
                    k(f'ds_read_b64_tr_b16 {v(W1 + 80*t + 4*(4*c+ksl) + 2*hh, 2)}, v{ad} offset:{buf + ksl*8192 + hh*1024}')
            k('s_waitcnt lgkmcnt(0)')
        k(f'{sk}:')
    k('s_barrier')
    k(f"""
s_cmp_ge_u32 s{S_I}, 10
s_cbranch_scc1 L_ch_nowo
v_lshrrev_b32 v10, 3, v0
v_and_b32 v11, 7, v0
v_mul_u32_u24 v12, 1280, v10
v_lshl_add_u32 v12, v11, 4, v12
s_lshl_b32 s34, s{S_G}, 2
s_mul_i32 s34, s34, {128*1280}
s_lshl_b32 s35, s{S_I}, 7
s_add_u32 s34, s34, s35
v_add_u32 v12, s34, v12""")
    for kk in range(8):
        k(f's_mov_b32 s34, {64*kk*1280}\nbuffer_load_dwordx4 {v(192+4*kk,4)}, v12, s[20:23], s34 offen')
    k(f"""
v_lshrrev_b32 v13, 1, v11
v_lshrrev_b32 v14, 1, v10
v_add_u32 v13, v13, v14
v_and_b32 v13, 3, v13
v_lshlrev_b32 v13, 5, v13
v_and_b32 v14, 1, v11
v_lshl_add_u32 v13, v14, 4, v13
v_lshl_add_u32 v13, v10, 7, v13
s_waitcnt vmcnt(0)""")
    for kk in range(8):
        k(f'ds_write_b128 v13, {v(192+4*kk,4)} offset:{kk*8192}')
    k(f"""s_waitcnt lgkmcnt(0)
s_barrier
s_cmp_ge_u32 s{SW}, 4
s_cbranch_scc1 L_ch_wo_done
v_lshrrev_b32 v10, 4, v1
v_bfe_u32 v11, v1, 2, 2
v_lshl_add_u32 v12, v10, 2, v11
s_lshl_b32 s34, s{SW}, 14
v_lshlrev_b32 v13, 7, v12
v_add_u32 v13, s34, v13
v_and_b32 v14, 3, v1
v_lshl_add_u32 v13, v14, 3, v13
v_lshrrev_b32 v12, 1, v12""")
    for ct in range(4):
        k(f'v_add_u32 v14, {ct}, v12\nv_and_b32 v14, 3, v14\nv_lshl_add_u32 v14, v14, 5, v13')
        for ks in range(4):
            for hh in range(2):
                k(f'ds_read_b64_tr_b16 {v(WO + 16*ct + 4*ks + 2*hh, 2)}, v14 offset:{(32*ks + 16*hh)*128}')
        k('s_waitcnt lgkmcnt(0)')
    k(f"""L_ch_wo_done:
s_barrier
L_ch_nowo:
; ---- mem0 -> LDS fragments""")
    for rnd in range(2):
        if rnd == 1: k('v_cmp_gt_u32 vcc, 128, v0\ns_and_saveexec_b64 s[70:71], vcc\ns_cbranch_execz L_ch_m0d')
        k(f"""v_add_u32 v10, {512*rnd}, v0
v_lshrrev_b32 v11, 6, v10
v_bfe_u32 v12, v10, 4, 2
v_and_b32 v13, 7, v10
v_bfe_u32 v14, v10, 3, 1
v_mul_u32_u24 v13, 1280, v13
v_lshl_add_u32 v13, v11, 7, v13
v_lshl_add_u32 v13, v12, 5, v13
v_lshl_add_u32 v13, v14, 2, v13
buffer_load_dword v192, v13, s[24:27], 0 offen
buffer_load_dword v193, v13, s[24:27], 0 offen offset:8
buffer_load_dword v194, v13, s[24:27], 0 offen offset:16
buffer_load_dword v195, v13, s[24:27], 0 offen offset:24
v_lshlrev_b32 v10, 4, v10
v_add_u32 v10, {L_MEMF}, v10
s_waitcnt vmcnt(0)
ds_write_b128 v10, v[192:195]""")
    k(f"""L_ch_m0d:
s_mov_b64 exec, -1
s_mov_b32 s{SSTEP}, 0
s_mov_b32 s{S_AVAIL}, 0
s_cmp_ge_u32 s{SW}, 4
s_cbranch_scc1 L_ch_pS
s_lshl_b32 s34, s{S_G}, 2
s_add_u32 s34, s34, s{SW}
s_mul_i32 s35, s34, 6144
v_add_u32 v{V_A3}, s35, v{VLANE16}
s_lshl_b32 s35, s34, 13
v_add_u32 v{V_A4}, s35, v{VLANE16}
s_lshl_b32 s35, s{SW}, 11
s_add_u32 s35, s35, {L_RED}
v_add_u32 v{V_A5}, s35, v{VLANE16}
s_lshl_b32 s35, s{SW}, 14
s_add_u32 s35, s35, {L_KV}
s_lshr_b32 s34, s34, 1
v_and_b32 v10, 1, v1
v_lshlrev_b32 v10, 4, v10
v_add_u32 v10, s34, v10
v_add_u32 v10, 16, v10
v_lshlrev_b32 v{V_A9}, 2, v10
v_cmp_gt_u32 vcc, 32, v1
v_mov_b32 v10, 0
v_mov_b32 v11, 0xf149f2ca
v_cndmask_b32 v{NEG}, v10, v11, vcc
v_mov_b32 v{NEG+1}, v{NEG}
v_mov_b32 v{NEG+2}, v{NEG}
v_mov_b32 v{NEG+3}, v{NEG}
v_add_u32 v14, s35, v{VLANE16}
s_branch L_ch_pD
L_ch_pS:
s_sub_u32 s38, s{SW}, 4               ; sw
s_lshl_b32 s34, s38, 10
v_add_u32 v{V_A3}, s34, v{VLANE16}
v_and_b32 v10, 15, v1                 ; e16
v_bfe_u32 v11, v1, 4, 1               ; gg
v_lshrrev_b32 v12, 5, v1              ; hi
s_mul_i32 s36, s{S_HEAD}, 6144
s_cmp_eq_u32 s{S_M}, 2
s_cbranch_scc1 L_ch_qst_v
; q/k unit: row = 4gg + hi + 2*(e16&1) (+8 for k); g = 2*(te%2) + (e16/4)%2; j0 = 4*(e16/8) + (e16 & 2)
v_lshl_add_u32 v13, v11, 2, v12
v_and_b32 v14, 1, v10
v_lshl_add_u32 v13, v14, 1, v13
s_lshl_b32 s34, s{S_M}, 3
v_add_u32 v13, s34, v13
v_bfe_u32 v14, v10, 2, 1
v_lshl_add_u32 v13, v14, 4, v13
v_lshlrev_b32 v13, 4, v13
v_lshrrev_b32 v14, 3, v10
v_lshl_add_u32 v13, v14, 3, v13
v_and_b32 v14, 2, v10
v_lshl_add_u32 v13, v14, 1, v13
s_lshl_b32 s34, s38, 10
s_add_u32 s34, s34, s36
v_add_u32 v{V_A4}, s34, v13
v_add_u32 v{V_A5}, 512, v{V_A4}
s_branch L_ch_qst_done
L_ch_qst_v:
; v unit: 4096 + u*1024 + clane*16 + (sw%2)*8 + hi*4; clane = 32 + gg*16 + e16 (even tile), gg*16 + e16 (odd tile)
v_lshl_add_u32 v13, v11, 4, v10
v_lshlrev_b32 v13, 4, v13
v_lshl_add_u32 v13, v12, 2, v13
s_and_b32 s34, s38, 1
s_lshl_b32 s34, s34, 3
s_lshr_b32 s35, s38, 1
s_lshl_b32 s35, s35, 10
s_add_u32 s34, s34, s35
s_add_u32 s34, s34, 4096
s_add_u32 s34, s34, s36
v_add_u32 v{V_A5}, s34, v13
v_add_u32 v{V_A4}, 512, v{V_A5}
L_ch_qst_done:
v_mov_b32 v216, 0
v_mov_b32 v217, 0
v_mov_b32 v218, 0
v_mov_b32 v219, 0
v_mov_b32 v220, 0
v_mov_b32 v221, 0
v_mov_b32 v222, 0
v_mov_b32 v223, 0
v_bfe_u32 v10, v1, 2, 3               ; r
v_lshrrev_b32 v13, 5, v1              ; c / 4
v_and_b32 v12, 3, v1                  ; c % 4
v_lshl_add_u32 v11, v13, 2, v12       ; c
v_lshlrev_b32 v12, 4, v12
v_lshl_add_u32 v12, v13, 3, v12
v_add_u32 v12, v12, v10
v_lshlrev_b32 v12, 4, v12
s_and_b32 s35, s38, 1
s_lshl_b32 s36, s35, 10
s_add_u32 s36, s36, {L_RED}
v_add_u32 v{V_A6}, s36, v12
s_lshl_b32 s36, s{S_I}, 1
s_add_u32 s36, s36, s35               ; j = 2i + (wave&1)
s_lshr_b32 s37, s36, 3
s_lshl_b32 s37, s37, 14
s_and_b32 s36, s36, 7
s_lshl_b32 s36, s36, 10
s_add_u32 s36, s36, s37
s_mul_i32 s37, s{S_G}, 49152
s_add_u32 s36, s36, s37
v_add_u32 v{V_A7}, s36, v{VLANE16}
s_lshl_b32 s34, s{S_G}, 2
s_add_u32 s34, s34, s38
s_lshl_b32 s35, s34, 13
v_add_u32 v8, s35, v{VLANE16}
s_lshl_b32 s60, s38, 14
s_add_u32 s60, s60, {L_KV}
s_lshr_b32 s34, s34, 1
v_and_b32 v9, 1, v1
v_lshlrev_b32 v9, 4, v9
v_add_u32 v9, s34, v9
v_add_u32 v9, 16, v9
v_lshlrev_b32 v{V_A9}, 2, v9
s_cmp_ge_u32 s{S_I}, 10
s_cbranch_scc1 L_ch_nok0
s_mov_b32 s36, 1""")
    kv_wait(k, 36)
    k(f's_mov_b32 s36, {KX}\ns_mov_b32 s37, {VX}')
    kv_dma(k, 36, 37)
    k(f"""s_waitcnt vmcnt(0)
L_ch_nok0:
s_cmp_lg_u32 s{SW}, 6
s_cbranch_scc1 L_ch_pD
s_mul_i32 s36, s{S_GI}, 10
s_add_u32 s36, s36, s{S_I}            ; j
s_lshr_b32 s37, s36, 3
s_lshl_b32 s37, s37, 14
s_and_b32 s35, s36, 7
s_lshl_b32 s35, s35, 10
s_add_u32 s35, s35, s37
v_add_u32 v240, s35, v{VLANE16}""")
    for g in range(1, 8): k(f'v_add_u32 v{240+g}, 49152, v{239+g}')
    k(f"""
s_lshl_b32 s36, s36, 5                ; 32j
v_lshl_add_u32 v12, v11, 2, s36       ; d0
v_lshrrev_b32 v13, 6, v12
v_lshlrev_b32 v13, 10, v13
v_bfe_u32 v14, v12, 4, 2
v_lshl_add_u32 v14, v14, 4, v10
v_lshl_add_u32 v13, v14, 4, v13
v_bfe_u32 v14, v12, 2, 2
v_lshl_add_u32 v{V_A6}, v14, 2, v13
L_ch_pD:
v_add_u32 v{V_MF}, {L_MEMF}, v{VLANE16}
v_add_u32 v{V_MW}, {L_MEMF}, v{V_A3}
s_waitcnt lgkmcnt(0)""")

def delay(k, clks):
    n = clks // 4
    while n > 0:
        m = min(n, 16); k(f's_nop {m-1}'); n -= m

OPT = dict(dq=256, dp=512, dm=128, warm=1, dd=320, dw=1024, da=192, clrlate=0, lite=0)
def interleave(k, mf, va, per=2):
    va = list(va)
    for m in mf:
        k(m)
        for _ in range(per):
            if va: k(va.pop(0))
    for x in va: k(x)

def chain_loop(k, sc, prof, tag, qdelay=0):
    T = tag
    k(f'L_step{T}:')
    k('s_barrier')
    k(f's_cmp_lt_u32 s{SW}, 4\ns_cbranch_scc1 L_aw{T}')
    if prof: k('s_memrealtime s[80:81]')
    for i in range(10): k(f'ds_read_b128 {v(MF+4*i,4)}, v{V_MF} offset:{i*1024}')
    chain_offsets(k, 'q')
    for i in range(10):
        k(f's_waitcnt lgkmcnt({9-i})')
        k(f'v_smfmac_f32_16x16x64_bf16 {v(DA,4)}, {v(MF+4*i,4)}, {v(W1+8*i,8)}, v{V_IDX}')
        k(f'v_smfmac_f32_16x16x64_bf16 {v(DB,4)}, {v(MF+4*i,4)}, {v(W1+80+8*i,8)}, v{V_IDX}')
    k(f"""s_cmp_eq_u32 s{S_M}, 2
s_mov_b64 vcc, s[{M_EVEN}:{M_EVEN+1}]
v_permlane32_swap_b32 v{DA}, v{DA+1}
v_permlane32_swap_b32 v{DA+2}, v{DA+3}
v_add_f32 v{DA}, v{DA}, v{DA+1}
v_add_f32 v{DA+2}, v{DA+2}, v{DA+3}
v_permlane32_swap_b32 v{DB}, v{DB+1}
v_permlane32_swap_b32 v{DB+2}, v{DB+3}
v_add_f32 v{DB}, v{DB}, v{DB+1}
v_add_f32 v{DB+2}, v{DB+2}, v{DB+3}
s_cbranch_scc1 L_s1v{T}
v_cndmask_b32_dpp v224, v{DA+2}, v{DA}, vcc quad_perm:[1,0,3,2] row_mask:0xf bank_mask:0xf
v_cndmask_b32_dpp v226, v{DB+2}, v{DB}, vcc quad_perm:[1,0,3,2] row_mask:0xf bank_mask:0xf
s_mov_b64 vcc, s[{M_ODD}:{M_ODD+1}]
v_cndmask_b32_dpp v225, v{DA}, v{DA+2}, vcc quad_perm:[1,0,3,2] row_mask:0xf bank_mask:0xf
v_cndmask_b32_dpp v227, v{DB}, v{DB+2}, vcc quad_perm:[1,0,3,2] row_mask:0xf bank_mask:0xf
v_cvt_pk_bf16_f32 v12, v224, v225
v_cvt_pk_bf16_f32 v13, v226, v227
s_branch L_s1s{T}
L_s1v{T}:
v_cvt_pk_bf16_f32 v12, v{DA}, v{DA+2}
v_cvt_pk_bf16_f32 v13, v{DB}, v{DB+2}
L_s1s{T}:
buffer_store_dword v12, v{V_A4}, {WS}, s{S_QC} offen{sc}
buffer_store_dword v13, v{V_A5}, {WS}, s{S_QC} offen{sc}""")
    if prof: k('s_memrealtime s[82:83]')
    k(f"""s_cmp_eq_u32 s{SSTEP}, 63
s_cbranch_scc1 L_fin
s_cmp_ge_u32 s{S_I}, 10
s_cbranch_scc1 L_s1only{T}
s_barrier""")
    chain_offsets(k, 'r')
    clr = f"""v_mov_b32 v14, -1
buffer_store_dword v14, v{V_A4}, {WS}, s{S_QZ} offen{sc}
buffer_store_dword v14, v{V_A5}, {WS}, s{S_QZ} offen{sc}"""
    k(clr)
    for i in range(8): k(f'v_mov_b32 v{DA+i}, 0')
    k(f's_add_u32 s36, s{SSTEP}, 2')
    kv_wait(k, 36)
    delay(k, OPT['dd'])
    if not NOKV: kv_dma(k, S_KXN, S_VXN)
    k('s_barrier')
    if prof: k('s_memrealtime s[88:89]')
    k(f's_cmp_ge_u32 s{SW}, 6\ns_cbranch_scc1 L_bw6{T}')
    for w in range(4): k(f'ds_read_b128 {v(176+4*w,4)}, v{V_A6} offset:{w*2048}')
    k(f"""s_waitcnt lgkmcnt(2)
v_pk_add_f32 v[176:177], v[176:177], v[180:181]
v_pk_add_f32 v[178:179], v[178:179], v[182:183]
s_waitcnt lgkmcnt(0)
v_pk_add_f32 v[184:185], v[184:185], v[188:189]
v_pk_add_f32 v[186:187], v[186:187], v[190:191]
v_pk_add_f32 v[176:177], v[176:177], v[184:185]
v_pk_add_f32 v[178:179], v[178:179], v[186:187]
buffer_store_dwordx4 v[176:179], v{V_A7}, {WS}, s{S_PC} offen sc1
{'s_memrealtime s[90:91]' if prof else ''}
v_mov_b32 v180, -1
v_mov_b32 v181, -1
v_mov_b32 v182, -1
v_mov_b32 v183, -1
buffer_store_dwordx4 v[180:183], v{V_A7}, {WS}, s{S_PZ} offen sc1
""")
    k(f's_branch L_b3{T}\nL_bw6{T}:')
    k(f's_cmp_lg_u32 s{SW}, 6\ns_cbranch_scc1 L_b3{T}')
    delay(k, OPT['dp'])
    if prof: k('s_memrealtime s[90:91]')
    def ploads():
        for g in range(8): k(f'buffer_load_dwordx4 {v(176+4*g,4)}, v{240+g}, {WS}, s{S_PC} offen sc1')
    poll(k, 'pp' + T, ploads, lambda: umax_check(k, [176+4*g for g in range(8)], 224))
    if prof: k('s_memrealtime s[92:93]\ns_mov_b32 s65, s39')
    for a, b in ((176, 180), (184, 188), (192, 196), (200, 204), (176, 184), (192, 200), (176, 192)):
        k(f'v_pk_add_f32 {v(a,2)}, {v(a,2)}, {v(b,2)}\nv_pk_add_f32 {v(a+2,2)}, {v(a+2,2)}, {v(b+2,2)}')
    k(f"""v_cvt_pk_bf16_f32 v176, v176, v177
v_cvt_pk_bf16_f32 v177, v178, v179
buffer_store_dword v176, v{V_A6}, {WS}, s{S_MEMN} offen{sc}
buffer_store_dword v177, v{V_A6}, {WS}, s{S_MEMN} offen offset:128{sc}
L_b3{T}:
s_barrier""")
    def mem_poll(sleep):
        A, D = k.lab('mA'), k.lab('mD')
        k(f's_cmp_ge_u32 s{SW}, 6\ns_cbranch_scc1 {A}')
        def l3():
            k(f'buffer_load_dwordx4 v[176:179], v{V_A3}, {WS}, s{S_MEMN} offen sc1')
            k(f'buffer_load_dwordx4 v[180:183], v{V_A3}, {WS}, s{S_MEMN4} offen sc1')
            k(f'buffer_load_dwordx4 v[184:187], v{V_A3}, {WS}, s{S_MEMN8} offen sc1')
        poll(k, 'pm3' + T, l3, lambda: umax_check(k, range(176, 188), 224), sleep=sleep)
        k(f'ds_write_b128 v{V_MW}, v[184:187] offset:8192\ns_branch {D}\n{A}:')
        def l2():
            k(f'buffer_load_dwordx4 v[176:179], v{V_A3}, {WS}, s{S_MEMN} offen sc1')
            k(f'buffer_load_dwordx4 v[180:183], v{V_A3}, {WS}, s{S_MEMN4} offen sc1')
        poll(k, 'pm2' + T, l2, lambda: umax_check(k, range(176, 184), 224), sleep=sleep)
        k(f"""{D}:
ds_write_b128 v{V_MW}, v[176:179]
ds_write_b128 v{V_MW}, v[180:183] offset:4096""")
    if prof: k('s_memrealtime s[94:95]')
    delay(k, OPT['dm'])
    mem_poll(0)
    if prof: k('s_mov_b32 s66, s39')
    k(f"""s_cmp_lg_u32 s{SW}, 6
s_cbranch_scc1 L_next{T}
v_mov_b32 v14, -1
buffer_store_dword v14, v{V_A6}, {WS}, s{S_MEMZ} offen{sc}
buffer_store_dword v14, v{V_A6}, {WS}, s{S_MEMZ} offen offset:128{sc}
L_next{T}:""")
    if prof:
        k('s_memrealtime s[96:97]\ns_waitcnt lgkmcnt(0)\ns_mov_b32 m0, s40')
        pA, pD = k.lab('pfA'), k.lab('pfD')
        k(f's_cmp_lt_u32 s{SW}, 4\ns_cbranch_scc1 {pA}')
        for n, r in enumerate((80, 82, 88, 90, 92, 94, 96)): k(f'v_writelane_b32 v{248+n}, s{r}, m0')
        k('s_lshl_b32 s65, s65, 16\ns_or_b32 s65, s65, s66\nv_writelane_b32 v255, s65, m0')
        k(f's_branch {pD}\n{pA}:')
        for n, r in enumerate((80, 84, 86, 96)): k(f'v_writelane_b32 v{252+n}, s{r}, m0')
        pass
        k(f'{pD}:')
    if OPT['lite']:
        l1, l2 = k.lab('lt'), k.lab('lt')
        k(f"""s_cmp_eq_u32 s{SSTEP}, 8
s_cbranch_scc0 {l1}
s_memrealtime s[98:99]
{l1}:
s_cmp_eq_u32 s{SSTEP}, 56
s_cbranch_scc0 {l2}
s_memrealtime s[100:101]
{l2}:""")
    k(f"""s_waitcnt lgkmcnt(0)
s_add_u32 s{SSTEP}, s{SSTEP}, 1
s_branch L_step{T}""")
    k(f'L_s1only{T}:')
    chain_offsets(k, 'r')
    k(f"""v_mov_b32 v14, -1
buffer_store_dword v14, v{V_A4}, {WS}, s{S_QZ} offen{sc}
buffer_store_dword v14, v{V_A5}, {WS}, s{S_QZ} offen{sc}""")
    for i in range(8): k(f'v_mov_b32 v{DA+i}, 0')
    k('s_barrier')
    mem_poll(4)
    k(f's_branch L_next{T}')
    k(f'L_aw{T}:')
    chain_offsets(k, 'qr')
    k(f"""s_cmp_ge_u32 s{S_I}, 10
s_cbranch_scc1 L_aidle{T}
s_cmp_eq_u32 s{SSTEP}, 63
s_cbranch_scc1 L_fin""")
    if prof: k('s_memrealtime s[80:81]')
    delay(k, OPT['da'])
    for i in range(8): k(f'ds_read_b128 {v(KXR+4*i,4)}, v14 offset:{i*1024}')
    k('s_waitcnt lgkmcnt(0)')
    for i in range(8): k(f'ds_read_b128 {v(VXR+4*i,4)}, v14 offset:{8192 + i*1024}')
    k('s_waitcnt lgkmcnt(0)')
    k('s_barrier')
    delay(k, OPT['dq'])
    LQ, LQD = k.lab('pq'), k.lab('pqd')
    k(f's_mov_b32 s39, 0\n{LQ}:')
    for ks in range(4): k(f'buffer_load_dwordx4 {v(QK+4*ks,4)}, v{V_A3}, {WS}, s{S_QC} offen offset:{ks*1024} sc1')
    if prof: k('s_memrealtime s[62:63]' if False else 's_memrealtime s[64:65]' if False else '')
    k('s_waitcnt vmcnt(0)')
    for u in range(2): k(f'buffer_load_dwordx4 {v(VM+4*u,4)}, v{V_A3}, {WS}, s{S_QC4} offen offset:{u*1024} sc1')
    mf = []
    for ks in range(4): mf.append(f'v_mfma_f32_16x16x32_bf16 {v(S0,4)}, {v(KXR+4*ks,4)}, {v(QK+4*ks,4)}, {"0" if ks == 0 else v(S0,4)}')
    for ks in range(4): mf.append(f'v_mfma_f32_16x16x32_bf16 {v(S1,4)}, {v(KXR+16+4*ks,4)}, {v(QK+4*ks,4)}, {"0" if ks == 0 else v(S1,4)}')
    for ks in range(4): mf.append(f'v_mfma_f32_16x16x32_bf16 {v(SM,4)}, {v(QK+4*ks,4)}, {v(QK+4*ks,4)}, {v(NEG,4) if ks == 0 else v(SM,4)}')
    chk = [f'v_max3_u32 v244, v{QK}, v{QK+1}, v{QK+2}'] + [f'v_max3_u32 v244, v244, v{QK+3+2*n}, v{QK+4+2*n}' for n in range(6)] + [f'v_max_u32 v244, v244, v{QK+15}']
    interleave(k, mf[:4], chk)
    k(mf[4]); k('v_cmp_eq_u32 vcc, -1, v244')
    k(mf[5]); k(f's_cbranch_vccz {LQD}')
    k(f"""s_add_u32 s39, s39, 1
s_cmp_lt_u32 s39, s{SLIM}
s_cbranch_scc1 {LQ}
s_mov_b32 s{SLIM}, 0
{LQD}:""")
    k(mf[6]); k(mf[7]); k(mf[8])
    k(f'v_max3_f32 v244, v{S0}, v{S0+1}, v{S0+2}')
    k(mf[9]); k(mf[10])
    k(f'v_max3_f32 v244, v244, v{S0+3}, v{S1}')
    k(mf[11])
    k(f"""v_max3_f32 v244, v244, v{S1+1}, v{S1+2}
v_max_f32 v244, v244, v{S1+3}""")
    if prof: k('s_memrealtime s[84:85]')
    k(f"""v_max3_f32 v244, v244, v{SM}, v{SM+1}
v_max3_f32 v244, v244, v{SM+2}, v{SM+3}
v_mov_b32 v245, v244
v_permlane16_swap_b32 v244, v245
v_max_f32 v244, v244, v245
v_mov_b32 v245, v244
v_permlane32_swap_b32 v244, v245
v_max_f32 v244, v244, v245
v_mul_f32 v244, s{S_NC}, v244""")
    for i in range(12): k(f'v_fma_f32 v{S0+i}, v{S0+i}, s{S_C}, v244')
    for i in range(12): k(f'v_exp_f32 v{S0+i}, v{S0+i}')
    k(f"""v_cvt_pk_bf16_f32 v{PX}, v{S0}, v{S0+1}
v_cvt_pk_bf16_f32 v{PX+1}, v{S0+2}, v{S0+3}
v_cvt_pk_bf16_f32 v{PX+2}, v{S1}, v{S1+1}
v_cvt_pk_bf16_f32 v{PX+3}, v{S1+2}, v{S1+3}
v_cvt_pk_bf16_f32 v{PM}, v{SM}, v{SM+2}
v_cvt_pk_bf16_f32 v{PM+1}, v{SM+1}, v{SM+3}""")
    mf = [f'v_mfma_f32_16x16x32_bf16 {v(O+4*te,4)}, {v(VXR+4*te,4)}, {v(PX,4)}, 0' for te in range(8)]
    va = [f'v_mov_b32 v188, v{PM}', f'v_mov_b32 v189, v{PM+1}', f'v_mov_b32 v{PM2}, 0', f'v_mov_b32 v{PM2+1}, 0',
          f'v_add_f32 v245, v{S0}, v{S0+1}', f'v_add_f32 v246, v{S0+2}, v{S0+3}',
          f'v_permlane32_swap_b32 v188, v{PM2}', f'v_permlane32_swap_b32 v189, v{PM2+1}',
          f'v_add_f32 v245, v245, v{S1}', f'v_add_f32 v246, v246, v{S1+1}', f'v_add_f32 v245, v245, v{S1+2}', f'v_add_f32 v246, v246, v{S1+3}',
          f'v_add_f32 v245, v245, v{SM}', f'v_add_f32 v246, v246, v{SM+1}', f'v_add_f32 v245, v245, v{SM+2}', f'v_add_f32 v246, v246, v{SM+3}']
    interleave(k, mf, va)
    LV, LVD = k.lab('pv'), k.lab('pvd')
    k(f's_mov_b32 s39, 0\ns_waitcnt vmcnt(0)\n{LV}:')
    umax_check(k, range(VM, VM+8), 247)
    k(f's_cbranch_vccz {LVD}')
    for u in range(2): k(f'buffer_load_dwordx4 {v(VM+4*u,4)}, v{V_A3}, {WS}, s{S_QC4} offen offset:{u*1024} sc1')
    k(f"""s_waitcnt vmcnt(0)
s_add_u32 s39, s39, 1
s_cmp_lt_u32 s39, s{SLIM}
s_cbranch_scc1 {LV}
s_mov_b32 s{SLIM}, 0
{LVD}:""")
    mf = []
    for te in range(8):
        u, t4 = te // 4, te % 4
        a = VM + 4*u + 2*(t4 // 2); b = PM if t4 % 2 == 0 else PM2
        mf.append(f'v_mfma_f32_16x16x16_bf16 {v(O+4*te,4)}, {v(a,2)}, {v(b,2)}, {v(O+4*te,4)}')
    def cv(te): return [f'v_cvt_pk_bf16_f32 v{OB+4*(te//2)+2*(te%2)}, v{O+4*te}, v{O+4*te+1}', f'v_cvt_pk_bf16_f32 v{OB+4*(te//2)+2*(te%2)+1}, v{O+4*te+2}, v{O+4*te+3}']
    va = ['v_add_f32 v245, v245, v246', 'v_mov_b32 v246, v245', 's_nop 0', 's_nop 0', 'v_permlane16_swap_b32 v245, v246', 'v_add_f32 v245, v245, v246',
          'v_mov_b32 v246, v245', 's_nop 0']
    interleave(k, mf[:4], va)
    k('v_permlane32_swap_b32 v245, v246')
    k(mf[4]); k('v_add_f32 v245, v245, v246'); k(cv(0)[0])
    k(mf[5]); k(cv(0)[1]); k('v_rcp_f32 v245, v245')
    k(mf[6]); k(cv(1)[0]); k(cv(1)[1])
    k(mf[7]); k(cv(2)[0]); k(cv(2)[1])
    mo = [[f'v_mfma_f32_16x16x32_bf16 {v(OA+4*ct,4)}, {v(WO+16*ct+4*ks,4)}, {v(OB+4*ks,4)}, {"0" if ks == 0 else v(OA+4*ct,4)}' for ct in range(4)] for ks in range(4)]
    interleave(k, mo[0], cv(3) + ['v_mov_b32_dpp v246, v245 row_shr:8 row_mask:0xf bank_mask:0xc'] + cv(4) + cv(5))
    interleave(k, mo[1], cv(6) + cv(7))
    interleave(k, mo[2], [])
    interleave(k, mo[3], [])
    for p in range(2):
        for i in range(4):
            k(f'v_mul_f32_dpp v{O+4*p+i}, v{OA+8*p+i}, v245 quad_perm:[0,1,2,3] row_mask:0xf bank_mask:0x3')
        for i in range(4):
            k(f'v_mul_f32_dpp v{O+4*p+i}, v{OA+8*p+4+i}, v246 row_shr:8 row_mask:0xf bank_mask:0xc')
        k(f'ds_write_b128 v{V_A5}, {v(O+4*p,4)} offset:{p*1024}')
    k('s_waitcnt lgkmcnt(0)')
    if prof: k('s_memrealtime s[86:87]')
    k('s_barrier')
    k(f's_barrier\ns_branch L_next{T}')
    k(f"""L_aidle{T}:
s_cmp_eq_u32 s{S_I}, 10
s_cbranch_scc0 L_awarm{T}""")
    def qloads():
        for ks in range(4): k(f'buffer_load_dwordx4 {v(QK+4*ks,4)}, v{V_A3}, {WS}, s{S_QC} offen offset:{ks*1024} sc1')
        for u in range(2): k(f'buffer_load_dwordx4 {v(VM+4*u,4)}, v{V_A3}, {WS}, s{S_QC4} offen offset:{u*1024} sc1')
    delay(k, 1024)
    poll(k, 'pk' + T, qloads, lambda: umax_check(k, list(range(QK, QK+16)) + list(range(VM, VM+8)), 244), sleep=2)
    for ks in range(4): k(f'buffer_store_dwordx4 {v(QK+4*ks,4)}, v{V_A3}, {WS}, s{S_KP} offen offset:{ks*1024} sc1')
    for u in range(2): k(f'buffer_store_dwordx4 {v(VM+4*u,4)}, v{V_A3}, {WS}, s{S_KP4} offen offset:{u*1024} sc1')
    k(f"""s_waitcnt vmcnt(0)
s_lshl_b32 s34, s{S_G}, 2
s_add_u32 s34, s34, s{SW}
s_lshl_b32 s34, s34, 2
s_add_u32 s34, s34, {F_KVM}
s_add_u32 s35, s{SSTEP}, 1
v_mov_b32 v244, s34
v_mov_b32 v245, s35
s_mov_b64 exec, 1
buffer_store_dword v245, v244, {WS}, 0 offen sc1
s_mov_b64 exec, -1
s_cmp_eq_u32 s{SSTEP}, 63
s_cbranch_scc1 L_fin
s_barrier
s_branch L_next{T}
L_awarm{T}:
s_cmp_eq_u32 s{SSTEP}, 63
s_cbranch_scc1 L_fin""")
    if OPT['warm']:
        W = k.lab('wsk')
        k(f's_add_u32 s36, s{SSTEP}, 3\ns_cmp_gt_u32 s36, 64\ns_cbranch_scc1 {W}')
        kv_wait(k, 36)
        delay(k, OPT['dw'])
        k(f"""s_add_u32 s36, s{SSTEP}, 2
s_lshl_b32 s36, s36, 18
s_add_u32 s37, s36, {VX}
s_add_u32 s36, s36, {KX}""")
        kv_loads(k, 36, 37)
        k(f'{W}:')
    k(f's_barrier\ns_branch L_next{T}')

def chain_fin(k, prof):
    k('L_fin:')
    if OPT['lite']:
        k(f"""s_sub_u32 s34, s100, s98
v_mov_b32 v12, s34
s_lshl_b32 s34, s{SX}, 5
s_add_u32 s34, s34, s{SR}
s_lshl_b32 s34, s34, 3
s_add_u32 s34, s34, s{SW}
s_lshl_b32 s34, s34, 2
s_add_u32 s34, s34, 0x8800000
v_mov_b32 v10, s34
buffer_store_dword v12, v10, {WS}, 0 offen""")
    if prof:
        k(f"""s_lshl_b32 s34, s{SX}, 5
s_add_u32 s34, s34, s{SR}
s_lshl_b32 s34, s34, 3
s_add_u32 s34, s34, s{SW}
s_lshl_b32 s34, s34, 11
s_add_u32 s34, s34, 0x8000000
v_lshlrev_b32 v10, 2, v1
v_add_u32 v10, s34, v10
s_cmp_lt_u32 s{SW}, 4
s_cbranch_scc1 L_fin0""")
        for n in range(8): k(f'buffer_store_dword v{248+n}, v10, {WS}, 0 offen offset:{n*256}')
        k('s_branch L_end\nL_fin0:')
        for n in range(4): k(f'buffer_store_dword v{252+n}, v10, {WS}, 0 offen offset:{n*256}')
    k('s_branch L_end')

def build(prof=False, roles=('chain',), keepflags=False, qdelay=0):
    k = Kern()
    start_phase(k, keepflags)
    on = lambda r: r in roles
    k(f'''s_cmp_ge_u32 s{SX}, 4
s_cbranch_scc1 L_hi
s_cmp_lt_u32 s{SR}, 24
s_cbranch_scc1 {'L_chain' if on('chain') else 'L_end'}
s_lshl_b32 s41, s{SX}, 3
s_add_u32 s41, s41, s{SR}
s_sub_u32 s41, s41, 24
s_branch {'L_proj' if on('proj') else 'L_end'}
L_hi:
s_cmp_lt_u32 s{SX}, 6
s_cbranch_scc0 L_hi2
s_sub_u32 s41, s{SX}, 4
s_lshl_b32 s41, s41, 5
s_add_u32 s41, s41, s{SR}
s_branch {'L_brole' if on('b') else 'L_end'}
L_hi2:
s_cmp_eq_u32 s{SX}, 6
s_cbranch_scc0 L_hi3
s_mov_b32 s41, s{SR}
s_branch {'L_out' if on('out') else 'L_end'}
L_hi3:
s_cmp_lt_u32 s{SR}, 8
s_cbranch_scc0 L_hi4
s_add_u32 s41, s{SR}, 32
s_branch {'L_out' if on('out') else 'L_end'}
L_hi4:
s_cmp_lt_u32 s{SR}, 16
s_cbranch_scc0 L_hi5
s_sub_u32 s41, s{SR}, 8
s_branch {'L_att' if on('att') else 'L_end'}
L_hi5:
s_add_u32 s41, s{SR}, 16
s_branch {'L_proj' if on('proj') else 'L_end'}''')
    if on('proj'): proj_role(k)
    if on('att'): att_role(k)
    if on('out'): out_role(k)
    if on('b'): b_role(k)
    if on('chain'):
        chain_prologue(k)
        k(f's_cmp_lg_u32 s{SSLOW}, 0\ns_cbranch_scc1 L_stepS')
        chain_loop(k, '', prof, 'F', qdelay)
        chain_loop(k, ' sc1', False, 'S')
        chain_fin(k, prof)
    k('L_end:\ns_endpgm')
    body, nops = k.text()
    head = f'''; @launch grid=(256,1,1) block=(512,1,1) lds=163840
.amdgcn_target "amdgcn-amd-amdhsa--gfx950"
.text
.globl {NAME}
.p2align 8
.type {NAME},@function
{NAME}:
'''
    tail = f'''
.section .rodata,"a"
.p2align 6
.amdhsa_kernel {NAME}
  .amdhsa_next_free_vgpr 256
  .amdhsa_next_free_sgpr 102
  .amdhsa_accum_offset 256
  .amdhsa_group_segment_fixed_size 0
  .amdhsa_kernarg_size 104
  .amdhsa_user_sgpr_count 2
  .amdhsa_user_sgpr_kernarg_segment_ptr 1
  .amdhsa_system_sgpr_workgroup_id_x 1
.end_amdhsa_kernel
'''
    return head + '\n'.join(body) + tail, nops

if __name__ == '__main__':
    out = sys.argv[1]
    opts = dict(a.split('=') for a in sys.argv[2:] if '=' in a)
    if 'kvsc' in opts: KVSC = {'p': '', 's': ' sc1', 'n': ' nt', '0': ' sc0'}[opts['kvsc']]
    NOKV = 'nokv' in sys.argv[2:]
    for o in OPT:
        if o in opts: OPT[o] = int(opts[o])
    txt, nops = build(prof='prof' in sys.argv[2:], keepflags='keepflags' in sys.argv[2:], qdelay=int(opts.get('qdelay', 0)), roles=opts.get('roles', 'chain').split(','))
    open(out, 'w').write(txt)
    print('wrote', out, 'lines', txt.count('\n'), 'nop states', nops)
```

```python
import math, struct
from dsl import v, s
from layout import *
from proj import srd
WS = 's[8:11]'
SX, SR, SW, SLIM = 28, 29, 30, 33
def f32bits(x): return struct.unpack('<I', struct.pack('<f', x))[0]

def flag_wait(k, name, vaddr, nl, sneed, soff='0', tmp=13):
    L, D = k.lab(name), k.lab(name + 'd')
    k(f'''s_mov_b32 s39, 0
s_mov_b64 s[70:71], exec
s_mov_b32 exec_lo, {((1 << nl) - 1) & 0xffffffff:#x}
s_mov_b32 exec_hi, {((1 << nl) - 1) >> 32:#x}
{L}:
buffer_load_dword v{tmp}, v{vaddr}, {WS}, {soff} offen sc1
s_waitcnt vmcnt(0)
v_cmp_gt_u32 vcc, s{sneed}, v{tmp}
s_cbranch_vccz {D}
s_sleep 8
s_add_u32 s39, s39, 1
s_cmp_lt_u32 s39, s{SLIM}
s_cbranch_scc1 {L}
s_mov_b32 s{SLIM}, 0
{D}:
s_mov_b64 exec, s[70:71]''')

mark = lambda k, n: None
OSLEEP = 0
XWARM = 0
def att_role(k):
    QX_, KX_, VX_, QM, VM, NEG, DIAG = 16, 48, 80, 112, 128, 136, 140
    S0, S1, SM, PX, PM, PM2, O, T = 144, 148, 152, 156, 160, 162, 168, 200
    SH, SS, SC, SNC = 42, 40, 78, 79
    k(f'''
L_att:
s_lshl_b32 s34, s41, 3
s_add_u32 s34, s34, s{SW}
s_and_b32 s{SH}, s34, 31
s_lshr_b32 s{SS}, s34, 5
s_mov_b32 s{SC}, {f32bits(128**-0.5 * math.log2(math.e)):#x}
s_mov_b32 s{SNC}, {f32bits(-(128**-0.5) * math.log2(math.e)):#x}
v_lshlrev_b32 v2, 4, v1
s_lshl_b32 s34, s{SH}, 13
v_add_u32 v3, s34, v2
s_mul_i32 s34, s{SH}, 6144
v_add_u32 v4, s34, v2
s_lshr_b32 s34, s{SH}, 1
v_lshlrev_b32 v5, 4, v1
v_add_u32 v5, s34, v5
v_lshlrev_b32 v5, 2, v5
s_lshl_b32 s34, s{SH}, 2
s_add_u32 s34, s34, {F_KVM}
v_mov_b32 v10, s34
v_cmp_eq_u32 vcc, 3, v1
v_cndmask_b32 v5, v5, v10, vcc
; masks
v_cmp_gt_u32 vcc, 32, v1
v_mov_b32 v10, 0
v_mov_b32 v11, 0xf149f2ca
v_cndmask_b32 v{NEG}, v10, v11, vcc
v_mov_b32 v{NEG+1}, v{NEG}
v_mov_b32 v{NEG+2}, v{NEG}
v_mov_b32 v{NEG+3}, v{NEG}
v_lshrrev_b32 v12, 4, v1
v_lshlrev_b32 v12, 2, v12             ; 4g
v_and_b32 v13, 15, v1''')
    for i in range(4):
        k(f'v_add_u32 v14, {i}, v12\nv_cmp_gt_u32 vcc, v14, v13\nv_cndmask_b32 v{DIAG+i}, v10, v11, vcc')
    if XWARM:
        k('s_load_dwordx2 s[4:5], s[0:1], 0\ns_waitcnt lgkmcnt(0)')
        srd(k, 16, 4, 2048*1280)
        k('s_lshl_b32 s34, s41, 9\nv_add_u32 v10, s34, v0\nv_lshlrev_b32 v10, 7, v10')
        for i in range(5): k(f's_mov_b32 s34, {i*4096*128}\nbuffer_load_dword v{210+i}, v10, s[16:19], s34 offen')
        k('s_waitcnt vmcnt(0)')
    validate(k)
    k(f's_cmp_lg_u32 s41, 0\ns_cbranch_scc1 L_att_task\ns_cmp_lg_u32 s{SW}, 0\ns_cbranch_scc1 L_att_task')
    calibrate(k)
    k(f'''L_att_task:
s_add_u32 s36, s{SS}, 1''')
    flag_wait(k, 'atw', 5, 4, 36)
    k(f'''s_lshl_b32 s34, s{SS}, 18
s_add_u32 s35, s34, {QX}
s_add_u32 s36, s34, {KX}
s_add_u32 s37, s34, {VX}
s_mul_i32 s38, s{SS}, 196608
s_add_u32 s38, s38, {KVMP}''')
    for base, sreg in ((QX_, 35), (KX_, 36)):
        for i in range(8):
            if i == 4: k(f's_add_u32 s{sreg}, s{sreg}, 4096')
            k(f'buffer_load_dwordx4 {v(base+4*i,4)}, v3, {WS}, s{sreg} offen offset:{(i%4)*1024} sc1')
    for i in range(4): k(f'buffer_load_dwordx4 {v(QM+4*i,4)}, v4, {WS}, s38 offen offset:{i*1024} sc1')
    for i in range(8):
        if i == 4: k('s_add_u32 s37, s37, 4096')
        k(f'buffer_load_dwordx4 {v(VX_+4*i,4)}, v3, {WS}, s37 offen offset:{(i%4)*1024} sc1')
    k('s_add_u32 s38, s38, 4096')
    for i in range(2): k(f'buffer_load_dwordx4 {v(VM+4*i,4)}, v4, {WS}, s38 offen offset:{i*1024} sc1')
    k(f's_lshl_b32 s44, s{SS}, 18\ns_add_u32 s44, s44, {OX}')
    for qt in range(2):
        k('s_waitcnt vmcnt(10)' if qt == 0 else '')
        q = lambda ks: v(QX_ + 16*qt + 4*ks, 4)
        for ks in range(4):
            k(f'v_mfma_f32_16x16x32_bf16 {v(S0,4)}, {v(KX_+4*ks,4)}, {q(ks)}, {(v(DIAG,4) if qt == 0 else "0") if ks == 0 else v(S0,4)}')
            if qt == 1: k(f'v_mfma_f32_16x16x32_bf16 {v(S1,4)}, {v(KX_+16+4*ks,4)}, {q(ks)}, {v(DIAG,4) if ks == 0 else v(S1,4)}')
            k(f'v_mfma_f32_16x16x32_bf16 {v(SM,4)}, {v(QM+4*ks,4)}, {q(ks)}, {v(NEG,4) if ks == 0 else v(SM,4)}')
        vals = list(range(S0, S0+4)) + (list(range(S1, S1+4)) if qt == 1 else []) + list(range(SM, SM+4))
        k(f'v_max3_f32 v{T}, v{vals[0]}, v{vals[1]}, v{vals[2]}')
        r = vals[3:]
        while len(r) >= 2: k(f'v_max3_f32 v{T}, v{T}, v{r[0]}, v{r[1]}'); r = r[2:]
        if r: k(f'v_max_f32 v{T}, v{T}, v{r[0]}')
        for sw in ('16', '32'):
            k(f'v_mov_b32 v{T+1}, v{T}\nv_permlane{sw}_swap_b32 v{T}, v{T+1}\nv_max_f32 v{T}, v{T}, v{T+1}')
        k(f'v_mul_f32 v{T}, s{SNC}, v{T}')
        for x in vals: k(f'v_fma_f32 v{x}, v{x}, s{SC}, v{T}')
        for x in vals: k(f'v_exp_f32 v{x}, v{x}')
        k(f'v_add_f32 v{T}, v{vals[0]}, v{vals[1]}')
        for x in vals[2:]: k(f'v_add_f32 v{T}, v{T}, v{x}')
        for sw in ('16', '32'):
            k(f'v_mov_b32 v{T+1}, v{T}\nv_permlane{sw}_swap_b32 v{T}, v{T+1}\nv_add_f32 v{T}, v{T}, v{T+1}')
        k(f'v_rcp_f32 v{T}, v{T}')
        for x in vals: k(f'v_mul_f32 v{x}, v{x}, v{T}')
        k(f'v_cvt_pk_bf16_f32 v{PX}, v{S0}, v{S0+1}\nv_cvt_pk_bf16_f32 v{PX+1}, v{S0+2}, v{S0+3}')
        if qt == 1: k(f'v_cvt_pk_bf16_f32 v{PX+2}, v{S1}, v{S1+1}\nv_cvt_pk_bf16_f32 v{PX+3}, v{S1+2}, v{S1+3}')
        else: k(f'v_mov_b32 v{PX+2}, 0\nv_mov_b32 v{PX+3}, 0')
        k(f'''v_cvt_pk_bf16_f32 v{PM}, v{SM}, v{SM+2}
v_cvt_pk_bf16_f32 v{PM+1}, v{SM+1}, v{SM+3}
v_mov_b32 v{T+2}, v{PM}
v_mov_b32 v{T+3}, v{PM+1}
v_mov_b32 v{PM2}, 0
v_mov_b32 v{PM2+1}, 0
v_permlane32_swap_b32 v{T+2}, v{PM2}
v_permlane32_swap_b32 v{T+3}, v{PM2+1}''')
        if qt == 0: k('s_waitcnt vmcnt(0)')
        for te in range(8): k(f'v_mfma_f32_16x16x32_bf16 {v(O+4*te,4)}, {v(VX_+4*te,4)}, {v(PX,4)}, 0')
        for te in range(8):
            u, t4 = te // 4, te % 4
            k(f'v_mfma_f32_16x16x16_bf16 {v(O+4*te,4)}, {v(VM+4*u+2*(t4//2),2)}, {v(PM if t4 % 2 == 0 else PM2,2)}, {v(O+4*te,4)}')
        for ks in range(4):
            d = 204 + 4*ks
            for h in range(2):
                te = 2*ks + h
                k(f'v_cvt_pk_bf16_f32 v{d+2*h}, v{O+4*te}, v{O+4*te+1}\nv_cvt_pk_bf16_f32 v{d+2*h+1}, v{O+4*te+2}, v{O+4*te+3}')
            k(f'buffer_store_dwordx4 {v(d,4)}, v3, {WS}, s44 offen offset:{ks*1024} sc1')
        k('s_add_u32 s44, s44, 4096')
    k(f'''s_waitcnt vmcnt(0)
s_lshl_b32 s34, s{SS}, 5
s_add_u32 s34, s34, s{SH}
s_lshl_b32 s34, s34, 2
s_add_u32 s34, s34, {F_O}
v_mov_b32 v10, s34
v_mov_b32 v11, 1
s_mov_b64 exec, 1
buffer_store_dword v11, v10, {WS}, 0 offen sc1
s_mov_b64 exec, -1
s_add_u32 s{SS}, s{SS}, 2
s_cmp_lt_u32 s{SS}, 64
s_cbranch_scc1 L_att_task
s_branch L_end''')

def out_role(k):
    W, XB, ACC = 16, 144, 208
    SS, SNJ = 40, 42
    RED = 0
    k(f'''
L_out:
{''.join(['s_sleep 127' + chr(10)] * OSLEEP)}s_cmp_ge_u32 s41, 20
s_cselect_b32 s{SS}, 1, 0
s_mul_i32 s34, s{SS}, 20
s_sub_u32 s{SNJ}, s41, s34
s_load_dwordx2 s[4:5], s[0:1], 40
s_load_dwordx2 s[6:7], s[0:1], 80
s_waitcnt lgkmcnt(0)''')
    srd(k, 16, 4, 4096*1280)
    srd(k, 20, 6, 2048*2560)
    k(f'''v_lshrrev_b32 v10, 2, v1
v_and_b32 v11, 3, v1
v_mul_u32_u24 v12, 1280, v10
v_lshl_add_u32 v12, v11, 4, v12
s_lshl_b32 s34, s{SW}, 9
s_mul_i32 s34, s34, 1280
s_lshl_b32 s35, s{SNJ}, 6
s_add_u32 s34, s34, s35
v_add_u32 v12, s34, v12
s_lshl_b32 s34, s{SW}, 13
v_lshl_add_u32 v13, v1, 4, s34
v_lshrrev_b32 v10, 4, v1              ; g
v_bfe_u32 v11, v1, 2, 2               ; rr
v_lshl_add_u32 v10, v10, 2, v11
v_lshlrev_b32 v10, 6, v10
v_and_b32 v11, 3, v1
v_lshl_add_u32 v10, v11, 3, v10
v_add_u32 v14, s34, v10''')
    for hh4 in range(4):
        for i in range(8):
            k(f's_mov_b32 s34, {(128*hh4 + 16*i)*1280}\nbuffer_load_dwordx4 {v(XB+4*i,4)}, v12, s[16:19], s34 offen')
        k('s_waitcnt vmcnt(0)')
        for i in range(8): k(f'ds_write_b128 v13, {v(XB+4*i,4)} offset:{i*1024}')
        k('s_waitcnt lgkmcnt(0)')
        for ct in range(2):
            for ks in range(4):
                for hh in range(2):
                    k(f'ds_read_b64_tr_b16 {v(W + 64*ct + 4*(4*hh4+ks) + 2*hh, 2)}, v14 offset:{(32*ks + 16*hh)*64 + ct*32}')
            k('s_waitcnt lgkmcnt(0)')
    k(f'''s_barrier
v_lshlrev_b32 v2, 4, v1
s_lshl_b32 s34, s{SW}, 15             ; 4 heads * 8192
v_add_u32 v3, s34, v2
s_lshl_b32 s34, s{SW}, 4
v_lshlrev_b32 v5, 2, v1
v_add_u32 v5, s34, v5
v_add_u32 v5, {F_O}, v5
s_lshl_b32 s34, s{SW}, 12
v_add_u32 v6, s34, v2
; reducers (waves 0,1): token = lane/4, quarter = lane%4
v_lshrrev_b32 v10, 2, v1
v_and_b32 v11, 3, v1
v_lshrrev_b32 v12, 1, v11             ; ct
v_and_b32 v13, 1, v11
v_lshlrev_b32 v13, 5, v13             ; (2*(qd%2))*16
v_add_u32 v13, v13, v10
v_lshlrev_b32 v13, 4, v13
v_lshl_add_u32 v13, v12, 11, v13      ; ct*2048
s_lshl_b32 s34, s{SW}, 10             ; qt*1024
v_add_u32 v7, s34, v13
s_lshl_b32 s34, s{SW}, 4
v_add_u32 v10, s34, v10
v_mul_u32_u24 v10, 2560, v10
v_lshl_add_u32 v10, v11, 4, v10
s_lshl_b32 s34, s{SNJ}, 6
v_add_u32 v8, s34, v10
s_mov_b32 s45, 1
s_mov_b32 s46, 0''')
    validate(k)
    mark(k, 1)
    k(f'''L_out_seg:
s_lshl_b32 s37, s{SS}, 7''')
    flag_wait(k, 'otw', 5, 4, 45, soff='s37')
    k(f's_lshl_b32 s34, s{SS}, 18\ns_add_u32 s34, s34, {OX}')
    def ld(h):
        for i in range(8):
            off = h*8192 + i*1024
            if off % 4096 == 0: k(f's_add_u32 s35, s34, {off}')
            k(f'buffer_load_dwordx4 {v(XB+32*(h%2)+4*i,4)}, v3, {WS}, s35 offen offset:{off % 4096} sc1')
    ld(0); ld(1)
    for h in range(4):
        k(f's_waitcnt vmcnt({8 if h < 3 else 0})')
        for ks in range(4):
            for ct in range(2):
                for qt in range(2):
                    a = v(ACC + 8*ct + 4*qt, 4)
                    k(f'v_mfma_f32_16x16x32_bf16 {a}, {v(W+64*ct+4*(4*h+ks),4)}, {v(XB+32*(h%2)+16*qt+4*ks,4)}, {"0" if h == 0 and ks == 0 else a}')
        if h + 2 < 4: ld(h + 2)
    k('v_add_u32 v10, s46, v6')
    for ct in range(2):
        for qt in range(2): k(f'ds_write_b128 v10, {v(ACC+8*ct+4*qt,4)} offset:{ct*2048 + qt*1024}')
    k(f'''s_waitcnt lgkmcnt(0)
s_barrier
s_cmp_ge_u32 s{SW}, 2
s_cbranch_scc1 L_out_nx
v_add_u32 v10, s46, v7''')
    for c in range(2):
        for w in range(8): k(f'ds_read_b128 {v(XB+32*c+4*w,4)}, v10 offset:{w*4096 + c*256}')
        k('s_waitcnt lgkmcnt(0)')
        b = XB + 32*c
        for x, y in ((0, 4), (8, 12), (16, 20), (24, 28), (0, 8), (16, 24), (0, 16)):
            k(f'v_pk_add_f32 {v(b+x,2)}, {v(b+x,2)}, {v(b+y,2)}\nv_pk_add_f32 {v(b+x+2,2)}, {v(b+x+2,2)}, {v(b+y+2,2)}')
        k(f'v_cvt_pk_bf16_f32 v{224+2*c}, v{b}, v{b+1}\nv_cvt_pk_bf16_f32 v{225+2*c}, v{b+2}, v{b+3}')
    k(f'''s_mul_i32 s34, s{SS}, {32*2560}
buffer_store_dwordx4 v[224:227], v8, s[20:23], s34 offen
L_out_nx:
s_xor_b32 s46, s46, 0x8000
s_add_u32 s{SS}, s{SS}, 2
s_cmp_lt_u32 s{SS}, 64
s_cbranch_scc1 L_out_seg
s_branch L_end''')
```

```python
import math, struct
from dsl import v, s
from layout import *
from proj import srd
from attout import flag_wait
WS = 's[8:11]'
SX, SR, SW, SLIM = 28, 29, 30, 33
def f32bits(x): return struct.unpack('<I', struct.pack('<f', x))[0]
PW, ACC, XF, STG, WST = 16, 176, 192, 204, 232
XBUF = 41472

def stat_gemm(k, tag, colstride, wrow, xsrd, xsc, ntiles, typ, epilogue, nwaves):
    k('v_lshlrev_b32 v2, 4, v0')
    for i in range(5):
        k(f'''v_add_u32 v10, {512*i}, v0
v_mul_u32_u24 v11, 52429, v10
v_lshrrev_b32 v11, 22, v11
v_add_u32 v11, v11, v10
v_lshlrev_b32 v{3+i}, 4, v11''')
    k('s_mul_i32 s34, s47, 40960')
    for i in range(5):
        k(f'buffer_load_dwordx4 {v(STG+4*i,4)}, v2, {xsrd}, s34 offen{xsc}\ns_add_u32 s34, s34, 8192')
    k(f'''v_lshrrev_b32 v10, 4, v1
v_lshrrev_b32 v11, 1, v10             ; g2
v_and_b32 v10, 1, v10                 ; nh
v_bfe_u32 v14, v1, 2, 2               ; rr
v_lshl_add_u32 v11, v11, 3, v14
v_mul_u32_u24 v11, 320, v11
v_lshl_add_u32 v11, v10, 5, v11
v_and_b32 v10, 3, v1
v_lshl_add_u32 v11, v10, 3, v11
s_mul_i32 s34, s{SW}, {colstride}
v_add_u32 v14, s34, v11''')
    for i in range(3):
        k(f'''v_add_u32 v9, {512*i}, v0
v_mul_u32_u24 v13, 52429, v9
v_lshrrev_b32 v13, 20, v13
v_mul_u32_u24 v8, 20, v13
v_sub_u32 v8, v9, v8
v_mul_u32_u24 v13, {wrow}, v13
v_lshl_add_u32 v13, v8, 4, v13
v_add_u32 v{10+i}, s46, v13''')
    def ld(c):
        k(f's_mov_b32 s34, {64*c*wrow}')
        for i in range(3): k(f'buffer_load_dwordx4 {v(WST+12*(c%2)+4*i,4)}, v{10+i}, s[16:19], s34 offen')
    ld(0); ld(1)
    for c in range(10):
        buf = (c % 2)*24576
        k(f's_waitcnt vmcnt({3 if c < 9 else 0})')
        for i in range(3): k(f'ds_write_b128 v2, {v(WST+12*(c%2)+4*i,4)} offset:{buf + i*8192}')
        k('s_waitcnt lgkmcnt(0)')
        if c + 2 < 10: ld(c + 2)
        k('s_barrier')
        for ksl in range(4):
            for hh in range(2):
                k(f'ds_read_b64_tr_b16 {v(PW + 4*(4*c+ksl) + 2*hh, 2)}, v14 offset:{buf + ksl*16*320 + hh*4*320}')
        k('s_waitcnt lgkmcnt(0)')
    k(f'''s_barrier
v_and_b32 v10, 31, v1
v_mul_u32_u24 v10, 1296, v10
v_lshrrev_b32 v11, 5, v1
v_lshl_add_u32 v9, v11, 4, v10''')
    for i in range(5): k(f'ds_write_b128 v{3+i}, {v(STG+4*i,4)}')
    k('s_waitcnt lgkmcnt(0)\ns_add_u32 s34, s47, 1\ns_mul_i32 s34, s34, 40960')
    for i in range(5):
        k(f'buffer_load_dwordx4 {v(STG+4*i,4)}, v2, {xsrd}, s34 offen{xsc}\ns_add_u32 s34, s34, 8192')
    epilogue('setup')
    if tag == 'b1': validate(k)
    k(f'''s_mov_b32 s40, 0
s_waitcnt vmcnt(0)
s_barrier
L_{tag}_loop:
s_and_b32 s34, s40, 1
s_mul_i32 s35, s34, {XBUF}
v_add_u32 v10, s35, v9
s_xor_b32 s34, s34, 1
s_mul_i32 s35, s34, {XBUF}
s_cmp_ge_u32 s40, {ntiles-1}
s_cbranch_scc1 L_{tag}_nost''')
    for i in range(5): k(f'v_add_u32 v11, s35, v{3+i}\nds_write_b128 v11, {v(STG+4*i,4)}')
    k(f'''s_waitcnt lgkmcnt(0)
s_cmp_ge_u32 s40, {ntiles-2}
s_cbranch_scc1 L_{tag}_nost
s_add_u32 s34, s40, 2
s_add_u32 s34, s34, s47
s_mul_i32 s34, s34, 40960''')
    for i in range(5):
        k(f'buffer_load_dwordx4 {v(STG+4*i,4)}, v2, {xsrd}, s34 offen{xsc}')
        if i < 4: k('s_add_u32 s34, s34, 8192')
    k(f'L_{tag}_nost:')
    if nwaves < 8: k(f's_cmp_ge_u32 s{SW}, {nwaves}\ns_cbranch_scc1 L_{tag}_idle')
    variants = typ if isinstance(typ, (list, tuple)) else [typ]
    for vi, t in enumerate(variants):
        if len(variants) > 1 and vi == 0: k(f's_cmp_eq_u32 s42, 2\ns_cbranch_scc1 L_{tag}_v1')
        if vi == 1: k(f'L_{tag}_v1:')
        for i in range(2): k(f'ds_read_b128 {v(XF+4*i,4)}, v10 offset:{i*32}')
        for ks in range(40):
            if ks + 2 < 40: k(f'ds_read_b128 {v(XF+4*((ks+2)%3),4)}, v10 offset:{(ks+2)*32}')
            k(f's_waitcnt lgkmcnt({2 if ks + 2 < 40 else (1 if ks + 1 < 40 else 0)})')
            c = '0' if ks == 0 else v(ACC, 16)
            w, x = v(PW+4*ks, 4), v(XF+4*(ks % 3), 4)
            k(f'v_mfma_f32_32x32x16_bf16 {v(ACC,16)}, {w if t != "V" else x}, {x if t != "V" else w}, {c}')
        epilogue(t)
        if len(variants) > 1 and vi == 0: k(f's_branch L_{tag}_skip')
    k(f'''L_{tag}_skip:
s_waitcnt vmcnt({epilogue("nst")})
s_branch L_{tag}_bar
L_{tag}_idle:
s_waitcnt vmcnt(0)
L_{tag}_bar:
s_barrier
s_add_u32 s40, s40, 1
s_cmp_lt_u32 s40, {ntiles}
s_cbranch_scc1 L_{tag}_loop
s_waitcnt vmcnt(0)''')

BMODE = 0
SLEEP = 0
mark = lambda k, n: None
def b_role(k):
    SC_, SM_ = 41, 42
    cB = f32bits(20**-0.5 * math.log2(math.e))
    k('L_brole:')
    help_prefetch(k)
    k(f'''
{''.join(['s_sleep 127' + chr(10)] * SLEEP)}s_load_dwordx2 s[4:5], s[0:1], 64
s_load_dwordx2 s[6:7], s[0:1], 56
s_waitcnt lgkmcnt(0)''')
    srd(k, 16, 4, 640*3840)
    srd(k, 20, 6, 2048*1280)
    k(f'''s_cmp_ge_u32 s{SC_}, {48 if BMODE != 2 else 0}
s_cbranch_scc1 L_b2v
; B1: gs = c % 12 (m = gs / 4, head octet = gs % 4), token quarter = c / 12
s_mul_i32 s34, s{SC_}, 43
s_lshr_b32 s34, s34, 9
s_mul_i32 s35, s34, 12
s_sub_u32 s35, s{SC_}, s35
s_lshl_b32 s47, s34, 4
s_lshr_b32 s{SM_}, s35, 2
s_and_b32 s43, s35, 3
s_mul_i32 s46, s{SM_}, 1280
s_mul_i32 s34, s43, 320
s_add_u32 s46, s46, s34''')
    def ep1(t):
        if t == 'nst': return 2
        if t == 'setup':
            k(f'''s_lshl_b32 s34, s43, 3
s_add_u32 s34, s34, s{SW}             ; head
s_lshl_b32 s34, s34, 17
s_mov_b32 s35, {QB >> 20}
s_cmp_eq_u32 s{SM_}, 0
s_cselect_b32 s35, s35, {KB >> 20}
s_cmp_eq_u32 s{SM_}, 2
s_cselect_b32 s35, {VB >> 20}, s35
s_lshl_b32 s35, s35, 20
s_add_u32 s44, s34, s35
v_lshlrev_b32 v8, 4, v1
s_mov_b32 s48, {cB:#x}
s_cmp_eq_u32 s{SM_}, 0
s_cselect_b32 s48, s48, 1.0
s_cselect_b32 s49, 0, 0x3f80
s_mov_b32 s50, 0
s_mov_b32 s51, -1
v_and_b32 v12, 31, v1
v_cmp_gt_u32 vcc, 20, v12
s_mov_b64 s[52:53], vcc
v_cmp_eq_u32 vcc, 20, v12
v_mov_b32 v13, 0x3f803f80
v_cndmask_b32 v13, 0, v13, vcc''')
            return
        if t == 'K':
            for i in range(12): k(f'v_mul_f32 v{ACC+i}, s48, v{ACC+i}')
            for n in range(6): k(f'v_cvt_pk_bf16_f32 v{224+n}, v{ACC+2*n}, v{ACC+2*n+1}')
            k(f'''v_mov_b32 v12, s49
v_cndmask_b32 v228, v228, v12, s[50:51]
v_cndmask_b32 v229, v229, 0, s[50:51]
v_mov_b32 v230, 0
v_mov_b32 v231, 0''')
        else:
            for n in range(8): k(f'v_cvt_pk_bf16_f32 v{224+n}, v{ACC+2*n}, v{ACC+2*n+1}')
            for n in range(8): k(f'v_cndmask_b32 v{224+n}, v13, v{224+n}, s[52:53]')
        k(f'''s_add_u32 s34, s40, s47
s_lshl_b32 s34, s34, 11
s_add_u32 s34, s34, s44
buffer_store_dwordx4 v[224:227], v8, {WS}, s34 offen sc1
buffer_store_dwordx4 v[228:231], v8, {WS}, s34 offen offset:1024 sc1''')
    stat_gemm(k, 'b1', 40, 3840, 's[20:23]', '', 16, ['K', 'V'], ep1, 8)
    k(f'''s_barrier
s_cmp_lg_u32 s{SW}, 0
s_cbranch_scc1 L_b2
s_lshl_b32 s34, s{SC_}, 2
s_add_u32 s34, s34, {F_B1}
v_mov_b32 v10, s34
v_mov_b32 v11, 1
s_mov_b64 exec, 1
buffer_store_dword v11, v10, {WS}, 0 offen sc1
s_mov_b64 exec, -1''')
    Q, O, KV, SA, SB, P, M, T = 16, 48, 112, 144, 160, 176, 184, 188
    k('s_branch L_b2\nL_b2v:')
    validate(k)
    if BMODE == 1: k('L_b2:\ns_branch L_end\nL_b2x:')
    k(f'''{'L_b2:' if BMODE != 1 else ''}
v_lshlrev_b32 v10, 2, v1
v_add_u32 v10, {F_B1}, v10
s_mov_b32 s36, 1''')
    if BMODE != 2: flag_wait(k, 'b1w', 10, 48, 36)
    mark(k, 1)
    k(f'''s_lshr_b32 s43, s{SC_}, 1             ; head
s_and_b32 s44, s{SC_}, 1
s_lshl_b32 s34, s43, 17
v_lshlrev_b32 v2, 4, v1
v_add_u32 v3, s34, v2
s_lshl_b32 s35, s44, 5
s_lshl_b32 s36, s{SW}, 2
s_add_u32 s35, s35, s36
s_lshl_b32 s36, s35, 11
s_add_u32 s36, s36, {QB}''')
    for qb in range(4):
        for ks in range(2): k(f'buffer_load_dwordx4 {v(Q+8*qb+4*ks,4)}, v3, {WS}, s36 offen offset:{ks*1024} sc1')
        if qb < 3: k('s_add_u32 s36, s36, 2048')
    k(f'''s_mov_b32 s45, s35
s_lshl_b32 s46, s{SW}, 11             ; w*2048
v_add_u32 v4, s46, v3''')
    def dma(chunk_sreg):
        k(f'''s_and_b32 s34, s{chunk_sreg}, 1
s_lshl_b32 s34, s34, 15
s_add_u32 s34, s34, s46
s_mov_b32 m0, s34
s_lshl_b32 s35, s{chunk_sreg}, 14
s_add_u32 s36, s35, {KB}
buffer_load_dwordx4 v4, {WS}, s36 offen sc1 lds
buffer_load_dwordx4 v4, {WS}, s36 offen offset:1024 sc1 lds
s_add_u32 m0, s34, 16384
s_add_u32 s36, s35, {VB}
buffer_load_dwordx4 v4, {WS}, s36 offen sc1 lds
buffer_load_dwordx4 v4, {WS}, s36 offen offset:1024 sc1 lds''')
    k('s_mov_b32 s40, 0')
    dma(40)
    for i in range(64): k(f'v_mov_b32 v{O+i}, 0')
    for i in range(4): k(f'v_mov_b32 v{M+i}, 0')
    k(f'''s_mov_b32 s50, 0
s_mov_b32 s51, -1                     ; lanes 32..63
s_mov_b32 s52, 0xff800000
s_mov_b32 s53, 0xff800000
L_b2_chunk:
s_waitcnt vmcnt(0)
s_barrier
s_cmp_ge_u32 s40, 7
s_cbranch_scc1 L_b2_nodma
s_add_u32 s37, s40, 1''')
    dma(37)
    k(f'''L_b2_nodma:
s_and_b32 s34, s40, 1
s_lshl_b32 s34, s34, 15
v_add_u32 v5, s34, v2
s_mov_b32 s47, 0''')
    def kvread(setn, kbl):
        for ks in range(2): k(f'ds_read_b128 {v(KV+16*setn+4*ks,4)}, v5 offset:{kbl*2048 + ks*1024}')
        for kk in range(2): k(f'ds_read_b128 {v(KV+16*setn+8+4*kk,4)}, v5 offset:{16384 + kbl*2048 + kk*1024}')
    def smfma(dst, setn, qb):
        k(f'v_mfma_f32_32x32x16_bf16 {v(dst,16)}, {v(KV+16*setn,4)}, {v(Q+8*qb,4)}, 0')
        k(f'v_mfma_f32_32x32x16_bf16 {v(dst,16)}, {v(KV+16*setn+4,4)}, {v(Q+8*qb+4,4)}, {v(dst,16)}')
    rare = []
    kvread(0, 0)
    k('s_waitcnt lgkmcnt(0)')
    smfma(SA, 0, 0)
    k('L_b2_pair:')
    for par in range(2):
        for qb in range(4):
            cur, nxt = (SA, SB) if qb % 2 == 0 else (SB, SA)
            if qb == 0:
                if par == 0: kvread(1, 1)
                else:
                    k('v_add_u32 v5, 4096, v5')
                    lab = k.lab('b2nr')
                    k(f's_cmp_eq_u32 s47, 3\ns_cbranch_scc1 {lab}')
                    kvread(0, 0)
                    k(f'{lab}:')
            if qb < 3: smfma(nxt, par, qb + 1)
            else:
                if par == 0:
                    k('s_waitcnt lgkmcnt(0)'); smfma(nxt, 1, 0)
                else:
                    lab = k.lab('b2ns')
                    k(f's_waitcnt lgkmcnt(0)\ns_cmp_eq_u32 s47, 3\ns_cbranch_scc1 {lab}')
                    smfma(nxt, 0, 0)
                    k(f'{lab}:')
            k(f'v_max3_f32 v{T}, v{cur}, v{cur+1}, v{cur+2}')
            for n in range(6): k(f'v_max3_f32 v{T}, v{T}, v{cur+3+2*n}, v{cur+4+2*n}')
            k(f'v_max_f32 v{T}, v{T}, v{cur+15}')
            R, B = k.lab('b2r'), k.lab('b2b')
            k(f'v_cmp_lt_f32 vcc, s52, v{T}\ns_cbranch_vccnz {R}\n{B}:')
            rare.append((R, B, cur, qb))
            for i in range(16): k(f'v_exp_f32 v{cur+i}, v{cur+i}')
            for n in range(8): k(f'v_cvt_pk_bf16_f32 v{P+n}, v{cur+2*n}, v{cur+2*n+1}')
            for kk in range(2):
                k(f'v_mfma_f32_32x32x16_bf16 {v(O+16*qb,16)}, {v(KV+16*par+8+4*kk,4)}, {v(P+4*kk,4)}, {v(O+16*qb,16)}')
        if par == 0: k('s_mov_b32 s52, 0x41200000\ns_mov_b32 s53, 0')
    k(f'''s_add_u32 s47, s47, 1
s_cmp_lt_u32 s47, 4
s_cbranch_scc1 L_b2_pair
s_add_u32 s40, s40, 1
s_cmp_lt_u32 s40, 8
s_cbranch_scc1 L_b2_chunk
s_branch L_b2_done''')
    for R, B, cur, qb in rare:
        k(f'''{R}:
v_mov_b32 v{T+1}, v{T}
v_permlane32_swap_b32 v{T}, v{T+1}
v_max_f32 v{T}, v{T}, v{T+1}
v_max_f32 v{T}, s53, v{T}
v_add_f32 v{T}, v{M+qb}, v{T}
v_cvt_pk_bf16_f32 v{T+1}, v{T}, v{T}
v_lshlrev_b32 v{T}, 16, v{T+1}
v_sub_f32 v{T+2}, v{T}, v{M+qb}
v_mov_b32 v{M+qb}, v{T}
v_and_b32 v{T+1}, 0xffff, v{T+1}
v_xor_b32 v{T+1}, 0x8000, v{T+1}
v_cndmask_b32 v{Q+8*qb+4}, v{Q+8*qb+4}, v{T+1}, s[50:51]''')
        for i in range(16): k(f'v_sub_f32 v{cur+i}, v{cur+i}, v{T+2}')
        k(f'v_sub_f32 v{T+2}, 0, v{T+2}\nv_exp_f32 v{T+2}, v{T+2}')
        for i in range(16): k(f'v_mul_f32 v{O+16*qb+i}, v{O+16*qb+i}, v{T+2}')
        k(f's_branch {B}')
    k('L_b2_done:')
    mark(k, 2)
    k(f'''v_and_b32 v10, 31, v1
v_lshrrev_b32 v11, 5, v1
v_mul_u32_u24 v10, 1280, v10
v_lshl_add_u32 v10, v11, 3, v10
s_mul_i32 s34, s43, 40
s_mul_i32 s35, s45, {32*1280}
s_add_u32 s34, s34, s35
s_add_u32 s34, s34, {OB}''')
    for qb in range(4):
        o = O + 16*qb
        k(f'''v_mov_b32 v{T}, v{o+8}
v_mov_b32 v{T+1}, v{o+8}
v_permlane32_swap_b32 v{T}, v{T+1}
v_rcp_f32 v{T+1}, v{T+1}''')
        for a in range(3):
            for b in range(4): k(f'v_mul_f32 v{o+4*a+b}, v{o+4*a+b}, v{T+1}')
            k(f'v_cvt_pk_bf16_f32 v{P+2*a}, v{o+4*a}, v{o+4*a+1}\nv_cvt_pk_bf16_f32 v{P+2*a+1}, v{o+4*a+2}, v{o+4*a+3}')
        k(f'''buffer_store_dwordx2 {v(P,2)}, v10, {WS}, s34 offen
buffer_store_dwordx2 {v(P+2,2)}, v10, {WS}, s34 offen offset:16
s_mov_b32 exec_hi, 0
buffer_store_dwordx2 {v(P+4,2)}, v10, {WS}, s34 offen offset:32
s_mov_b32 exec_hi, -1
s_add_u32 s34, s34, {32*1280}''')
    k(f'''s_waitcnt vmcnt(0)
s_barrier
s_cmp_lg_u32 s{SW}, 0
s_cbranch_scc1 L_b3
buffer_wbl2 sc1
s_waitcnt vmcnt(0)
s_lshl_b32 s34, s{SC_}, 2
s_add_u32 s34, s34, {F_B2}
v_mov_b32 v10, s34
v_mov_b32 v11, 1
s_mov_b64 exec, 1
buffer_store_dword v11, v10, {WS}, 0 offen sc1
s_mov_b64 exec, -1
L_b3:
s_load_dwordx2 s[4:5], s[0:1], 72
s_load_dwordx2 s[6:7], s[0:1], 80
s_waitcnt lgkmcnt(0)''')
    srd(k, 16, 4, 640*1280)
    srd(k, 24, 6, 2048*2560)
    k(f'''s_mov_b32 s20, s8
s_mov_b32 s21, s9
s_add_u32 s20, s20, {OB}
s_addc_u32 s21, s21, 0
s_mov_b32 s22, {2048*1280}
s_mov_b32 s23, 0x20000
v_lshlrev_b32 v10, 2, v1
v_add_u32 v10, {F_B2}, v10
s_mov_b32 s36, 1''')
    flag_wait(k, 'b2w', 10, 64, 36)
    k(f'''s_and_b32 s43, s{SC_}, 3
s_lshr_b32 s34, s{SC_}, 2
s_lshl_b32 s47, s34, 2
s_mul_i32 s46, s43, 320''')
    def ep3(t):
        if t == 'nst': return 4
        if t == 'setup':
            k(f'''v_and_b32 v12, 31, v1
v_lshrrev_b32 v13, 5, v1
v_mul_u32_u24 v12, 2560, v12
v_lshl_add_u32 v12, v13, 3, v12
s_mul_i32 s34, s43, 320
s_lshl_b32 s35, s{SW}, 6
s_add_u32 s34, s34, s35
s_add_u32 s34, s34, 1280
v_add_u32 v8, s34, v12''')
            return
        for n in range(8): k(f'v_cvt_pk_bf16_f32 v{224+n}, v{ACC+2*n}, v{ACC+2*n+1}')
        k(f's_add_u32 s34, s40, s47\ns_mul_i32 s34, s34, {32*2560}')
        for a in range(4): k(f'buffer_store_dwordx2 {v(224+2*a,2)}, v8, s[24:27], s34 offen offset:{16*a}')
    stat_gemm(k, 'b3', 64, 1280, 's[20:23]', ' sc1', 4, 'O', ep3, 5)
    k('s_branch L_end')
```

```python
from dsl import v, s
from layout import *
WS = 's[8:11]'
SX, SR, SW, SLIM = 28, 29, 30, 33
PW = 16
ACC2 = [176, 192]
STG2 = [208, 228]
XFR = [12, 248, 252]
XBUF = 41472

def srd(k, base, ptr, nbytes):
    k(f'''s_mov_b32 s{base}, s{ptr}
s_and_b32 s{base+1}, s{ptr+1}, 0xffff
s_mov_b32 s{base+2}, {nbytes:#x}
s_mov_b32 s{base+3}, 0x20000''')

mark = lambda k, n: None
LITE = 0
def proj_role(k):
    SP, SM_, SHP, SSEG, SOUT, SFLAG = 41, 42, 43, 40, 44, 45
    k(f'''
L_proj:
s_lshr_b32 s{SM_}, s{SP}, 4
s_and_b32 s{SHP}, s{SP}, 15
s_lshl_b32 s34, s{SM_}, 3
s_add_u32 s34, s34, 16
s_load_dwordx2 s[4:5], s[0:1], s34
s_load_dwordx2 s[6:7], s[0:1], 0
s_waitcnt lgkmcnt(0)''')
    srd(k, 16, 4, 640*8192)
    srd(k, 20, 6, 2048*1280)
    k('v_lshlrev_b32 v2, 4, v0')
    for i in range(5):
        k(f'''v_add_u32 v10, {512*i}, v0
v_mul_u32_u24 v11, 52429, v10
v_lshrrev_b32 v11, 22, v11
v_add_u32 v11, v11, v10
v_lshlrev_b32 v{3+i}, 4, v11''')
    for sg in range(2):
        for i in range(5):
            k(f's_mov_b32 s34, {sg*40960 + i*8192}\nbuffer_load_dwordx4 {v(STG2[sg]+4*i,4)}, v2, s[20:23], s34 offen')
    k(f'''v_lshrrev_b32 v10, 5, v0
v_and_b32 v11, 31, v0
v_lshlrev_b32 v12, 13, v10
v_lshl_add_u32 v12, v11, 4, v12
s_lshl_b32 s34, s{SHP}, 9
v_add_u32 v12, s34, v12
v_and_b32 v13, 3, v10
v_lshlrev_b32 v13, 1, v13
v_lshrrev_b32 v14, 1, v11
v_add_u32 v13, v13, v14
v_and_b32 v13, 15, v13
v_lshlrev_b32 v13, 5, v13
v_and_b32 v14, 1, v11
v_lshl_add_u32 v13, v14, 4, v13
v_lshl_add_u32 v13, v10, 9, v13
v_lshrrev_b32 v10, 4, v1
v_lshrrev_b32 v11, 1, v10             ; g2
v_and_b32 v10, 1, v10                 ; nh
v_bfe_u32 v14, v1, 2, 2               ; rr
v_lshl_add_u32 v11, v11, 3, v14
v_lshlrev_b32 v11, 9, v11
v_lshl_add_u32 v10, v14, 1, v10
s_lshl_b32 s34, s{SW}, 1
v_add_u32 v10, s34, v10
v_and_b32 v10, 15, v10
v_lshl_add_u32 v11, v10, 5, v11
v_and_b32 v10, 3, v1
v_lshl_add_u32 v14, v10, 3, v11''')
    raw = lambda c: PW + 16*(c + 1)
    for c in range(10):
        for kk in range(4):
            k(f's_mov_b32 s34, {(64*c + 16*kk)*8192}\nbuffer_load_dwordx4 {v(raw(c)+4*kk,4)}, v12, s[16:19], s34 offen')
    for c in range(10):
        buf = (c % 2)*32768
        k(f's_waitcnt vmcnt({36 - 4*c})')
        for kk in range(4): k(f'ds_write_b128 v13, {v(raw(c)+4*kk,4)} offset:{buf + kk*8192}')
        k('s_waitcnt lgkmcnt(0)\ns_barrier')
        for ksl in range(4):
            for hh in range(2):
                k(f'ds_read_b64_tr_b16 {v(PW + 4*(4*c+ksl) + 2*hh, 2)}, v14 offset:{buf + ksl*8192 + hh*2048}')
        k('s_waitcnt lgkmcnt(0)')
    k('s_barrier')
    k(f'''s_lshr_b32 s34, s{SW}, 2
s_lshl_b32 s35, s{SHP}, 1
s_add_u32 s34, s34, s35               ; head
s_lshl_b32 s34, s34, 13
s_and_b32 s35, s{SW}, 3               ; e group
v_lshrrev_b32 v10, 5, v1              ; hi
v_and_b32 v11, 15, v1
v_lshl_add_u32 v11, v10, 4, v11
v_lshlrev_b32 v11, 4, v11
v_bfe_u32 v10, v1, 4, 1
s_cmp_eq_u32 s{SM_}, 2
s_cbranch_scc1 L_pj_ov
s_lshl_b32 s35, s35, 10
v_lshl_add_u32 v11, v10, 12, v11
s_branch L_pj_od
L_pj_ov:
s_lshl_b32 s35, s35, 11
v_lshl_add_u32 v11, v10, 10, v11
L_pj_od:
s_add_u32 s34, s34, s35
v_add_u32 v8, s34, v11
s_add_u32 s35, s{SM_}, 2
s_cmp_eq_u32 s{SM_}, 0
s_cselect_b32 s35, 3, s{SM_}
s_lshl_b32 s{SOUT}, s35, 24
s_lshl_b32 s{SFLAG}, s{SP}, 2
v_and_b32 v10, 31, v1
v_mul_u32_u24 v10, 1296, v10
v_lshrrev_b32 v11, 5, v1
v_lshl_add_u32 v9, v11, 4, v10
s_waitcnt vmcnt(0)''')
    for i in range(5): k(f'ds_write_b128 v{3+i}, {v(STG2[0]+4*i,4)}')
    k('s_waitcnt lgkmcnt(0)')
    for i in range(5):
        k(f's_mov_b32 s34, {2*40960 + i*8192}\nbuffer_load_dwordx4 {v(STG2[0]+4*i,4)}, v2, s[20:23], s34 offen')
    validate(k)
    mark(k, 1)
    k(f's_mov_b32 s{SSEG}, 0\ns_barrier\ns_cmp_eq_u32 s{SM_}, 2\ns_cbranch_scc1 L_pj_loopV')
    def pack_ops(typ, acc):
        order = [(0, 0), (0, 1), (1, 0), (1, 1), (2, 0), (2, 1), (3, 0), (3, 1)] if typ == 'K' else [(0, 0), (0, 1), (2, 0), (2, 1), (1, 0), (1, 1), (3, 0), (3, 1)]
        return [f'v_cvt_pk_bf16_f32 v{acc+n}, v{acc+4*a+2*h}, v{acc+4*a+2*h+1}' for n, (a, h) in enumerate(order)]
    def flag(val):
        lab = k.lab('pjf')
        k(f'''s_cmp_lg_u32 s{SW}, 0
s_cbranch_scc1 {lab}
v_mov_b32 v10, s{SFLAG}
v_mov_b32 v11, {val}
s_mov_b64 exec, 1
buffer_store_dword v11, v10, {WS}, 0 offen sc1
s_mov_b64 exec, -1
{lab}:''')
    for typ in ('K', 'V'):
        k(f'L_pj_loop{typ}:')
        for par in range(2):
            acc, prev = ACC2[par], ACC2[1 - par]
            stg = STG2[1 - par]
            rb, wb = par*XBUF, (1 - par)*XBUF
            k(f'''s_add_u32 s34, s{SSEG}, 3
s_min_u32 s34, s34, 63
s_mul_i32 s46, s34, 40960
s_sub_u32 s34, s{SSEG}, 1
s_lshl_b32 s47, s34, 18
s_add_u32 s47, s47, s{SOUT}''')
            fill = {}
            pk = pack_ops(typ, prev)
            for i in range(5): fill[1 + 2*i] = [f'ds_write_b128 v{3+i}, {v(stg+4*i,4)} offset:{wb}']
            fill[2] = pk[0:2]; fill[4] = pk[2:4]; fill[6] = pk[4:6]; fill[8] = pk[6:8]
            st = [f'buffer_store_dwordx4 v[{prev}:{prev+3}], v8, {WS}, s47 offen sc1', f'buffer_store_dwordx4 v[{prev+4}:{prev+7}], v8, {WS}, s47 offen offset:512 sc1']
            for i in range(5): fill[11 + i] = [f's_add_u32 s48, s46, {i*8192}', f'buffer_load_dwordx4 {v(stg+4*i,4)}, v2, s[20:23], s48 offen']
            for i in range(2): k(f'ds_read_b128 {v(XFR[i],4)}, v9 offset:{rb + i*32}')
            for ks in range(40):
                if ks + 2 < 40: k(f'ds_read_b128 {v(XFR[(ks+2)%3],4)}, v9 offset:{rb + (ks+2)*32}')
                k(f's_waitcnt lgkmcnt({2 if ks + 2 < 40 else (1 if ks + 1 < 40 else 0)})')
                c = '0' if ks == 0 else v(acc, 16)
                w, x = v(PW+4*ks, 4), v(XFR[ks % 3], 4)
                k(f'v_mfma_f32_32x32x16_bf16 {v(acc,16)}, {w if typ == "K" else x}, {x if typ == "K" else w}, {c}')
                for f in fill.get(ks, []): k(f)
                if ks == 10:
                    lab = k.lab('pjs')
                    k(f's_cmp_eq_u32 s{SSEG}, 0\ns_cbranch_scc1 {lab}')
                    for f in st: k(f)
                    k(f'{lab}:')
            k('s_waitcnt vmcnt(5)\ns_barrier')
            flag(f's{SSEG}')
            if LITE:
                l1, l2 = k.lab('lt'), k.lab('lt')
                k(f'''s_cmp_eq_u32 s{SSEG}, 8
s_cbranch_scc0 {l1}
s_memrealtime s[90:91]
s_memtime s[94:95]
s_waitcnt lgkmcnt(0)
{l1}:
s_cmp_eq_u32 s{SSEG}, 56
s_cbranch_scc0 {l2}
s_memrealtime s[92:93]
s_memtime s[96:97]
s_waitcnt lgkmcnt(0)
{l2}:''')
            k(f's_add_u32 s{SSEG}, s{SSEG}, 1')
            if par == 1: k(f's_cmp_lt_u32 s{SSEG}, 64\ns_cbranch_scc1 L_pj_loop{typ}')
        for f in pack_ops(typ, ACC2[1]): k(f)
        k(f'''s_mov_b32 s47, 63
s_lshl_b32 s47, s47, 18
s_add_u32 s47, s47, s{SOUT}
buffer_store_dwordx4 v[{ACC2[1]}:{ACC2[1]+3}], v8, {WS}, s47 offen sc1
buffer_store_dwordx4 v[{ACC2[1]+4}:{ACC2[1]+7}], v8, {WS}, s47 offen offset:512 sc1
s_waitcnt vmcnt(0)
s_barrier''')
        flag('64')
        if LITE:
            k(f'''s_sub_u32 s34, s92, s90
v_mov_b32 v12, s34
s_lshl_b32 s34, s{SX}, 5
s_add_u32 s34, s34, s{SR}
s_lshl_b32 s34, s34, 3
s_add_u32 s34, s34, s{SW}
s_lshl_b32 s34, s34, 2
s_add_u32 s34, s34, 0x8800000
v_mov_b32 v10, s34
buffer_store_dword v12, v10, {WS}, 0 offen
s_sub_u32 s34, s96, s94
v_mov_b32 v12, s34
v_add_u32 v10, 0x10000, v10
buffer_store_dword v12, v10, {WS}, 0 offen''')
        k('s_branch L_end')
```

```python
import sys, math, struct
from dsl import Kern, v, s
from layout import *
from proj import proj_role
from attout import att_role, out_role
from brole import b_role

def f32bits(x): return struct.unpack('<I', struct.pack('<f', x))[0]

WS, DBG = 's[8:11]', 's[12:15]'
SX, SR, SW, SSLOW, SPAR, SLIM = 28, 29, 30, 31, 32, 33
SXCC, SRANK = 98, 99
SSTEP = 40
POLL_LIMIT = 1 << 17

def srd(k, base, ptr, nbytes):
    k(f'''s_mov_b32 s{base}, s{ptr}
s_and_b32 s{base+1}, s{ptr+1}, 0xffff
s_mov_b32 s{base+2}, {nbytes:#x}
s_mov_b32 s{base+3}, 0x20000''')

def poll(k, name, loads, check, cnt=39, sleep=0):
    L, D = k.lab(name), k.lab(name + 'd')
    k(f's_mov_b32 s{cnt}, 0\n{L}:')
    loads()
    k('s_waitcnt vmcnt(0)')
    check()
    k(f's_cbranch_vccz {D}')
    if sleep: k(f's_sleep {sleep}')
    k(f'''s_add_u32 s{cnt}, s{cnt}, 1
s_cmp_lt_u32 s{cnt}, s{SLIM}
s_cbranch_scc1 {L}
s_mov_b32 s{SLIM}, 0
{D}:''')

def umax_check(k, regs, tmp):
    r = list(regs)
    if len(r) == 1:
        k(f'v_cmp_eq_u32 vcc, -1, v{r[0]}'); return
    if len(r) == 2:
        k(f'v_max_u32 v{tmp}, v{r[0]}, v{r[1]}'); r = []
    else:
        k(f'v_max3_u32 v{tmp}, v{r[0]}, v{r[1]}, v{r[2]}'); r = r[3:]
    while len(r) >= 2:
        k(f'v_max3_u32 v{tmp}, v{tmp}, v{r[0]}, v{r[1]}'); r = r[2:]
    if r: k(f'v_max_u32 v{tmp}, v{tmp}, v{r[0]}')
    k(f'v_cmp_eq_u32 vcc, -1, v{tmp}')

TL = False
DBGST = False
def dstamp(k, word, cond_x, cond_r, wave=0):
    if not DBGST: return
    L = k.lab('ds')
    k(f'''s_cmp_lg_u32 s{SX}, {cond_x}
s_cbranch_scc1 {L}
s_cmp_lg_u32 s{SR}, {cond_r}
s_cbranch_scc1 {L}
s_cmp_lg_u32 s{SW}, {wave}
s_cbranch_scc1 {L}
s_memrealtime s[82:83]
s_waitcnt lgkmcnt(0)
v_mov_b32 v252, s82
v_mov_b32 v253, {word*4}
s_mov_b64 exec, 1
buffer_store_dword v252, v253, {DBG}, 0 offen
s_mov_b64 exec, -1
{L}:''')

def mark(k, n):
    if TL: k(f's_memrealtime s[82:83]\ns_waitcnt lgkmcnt(0)\ns_mov_b32 s{85+n}, s82')

def start_phase(k, keepflags=False):
    k(f'''
s_cmp_ge_u32 s2, 256
s_cbranch_scc1 L_exit
{'s_memrealtime s[84:85]' if TL else ''}
s_load_dwordx4 s[4:7], s[0:1], 88
s_getreg_b32 s{SXCC}, hwreg(HW_REG_XCC_ID)
s_and_b32 s{SXCC}, s{SXCC}, 15
v_and_b32 v1, 63, v0
v_lshrrev_b32 v2, 6, v0
v_readfirstlane_b32 s{SW}, v2
s_waitcnt lgkmcnt(0)''')
    srd(k, 8, 6, WS_BYTES)
    srd(k, 12, 4, 256)
    k(f'''
s_mov_b32 s{SLIM}, {POLL_LIMIT}
s_mov_b32 s{SSLOW}, 0
v_mov_b32 v9, 0
s_cmp_lg_u32 s{SW}, 0
s_cbranch_scc1 L_st_clr
s_lshl_b32 s35, s{SXCC}, 4
v_mov_b32 v8, s35
v_mov_b32 v9, 1
s_mov_b64 exec, 1
buffer_atomic_add v9, v8, {DBG}, 0 offen sc0
s_mov_b64 exec, -1
L_st_clr:
s_lshl_b32 s35, s2, 14
s_cmp_lt_u32 s35, 0x10000
s_cselect_b32 s36, 0, -1
v_mov_b32 v4, s36
v_mov_b32 v5, s36
v_mov_b32 v6, s36
v_mov_b32 v7, s36
v_lshlrev_b32 v2, 4, v0
s_add_u32 s36, s35, 8192
{'s_cmp_lt_u32 s35, 0x10000' if keepflags else ''}
{'s_cbranch_scc1 L_st_noclr' if keepflags else ''}
buffer_store_dwordx4 v[4:7], v2, {WS}, s35 offen sc1
buffer_store_dwordx4 v[4:7], v2, {WS}, s36 offen sc1
L_st_noclr:
s_cmp_lg_u32 s{SW}, 0
s_cbranch_scc1 L_st_w1
s_waitcnt vmcnt(2)
v_readfirstlane_b32 s35, v9
v_mov_b32 v4, s35
v_mov_b32 v8, 0
ds_write_b32 v8, v4
s_waitcnt lgkmcnt(0)
L_st_w1:
s_barrier
v_mov_b32 v8, 0
ds_read_b32 v4, v8
s_waitcnt lgkmcnt(0)
v_readfirstlane_b32 s{SRANK}, v4
s_min_u32 s{SR}, s{SRANK}, 31
s_and_b32 s{SX}, s{SXCC}, 7
s_waitcnt vmcnt(0)
s_barrier
s_cmp_lg_u32 s{SW}, 0
s_cbranch_scc1 L_dispatch
s_lshl_b32 s35, s{SXCC}, 4
s_add_u32 s35, s35, 8
v_mov_b32 v8, s35
v_mov_b32 v9, 1
s_mov_b64 exec, 1
buffer_atomic_add v9, v8, {DBG}, 0 offen
s_mov_b64 exec, -1
L_dispatch:''')
    dstamp(k, 15, 0, 0)
    if TL: k('s_memrealtime s[82:83]\ns_mov_b32 s86, 0\ns_mov_b32 s87, 0\ns_waitcnt lgkmcnt(0)\ns_mov_b32 s85, s82')

def validate(k, need_par=False):
    L, G, OK = k.lab('val'), k.lab('valg'), k.lab('valok')
    k(f'''s_cmp_lg_u32 s{SSLOW}, 0
s_cbranch_scc1 {OK}
v_lshlrev_b32 v10, 2, v1
s_mov_b32 s39, 0
{L}:
buffer_load_dword v11, v10, {DBG}, 0 offen sc1
s_waitcnt vmcnt(0)
s_mov_b32 s36, 0
s_mov_b32 s37, 0
s_mov_b32 s38, 0
s_mov_b32 s34, 0''')
    for i in range(16):
        k(f'''v_readlane_b32 s35, v11, {4*i+2}
s_add_u32 s38, s38, s35
v_readlane_b32 s35, v11, {4*i}
s_add_u32 s36, s36, s35
s_cmp_eq_u32 s35, {32 if i < 8 else 0}
s_cselect_b32 s97, 0, 1
s_or_b32 s34, s34, s97
s_cmp_gt_u32 s{SXCC}, {i}
s_cselect_b32 s35, s35, 0
s_add_u32 s37, s37, s35''')
    k(f'''v_readlane_b32 s{SPAR}, v11, 1
s_cmp_eq_u32 s36, 256
s_cselect_b32 s35, s38, 0
s_cmp_eq_u32 s35, 256''')
    if need_par:
        k(f'''s_cselect_b32 s35, s{SPAR}, 0
s_or_b32 s97, s35, s34
s_cmp_eq_u32 s36, 256
s_cselect_b32 s97, s97, 0
s_cmp_eq_u32 s38, 256
s_cselect_b32 s97, s97, 0
s_cmp_lg_u32 s97, 0''')
    k(f'''s_cbranch_scc1 {G}
s_sleep 2
s_add_u32 s39, s39, 1
s_cmp_lt_u32 s39, s{SLIM}
s_cbranch_scc1 {L}
s_mov_b32 s{SLIM}, 0
{G}:
s_and_b32 s{SPAR}, s{SPAR}, 2
s_lshl_b32 s{SPAR}, s{SPAR}, 12
s_cmp_eq_u32 s34, 0
s_cbranch_scc1 {OK}
s_mov_b32 s{SSLOW}, 1
s_mov_b32 s{SPAR}, 0
s_add_u32 s37, s37, s{SRANK}
s_and_b32 s37, s37, 255
s_lshr_b32 s{SX}, s37, 5
s_and_b32 s{SR}, s37, 31
s_barrier
s_branch L_dispatch
{OK}:''')

def calibrate(k):
    k(f'''s_mov_b64 exec, 1
s_mov_b32 s36, -1
s_mov_b32 s37, -1''')
    for i in range(5):
        for par in range(2):
            k(f'''v_mov_b32 v8, {PART + 0x190000 + par*8192 + i*256:#x}
s_memtime s[44:45]
s_waitcnt lgkmcnt(0)
buffer_load_dword v9, v8, {WS}, 0 offen sc1
s_waitcnt vmcnt(0)
s_memtime s[46:47]
s_waitcnt lgkmcnt(0)
s_sub_u32 s38, s46, s44
s_min_u32 s{36+par}, s{36+par}, s38''')
    k(f'''s_cmp_lt_u32 s36, s37
s_cselect_b32 s38, 0, 1
s_cmp_ge_u32 s{SXCC}, 4
s_cselect_b32 s39, 1, 0
s_xor_b32 s38, s38, s39
s_add_u32 s38, s38, 1
v_mov_b32 v9, s38
v_mov_b32 v8, 4
buffer_store_dword v9, v8, {DBG}, 0 offen sc1
s_waitcnt vmcnt(0)
s_mov_b64 exec, -1''')

L_KV, L_MEMF, L_RED = 0, 65536, 65536 + 10240
V_MF = 10
V_MW = 11
VLANE16 = 2
V_A3 = 3
V_A4 = 4
V_A5 = 5
V_A6 = 6
V_A7 = 7
V_A9 = 9
V_IDX = 15
WO, KXR, VXR, QK, VM, S0, S1, SM = 16, 80, 112, 144, 160, 168, 172, 176
PX, PM, PM2, O, OB, OA, NEG = 180, 184, 186, 192, 224, 144, 240
W1, MF, DA, DB = 16, 176, 216, 220
S_HEAD, S_M, S_I, S_G, S_GI = 41, 42, 43, 44, 45
S_MEMN, S_MEMN4, S_MEMN8, S_MEMZ = 46, 47, 48, 49
S_QC, S_QC4, S_QZ = 50, 51, 52
S_PC, S_PZ = 53, 54
S_KP = 55
S_KXN, S_VXN = 56, 57
S_AVAIL = 58
S_KP4 = 59
M_LO8, M_EVEN, M_ODD = 72, 74, 76
S_C, S_NC = 78, 79

def chain_offsets(k, part):
    if 'q' in part:
        k(f"""s_and_b32 s34, s{SSTEP}, 3
s_mul_i32 s{S_QC}, s34, 196608
s_add_u32 s{S_QC}, s{S_QC}, {QKVR}""")
    if 'r' in part:
        k(f"""s_and_b32 s34, s{SSTEP}, 3
s_add_u32 s{S_QC4}, s{S_QC}, 4096
s_mul_i32 s{S_PC}, s34, {8*3*16384}
s_add_u32 s{S_PC}, s{S_PC}, {PART}
s_add_u32 s{S_PC}, s{S_PC}, s{SPAR}
s_add_u32 s35, s{SSTEP}, 2
s_and_b32 s35, s35, 3
s_mul_i32 s{S_QZ}, s35, 196608
s_add_u32 s{S_QZ}, s{S_QZ}, {QKVR}
s_mul_i32 s{S_PZ}, s35, {8*3*16384}
s_add_u32 s{S_PZ}, s{S_PZ}, {PART}
s_add_u32 s{S_PZ}, s{S_PZ}, s{SPAR}
s_mul_i32 s36, s{SX}, 10240
s_add_u32 s36, s36, {MEMR}
s_add_u32 s35, s{SSTEP}, 1
s_and_b32 s35, s35, 3
s_mul_i32 s{S_MEMN}, s35, 40960
s_add_u32 s{S_MEMN}, s{S_MEMN}, s36
s_add_u32 s{S_MEMN4}, s{S_MEMN}, 4096
s_add_u32 s{S_MEMN8}, s{S_MEMN}, 8192
s_add_u32 s35, s{SSTEP}, 3
s_and_b32 s35, s35, 3
s_mul_i32 s{S_MEMZ}, s35, 40960
s_add_u32 s{S_MEMZ}, s{S_MEMZ}, s36
s_mul_i32 s{S_KP}, s{SSTEP}, 196608
s_add_u32 s{S_KP}, s{S_KP}, {KVMP}
s_add_u32 s{S_KP4}, s{S_KP}, 4096
s_add_u32 s35, s{SSTEP}, 1
s_lshl_b32 s35, s35, 18
s_add_u32 s{S_KXN}, s35, {KX}
s_add_u32 s{S_VXN}, s35, {VX}""")

def kv_wait(k, need_sreg):
    D = k.lab('kvok')
    k(f's_cmp_ge_u32 s{S_AVAIL}, s{need_sreg}\ns_cbranch_scc1 {D}')
    L = k.lab('kvp')
    k(f"""s_mov_b32 s39, 0
{L}:
buffer_load_dword v13, v{V_A9}, {WS}, 0 offen sc1
s_waitcnt vmcnt(0)
v_readlane_b32 s34, v13, 0
v_readlane_b32 s35, v13, 1
s_min_u32 s{S_AVAIL}, s34, s35
s_cmp_ge_u32 s{S_AVAIL}, s{need_sreg}
s_cbranch_scc1 {D}
s_sleep 2
s_add_u32 s39, s39, 1
s_cmp_lt_u32 s39, s{SLIM}
s_cbranch_scc1 {L}
s_mov_b32 s{SLIM}, 0
{D}:""")

KVSC = ' sc1'
NOKV = False
def kv_loads(k, skx, svx):
    k(f's_add_u32 s34, s{skx}, 4096\ns_add_u32 s35, s{svx}, 4096')
    for i in range(8):
        k(f'buffer_load_dwordx4 {v(KXR+4*i,4)}, v{V_A4}, {WS}, s{skx if i < 4 else 34} offen offset:{(i%4)*1024}{KVSC}')
    for i in range(8):
        k(f'buffer_load_dwordx4 {v(VXR+4*i,4)}, v{V_A4}, {WS}, s{svx if i < 4 else 35} offen offset:{(i%4)*1024}{KVSC}')

def kv_dma(k, skx, svx):
    for part, sb in ((0, skx), (1, svx)):
        for hlf in range(2):
            k(f's_add_u32 m0, s60, {part*8192 + hlf*4096}')
            k(f's_add_u32 s34, s{sb}, {hlf*4096}')
            for i in range(4):
                k(f'buffer_load_dwordx4 v8, {WS}, s34 offen offset:{i*1024}{KVSC} lds')

def chain_prologue(k):
    k(f"""
L_chain:
; i = R % 12, gi = R / 12, hl = i / 3, m = i % 3
s_cmp_ge_u32 s{SR}, 12
s_cselect_b32 s{S_GI}, 1, 0
s_mul_i32 s34, s{S_GI}, 12
s_sub_u32 s{S_I}, s{SR}, s34
s_mul_i32 s34, s{S_I}, 11
s_lshr_b32 s34, s34, 5
s_mul_i32 s35, s34, 3
s_sub_u32 s{S_M}, s{S_I}, s35
s_lshl_b32 s{S_G}, s{SX}, 1
s_add_u32 s{S_G}, s{S_G}, s{S_GI}
s_lshl_b32 s35, s{S_G}, 2
s_add_u32 s{S_HEAD}, s35, s34
s_lshl_b32 s34, s{S_M}, 3
s_add_u32 s34, s34, 16
s_load_dwordx2 s[4:5], s[0:1], s34
s_load_dwordx2 s[6:7], s[0:1], 40
s_load_dwordx2 s[36:37], s[0:1], 8
s_waitcnt lgkmcnt(0)""")
    srd(k, 16, 4, 640*8192)
    srd(k, 20, 6, 4096*1280)
    srd(k, 24, 36, 8*1280)
    STG = 176
    k(f"""
v_lshlrev_b32 v{VLANE16}, 4, v1
s_mov_b32 s{M_LO8}, 0x00ff00ff
s_mov_b32 s{M_LO8+1}, 0x00ff00ff
s_mov_b32 s{M_EVEN}, 0x55555555
s_mov_b32 s{M_EVEN+1}, 0x55555555
s_mov_b32 s{M_ODD}, 0xaaaaaaaa
s_mov_b32 s{M_ODD+1}, 0xaaaaaaaa
s_mov_b32 s{S_C}, {f32bits(128**-0.5 * math.log2(math.e)):#x}
s_mov_b32 s{S_NC}, {f32bits(-(128**-0.5) * math.log2(math.e)):#x}
v_and_b32 v10, 8, v1
v_cmp_eq_u32 vcc, 0, v10
v_mov_b32 v10, 0xeeee
v_mov_b32 v11, 0x4444
v_cndmask_b32 v{V_IDX}, v10, v11, vcc
v_lshrrev_b32 v10, 4, v0
v_and_b32 v11, 15, v0
v_lshlrev_b32 v12, 13, v10
v_lshl_add_u32 v12, v11, 4, v12
s_lshl_b32 s34, s{S_HEAD}, 8
v_add_u32 v12, s34, v12""")
    for c in range(5):
        for kk in range(4):
            k(f's_mov_b32 s34, {(128*c + 32*kk)*8192}\nbuffer_load_dwordx4 {v(STG+16*c+4*kk,4)}, v12, s[16:19], s34 offen')
    k(f"""
; LDS write address: r*256 + ((c16/2 + f) % 8)*32 + (c16%2)*16, f = 2*(r%4) + ((r>>3)&1)
v_and_b32 v13, 3, v10
v_lshlrev_b32 v13, 1, v13
v_bfe_u32 v14, v10, 3, 1
v_add_u32 v13, v13, v14
v_lshrrev_b32 v14, 1, v11
v_add_u32 v13, v13, v14
v_and_b32 v13, 7, v13
v_lshlrev_b32 v13, 5, v13
v_and_b32 v14, 1, v11
v_lshl_add_u32 v13, v14, 4, v13
v_lshl_add_u32 v13, v10, 8, v13
; transposing read addresses (tiles 2sw, 2sw+1): (8g+rr)*256 + ((te + 2rr + (g&1)) % 8)*32 + 8*(i%4)
v_lshrrev_b32 v10, 4, v1
v_bfe_u32 v11, v1, 2, 2
v_lshl_add_u32 v14, v10, 3, v11
v_lshlrev_b32 v14, 8, v14
v_and_b32 v8, 3, v1
v_lshl_add_u32 v14, v8, 3, v14
v_and_b32 v10, 1, v10
v_lshl_add_u32 v10, v11, 1, v10
s_and_b32 s34, s{SW}, 3
s_lshl_b32 s34, s34, 1
v_add_u32 v10, s34, v10
v_add_u32 v11, 1, v10
v_and_b32 v10, 7, v10
v_and_b32 v11, 7, v11
v_lshl_add_u32 v8, v11, 5, v14
v_lshl_add_u32 v14, v10, 5, v14""")
    for c in range(5):
        buf = (c % 2)*32768
        k(f's_waitcnt vmcnt({16 - 4*c})')
        for kk in range(4):
            k(f'ds_write_b128 v13, {v(STG+16*c+4*kk,4)} offset:{buf + kk*8192}')
        k('s_waitcnt lgkmcnt(0)\ns_barrier')
        sk = k.lab('w1s')
        k(f's_cmp_lt_u32 s{SW}, 4\ns_cbranch_scc1 {sk}')
        for t, ad in ((0, 14), (1, 8)):
            for ksl in range(4):
                for hh in range(2):
                    k(f'ds_read_b64_tr_b16 {v(W1 + 80*t + 4*(4*c+ksl) + 2*hh, 2)}, v{ad} offset:{buf + ksl*8192 + hh*1024}')
            k('s_waitcnt lgkmcnt(0)')
        k(f'{sk}:')
    k('s_barrier')
    k(f"""
s_cmp_ge_u32 s{S_I}, 10
s_cbranch_scc1 L_ch_nowo
v_lshrrev_b32 v10, 3, v0
v_and_b32 v11, 7, v0
v_mul_u32_u24 v12, 1280, v10
v_lshl_add_u32 v12, v11, 4, v12
s_lshl_b32 s34, s{S_G}, 2
s_mul_i32 s34, s34, {128*1280}
s_lshl_b32 s35, s{S_I}, 7
s_add_u32 s34, s34, s35
v_add_u32 v12, s34, v12""")
    for kk in range(8):
        k(f's_mov_b32 s34, {64*kk*1280}\nbuffer_load_dwordx4 {v(192+4*kk,4)}, v12, s[20:23], s34 offen')
    k(f"""
v_lshrrev_b32 v13, 1, v11
v_lshrrev_b32 v14, 1, v10
v_add_u32 v13, v13, v14
v_and_b32 v13, 3, v13
v_lshlrev_b32 v13, 5, v13
v_and_b32 v14, 1, v11
v_lshl_add_u32 v13, v14, 4, v13
v_lshl_add_u32 v13, v10, 7, v13
s_waitcnt vmcnt(0)""")
    for kk in range(8):
        k(f'ds_write_b128 v13, {v(192+4*kk,4)} offset:{kk*8192}')
    k(f"""s_waitcnt lgkmcnt(0)
s_barrier
s_cmp_ge_u32 s{SW}, 4
s_cbranch_scc1 L_ch_wo_done
v_lshrrev_b32 v10, 4, v1
v_bfe_u32 v11, v1, 2, 2
v_lshl_add_u32 v12, v10, 2, v11
s_lshl_b32 s34, s{SW}, 14
v_lshlrev_b32 v13, 7, v12
v_add_u32 v13, s34, v13
v_and_b32 v14, 3, v1
v_lshl_add_u32 v13, v14, 3, v13
v_lshrrev_b32 v12, 1, v12""")
    for ct in range(4):
        k(f'v_add_u32 v14, {ct}, v12\nv_and_b32 v14, 3, v14\nv_lshl_add_u32 v14, v14, 5, v13')
        for ks in range(4):
            for hh in range(2):
                k(f'ds_read_b64_tr_b16 {v(WO + 16*ct + 4*ks + 2*hh, 2)}, v14 offset:{(32*ks + 16*hh)*128}')
        k('s_waitcnt lgkmcnt(0)')
    k(f"""L_ch_wo_done:
s_barrier
L_ch_nowo:
; ---- mem0 -> LDS fragments""")
    for rnd in range(2):
        if rnd == 1: k('v_cmp_gt_u32 vcc, 128, v0\ns_and_saveexec_b64 s[70:71], vcc\ns_cbranch_execz L_ch_m0d')
        k(f"""v_add_u32 v10, {512*rnd}, v0
v_lshrrev_b32 v11, 6, v10
v_bfe_u32 v12, v10, 4, 2
v_and_b32 v13, 7, v10
v_bfe_u32 v14, v10, 3, 1
v_mul_u32_u24 v13, 1280, v13
v_lshl_add_u32 v13, v11, 7, v13
v_lshl_add_u32 v13, v12, 5, v13
v_lshl_add_u32 v13, v14, 2, v13
buffer_load_dword v192, v13, s[24:27], 0 offen
buffer_load_dword v193, v13, s[24:27], 0 offen offset:8
buffer_load_dword v194, v13, s[24:27], 0 offen offset:16
buffer_load_dword v195, v13, s[24:27], 0 offen offset:24
v_lshlrev_b32 v10, 4, v10
v_add_u32 v10, {L_MEMF}, v10
s_waitcnt vmcnt(0)
ds_write_b128 v10, v[192:195]""")
    k('L_ch_m0d:\ns_mov_b64 exec, -1')
    validate(k, True)
    k(f"""s_mov_b32 s{SSTEP}, 0
s_mov_b32 s{S_AVAIL}, 0
s_cmp_ge_u32 s{SW}, 4
s_cbranch_scc1 L_ch_pS
s_lshl_b32 s34, s{S_G}, 2
s_add_u32 s34, s34, s{SW}
s_mul_i32 s35, s34, 6144
v_add_u32 v{V_A3}, s35, v{VLANE16}
s_lshl_b32 s35, s34, 13
v_add_u32 v{V_A4}, s35, v{VLANE16}
s_lshl_b32 s35, s{SW}, 11
s_add_u32 s35, s35, {L_RED}
v_add_u32 v{V_A5}, s35, v{VLANE16}
s_lshl_b32 s35, s{SW}, 14
s_add_u32 s35, s35, {L_KV}
s_lshr_b32 s34, s34, 1
v_and_b32 v10, 1, v1
v_lshlrev_b32 v10, 4, v10
v_add_u32 v10, s34, v10
v_add_u32 v10, 16, v10
v_lshlrev_b32 v{V_A9}, 2, v10
v_cmp_gt_u32 vcc, 32, v1
v_mov_b32 v10, 0
v_mov_b32 v11, 0xf149f2ca
v_cndmask_b32 v{NEG}, v10, v11, vcc
v_mov_b32 v{NEG+1}, v{NEG}
v_mov_b32 v{NEG+2}, v{NEG}
v_mov_b32 v{NEG+3}, v{NEG}
v_add_u32 v14, s35, v{VLANE16}
s_branch L_ch_pD
L_ch_pS:
s_sub_u32 s38, s{SW}, 4               ; sw
s_lshl_b32 s34, s38, 10
v_add_u32 v{V_A3}, s34, v{VLANE16}
v_and_b32 v10, 15, v1                 ; e16
v_bfe_u32 v11, v1, 4, 1               ; gg
v_lshrrev_b32 v12, 5, v1              ; hi
s_mul_i32 s36, s{S_HEAD}, 6144
s_cmp_eq_u32 s{S_M}, 2
s_cbranch_scc1 L_ch_qst_v
; q/k unit: row = 4gg + hi + 2*(e16&1) (+8 for k); g = 2*(te%2) + (e16/4)%2; j0 = 4*(e16/8) + (e16 & 2)
v_lshl_add_u32 v13, v11, 2, v12
v_and_b32 v14, 1, v10
v_lshl_add_u32 v13, v14, 1, v13
s_lshl_b32 s34, s{S_M}, 3
v_add_u32 v13, s34, v13
v_bfe_u32 v14, v10, 2, 1
v_lshl_add_u32 v13, v14, 4, v13
v_lshlrev_b32 v13, 4, v13
v_lshrrev_b32 v14, 3, v10
v_lshl_add_u32 v13, v14, 3, v13
v_and_b32 v14, 2, v10
v_lshl_add_u32 v13, v14, 1, v13
s_lshl_b32 s34, s38, 10
s_add_u32 s34, s34, s36
v_add_u32 v{V_A4}, s34, v13
v_add_u32 v{V_A5}, 512, v{V_A4}
s_branch L_ch_qst_done
L_ch_qst_v:
; v unit: 4096 + u*1024 + clane*16 + (sw%2)*8 + hi*4; clane = 32 + gg*16 + e16 (even tile), gg*16 + e16 (odd tile)
v_lshl_add_u32 v13, v11, 4, v10
v_lshlrev_b32 v13, 4, v13
v_lshl_add_u32 v13, v12, 2, v13
s_and_b32 s34, s38, 1
s_lshl_b32 s34, s34, 3
s_lshr_b32 s35, s38, 1
s_lshl_b32 s35, s35, 10
s_add_u32 s34, s34, s35
s_add_u32 s34, s34, 4096
s_add_u32 s34, s34, s36
v_add_u32 v{V_A5}, s34, v13
v_add_u32 v{V_A4}, 512, v{V_A5}
L_ch_qst_done:
v_mov_b32 v216, 0
v_mov_b32 v217, 0
v_mov_b32 v218, 0
v_mov_b32 v219, 0
v_mov_b32 v220, 0
v_mov_b32 v221, 0
v_mov_b32 v222, 0
v_mov_b32 v223, 0
v_bfe_u32 v10, v1, 2, 3               ; r
v_lshrrev_b32 v13, 5, v1              ; c / 4
v_and_b32 v12, 3, v1                  ; c % 4
v_lshl_add_u32 v11, v13, 2, v12       ; c
v_lshlrev_b32 v12, 4, v12
v_lshl_add_u32 v12, v13, 3, v12
v_add_u32 v12, v12, v10
v_lshlrev_b32 v12, 4, v12
s_and_b32 s35, s38, 1
s_lshl_b32 s36, s35, 10
s_add_u32 s36, s36, {L_RED}
v_add_u32 v{V_A6}, s36, v12
s_lshl_b32 s36, s{S_I}, 1
s_add_u32 s36, s36, s35               ; j = 2i + (wave&1)
s_lshr_b32 s37, s36, 3
s_lshl_b32 s37, s37, 14
s_and_b32 s36, s36, 7
s_lshl_b32 s36, s36, 10
s_add_u32 s36, s36, s37
s_mul_i32 s37, s{S_G}, 49152
s_add_u32 s36, s36, s37
v_add_u32 v{V_A7}, s36, v{VLANE16}
s_lshl_b32 s34, s{S_G}, 2
s_add_u32 s34, s34, s38
s_lshl_b32 s35, s34, 13
v_add_u32 v8, s35, v{VLANE16}
s_lshl_b32 s60, s38, 14
s_add_u32 s60, s60, {L_KV}
s_lshr_b32 s34, s34, 1
v_and_b32 v9, 1, v1
v_lshlrev_b32 v9, 4, v9
v_add_u32 v9, s34, v9
v_add_u32 v9, 16, v9
v_lshlrev_b32 v{V_A9}, 2, v9
s_cmp_ge_u32 s{S_I}, 10
s_cbranch_scc1 L_ch_nok0
s_mov_b32 s36, 1""")
    kv_wait(k, 36)
    k(f's_mov_b32 s36, {KX}\ns_mov_b32 s37, {VX}')
    kv_dma(k, 36, 37)
    k(f"""s_waitcnt vmcnt(0)
L_ch_nok0:
s_cmp_lg_u32 s{SW}, 6
s_cbranch_scc1 L_ch_pD
s_mul_i32 s36, s{S_GI}, 10
s_add_u32 s36, s36, s{S_I}            ; j
s_lshr_b32 s37, s36, 3
s_lshl_b32 s37, s37, 14
s_and_b32 s35, s36, 7
s_lshl_b32 s35, s35, 10
s_add_u32 s35, s35, s37
v_add_u32 v240, s35, v{VLANE16}""")
    for g in range(1, 8): k(f'v_add_u32 v{240+g}, 49152, v{239+g}')
    k(f"""
s_lshl_b32 s36, s36, 5                ; 32j
v_lshl_add_u32 v12, v11, 2, s36       ; d0
v_lshrrev_b32 v13, 6, v12
v_lshlrev_b32 v13, 10, v13
v_bfe_u32 v14, v12, 4, 2
v_lshl_add_u32 v14, v14, 4, v10
v_lshl_add_u32 v13, v14, 4, v13
v_bfe_u32 v14, v12, 2, 2
v_lshl_add_u32 v{V_A6}, v14, 2, v13
L_ch_pD:
v_add_u32 v{V_MF}, {L_MEMF}, v{VLANE16}
v_add_u32 v{V_MW}, {L_MEMF}, v{V_A3}
s_waitcnt lgkmcnt(0)""")

def delay(k, clks):
    n = clks // 4
    while n > 0:
        m = min(n, 16); k(f's_nop {m-1}'); n -= m

OPT = dict(dq=256, dp=512, dm=128, warm=1, dd=320, dw=1024, da=192, clrlate=0, lite=0, bsleep=0, osleep=0, xwarm=0, ds1=2048, place=0, sx=0, sm=0, sq=0)
def interleave(k, mf, va, per=2):
    va = list(va)
    for m in mf:
        k(m)
        for _ in range(per):
            if va: k(va.pop(0))
    for x in va: k(x)

def chain_loop(k, sc, prof, tag, qdelay=0):
    T = tag
    late = []
    k(f'L_step{T}:')
    k('s_barrier')
    k(f's_cmp_lt_u32 s{SW}, 4\ns_cbranch_scc1 L_aw{T}')
    if prof: k('s_memrealtime s[80:81]')
    for i in range(10): k(f'ds_read_b128 {v(MF+4*i,4)}, v{V_MF} offset:{i*1024}')
    chain_offsets(k, 'q')
    for i in range(10):
        k(f's_waitcnt lgkmcnt({9-i})')
        k(f'v_smfmac_f32_16x16x64_bf16 {v(DA,4)}, {v(MF+4*i,4)}, {v(W1+8*i,8)}, v{V_IDX}')
        k(f'v_smfmac_f32_16x16x64_bf16 {v(DB,4)}, {v(MF+4*i,4)}, {v(W1+80+8*i,8)}, v{V_IDX}')
    k(f"""s_cmp_eq_u32 s{S_M}, 2
s_mov_b64 vcc, s[{M_EVEN}:{M_EVEN+1}]
v_permlane32_swap_b32 v{DA}, v{DA+1}
v_permlane32_swap_b32 v{DA+2}, v{DA+3}
v_add_f32 v{DA}, v{DA}, v{DA+1}
v_add_f32 v{DA+2}, v{DA+2}, v{DA+3}
v_permlane32_swap_b32 v{DB}, v{DB+1}
v_permlane32_swap_b32 v{DB+2}, v{DB+3}
v_add_f32 v{DB}, v{DB}, v{DB+1}
v_add_f32 v{DB+2}, v{DB+2}, v{DB+3}
s_cbranch_scc1 L_s1v{T}
v_cndmask_b32_dpp v224, v{DA+2}, v{DA}, vcc quad_perm:[1,0,3,2] row_mask:0xf bank_mask:0xf
v_cndmask_b32_dpp v226, v{DB+2}, v{DB}, vcc quad_perm:[1,0,3,2] row_mask:0xf bank_mask:0xf
s_mov_b64 vcc, s[{M_ODD}:{M_ODD+1}]
v_cndmask_b32_dpp v225, v{DA}, v{DA+2}, vcc quad_perm:[1,0,3,2] row_mask:0xf bank_mask:0xf
v_cndmask_b32_dpp v227, v{DB}, v{DB+2}, vcc quad_perm:[1,0,3,2] row_mask:0xf bank_mask:0xf
v_cvt_pk_bf16_f32 v12, v224, v225
v_cvt_pk_bf16_f32 v13, v226, v227
s_branch L_s1s{T}
L_s1v{T}:
v_cvt_pk_bf16_f32 v12, v{DA}, v{DA+2}
v_cvt_pk_bf16_f32 v13, v{DB}, v{DB+2}
L_s1s{T}:
buffer_store_dword v12, v{V_A4}, {WS}, s{S_QC} offen{sc}
buffer_store_dword v13, v{V_A5}, {WS}, s{S_QC} offen{sc}""")
    if prof: k('s_memrealtime s[82:83]')
    k(f"""s_cmp_eq_u32 s{SSTEP}, 63
s_cbranch_scc1 L_fin
s_cmp_ge_u32 s{S_I}, 10
s_cbranch_scc1 L_s1only{T}
s_barrier""")
    chain_offsets(k, 'r')
    clr = f"""v_mov_b32 v14, -1
buffer_store_dword v14, v{V_A4}, {WS}, s{S_QZ} offen{sc}
buffer_store_dword v14, v{V_A5}, {WS}, s{S_QZ} offen{sc}"""
    k(clr)
    for i in range(8): k(f'v_mov_b32 v{DA+i}, 0')
    k(f's_add_u32 s36, s{SSTEP}, 2')
    kv_wait(k, 36)
    delay(k, OPT['dd'])
    if not NOKV: kv_dma(k, S_KXN, S_VXN)
    k('s_barrier')
    if prof: k('s_memrealtime s[88:89]')
    k(f's_cmp_ge_u32 s{SW}, 6\ns_cbranch_scc1 L_bw6{T}')
    for w in range(4): k(f'ds_read_b128 {v(176+4*w,4)}, v{V_A6} offset:{w*2048}')
    k(f"""s_waitcnt lgkmcnt(2)
v_pk_add_f32 v[176:177], v[176:177], v[180:181]
v_pk_add_f32 v[178:179], v[178:179], v[182:183]
s_waitcnt lgkmcnt(0)
v_pk_add_f32 v[184:185], v[184:185], v[188:189]
v_pk_add_f32 v[186:187], v[186:187], v[190:191]
v_pk_add_f32 v[176:177], v[176:177], v[184:185]
v_pk_add_f32 v[178:179], v[178:179], v[186:187]
buffer_store_dwordx4 v[176:179], v{V_A7}, {WS}, s{S_PC} offen sc1
{'s_memrealtime s[90:91]' if prof else ''}
v_mov_b32 v180, -1
v_mov_b32 v181, -1
v_mov_b32 v182, -1
v_mov_b32 v183, -1
buffer_store_dwordx4 v[180:183], v{V_A7}, {WS}, s{S_PZ} offen sc1
""")
    k(f's_branch L_b3{T}\nL_bw6{T}:')
    k(f's_cmp_lg_u32 s{SW}, 6\ns_cbranch_scc1 L_b3{T}')
    delay(k, OPT['dp'])
    if prof: k('s_memrealtime s[90:91]')
    spins = []
    for g in range(8): k(f'buffer_load_dwordx4 {v(176+4*g,4)}, v{240+g}, {WS}, s{S_PC} offen sc1')
    k('s_mov_b32 s39, 0')
    for g in range(8):
        R_, C_, B_ = k.lab('pps'), k.lab('ppc'), k.lab('ppb')
        k(f'{C_}:\ns_waitcnt vmcnt({7-g})\nv_cmp_eq_u32 vcc, -1, v{176+4*g}\ns_cbranch_vccnz {R_}\n{B_}:')
        spins.append((R_, C_, B_, [f'buffer_load_dwordx4 {v(176+4*gg,4)}, v{240+gg}, {WS}, s{S_PC} offen sc1' for gg in range(g, 8)], OPT['sx']))
        if g > 0: k(f'v_pk_add_f32 v[176:177], v[176:177], {v(176+4*g,2)}\nv_pk_add_f32 v[178:179], v[178:179], {v(178+4*g,2)}')
    if prof: k('s_memrealtime s[92:93]\ns_mov_b32 s65, s39')
    k(f"""v_cvt_pk_bf16_f32 v176, v176, v177
v_cvt_pk_bf16_f32 v177, v178, v179
buffer_store_dword v176, v{V_A6}, {WS}, s{S_MEMN} offen{sc}
buffer_store_dword v177, v{V_A6}, {WS}, s{S_MEMN} offen offset:128{sc}
L_b3{T}:
s_barrier""")
    def mem_poll(sleep):
        A, D = k.lab('mA'), k.lab('mD')
        k(f's_cmp_ge_u32 s{SW}, 6\ns_cbranch_scc1 {A}')
        for n in (3, 2):
            srcs = [S_MEMN, S_MEMN4, S_MEMN8][:n]
            for i, sr in enumerate(srcs): k(f'buffer_load_dwordx4 {v(176+4*i,4)}, v{V_A3}, {WS}, s{sr} offen sc1')
            k('s_mov_b32 s39, 0')
            for i, sr in enumerate(srcs):
                R_, C_, B_ = k.lab('pms'), k.lab('pmc'), k.lab('pmb')
                k(f"""{C_}:
s_waitcnt vmcnt({n-1-i})
v_max3_u32 v224, v{176+4*i}, v{177+4*i}, v{178+4*i}
v_max_u32 v224, v224, v{179+4*i}
v_cmp_eq_u32 vcc, -1, v224
s_cbranch_vccnz {R_}
{B_}:
ds_write_b128 v{V_MW}, {v(176+4*i,4)} offset:{i*4096}""")
                spins.append((R_, C_, B_, [f'buffer_load_dwordx4 {v(176+4*ii,4)}, v{V_A3}, {WS}, s{srcs[ii]} offen sc1' for ii in range(i, n)], OPT['sm'] if sleep == 0 else 512))
            if n == 3: k(f's_branch {D}\n{A}:')
        k(f'{D}:')
    if prof: k('s_memrealtime s[94:95]')
    delay(k, OPT['dm'])
    mem_poll(0)
    if prof: k('s_mov_b32 s66, s39')
    k(f"""s_cmp_lg_u32 s{SW}, 6
s_cbranch_scc1 L_next{T}
v_mov_b32 v14, -1
buffer_store_dword v14, v{V_A6}, {WS}, s{S_MEMZ} offen{sc}
buffer_store_dword v14, v{V_A6}, {WS}, s{S_MEMZ} offen offset:128{sc}
L_next{T}:""")
    if prof:
        k('s_memrealtime s[96:97]\ns_waitcnt lgkmcnt(0)\ns_mov_b32 m0, s40')
        pA, pD = k.lab('pfA'), k.lab('pfD')
        k(f's_cmp_lt_u32 s{SW}, 4\ns_cbranch_scc1 {pA}')
        for n, r in enumerate((80, 82, 88, 90, 92, 94, 96)): k(f'v_writelane_b32 v{248+n}, s{r}, m0')
        k('s_lshl_b32 s65, s65, 16\ns_or_b32 s65, s65, s66\nv_writelane_b32 v255, s65, m0')
        k(f's_branch {pD}\n{pA}:')
        for n, r in enumerate((80, 84, 86, 96)): k(f'v_writelane_b32 v{252+n}, s{r}, m0')
        pass
        k(f'{pD}:')
    if OPT['lite']:
        l1, l2 = k.lab('lt'), k.lab('lt')
        k(f"""s_cmp_eq_u32 s{SSTEP}, 8
s_cbranch_scc0 {l1}
s_memrealtime s[90:91]
s_memtime s[94:95]
{l1}:
s_cmp_eq_u32 s{SSTEP}, 56
s_cbranch_scc0 {l2}
s_memrealtime s[92:93]
s_memtime s[96:97]
{l2}:""")
    if OPT['lite'] > 1:
        k(f's_memrealtime s[88:89]\ns_waitcnt lgkmcnt(0)\ns_mov_b32 m0, s{SSTEP}\nv_writelane_b32 v254, s88, m0')
    if DBGST:
        l4 = k.lab('d4')
        k(f's_cmp_lg_u32 s{SSTEP}, 4\ns_cbranch_scc1 {l4}')
        dstamp(k, 13, 0, 0, 6)
        k(f'{l4}:')
    k(f"""s_waitcnt lgkmcnt(0)
s_add_u32 s{SSTEP}, s{SSTEP}, 1
s_branch L_step{T}""")
    k(f'L_s1only{T}:')
    chain_offsets(k, 'r')
    k(f"""v_mov_b32 v14, -1
buffer_store_dword v14, v{V_A4}, {WS}, s{S_QZ} offen{sc}
buffer_store_dword v14, v{V_A5}, {WS}, s{S_QZ} offen{sc}""")
    for i in range(8): k(f'v_mov_b32 v{DA+i}, 0')
    delay(k, OPT['ds1'])
    mem_poll(1)
    k(f's_branch L_next{T}')
    k(f'L_aw{T}:')
    chain_offsets(k, 'qr')
    k(f"""s_cmp_ge_u32 s{S_I}, 10
s_cbranch_scc1 L_aidle{T}
s_cmp_eq_u32 s{SSTEP}, 63
s_cbranch_scc1 L_fin""")
    if prof: k('s_memrealtime s[80:81]')
    delay(k, OPT['da'])
    for i in range(8): k(f'ds_read_b128 {v(KXR+4*i,4)}, v14 offset:{i*1024}')
    k('s_waitcnt lgkmcnt(0)')
    for i in range(8): k(f'ds_read_b128 {v(VXR+4*i,4)}, v14 offset:{8192 + i*1024}')
    k('s_waitcnt lgkmcnt(0)')
    k('s_barrier')
    delay(k, OPT['dq'])
    LQ, LQD = k.lab('pq'), k.lab('pqd')
    k('s_mov_b32 s39, 0')
    for ks in range(4): k(f'buffer_load_dwordx4 {v(QK+4*ks,4)}, v{V_A3}, {WS}, s{S_QC} offen offset:{ks*1024} sc1')
    for u in range(2): k(f'buffer_load_dwordx4 {v(VM+4*u,4)}, v{V_A3}, {WS}, s{S_QC4} offen offset:{u*1024} sc1')
    k('s_waitcnt vmcnt(2)')
    LQM = k.lab('pqm')
    k(f'{LQM}:')
    mf = []
    for ks in range(4): mf.append(f'v_mfma_f32_16x16x32_bf16 {v(S0,4)}, {v(KXR+4*ks,4)}, {v(QK+4*ks,4)}, {"0" if ks == 0 else v(S0,4)}')
    for ks in range(4): mf.append(f'v_mfma_f32_16x16x32_bf16 {v(S1,4)}, {v(KXR+16+4*ks,4)}, {v(QK+4*ks,4)}, {"0" if ks == 0 else v(S1,4)}')
    for ks in range(4): mf.append(f'v_mfma_f32_16x16x32_bf16 {v(SM,4)}, {v(QK+4*ks,4)}, {v(QK+4*ks,4)}, {v(NEG,4) if ks == 0 else v(SM,4)}')
    chk = [f'v_max3_u32 v244, v{QK}, v{QK+1}, v{QK+2}'] + [f'v_max3_u32 v244, v244, v{QK+3+2*n}, v{QK+4+2*n}' for n in range(6)] + [f'v_max_u32 v244, v244, v{QK+15}']
    interleave(k, mf[:4], chk)
    k(mf[4]); k('v_cmp_eq_u32 vcc, -1, v244')
    QR = k.lab('pqr')
    k(mf[5]); k(f's_cbranch_vccnz {QR}')
    qspin = (QR, LQM)
    LQX = k.lab('pqx')
    k(f'{LQX}:')
    k(mf[6]); k(mf[7]); k(mf[8])
    k(f'v_max3_f32 v244, v{S0}, v{S0+1}, v{S0+2}')
    k(mf[9]); k(mf[10])
    k(f'v_max3_f32 v244, v244, v{S0+3}, v{S1}')
    k(mf[11])
    k(f"""v_max3_f32 v244, v244, v{S1+1}, v{S1+2}
v_max_f32 v244, v244, v{S1+3}""")
    if prof: k('s_memrealtime s[84:85]')
    k(f"""v_max3_f32 v244, v244, v{SM}, v{SM+1}
v_max3_f32 v244, v244, v{SM+2}, v{SM+3}
v_mov_b32 v245, v244
v_permlane16_swap_b32 v244, v245
v_max_f32 v244, v244, v245
v_mov_b32 v245, v244
v_permlane32_swap_b32 v244, v245
v_max_f32 v244, v244, v245
v_mul_f32 v244, s{S_NC}, v244""")
    for i in range(12): k(f'v_fma_f32 v{S0+i}, v{S0+i}, s{S_C}, v244')
    for i in range(12): k(f'v_exp_f32 v{S0+i}, v{S0+i}')
    k(f"""v_cvt_pk_bf16_f32 v{PX}, v{S0}, v{S0+1}
v_cvt_pk_bf16_f32 v{PX+1}, v{S0+2}, v{S0+3}
v_cvt_pk_bf16_f32 v{PX+2}, v{S1}, v{S1+1}
v_cvt_pk_bf16_f32 v{PX+3}, v{S1+2}, v{S1+3}
v_cvt_pk_bf16_f32 v{PM}, v{SM}, v{SM+2}
v_cvt_pk_bf16_f32 v{PM+1}, v{SM+1}, v{SM+3}""")
    mf = [f'v_mfma_f32_16x16x32_bf16 {v(O+4*te,4)}, {v(VXR+4*te,4)}, {v(PX,4)}, 0' for te in range(8)]
    va = [f'v_mov_b32 v188, v{PM}', f'v_mov_b32 v189, v{PM+1}', f'v_mov_b32 v{PM2}, 0', f'v_mov_b32 v{PM2+1}, 0',
          f'v_add_f32 v245, v{S0}, v{S0+1}', f'v_add_f32 v246, v{S0+2}, v{S0+3}',
          f'v_permlane32_swap_b32 v188, v{PM2}', f'v_permlane32_swap_b32 v189, v{PM2+1}',
          f'v_add_f32 v245, v245, v{S1}', f'v_add_f32 v246, v246, v{S1+1}', f'v_add_f32 v245, v245, v{S1+2}', f'v_add_f32 v246, v246, v{S1+3}',
          f'v_add_f32 v245, v245, v{SM}', f'v_add_f32 v246, v246, v{SM+1}', f'v_add_f32 v245, v245, v{SM+2}', f'v_add_f32 v246, v246, v{SM+3}']
    interleave(k, mf, va)
    LV, LVD = k.lab('pv'), k.lab('pvd')
    k(f's_mov_b32 s39, 0\ns_waitcnt vmcnt(0)\n{LV}:')
    umax_check(k, range(VM, VM+8), 247)
    k(f's_cbranch_vccz {LVD}')
    for u in range(2): k(f'buffer_load_dwordx4 {v(VM+4*u,4)}, v{V_A3}, {WS}, s{S_QC4} offen offset:{u*1024} sc1')
    k(f"""s_waitcnt vmcnt(0)
s_add_u32 s39, s39, 1
s_cmp_lt_u32 s39, s{SLIM}
s_cbranch_scc1 {LV}
s_mov_b32 s{SLIM}, 0
{LVD}:""")
    mf = []
    for te in range(8):
        u, t4 = te // 4, te % 4
        a = VM + 4*u + 2*(t4 // 2); b = PM if t4 % 2 == 0 else PM2
        mf.append(f'v_mfma_f32_16x16x16_bf16 {v(O+4*te,4)}, {v(a,2)}, {v(b,2)}, {v(O+4*te,4)}')
    def cv(te): return [f'v_cvt_pk_bf16_f32 v{OB+4*(te//2)+2*(te%2)}, v{O+4*te}, v{O+4*te+1}', f'v_cvt_pk_bf16_f32 v{OB+4*(te//2)+2*(te%2)+1}, v{O+4*te+2}, v{O+4*te+3}']
    va = ['v_add_f32 v245, v245, v246', 'v_mov_b32 v246, v245', 's_nop 0', 's_nop 0', 'v_permlane16_swap_b32 v245, v246', 'v_add_f32 v245, v245, v246',
          'v_mov_b32 v246, v245', 's_nop 0']
    interleave(k, mf[:4], va)
    k('v_permlane32_swap_b32 v245, v246')
    k(mf[4]); k('v_add_f32 v245, v245, v246'); k(cv(0)[0])
    k(mf[5]); k(cv(0)[1]); k('v_rcp_f32 v245, v245')
    k(mf[6]); k(cv(1)[0]); k(cv(1)[1])
    k(mf[7]); k(cv(2)[0]); k(cv(2)[1])
    mo = [[f'v_mfma_f32_16x16x32_bf16 {v(OA+4*ct,4)}, {v(WO+16*ct+4*ks,4)}, {v(OB+4*ks,4)}, {"0" if ks == 0 else v(OA+4*ct,4)}' for ct in range(4)] for ks in range(4)]
    interleave(k, mo[0], cv(3) + ['v_mov_b32_dpp v246, v245 row_shr:8 row_mask:0xf bank_mask:0xc'] + cv(4) + cv(5))
    interleave(k, mo[1], cv(6) + cv(7))
    interleave(k, mo[2], [])
    interleave(k, mo[3], [])
    for p in range(2):
        for i in range(4):
            k(f'v_mul_f32_dpp v{O+4*p+i}, v{OA+8*p+i}, v245 quad_perm:[0,1,2,3] row_mask:0xf bank_mask:0x3')
        for i in range(4):
            k(f'v_mul_f32_dpp v{O+4*p+i}, v{OA+8*p+4+i}, v246 row_shr:8 row_mask:0xf bank_mask:0xc')
        k(f'ds_write_b128 v{V_A5}, {v(O+4*p,4)} offset:{p*1024}')
    k('s_waitcnt lgkmcnt(0)')
    if prof: k('s_memrealtime s[86:87]')
    k('s_barrier')
    k(f's_barrier\ns_branch L_next{T}')
    def emit_spin(R_, C_, B_, loads, slp):
        k(f"""{R_}:
s_add_u32 s39, s39, 1
s_cmp_ge_u32 s39, s{SLIM}
s_cbranch_scc1 {R_}_t""")
        delay(k, slp)
        for x in loads: k(x)
        k(f's_branch {C_}\n{R_}_t:\ns_mov_b32 s{SLIM}, 0\ns_waitcnt vmcnt(0)\ns_branch {B_}')
    QR, LQM = qspin
    k(f"""{QR}:
s_add_u32 s39, s39, 1
s_cmp_ge_u32 s39, s{SLIM}
s_cbranch_scc1 {QR}_t""")
    delay(k, OPT['sq'])
    for ks in range(4): k(f'buffer_load_dwordx4 {v(QK+4*ks,4)}, v{V_A3}, {WS}, s{S_QC} offen offset:{ks*1024} sc1')
    k(f's_waitcnt vmcnt(0)\ns_branch {LQM}\n{QR}_t:\ns_mov_b32 s{SLIM}, 0\ns_branch {LQX}')
    late.append(lambda: [emit_spin(*x) for x in spins])
    k(f"""L_aidle{T}:
s_cmp_eq_u32 s{S_I}, 10
s_cbranch_scc0 L_awarm{T}""")
    def qloads():
        for ks in range(4): k(f'buffer_load_dwordx4 {v(QK+4*ks,4)}, v{V_A3}, {WS}, s{S_QC} offen offset:{ks*1024} sc1')
        for u in range(2): k(f'buffer_load_dwordx4 {v(VM+4*u,4)}, v{V_A3}, {WS}, s{S_QC4} offen offset:{u*1024} sc1')
    delay(k, 1024)
    poll(k, 'pk' + T, qloads, lambda: umax_check(k, list(range(QK, QK+16)) + list(range(VM, VM+8)), 244), sleep=2)
    for ks in range(4): k(f'buffer_store_dwordx4 {v(QK+4*ks,4)}, v{V_A3}, {WS}, s{S_KP} offen offset:{ks*1024} sc1')
    for u in range(2): k(f'buffer_store_dwordx4 {v(VM+4*u,4)}, v{V_A3}, {WS}, s{S_KP4} offen offset:{u*1024} sc1')
    k(f"""s_waitcnt vmcnt(0)
s_lshl_b32 s34, s{S_G}, 2
s_add_u32 s34, s34, s{SW}
s_lshl_b32 s34, s34, 2
s_add_u32 s34, s34, {F_KVM}
s_add_u32 s35, s{SSTEP}, 1
v_mov_b32 v244, s34
v_mov_b32 v245, s35
s_mov_b64 exec, 1
buffer_store_dword v245, v244, {WS}, 0 offen sc1
s_mov_b64 exec, -1
s_cmp_eq_u32 s{SSTEP}, 63
s_cbranch_scc1 L_fin
s_branch L_next{T}
L_awarm{T}:
s_cmp_eq_u32 s{SSTEP}, 63
s_cbranch_scc1 L_fin""")
    if OPT['warm']:
        W = k.lab('wsk')
        k(f's_add_u32 s36, s{SSTEP}, 3\ns_cmp_gt_u32 s36, 64\ns_cbranch_scc1 {W}')
        delay(k, OPT['dw'])
        k(f"""buffer_load_dword v13, v{V_A9}, {WS}, 0 offen sc1
s_waitcnt vmcnt(0)
v_readlane_b32 s34, v13, 0
v_readlane_b32 s35, v13, 1
s_min_u32 s34, s34, s35
s_cmp_lt_u32 s34, s36
s_cbranch_scc1 {W}
s_add_u32 s36, s{SSTEP}, 2
s_lshl_b32 s36, s36, 18
s_add_u32 s37, s36, {VX}
s_add_u32 s36, s36, {KX}""")
        kv_loads(k, 36, 37)
        k(f'{W}:')
    k(f's_branch L_next{T}')
    for f in late: f()

def chain_fin(k, prof):
    k('L_fin:')
    dstamp(k, 5, 0, 0)
    if OPT['lite']:
        k(f"""s_sub_u32 s34, s92, s90
v_mov_b32 v12, s34
s_lshl_b32 s34, s{SX}, 5
s_add_u32 s34, s34, s{SR}
s_lshl_b32 s34, s34, 3
s_add_u32 s34, s34, s{SW}
s_lshl_b32 s34, s34, 2
s_add_u32 s34, s34, 0x8800000
v_mov_b32 v10, s34
buffer_store_dword v12, v10, {WS}, 0 offen
s_sub_u32 s34, s96, s94
v_mov_b32 v12, s34
v_add_u32 v10, 0x10000, v10
buffer_store_dword v12, v10, {WS}, 0 offen""")
    if OPT['lite'] > 1:
        k(f"""s_lshl_b32 s34, s{SX}, 5
s_add_u32 s34, s34, s{SR}
s_lshl_b32 s34, s34, 3
s_add_u32 s34, s34, s{SW}
s_lshl_b32 s34, s34, 8
s_add_u32 s34, s34, 0x8a00000
v_lshlrev_b32 v10, 2, v1
v_add_u32 v10, s34, v10
buffer_store_dword v254, v10, {WS}, 0 offen""")
    if prof:
        k(f"""s_lshl_b32 s34, s{SX}, 5
s_add_u32 s34, s34, s{SR}
s_lshl_b32 s34, s34, 3
s_add_u32 s34, s34, s{SW}
s_lshl_b32 s34, s34, 11
s_add_u32 s34, s34, 0x8000000
v_lshlrev_b32 v10, 2, v1
v_add_u32 v10, s34, v10
s_cmp_lt_u32 s{SW}, 4
s_cbranch_scc1 L_fin0""")
        for n in range(8): k(f'buffer_store_dword v{248+n}, v10, {WS}, 0 offen offset:{n*256}')
        k('s_branch L_end\nL_fin0:')
        for n in range(4): k(f'buffer_store_dword v{252+n}, v10, {WS}, 0 offen offset:{n*256}')
    k('s_branch L_end')

def build(prof=False, roles=('chain',), keepflags=False, qdelay=0):
    k = Kern()
    import brole, proj, attout
    brole.validate = proj.validate = attout.validate = validate
    attout.calibrate = calibrate
    start_phase(k, keepflags)
    on = lambda r: r in roles
    R = lambda r, l: l if on(r) else 'L_end'
    k(f'''s_cmp_ge_u32 s{SX}, 4
s_cbranch_scc1 L_hi
s_cmp_lt_u32 s{SR}, 24
s_cbranch_scc1 {R('chain', 'L_chain')}
s_lshl_b32 s41, s{SX}, 3
s_add_u32 s41, s41, s{SR}
s_add_u32 s41, s41, 8
s_branch {R('b', 'L_brole')}
L_hi:
s_sub_u32 s34, s{SX}, 4
s_mul_i32 s41, s34, 12
s_add_u32 s41, s41, s{SR}
s_cmp_lt_u32 s{SR}, 12
s_cbranch_scc1 {R('proj', 'L_proj')}
s_lshl_b32 s41, s34, 3
s_add_u32 s41, s41, s{SR}
s_sub_u32 s41, s41, 12
s_cmp_lt_u32 s{SR}, 20
s_cbranch_scc1 {R('b', 'L_brole')}
s_mul_i32 s41, s34, 10
s_add_u32 s41, s41, s{SR}
s_sub_u32 s41, s41, 20
s_cmp_lt_u32 s{SR}, 30
s_cbranch_scc1 {R('out', 'L_out')}
s_lshl_b32 s41, s34, 1
s_add_u32 s41, s41, s{SR}
s_sub_u32 s41, s41, 30
s_branch {R('att', 'L_att')}''')
    if on('proj'): proj_role(k)
    if on('att'): att_role(k)
    if on('out'): out_role(k)
    if on('b'): b_role(k)
    if on('chain'):
        chain_prologue(k)
        mark(k, 1)
        dstamp(k, 3, 0, 0)
        k(f's_cmp_lg_u32 s{SSLOW}, 0\ns_cbranch_scc1 L_stepS')
        chain_loop(k, '', prof, 'F', qdelay)
        chain_loop(k, ' sc1', False, 'S')
        chain_fin(k, prof)
    k('L_end:')
    dstamp(k, 9, 7, 20)
    dstamp(k, 11, 4, 12)
    dstamp(k, 7, 4, 0)
    if TL:
        k(f'''s_memrealtime s[82:83]
s_waitcnt lgkmcnt(0)
v_mov_b32 v20, s84
v_mov_b32 v21, s85
v_mov_b32 v22, s86
v_mov_b32 v23, s87
v_mov_b32 v24, s82
s_lshl_b32 s34, s{SX}, 5
s_add_u32 s34, s34, s{SR}
s_lshl_b32 s34, s34, 3
s_add_u32 s34, s34, s{SW}
s_lshl_b32 s34, s34, 5
s_add_u32 s34, s34, 0x8900000
v_mov_b32 v25, s34
s_mov_b64 exec, 1
buffer_store_dwordx4 v[20:23], v25, {WS}, 0 offen
buffer_store_dword v24, v25, {WS}, 0 offen offset:16''')
    k('L_exit:\ns_endpgm')
    body, nops = k.text()
    head = f'''; @launch grid=(256,1,1) block=(512,1,1) lds=163840
.amdgcn_target "amdgcn-amd-amdhsa--gfx950"
.text
.globl {NAME}
.p2align 8
.type {NAME},@function
{NAME}:
'''
    tail = f'''
.section .rodata,"a"
.p2align 6
.amdhsa_kernel {NAME}
  .amdhsa_next_free_vgpr 256
  .amdhsa_next_free_sgpr 102
  .amdhsa_accum_offset 256
  .amdhsa_group_segment_fixed_size 0
  .amdhsa_kernarg_size 104
  .amdhsa_user_sgpr_count 2
  .amdhsa_user_sgpr_kernarg_segment_ptr 1
  .amdhsa_system_sgpr_workgroup_id_x 1
.end_amdhsa_kernel
'''
    return head + '\n'.join(body) + tail, nops

if __name__ == '__main__':
    out = sys.argv[1]
    opts = dict(a.split('=') for a in sys.argv[2:] if '=' in a)
    if 'kvsc' in opts: KVSC = {'p': '', 's': ' sc1', 'n': ' nt', '0': ' sc0'}[opts['kvsc']]
    NOKV = 'nokv' in sys.argv[2:]
    TL = 'tl' in sys.argv[2:]
    DBGST = 'dbgst' in sys.argv[2:]
    import brole, proj, attout
    brole.mark = proj.mark = attout.mark = mark
    brole.BMODE = int(opts.get('bmode', 0))
    for o in OPT:
        if o in opts: OPT[o] = int(opts[o])
    proj.LITE = OPT['lite']
    brole.SLEEP = OPT['bsleep']; attout.OSLEEP = OPT['osleep']; attout.XWARM = OPT['xwarm']
    txt, nops = build(prof='prof' in sys.argv[2:], keepflags='keepflags' in sys.argv[2:], qdelay=int(opts.get('qdelay', 0)), roles=opts.get('roles', 'chain').split(','))
    open(out, 'w').write(txt)
    print('wrote', out, 'lines', txt.count('\n'), 'nop states', nops)
```

```python
import math, struct
from dsl import v, s
from layout import *
from proj import srd
WS = 's[8:11]'
SX, SR, SW, SLIM = 28, 29, 30, 33
def f32bits(x): return struct.unpack('<I', struct.pack('<f', x))[0]

def flag_wait(k, name, vaddr, nl, sneed, soff='0', tmp=13, sleep=8):
    L, D = k.lab(name), k.lab(name + 'd')
    k(f'''s_mov_b32 s39, 0
s_mov_b64 s[70:71], exec
s_mov_b32 exec_lo, {((1 << nl) - 1) & 0xffffffff:#x}
s_mov_b32 exec_hi, {((1 << nl) - 1) >> 32:#x}
{L}:
buffer_load_dword v{tmp}, v{vaddr}, {WS}, {soff} offen sc1
s_waitcnt vmcnt(0)
v_cmp_gt_u32 vcc, s{sneed}, v{tmp}
s_cbranch_vccz {D}
s_sleep {sleep}
s_add_u32 s39, s39, 1
s_cmp_lt_u32 s39, s{SLIM}
s_cbranch_scc1 {L}
s_mov_b32 s{SLIM}, 0
{D}:
s_mov_b64 exec, s[70:71]''')

mark = lambda k, n: None
OSLEEP = 0
CALSLEEP = 0
OUTSC = ''
XWARM = 0
def att_role(k):
    QX_, KX_, VX_, QM, VM, NEG, DIAG = 16, 48, 80, 112, 128, 136, 140
    S0, S1, SM, PX, PM, PM2, O, T = 144, 148, 152, 156, 160, 162, 168, 200
    SH, SS, SC, SNC = 42, 40, 78, 79
    k('L_att:')
    help_prefetch(k)
    k(f'''
s_lshl_b32 s34, s41, 3
s_add_u32 s34, s34, s{SW}
s_and_b32 s{SH}, s34, 31
s_lshr_b32 s{SS}, s34, 5
s_mov_b32 s{SC}, {f32bits(128**-0.5 * math.log2(math.e)):#x}
s_mov_b32 s{SNC}, {f32bits(-(128**-0.5) * math.log2(math.e)):#x}
v_lshlrev_b32 v2, 4, v1
s_lshl_b32 s34, s{SH}, 13
v_add_u32 v3, s34, v2
s_mul_i32 s34, s{SH}, 6144
v_add_u32 v4, s34, v2
s_lshr_b32 s34, s{SH}, 1
v_lshlrev_b32 v5, 4, v1
v_add_u32 v5, s34, v5
v_lshlrev_b32 v5, 2, v5
s_lshl_b32 s34, s{SH}, 2
s_add_u32 s34, s34, {F_KVM}
v_mov_b32 v6, s34
; masks
v_cmp_gt_u32 vcc, 32, v1
v_mov_b32 v10, 0
v_mov_b32 v11, 0xf149f2ca
v_cndmask_b32 v{NEG}, v10, v11, vcc
v_mov_b32 v{NEG+1}, v{NEG}
v_mov_b32 v{NEG+2}, v{NEG}
v_mov_b32 v{NEG+3}, v{NEG}
v_lshrrev_b32 v12, 4, v1
v_lshlrev_b32 v12, 2, v12             ; 4g
v_and_b32 v13, 15, v1''')
    for i in range(4):
        k(f'v_add_u32 v14, {i}, v12\nv_cmp_gt_u32 vcc, v14, v13\nv_cndmask_b32 v{DIAG+i}, v10, v11, vcc')
    validate(k)
    k(f's_cmp_lg_u32 s41, 0\ns_cbranch_scc1 L_att_warm\ns_cmp_lg_u32 s{SW}, 0\ns_cbranch_scc1 L_att_warm')
    for _ in range(CALSLEEP): k('s_sleep 127')
    calibrate(k)
    k('L_att_warm:')
    if XWARM:
        k('s_load_dwordx2 s[4:5], s[0:1], 0\ns_waitcnt lgkmcnt(0)')
        srd(k, 16, 4, 2048*1280)
        k('s_lshl_b32 s34, s41, 9\nv_add_u32 v10, s34, v0\nv_lshlrev_b32 v10, 6, v10')
        for i in range(10): k(f's_mov_b32 s34, {i*4096*64}\nbuffer_load_dword v{210+i}, v10, s[16:19], s34 offen')
        k('s_waitcnt vmcnt(0)')
    k(f'''L_att_task:
s_add_u32 s45, s{SS}, 1''')
    flag_wait(k, 'atw', 5, 3, 45)
    k(f'''s_lshl_b32 s34, s{SS}, 18
s_add_u32 s35, s34, {QX}
s_add_u32 s36, s34, {KX}
s_add_u32 s37, s34, {VX}''')
    for base, sreg in ((QX_, 35), (KX_, 36), (VX_, 37)):
        for i in range(8):
            if i == 4: k(f's_add_u32 s{sreg}, s{sreg}, 4096')
            k(f'buffer_load_dwordx4 {v(base+4*i,4)}, v3, {WS}, s{sreg} offen offset:{(i%4)*1024} sc1')
    flag_wait(k, 'atm', 6, 1, 45, sleep=2)
    k(f's_mul_i32 s38, s{SS}, 196608\ns_add_u32 s38, s38, {KVMP}')
    for i in range(4): k(f'buffer_load_dwordx4 {v(QM+4*i,4)}, v4, {WS}, s38 offen offset:{i*1024} sc1')
    k('s_add_u32 s38, s38, 4096')
    for i in range(2): k(f'buffer_load_dwordx4 {v(VM+4*i,4)}, v4, {WS}, s38 offen offset:{i*1024} sc1')
    k(f's_lshl_b32 s44, s{SS}, 18\ns_add_u32 s44, s44, {OX}')
    for qt in range(2):
        k('s_waitcnt vmcnt(2)' if qt == 0 else '')
        q = lambda ks: v(QX_ + 16*qt + 4*ks, 4)
        for ks in range(4):
            k(f'v_mfma_f32_16x16x32_bf16 {v(S0,4)}, {v(KX_+4*ks,4)}, {q(ks)}, {(v(DIAG,4) if qt == 0 else "0") if ks == 0 else v(S0,4)}')
            if qt == 1: k(f'v_mfma_f32_16x16x32_bf16 {v(S1,4)}, {v(KX_+16+4*ks,4)}, {q(ks)}, {v(DIAG,4) if ks == 0 else v(S1,4)}')
            k(f'v_mfma_f32_16x16x32_bf16 {v(SM,4)}, {v(QM+4*ks,4)}, {q(ks)}, {v(NEG,4) if ks == 0 else v(SM,4)}')
        vals = list(range(S0, S0+4)) + (list(range(S1, S1+4)) if qt == 1 else []) + list(range(SM, SM+4))
        k(f'v_max3_f32 v{T}, v{vals[0]}, v{vals[1]}, v{vals[2]}')
        r = vals[3:]
        while len(r) >= 2: k(f'v_max3_f32 v{T}, v{T}, v{r[0]}, v{r[1]}'); r = r[2:]
        if r: k(f'v_max_f32 v{T}, v{T}, v{r[0]}')
        for sw in ('16', '32'):
            k(f'v_mov_b32 v{T+1}, v{T}\nv_permlane{sw}_swap_b32 v{T}, v{T+1}\nv_max_f32 v{T}, v{T}, v{T+1}')
        k(f'v_mul_f32 v{T}, s{SNC}, v{T}')
        for x in vals: k(f'v_fma_f32 v{x}, v{x}, s{SC}, v{T}')
        for x in vals: k(f'v_exp_f32 v{x}, v{x}')
        k(f'v_add_f32 v{T}, v{vals[0]}, v{vals[1]}')
        for x in vals[2:]: k(f'v_add_f32 v{T}, v{T}, v{x}')
        for sw in ('16', '32'):
            k(f'v_mov_b32 v{T+1}, v{T}\nv_permlane{sw}_swap_b32 v{T}, v{T+1}\nv_add_f32 v{T}, v{T}, v{T+1}')
        k(f'v_rcp_f32 v{T}, v{T}')
        for x in vals: k(f'v_mul_f32 v{x}, v{x}, v{T}')
        k(f'v_cvt_pk_bf16_f32 v{PX}, v{S0}, v{S0+1}\nv_cvt_pk_bf16_f32 v{PX+1}, v{S0+2}, v{S0+3}')
        if qt == 1: k(f'v_cvt_pk_bf16_f32 v{PX+2}, v{S1}, v{S1+1}\nv_cvt_pk_bf16_f32 v{PX+3}, v{S1+2}, v{S1+3}')
        else: k(f'v_mov_b32 v{PX+2}, 0\nv_mov_b32 v{PX+3}, 0')
        k(f'''v_cvt_pk_bf16_f32 v{PM}, v{SM}, v{SM+2}
v_cvt_pk_bf16_f32 v{PM+1}, v{SM+1}, v{SM+3}
v_mov_b32 v{T+2}, v{PM}
v_mov_b32 v{T+3}, v{PM+1}
v_mov_b32 v{PM2}, 0
v_mov_b32 v{PM2+1}, 0
v_permlane32_swap_b32 v{T+2}, v{PM2}
v_permlane32_swap_b32 v{T+3}, v{PM2+1}''')
        if qt == 0: k('s_waitcnt vmcnt(0)')
        for te in range(8): k(f'v_mfma_f32_16x16x32_bf16 {v(O+4*te,4)}, {v(VX_+4*te,4)}, {v(PX,4)}, 0')
        for te in range(8):
            u, t4 = te // 4, te % 4
            k(f'v_mfma_f32_16x16x16_bf16 {v(O+4*te,4)}, {v(VM+4*u+2*(t4//2),2)}, {v(PM if t4 % 2 == 0 else PM2,2)}, {v(O+4*te,4)}')
        for ks in range(4):
            d = 204 + 4*ks
            for h in range(2):
                te = 2*ks + h
                k(f'v_cvt_pk_bf16_f32 v{d+2*h}, v{O+4*te}, v{O+4*te+1}\nv_cvt_pk_bf16_f32 v{d+2*h+1}, v{O+4*te+2}, v{O+4*te+3}')
            k(f'buffer_store_dwordx4 {v(d,4)}, v3, {WS}, s44 offen offset:{ks*1024} sc1')
        k('s_add_u32 s44, s44, 4096')
    k(f'''s_waitcnt vmcnt(0)
s_lshl_b32 s34, s{SS}, 5
s_add_u32 s34, s34, s{SH}
s_lshl_b32 s34, s34, 2
s_add_u32 s34, s34, {F_O}
v_mov_b32 v10, s34
v_mov_b32 v11, 1
s_mov_b64 exec, 1
buffer_store_dword v11, v10, {WS}, 0 offen sc1
s_mov_b64 exec, -1
s_add_u32 s{SS}, s{SS}, 2
s_cmp_lt_u32 s{SS}, 64
s_cbranch_scc1 L_att_task
s_branch L_end''')

def out_role(k):
    W, XB, ACC = 16, 144, 240
    SS, SNJ, SQT = 40, 42, 43
    k('L_out:')
    help_prefetch(k)
    k(f'''
{''.join(['s_sleep 127' + chr(10)] * OSLEEP)}s_cmp_ge_u32 s41, 20
s_cselect_b32 s{SQT}, 1, 0
s_mul_i32 s34, s{SQT}, 20
s_sub_u32 s{SNJ}, s41, s34
s_load_dwordx2 s[4:5], s[0:1], 40
s_load_dwordx2 s[6:7], s[0:1], 80
s_waitcnt lgkmcnt(0)''')
    srd(k, 16, 4, 4096*1280)
    srd(k, 20, 6, 2048*2560)
    k(f'''v_lshrrev_b32 v10, 2, v1
v_and_b32 v11, 3, v1
v_mul_u32_u24 v12, 1280, v10
v_lshl_add_u32 v12, v11, 4, v12
s_lshl_b32 s34, s{SW}, 9
s_mul_i32 s34, s34, 1280
s_lshl_b32 s35, s{SNJ}, 6
s_add_u32 s34, s34, s35
v_add_u32 v12, s34, v12
s_lshl_b32 s34, s{SW}, 13
v_lshl_add_u32 v13, v1, 4, s34
v_lshrrev_b32 v10, 4, v1              ; g
v_bfe_u32 v11, v1, 2, 2               ; rr
v_lshl_add_u32 v10, v10, 2, v11
v_lshlrev_b32 v10, 6, v10
v_and_b32 v11, 3, v1
v_lshl_add_u32 v10, v11, 3, v10
v_add_u32 v14, s34, v10''')
    def wld(hh4):
        for i in range(8):
            k(f's_mov_b32 s34, {(128*hh4 + 16*i)*1280}\nbuffer_load_dwordx4 {v(XB+32*(hh4%2)+4*i,4)}, v12, s[16:19], s34 offen')
    wld(0); wld(1)
    for hh4 in range(4):
        k(f's_waitcnt vmcnt({8 if hh4 < 3 else 0})')
        for i in range(8): k(f'ds_write_b128 v13, {v(XB+32*(hh4%2)+4*i,4)} offset:{i*1024}')
        k('s_waitcnt lgkmcnt(0)')
        if hh4 + 2 < 4: wld(hh4 + 2)
        for ct in range(2):
            for ks in range(4):
                for hh in range(2):
                    k(f'ds_read_b64_tr_b16 {v(W + 64*ct + 4*(4*hh4+ks) + 2*hh, 2)}, v14 offset:{(32*ks + 16*hh)*64 + ct*32}')
            k('s_waitcnt lgkmcnt(0)')
    k(f'''s_barrier
v_lshlrev_b32 v2, 4, v1
s_lshl_b32 s34, s{SW}, 15             ; 4 heads * 8192
s_lshl_b32 s35, s{SQT}, 12
s_add_u32 s34, s34, s35
v_add_u32 v3, s34, v2
s_lshl_b32 s34, s{SW}, 4
v_lshlrev_b32 v5, 2, v1
v_add_u32 v5, s34, v5
v_add_u32 v5, {F_O}, v5
s_lshl_b32 s34, s{SW}, 11
v_add_u32 v6, s34, v2
; reducer (wave 0): token = lane/4, quarter = lane%4
v_lshrrev_b32 v10, 2, v1
v_and_b32 v11, 3, v1
v_lshrrev_b32 v12, 1, v11             ; ct
v_and_b32 v13, 1, v11
v_lshlrev_b32 v13, 5, v13             ; (2*(qd%2))*16
v_add_u32 v13, v13, v10
v_lshlrev_b32 v13, 4, v13
v_lshl_add_u32 v7, v12, 10, v13       ; ct*1024
s_lshl_b32 s34, s{SQT}, 4
v_add_u32 v10, s34, v10
v_mul_u32_u24 v10, 2560, v10
v_lshl_add_u32 v10, v11, 4, v10
s_lshl_b32 s34, s{SNJ}, 6
v_add_u32 v8, s34, v10
s_mov_b32 s45, 1
s_mov_b32 s46, 0
s_mov_b32 s{SS}, 0''')
    validate(k)
    mark(k, 1)
    k(f'''L_out_seg:
s_lshl_b32 s37, s{SS}, 7''')
    flag_wait(k, 'otw', 5, 4, 45, soff='s37', sleep=3)
    k(f's_lshl_b32 s34, s{SS}, 18\ns_add_u32 s34, s34, {OX}')
    for h in range(4):
        k(f's_add_u32 s35, s34, {h*8192}')
        for ks in range(4): k(f'buffer_load_dwordx4 {v(XB+16*h+4*ks,4)}, v3, {WS}, s35 offen offset:{ks*1024} sc1')
    for h in range(4):
        k(f's_waitcnt vmcnt({12 - 4*h})')
        for ks in range(4):
            for ct in range(2):
                a_ = v(ACC + 4*ct, 4)
                k(f'v_mfma_f32_16x16x32_bf16 {a_}, {v(W+64*ct+4*(4*h+ks),4)}, {v(XB+16*h+4*ks,4)}, {"0" if h == 0 and ks == 0 else a_}')
    k('v_add_u32 v10, s46, v6')
    for ct in range(2): k(f'ds_write_b128 v10, {v(ACC+4*ct,4)} offset:{ct*1024}')
    k(f'''s_waitcnt lgkmcnt(0)
s_barrier
s_cmp_ge_u32 s{SW}, 1
s_cbranch_scc1 L_out_nx
v_add_u32 v10, s46, v7''')
    for c in range(2):
        for w in range(8): k(f'ds_read_b128 {v(XB+32*c+4*w,4)}, v10 offset:{w*2048 + c*256}')
        k('s_waitcnt lgkmcnt(0)')
        b = XB + 32*c
        for x, y in ((0, 4), (8, 12), (16, 20), (24, 28), (0, 8), (16, 24), (0, 16)):
            k(f'v_pk_add_f32 {v(b+x,2)}, {v(b+x,2)}, {v(b+y,2)}\nv_pk_add_f32 {v(b+x+2,2)}, {v(b+x+2,2)}, {v(b+y+2,2)}')
        k(f'v_cvt_pk_bf16_f32 v{224+2*c}, v{b}, v{b+1}\nv_cvt_pk_bf16_f32 v{225+2*c}, v{b+2}, v{b+3}')
    k(f'''s_mul_i32 s34, s{SS}, {32*2560}
buffer_store_dwordx4 v[224:227], v8, s[20:23], s34 offen{OUTSC}
L_out_nx:
s_xor_b32 s46, s46, 0x4000
s_add_u32 s{SS}, s{SS}, 1
s_cmp_lt_u32 s{SS}, 64
s_cbranch_scc1 L_out_seg
s_branch L_end''')
```

```python
from dsl import v, s
from layout import *
WS = 's[8:11]'
SX, SR, SW, SLIM = 28, 29, 30, 33
PW = 16
ACC2 = [176, 192]
STG2 = [208, 228]
XFR = [12, 248, 252]
XBUF = 41472

def srd(k, base, ptr, nbytes):
    k(f'''s_mov_b32 s{base}, s{ptr}
s_and_b32 s{base+1}, s{ptr+1}, 0xffff
s_mov_b32 s{base+2}, {nbytes:#x}
s_mov_b32 s{base+3}, 0x20000''')

mark = lambda k, n: None
LITE = 0
PMARK = -1
EARLY = 3
def proj_role(k):
    SP, SM_, SHP, SSEG, SOUT, SFLAG = 41, 42, 43, 40, 44, 45
    k(f'''
L_proj:
s_lshr_b32 s{SM_}, s{SP}, 4
s_and_b32 s{SHP}, s{SP}, 15
s_lshl_b32 s34, s{SM_}, 3
s_add_u32 s34, s34, 16
s_load_dwordx2 s[4:5], s[0:1], s34
s_load_dwordx2 s[6:7], s[0:1], 0
s_waitcnt lgkmcnt(0)''')
    srd(k, 16, 4, 640*8192)
    srd(k, 20, 6, 2048*1280)
    k('v_lshlrev_b32 v2, 4, v0')
    for i in range(5):
        k(f'''v_add_u32 v10, {512*i}, v0
v_mul_u32_u24 v11, 52429, v10
v_lshrrev_b32 v11, 22, v11
v_add_u32 v11, v11, v10
v_lshlrev_b32 v{3+i}, 4, v11''')
    WS0 = 83968
    def xload(sg, seg):
        for i in range(5):
            k(f's_mov_b32 s34, {seg*40960 + i*8192}\nbuffer_load_dwordx4 {v(STG2[sg]+4*i,4)}, v2, s[20:23], s34 offen')
    xload(0, 0)
    k(f'''v_lshrrev_b32 v10, 5, v0
v_and_b32 v11, 31, v0
v_lshlrev_b32 v12, 13, v10
v_lshl_add_u32 v12, v11, 4, v12
s_lshl_b32 s34, s{SHP}, 9
v_add_u32 v12, s34, v12''')
    raw = lambda c: PW + 16*(c + 1)
    for c in range(10):
        for kk in range(4):
            k(f's_mov_b32 s34, {(64*c + 16*kk)*8192}\nbuffer_load_dwordx4 {v(raw(c)+4*kk,4)}, v12, s[16:19], s34 offen')
    xload(1, 1)
    k(f'''v_and_b32 v13, 3, v10
v_lshlrev_b32 v13, 1, v13
v_lshrrev_b32 v14, 1, v11
v_add_u32 v13, v13, v14
v_and_b32 v13, 15, v13
v_lshlrev_b32 v13, 5, v13
v_and_b32 v14, 1, v11
v_lshl_add_u32 v13, v14, 4, v13
v_lshl_add_u32 v13, v10, 9, v13
v_add_u32 v13, {WS0}, v13
v_lshrrev_b32 v10, 4, v1
v_lshrrev_b32 v11, 1, v10             ; g2
v_and_b32 v10, 1, v10                 ; nh
v_bfe_u32 v14, v1, 2, 2               ; rr
v_lshl_add_u32 v11, v11, 3, v14
v_lshlrev_b32 v11, 9, v11
v_lshl_add_u32 v10, v14, 1, v10
s_lshl_b32 s34, s{SW}, 1
v_add_u32 v10, s34, v10
v_and_b32 v10, 15, v10
v_lshl_add_u32 v11, v10, 5, v11
v_and_b32 v10, 3, v1
v_lshl_add_u32 v14, v10, 3, v11
v_add_u32 v14, {WS0}, v14
s_lshr_b32 s34, s{SW}, 2
s_lshl_b32 s35, s{SHP}, 1
s_add_u32 s34, s34, s35               ; head
s_lshl_b32 s34, s34, 13
s_and_b32 s35, s{SW}, 3               ; e group
v_lshrrev_b32 v10, 5, v1              ; hi
v_and_b32 v11, 15, v1
v_lshl_add_u32 v11, v10, 4, v11
v_lshlrev_b32 v11, 4, v11
v_bfe_u32 v10, v1, 4, 1
s_cmp_eq_u32 s{SM_}, 2
s_cbranch_scc1 L_pj_ov
s_lshl_b32 s35, s35, 10
v_lshl_add_u32 v11, v10, 12, v11
s_branch L_pj_od
L_pj_ov:
s_lshl_b32 s35, s35, 11
v_lshl_add_u32 v11, v10, 10, v11
L_pj_od:
s_add_u32 s34, s34, s35
v_add_u32 v8, s34, v11
s_add_u32 s35, s{SM_}, 2
s_cmp_eq_u32 s{SM_}, 0
s_cselect_b32 s35, 3, s{SM_}
s_lshl_b32 s{SOUT}, s35, 24
s_lshl_b32 s{SFLAG}, s{SP}, 2
v_and_b32 v10, 31, v1
v_mul_u32_u24 v10, 1296, v10
v_lshrrev_b32 v11, 5, v1
v_lshl_add_u32 v9, v11, 4, v10
s_waitcnt vmcnt(45)''')
    for i in range(5): k(f'ds_write_b128 v{3+i}, {v(STG2[0]+4*i,4)}')
    k('s_waitcnt lgkmcnt(0)')
    xload(0, 2)
    A0 = ACC2[1]
    def wr(c):
        k(f's_waitcnt vmcnt({46 - 4*c})')
        for kk in range(4): k(f'ds_write_b128 v13, {v(raw(c)+4*kk,4)} offset:{(c % 2)*32768 + kk*8192}')
    wr(0)
    k('s_waitcnt lgkmcnt(0)\ns_barrier')
    for c in range(10):
        buf = (c % 2)*32768
        if c == PMARK: mark(k, 2)
        if c + 1 < 10: wr(c + 1)
        for ksl in range(4):
            for hh in range(2):
                k(f'ds_read_b64_tr_b16 {v(PW + 4*(4*c+ksl) + 2*hh, 2)}, v14 offset:{buf + ksl*8192 + hh*2048}')
        for half in range(2):
            for q in range(2): k(f'ds_read_b128 {v(XFR[1+q],4)}, v9 offset:{(4*c + 2*half + q)*32}')
            k('s_waitcnt lgkmcnt(0)')
            lv, ld = k.lab('p0v'), k.lab('p0d')
            k(f's_cmp_eq_u32 s{SM_}, 2\ns_cbranch_scc1 {lv}')
            for t in ('K', 'V'):
                if t == 'V': k(f's_branch {ld}\n{lv}:')
                for q in range(2):
                    ks = 4*c + 2*half + q
                    w, x = v(PW+4*ks, 4), v(XFR[1+q], 4)
                    k(f'v_mfma_f32_32x32x16_bf16 {v(A0,16)}, {w if t == "K" else x}, {x if t == "K" else w}, {"0" if ks == 0 else v(A0,16)}')
            k(f'{ld}:')
        k('s_barrier')
    validate(k)
    mark(k, 1)
    def pack_ops(typ, acc):
        order = [(0, 0), (0, 1), (1, 0), (1, 1), (2, 0), (2, 1), (3, 0), (3, 1)] if typ == 'K' else [(0, 0), (0, 1), (2, 0), (2, 1), (1, 0), (1, 1), (3, 0), (3, 1)]
        return [f'v_cvt_pk_bf16_f32 v{acc+n}, v{acc+4*a+2*h}, v{acc+4*a+2*h+1}' for n, (a, h) in enumerate(order)]
    def flag(val):
        lab = k.lab('pjf')
        k(f'''s_cmp_lg_u32 s{SW}, 0
s_cbranch_scc1 {lab}
v_mov_b32 v10, s{SFLAG}
v_mov_b32 v11, {val}
s_mov_b64 exec, 1
buffer_store_dword v11, v10, {WS}, 0 offen sc1
s_mov_b64 exec, -1
{lab}:''')
    k(f's_cmp_eq_u32 s{SM_}, 2\ns_cbranch_scc1 L_pj_s0V')
    for typ in ('K', 'V'):
        k(f'L_pj_s0{typ}:')
        for f in pack_ops(typ, A0): k(f)
        k(f'''buffer_store_dwordx4 v[{A0}:{A0+3}], v8, {WS}, s{SOUT} offen sc1
buffer_store_dwordx4 v[{A0+4}:{A0+7}], v8, {WS}, s{SOUT} offen offset:512 sc1
s_waitcnt vmcnt(2)''')
        for i in range(5): k(f'ds_write_b128 v{3+i}, {v(STG2[1]+4*i,4)} offset:{XBUF}')
        k('s_waitcnt lgkmcnt(0)')
        xload(1, 3)
        k('s_waitcnt vmcnt(5)\ns_barrier')
        flag('1')
        k(f's_mov_b32 s{SSEG}, 1\ns_branch L_pj_par1{typ}')
    for typ in ('K', 'V'):
        k(f'L_pj_loop{typ}:')
        for par in range(2):
            if par == 1: k(f'L_pj_par1{typ}:')
            acc, prev = ACC2[par], ACC2[1 - par]
            stg = STG2[1 - par]
            rb, wb = par*XBUF, (1 - par)*XBUF
            k(f'''s_add_u32 s34, s{SSEG}, 3
s_min_u32 s34, s34, 63
s_mul_i32 s46, s34, 40960
s_sub_u32 s34, s{SSEG}, 1
s_lshl_b32 s47, s34, 18
s_add_u32 s47, s47, s{SOUT}''')
            fill = {}
            pk = pack_ops(typ, prev)
            for i in range(5): fill[1 + 2*i] = [f'ds_write_b128 v{3+i}, {v(stg+4*i,4)} offset:{wb}']
            fill[2] = pk[0:2]; fill[4] = pk[2:4]; fill[6] = pk[4:6]; fill[8] = pk[6:8]
            st = [f'buffer_store_dwordx4 v[{prev}:{prev+3}], v8, {WS}, s47 offen sc1', f'buffer_store_dwordx4 v[{prev+4}:{prev+7}], v8, {WS}, s47 offen offset:512 sc1']
            for i in range(5): fill[11 + i] = [f's_add_u32 s48, s46, {i*8192}', f'buffer_load_dwordx4 {v(stg+4*i,4)}, v2, s[20:23], s48 offen']
            for i in range(2): k(f'ds_read_b128 {v(XFR[i],4)}, v9 offset:{rb + i*32}')
            for ks in range(40):
                if ks + 2 < 40: k(f'ds_read_b128 {v(XFR[(ks+2)%3],4)}, v9 offset:{rb + (ks+2)*32}')
                k(f's_waitcnt lgkmcnt({2 if ks + 2 < 40 else (1 if ks + 1 < 40 else 0)})')
                c = '0' if ks == 0 else v(acc, 16)
                w, x = v(PW+4*ks, 4), v(XFR[ks % 3], 4)
                k(f'v_mfma_f32_32x32x16_bf16 {v(acc,16)}, {w if typ == "K" else x}, {x if typ == "K" else w}, {c}')
                for f in fill.get(ks, []): k(f)
                if ks == 10:
                    lab = k.lab('pjs')
                    k(f's_cmp_le_u32 s{SSEG}, {EARLY + 1}\ns_cbranch_scc1 {lab}')
                    for f in st: k(f)
                    k(f'{lab}:')
            e0 = k.lab('pje')
            k(f's_cmp_gt_u32 s{SSEG}, {EARLY}\ns_cbranch_scc1 {e0}')
            for f in pack_ops(typ, acc): k(f)
            k(f'''s_lshl_b32 s47, s{SSEG}, 18
s_add_u32 s47, s47, s{SOUT}
buffer_store_dwordx4 v[{acc}:{acc+3}], v8, {WS}, s47 offen sc1
buffer_store_dwordx4 v[{acc+4}:{acc+7}], v8, {WS}, s47 offen offset:512 sc1
s_waitcnt vmcnt(0)
s_barrier
s_add_u32 s47, s{SSEG}, 1''')
            flag('s47')
            k(f's_branch {e0}_d\n{e0}:')
            k('s_waitcnt vmcnt(5)\ns_barrier')
            flag(f's{SSEG}')
            k(f'{e0}_d:')
            if LITE:
                l1, l2 = k.lab('lt'), k.lab('lt')
                k(f'''s_cmp_eq_u32 s{SSEG}, 8
s_cbranch_scc0 {l1}
s_memrealtime s[90:91]
s_memtime s[94:95]
s_waitcnt lgkmcnt(0)
{l1}:
s_cmp_eq_u32 s{SSEG}, 56
s_cbranch_scc0 {l2}
s_memrealtime s[92:93]
s_memtime s[96:97]
s_waitcnt lgkmcnt(0)
{l2}:''')
            k(f's_add_u32 s{SSEG}, s{SSEG}, 1')
            if par == 1: k(f's_cmp_lt_u32 s{SSEG}, 64\ns_cbranch_scc1 L_pj_loop{typ}')
        for f in pack_ops(typ, ACC2[1]): k(f)
        k(f'''s_mov_b32 s47, 63
s_lshl_b32 s47, s47, 18
s_add_u32 s47, s47, s{SOUT}
buffer_store_dwordx4 v[{ACC2[1]}:{ACC2[1]+3}], v8, {WS}, s47 offen sc1
buffer_store_dwordx4 v[{ACC2[1]+4}:{ACC2[1]+7}], v8, {WS}, s47 offen offset:512 sc1
s_waitcnt vmcnt(0)
s_barrier''')
        flag('64')
        if LITE:
            k(f'''s_sub_u32 s34, s92, s90
v_mov_b32 v12, s34
s_lshl_b32 s34, s{SX}, 5
s_add_u32 s34, s34, s{SR}
s_lshl_b32 s34, s34, 3
s_add_u32 s34, s34, s{SW}
s_lshl_b32 s34, s34, 2
s_add_u32 s34, s34, 0x8800000
v_mov_b32 v10, s34
buffer_store_dword v12, v10, {WS}, 0 offen
s_sub_u32 s34, s96, s94
v_mov_b32 v12, s34
v_add_u32 v10, 0x10000, v10
buffer_store_dword v12, v10, {WS}, 0 offen''')
        k('s_branch L_end')
```

```python
import sys, math, struct
from dsl import Kern, v, s
from layout import *
from proj import proj_role
from attout import att_role, out_role
from brole import b_role

def f32bits(x): return struct.unpack('<I', struct.pack('<f', x))[0]

WS, DBG = 's[8:11]', 's[12:15]'
SX, SR, SW, SSLOW, SPAR, SLIM = 28, 29, 30, 31, 32, 33
SXCC, SRANK = 98, 99
SSTEP = 40
POLL_LIMIT = 1 << 17

def srd(k, base, ptr, nbytes):
    k(f'''s_mov_b32 s{base}, s{ptr}
s_and_b32 s{base+1}, s{ptr+1}, 0xffff
s_mov_b32 s{base+2}, {nbytes:#x}
s_mov_b32 s{base+3}, 0x20000''')

def poll(k, name, loads, check, cnt=39, sleep=0):
    L, D = k.lab(name), k.lab(name + 'd')
    k(f's_mov_b32 s{cnt}, 0\n{L}:')
    loads()
    k('s_waitcnt vmcnt(0)')
    check()
    k(f's_cbranch_vccz {D}')
    if sleep: k(f's_sleep {sleep}')
    k(f'''s_add_u32 s{cnt}, s{cnt}, 1
s_cmp_lt_u32 s{cnt}, s{SLIM}
s_cbranch_scc1 {L}
s_mov_b32 s{SLIM}, 0
{D}:''')

def umax_check(k, regs, tmp):
    r = list(regs)
    if len(r) == 1:
        k(f'v_cmp_eq_u32 vcc, -1, v{r[0]}'); return
    if len(r) == 2:
        k(f'v_max_u32 v{tmp}, v{r[0]}, v{r[1]}'); r = []
    else:
        k(f'v_max3_u32 v{tmp}, v{r[0]}, v{r[1]}, v{r[2]}'); r = r[3:]
    while len(r) >= 2:
        k(f'v_max3_u32 v{tmp}, v{tmp}, v{r[0]}, v{r[1]}'); r = r[2:]
    if r: k(f'v_max_u32 v{tmp}, v{tmp}, v{r[0]}')
    k(f'v_cmp_eq_u32 vcc, -1, v{tmp}')

TL = False
DBGST = False
def dstamp(k, word, cond_x, cond_r, wave=0):
    if not DBGST: return
    L = k.lab('ds')
    k(f'''s_cmp_lg_u32 s{SX}, {cond_x}
s_cbranch_scc1 {L}
s_cmp_lg_u32 s{SR}, {cond_r}
s_cbranch_scc1 {L}
s_cmp_lg_u32 s{SW}, {wave}
s_cbranch_scc1 {L}
s_memrealtime s[82:83]
s_waitcnt lgkmcnt(0)
v_mov_b32 v252, s82
v_mov_b32 v253, {word*4}
s_mov_b64 exec, 1
buffer_store_dword v252, v253, {DBG}, 0 offen
s_mov_b64 exec, -1
{L}:''')

def mark(k, n):
    if TL: k(f's_memrealtime s[82:83]\ns_waitcnt lgkmcnt(0)\ns_mov_b32 s{85+n}, s82')

def start_phase(k, keepflags=False):
    k(f'''
s_cmp_ge_u32 s2, 256
s_cbranch_scc1 L_exit
{'s_memrealtime s[84:85]' if TL else ''}
s_load_dwordx4 s[4:7], s[0:1], 88
s_getreg_b32 s{SXCC}, hwreg(HW_REG_XCC_ID)
s_and_b32 s{SXCC}, s{SXCC}, 15
v_and_b32 v1, 63, v0
v_lshrrev_b32 v2, 6, v0
v_readfirstlane_b32 s{SW}, v2
s_waitcnt lgkmcnt(0)''')
    srd(k, 8, 6, WS_BYTES)
    srd(k, 12, 4, 256)
    k(f'''
s_mov_b32 s{SLIM}, {POLL_LIMIT}
s_mov_b32 s{SSLOW}, 0
v_mov_b32 v9, 0
s_cmp_lg_u32 s{SW}, 0
s_cbranch_scc1 L_st_clr
s_lshl_b32 s35, s{SXCC}, 4
v_mov_b32 v8, s35
v_mov_b32 v9, 1
s_mov_b64 exec, 1
buffer_atomic_add v9, v8, {DBG}, 0 offen sc0
s_mov_b64 exec, -1
L_st_clr:
s_lshl_b32 s35, s2, 14
s_cmp_lt_u32 s35, 0x10000
s_cselect_b32 s36, 0, -1
v_mov_b32 v4, s36
v_mov_b32 v5, s36
v_mov_b32 v6, s36
v_mov_b32 v7, s36
v_lshlrev_b32 v2, 4, v0
s_add_u32 s36, s35, 8192
{'s_cmp_lt_u32 s35, 0x10000' if keepflags else ''}
{'s_cbranch_scc1 L_st_noclr' if keepflags else ''}
buffer_store_dwordx4 v[4:7], v2, {WS}, s35 offen sc1
buffer_store_dwordx4 v[4:7], v2, {WS}, s36 offen sc1
L_st_noclr:
s_cmp_lg_u32 s{SW}, 0
s_cbranch_scc1 L_st_w1
s_waitcnt vmcnt(2)
v_readfirstlane_b32 s35, v9
v_mov_b32 v4, s35
v_mov_b32 v8, 0
ds_write_b32 v8, v4
s_waitcnt lgkmcnt(0)
L_st_w1:
s_barrier
v_mov_b32 v8, 0
ds_read_b32 v4, v8
s_waitcnt lgkmcnt(0)
v_readfirstlane_b32 s{SRANK}, v4
s_min_u32 s{SR}, s{SRANK}, 31
s_and_b32 s{SX}, s{SXCC}, 7
s_waitcnt vmcnt(0)
s_barrier
s_cmp_lg_u32 s{SW}, 0
s_cbranch_scc1 L_dispatch
s_lshl_b32 s35, s{SXCC}, 4
s_add_u32 s35, s35, 8
v_mov_b32 v8, s35
v_mov_b32 v9, 1
s_mov_b64 exec, 1
buffer_atomic_add v9, v8, {DBG}, 0 offen
s_mov_b64 exec, -1
L_dispatch:''')
    dstamp(k, 15, 0, 0)
    if TL: k('s_memrealtime s[82:83]\ns_mov_b32 s86, 0\ns_mov_b32 s87, 0\ns_waitcnt lgkmcnt(0)\ns_mov_b32 s85, s82')

def help_prefetch(k):
    H, D = k.lab('hp'), k.lab('hpd')
    k(f'''s_cmp_ge_u32 s{SX}, 4
s_cbranch_scc1 {H}
; chain die: wave wg = (R-24)*8 + w; tasks wg + 64 j < 480: unit = t / 20, block of 16 rows = t % 20
s_sub_u32 s34, s{SR}, 24
s_lshl_b32 s34, s34, 3
s_add_u32 s34, s34, s{SW}
v_lshrrev_b32 v10, 2, v1
v_and_b32 v11, 3, v1
v_lshlrev_b32 v10, 13, v10
v_lshl_add_u32 v10, v11, 6, v10''')
    for j in range(8):
        sk = k.lab('hs')
        k(f'''s_add_u32 s35, s34, {64*j}
s_cmp_ge_u32 s35, 480
s_cbranch_scc1 {sk}
s_mul_i32 s36, s35, 3277
s_lshr_b32 s36, s36, 16               ; unit (0..23)
s_mul_i32 s37, s36, 20
s_sub_u32 s37, s35, s37               ; block
s_cmp_ge_u32 s36, 12
s_cselect_b32 s38, 1, 0
s_mul_i32 s39, s38, 12
s_sub_u32 s39, s36, s39               ; i
s_mul_i32 s44, s39, 11
s_lshr_b32 s44, s44, 5
s_mul_i32 s45, s44, 3
s_sub_u32 s45, s39, s45               ; m
s_lshl_b32 s46, s{SX}, 1
s_add_u32 s46, s46, s38
s_lshl_b32 s46, s46, 2
s_add_u32 s46, s46, s44               ; head
s_lshl_b32 s46, s46, 8
s_lshl_b32 s37, s37, 4
s_sub_u32 s37, 624, s37
s_lshl_b32 s37, s37, 13
s_add_u32 s46, s46, s37
s_lshl_b32 s45, s45, 3
s_add_u32 s45, s45, 16
s_load_dwordx2 s[4:5], s[0:1], s45
s_waitcnt lgkmcnt(0)''')
        srd(k, 16, 4, 640*8192)
        k(f'buffer_load_dword v{230+j}, v10, s[16:19], s46 offen\n{sk}:')
    k(f'''s_branch {D}
{H}:
; PROJ die: wave wg = (R-12)*8 + w; tasks wg + 160 j < 480: unit = t / 40, block of 8 rows = t % 40
s_sub_u32 s34, s{SR}, 12
s_lshl_b32 s34, s34, 3
s_add_u32 s34, s34, s{SW}
v_lshrrev_b32 v10, 3, v1
v_and_b32 v11, 7, v1
v_lshlrev_b32 v10, 13, v10
v_lshl_add_u32 v10, v11, 6, v10''')
    for j in range(3):
        k(f'''s_add_u32 s35, s34, {160*j}
s_mul_i32 s36, s35, 1639
s_lshr_b32 s36, s36, 16               ; unit (0..11)
s_mul_i32 s37, s36, 40
s_sub_u32 s37, s35, s37               ; block
s_sub_u32 s38, s{SX}, 4
s_mul_i32 s38, s38, 12
s_add_u32 s38, s38, s36               ; p
s_lshr_b32 s45, s38, 4                ; m
s_and_b32 s46, s38, 15
s_lshl_b32 s46, s46, 9
s_lshl_b32 s37, s37, 3
s_sub_u32 s37, 632, s37
s_lshl_b32 s37, s37, 13
s_add_u32 s46, s46, s37
s_lshl_b32 s45, s45, 3
s_add_u32 s45, s45, 16
s_min_u32 s45, s45, 32
s_load_dwordx2 s[4:5], s[0:1], s45
s_waitcnt lgkmcnt(0)''')
        srd(k, 16, 4, 640*8192)
        k(f'buffer_load_dword v{230+j}, v10, s[16:19], s46 offen')
    k(f'{D}:')

def validate(k, need_par=False):
    L, G, OK = k.lab('val'), k.lab('valg'), k.lab('valok')
    k(f'''s_cmp_lg_u32 s{SSLOW}, 0
s_cbranch_scc1 {OK}
v_lshlrev_b32 v10, 2, v1
s_mov_b32 s39, 0
{L}:
buffer_load_dword v11, v10, {DBG}, 0 offen sc1
s_waitcnt vmcnt(0)
v_cmp_eq_u32 vcc, 32, v11
s_and_b32 s34, vcc_lo, 0x55555555
s_cmp_eq_u32 s34, 0x55555555
s_cbranch_scc0 {G}_s
v_readlane_b32 s{SPAR}, v11, 1
s_mov_b32 s34, 0
{'s_cmp_lg_u32 s' + str(SPAR) + ', 0' if need_par else 's_cmp_eq_u32 s34, 0'}
s_cbranch_scc1 {G}
{G}_s:
s_mov_b32 s36, 0
s_mov_b32 s37, 0
s_mov_b32 s38, 0
s_mov_b32 s34, 0''')
    for i in range(16):
        k(f'''v_readlane_b32 s35, v11, {4*i+2}
s_add_u32 s38, s38, s35
v_readlane_b32 s35, v11, {4*i}
s_add_u32 s36, s36, s35
s_cmp_eq_u32 s35, {32 if i < 8 else 0}
s_cselect_b32 s97, 0, 1
s_or_b32 s34, s34, s97
s_cmp_gt_u32 s{SXCC}, {i}
s_cselect_b32 s35, s35, 0
s_add_u32 s37, s37, s35''')
    k(f'''v_readlane_b32 s{SPAR}, v11, 1
s_cmp_eq_u32 s36, 256
s_cselect_b32 s35, s38, 0
s_cmp_eq_u32 s35, 256''')
    if need_par:
        k(f'''s_cselect_b32 s35, s{SPAR}, 0
s_or_b32 s97, s35, s34
s_cmp_eq_u32 s36, 256
s_cselect_b32 s97, s97, 0
s_cmp_eq_u32 s38, 256
s_cselect_b32 s97, s97, 0
s_cmp_lg_u32 s97, 0''')
    k(f'''s_cbranch_scc1 {G}
s_sleep 2
s_add_u32 s39, s39, 1
s_cmp_lt_u32 s39, s{SLIM}
s_cbranch_scc1 {L}
s_mov_b32 s{SLIM}, 0
{G}:
s_and_b32 s{SPAR}, s{SPAR}, 2
s_lshl_b32 s{SPAR}, s{SPAR}, 12
s_cmp_eq_u32 s34, 0
s_cbranch_scc1 {OK}
s_mov_b32 s{SSLOW}, 1
s_mov_b32 s{SPAR}, 0
s_add_u32 s37, s37, s{SRANK}
s_and_b32 s37, s37, 255
s_lshr_b32 s{SX}, s37, 5
s_and_b32 s{SR}, s37, 31
s_barrier
s_branch L_dispatch
{OK}:''')

def calibrate(k):
    k(f'''s_mov_b64 exec, 1
s_mov_b32 s36, -1
s_mov_b32 s37, -1''')
    for i in range(5):
        for par in range(2):
            k(f'''v_mov_b32 v8, {PART + 0x190000 + par*8192 + i*256:#x}
s_memtime s[44:45]
s_waitcnt lgkmcnt(0)
buffer_load_dword v9, v8, {WS}, 0 offen sc1
s_waitcnt vmcnt(0)
s_memtime s[46:47]
s_waitcnt lgkmcnt(0)
s_sub_u32 s38, s46, s44
s_min_u32 s{36+par}, s{36+par}, s38''')
    k(f'''s_cmp_lt_u32 s36, s37
s_cselect_b32 s38, 0, 1
s_cmp_ge_u32 s{SXCC}, 4
s_cselect_b32 s39, 1, 0
s_xor_b32 s38, s38, s39
s_add_u32 s38, s38, 1
v_mov_b32 v9, s38
v_mov_b32 v8, 4
buffer_store_dword v9, v8, {DBG}, 0 offen sc1
s_waitcnt vmcnt(0)
s_mov_b64 exec, -1''')

L_KV, L_MEMF, L_RED = 0, 65536, 65536 + 10240
V_MF = 10
V_MW = 11
VLANE16 = 2
V_A3 = 3
V_A4 = 4
V_A5 = 5
V_A6 = 6
V_A7 = 7
V_A9 = 9
V_IDX = 15
WO, KXR, VXR, QK, VM, S0, S1, SM = 16, 80, 112, 144, 160, 168, 172, 176
PX, PM, PM2, O, OB, OA, NEG = 180, 184, 186, 192, 224, 144, 240
W1, MF, DA, DB = 16, 176, 216, 220
S_HEAD, S_M, S_I, S_G, S_GI = 41, 42, 43, 44, 45
S_MEMN, S_MEMN4, S_MEMN8, S_MEMZ = 46, 47, 48, 49
S_QC, S_QC4, S_QZ = 50, 51, 52
S_PC, S_PZ = 53, 54
S_KP = 55
S_KXN, S_VXN = 56, 57
S_AVAIL = 58
S_KP4 = 59
M_LO8, M_EVEN, M_ODD = 72, 74, 76
S_C, S_NC = 78, 79

def chain_offsets(k, part):
    if 'q' in part:
        k(f"""s_and_b32 s34, s{SSTEP}, 3
s_mul_i32 s{S_QC}, s34, 196608
s_add_u32 s{S_QC}, s{S_QC}, {QKVR}""")
    if 'r' in part:
        k(f"""s_and_b32 s34, s{SSTEP}, 3
s_add_u32 s{S_QC4}, s{S_QC}, 4096
s_mul_i32 s{S_PC}, s34, {8*3*16384}
s_add_u32 s{S_PC}, s{S_PC}, {PART}
s_add_u32 s{S_PC}, s{S_PC}, s{SPAR}
s_add_u32 s35, s{SSTEP}, 2
s_and_b32 s35, s35, 3
s_mul_i32 s{S_QZ}, s35, 196608
s_add_u32 s{S_QZ}, s{S_QZ}, {QKVR}
s_mul_i32 s{S_PZ}, s35, {8*3*16384}
s_add_u32 s{S_PZ}, s{S_PZ}, {PART}
s_add_u32 s{S_PZ}, s{S_PZ}, s{SPAR}
s_mul_i32 s36, s{SX}, 10240
s_add_u32 s36, s36, {MEMR}
s_add_u32 s35, s{SSTEP}, 1
s_and_b32 s35, s35, 3
s_mul_i32 s{S_MEMN}, s35, 40960
s_add_u32 s{S_MEMN}, s{S_MEMN}, s36
s_add_u32 s{S_MEMN4}, s{S_MEMN}, 4096
s_add_u32 s{S_MEMN8}, s{S_MEMN}, 8192
s_add_u32 s35, s{SSTEP}, 3
s_and_b32 s35, s35, 3
s_mul_i32 s{S_MEMZ}, s35, 40960
s_add_u32 s{S_MEMZ}, s{S_MEMZ}, s36
s_mul_i32 s{S_KP}, s{SSTEP}, 196608
s_add_u32 s{S_KP}, s{S_KP}, {KVMP}
s_add_u32 s{S_KP4}, s{S_KP}, 4096
s_add_u32 s35, s{SSTEP}, 1
s_lshl_b32 s35, s35, 18
s_add_u32 s{S_KXN}, s35, {KX}
s_add_u32 s{S_VXN}, s35, {VX}""")

def kv_wait(k, need_sreg):
    D = k.lab('kvok')
    k(f's_cmp_ge_u32 s{S_AVAIL}, s{need_sreg}\ns_cbranch_scc1 {D}')
    L = k.lab('kvp')
    k(f"""s_mov_b32 s39, 0
{L}:
buffer_load_dword v13, v{V_A9}, {WS}, 0 offen sc1
s_waitcnt vmcnt(0)
v_readlane_b32 s34, v13, 0
v_readlane_b32 s35, v13, 1
s_min_u32 s{S_AVAIL}, s34, s35
s_cmp_ge_u32 s{S_AVAIL}, s{need_sreg}
s_cbranch_scc1 {D}
s_sleep 2
s_add_u32 s39, s39, 1
s_cmp_lt_u32 s39, s{SLIM}
s_cbranch_scc1 {L}
s_mov_b32 s{SLIM}, 0
{D}:""")

KVSC = ' sc1'
NOKV = False
def kv_loads(k, skx, svx):
    k(f's_add_u32 s34, s{skx}, 4096\ns_add_u32 s35, s{svx}, 4096')
    for i in range(8):
        k(f'buffer_load_dwordx4 {v(KXR+4*i,4)}, v{V_A4}, {WS}, s{skx if i < 4 else 34} offen offset:{(i%4)*1024}{KVSC}')
    for i in range(8):
        k(f'buffer_load_dwordx4 {v(VXR+4*i,4)}, v{V_A4}, {WS}, s{svx if i < 4 else 35} offen offset:{(i%4)*1024}{KVSC}')

def kv_dma(k, skx, svx, second=False):
    for part, sb in ((0, skx), (1, svx)):
        for hlf in range(2):
            k(f's_add_u32 m0, s60, {part*8192 + hlf*4096 - (16384 if second else 0)}' if not second else f's_sub_u32 m0, s60, {16384 - part*8192 - hlf*4096}')
            if second: k(f's_sub_u32 s34, s{sb}, {8192 - hlf*4096}')
            else: k(f's_add_u32 s34, s{sb}, {hlf*4096}')
            for i in range(4):
                k(f'buffer_load_dwordx4 v8, {WS}, s34 offen offset:{i*1024}{KVSC} lds')

def kv_copies(k, skx, svx):
    A, D = k.lab('kc'), k.lab('kd')
    k(f's_cmp_eq_u32 s{SW}, 6\ns_cbranch_scc1 {D}')
    kv_dma(k, skx, svx)
    k(f's_cmp_eq_u32 s{SW}, 7\ns_cbranch_scc0 {D}')
    kv_dma(k, skx, svx, second=True)
    k(f'{D}:')

def chain_prologue(k):
    k(f"""
L_chain:
; i = R % 12, gi = R / 12, hl = i / 3, m = i % 3
s_cmp_ge_u32 s{SR}, 12
s_cselect_b32 s{S_GI}, 1, 0
s_mul_i32 s34, s{S_GI}, 12
s_sub_u32 s{S_I}, s{SR}, s34
s_mul_i32 s34, s{S_I}, 11
s_lshr_b32 s34, s34, 5
s_mul_i32 s35, s34, 3
s_sub_u32 s{S_M}, s{S_I}, s35
s_lshl_b32 s{S_G}, s{SX}, 1
s_add_u32 s{S_G}, s{S_G}, s{S_GI}
s_lshl_b32 s35, s{S_G}, 2
s_add_u32 s{S_HEAD}, s35, s34
s_lshl_b32 s34, s{S_M}, 3
s_add_u32 s34, s34, 16
s_load_dwordx2 s[4:5], s[0:1], s34
s_load_dwordx2 s[6:7], s[0:1], 40
s_load_dwordx2 s[36:37], s[0:1], 8
s_waitcnt lgkmcnt(0)""")
    srd(k, 16, 4, 640*8192)
    srd(k, 20, 6, 4096*1280)
    srd(k, 24, 36, 8*1280)
    STG = 176
    k(f"""
v_lshlrev_b32 v{VLANE16}, 4, v1
s_mov_b32 s{M_LO8}, 0x00ff00ff
s_mov_b32 s{M_LO8+1}, 0x00ff00ff
s_mov_b32 s{M_EVEN}, 0x55555555
s_mov_b32 s{M_EVEN+1}, 0x55555555
s_mov_b32 s{M_ODD}, 0xaaaaaaaa
s_mov_b32 s{M_ODD+1}, 0xaaaaaaaa
s_mov_b32 s{S_C}, {f32bits(128**-0.5 * math.log2(math.e)):#x}
s_mov_b32 s{S_NC}, {f32bits(-(128**-0.5) * math.log2(math.e)):#x}
v_and_b32 v10, 8, v1
v_cmp_eq_u32 vcc, 0, v10
v_mov_b32 v10, 0xeeee
v_mov_b32 v11, 0x4444
v_cndmask_b32 v{V_IDX}, v10, v11, vcc
s_cmp_ge_u32 s{SW}, 4
s_cbranch_scc1 L_ch_ldw""")
    for rnd in range(3):
        k(f"""v_add_u32 v10, {256*rnd}, v0
v_lshrrev_b32 v11, 6, v10
v_bfe_u32 v12, v10, 4, 2
v_and_b32 v13, 7, v10
v_bfe_u32 v14, v10, 3, 1
v_mul_u32_u24 v13, 1280, v13
v_lshl_add_u32 v13, v11, 7, v13
v_lshl_add_u32 v13, v12, 5, v13
v_lshl_add_u32 v13, v14, 2, v13
buffer_load_dword v{144+4*rnd}, v13, s[24:27], 0 offen
buffer_load_dword v{145+4*rnd}, v13, s[24:27], 0 offen offset:8
buffer_load_dword v{146+4*rnd}, v13, s[24:27], 0 offen offset:16
buffer_load_dword v{147+4*rnd}, v13, s[24:27], 0 offen offset:24""")
    k(f"""s_cmp_ge_u32 s{S_I}, 10
s_cbranch_scc1 L_ch_ldw
v_lshrrev_b32 v10, 3, v1
v_and_b32 v11, 7, v1
v_mul_u32_u24 v12, 1280, v10
v_lshl_add_u32 v12, v11, 4, v12
s_lshl_b32 s34, s{S_G}, 2
s_add_u32 s34, s34, s{SW}
s_mul_i32 s34, s34, {128*1280}
s_lshl_b32 s35, s{S_I}, 7
s_add_u32 s34, s34, s35
v_add_u32 v12, s34, v12""")
    for i in range(16):
        k(f's_mov_b32 s34, {8*i*1280}\nbuffer_load_dwordx4 {v(80+4*i,4)}, v12, s[20:23], s34 offen')
    k(f"""L_ch_ldw:
v_lshrrev_b32 v10, 4, v0
v_and_b32 v11, 15, v0
v_lshlrev_b32 v12, 13, v10
v_lshl_add_u32 v12, v11, 4, v12
s_lshl_b32 s34, s{S_HEAD}, 8
v_add_u32 v12, s34, v12""")
    for c in range(5):
        for kk in range(4):
            k(f's_mov_b32 s34, {(128*c + 32*kk)*8192}\nbuffer_load_dwordx4 {v(STG+16*c+4*kk,4)}, v12, s[16:19], s34 offen')
    k(f"""
; LDS write address: r*256 + ((c16/2 + f) % 8)*32 + (c16%2)*16, f = 2*(r%4) + ((r>>3)&1)
v_and_b32 v13, 3, v10
v_lshlrev_b32 v13, 1, v13
v_bfe_u32 v14, v10, 3, 1
v_add_u32 v13, v13, v14
v_lshrrev_b32 v14, 1, v11
v_add_u32 v13, v13, v14
v_and_b32 v13, 7, v13
v_lshlrev_b32 v13, 5, v13
v_and_b32 v14, 1, v11
v_lshl_add_u32 v13, v14, 4, v13
v_lshl_add_u32 v13, v10, 8, v13
; transposing read addresses (tiles 2sw, 2sw+1): (8g+rr)*256 + ((te + 2rr + (g&1)) % 8)*32 + 8*(i%4)
v_lshrrev_b32 v10, 4, v1
v_bfe_u32 v11, v1, 2, 2
v_lshl_add_u32 v14, v10, 3, v11
v_lshlrev_b32 v14, 8, v14
v_and_b32 v8, 3, v1
v_lshl_add_u32 v14, v8, 3, v14
v_and_b32 v10, 1, v10
v_lshl_add_u32 v10, v11, 1, v10
s_and_b32 s34, s{SW}, 3
s_lshl_b32 s34, s34, 1
v_add_u32 v10, s34, v10
v_add_u32 v11, 1, v10
v_and_b32 v10, 7, v10
v_and_b32 v11, 7, v11
v_lshl_add_u32 v8, v11, 5, v14
v_lshl_add_u32 v14, v10, 5, v14
v_lshrrev_b32 v10, 3, v1
v_and_b32 v11, 7, v1
v_lshrrev_b32 v4, 1, v11
v_lshrrev_b32 v5, 1, v10
v_add_u32 v4, v4, v5
v_and_b32 v4, 3, v4
v_lshlrev_b32 v4, 5, v4
v_and_b32 v5, 1, v11
v_lshl_add_u32 v4, v5, 4, v4
v_lshl_add_u32 v4, v10, 7, v4
s_lshl_b32 s34, s{SW}, 14
s_add_u32 s34, s34, 98304
v_add_u32 v4, s34, v4
v_lshrrev_b32 v10, 4, v1
v_bfe_u32 v11, v1, 2, 2
v_lshl_add_u32 v6, v10, 2, v11
v_lshlrev_b32 v5, 7, v6
v_add_u32 v5, s34, v5
v_and_b32 v10, 3, v1
v_lshl_add_u32 v5, v10, 3, v5
v_lshrrev_b32 v6, 1, v6""")
    for c in range(5):
        buf = (c % 2)*32768
        k(f's_waitcnt vmcnt({16 - 4*c})')
        for kk in range(4):
            k(f'ds_write_b128 v13, {v(STG+16*c+4*kk,4)} offset:{buf + kk*8192}')
        k('s_waitcnt lgkmcnt(0)\ns_barrier')
        sa, sk = k.lab('w1a'), k.lab('w1s')
        k(f's_cmp_lt_u32 s{SW}, 4\ns_cbranch_scc1 {sa}')
        for t, ad in ((0, 14), (1, 8)):
            for ksl in range(4):
                for hh in range(2):
                    k(f'ds_read_b64_tr_b16 {v(W1 + 80*t + 4*(4*c+ksl) + 2*hh, 2)}, v{ad} offset:{buf + ksl*8192 + hh*1024}')
            k('s_waitcnt lgkmcnt(0)')
        k(f's_branch {sk}\n{sa}:')
        if c == 0:
            for rnd in range(3):
                k(f'v_add_u32 v10, {256*rnd}, v0\nv_lshlrev_b32 v10, 4, v10\nv_add_u32 v10, {L_MEMF}, v10\nds_write_b128 v10, {v(144+4*rnd,4)}')
            k('s_waitcnt lgkmcnt(0)')
        if c in (1, 2, 3):
            k(f's_cmp_ge_u32 s{S_I}, 10\ns_cbranch_scc1 {sk}')
            if c == 1:
                for i in range(16): k(f'ds_write_b128 v4, {v(80+4*i,4)} offset:{i*1024}')
                k('s_waitcnt lgkmcnt(0)')
            else:
                for ct in (2*(c-2), 2*(c-2)+1):
                    k(f'v_add_u32 v10, {ct}, v6\nv_and_b32 v10, 3, v10\nv_lshl_add_u32 v10, v10, 5, v5')
                    for ks in range(4):
                        for hh in range(2):
                            k(f'ds_read_b64_tr_b16 {v(WO + 16*ct + 4*ks + 2*hh, 2)}, v10 offset:{(32*ks + 16*hh)*128}')
                    k('s_waitcnt lgkmcnt(0)')
        k(f'{sk}:')
    k('s_barrier')
    validate(k, True)
    k(f"""s_mov_b32 s{SSTEP}, 0
s_mov_b32 s{S_AVAIL}, 0
s_cmp_ge_u32 s{SW}, 4
s_cbranch_scc1 L_ch_pS
s_lshl_b32 s34, s{S_G}, 2
s_add_u32 s34, s34, s{SW}
s_mul_i32 s35, s34, 6144
v_add_u32 v{V_A3}, s35, v{VLANE16}
s_lshl_b32 s35, s34, 13
v_add_u32 v{V_A4}, s35, v{VLANE16}
s_lshl_b32 s35, s{SW}, 11
s_add_u32 s35, s35, {L_RED}
v_add_u32 v{V_A5}, s35, v{VLANE16}
s_lshl_b32 s35, s{SW}, 14
s_add_u32 s35, s35, {L_KV}
s_lshr_b32 s34, s34, 1
v_and_b32 v10, 1, v1
v_lshlrev_b32 v10, 4, v10
v_add_u32 v10, s34, v10
v_add_u32 v10, 16, v10
v_lshlrev_b32 v{V_A9}, 2, v10
v_cmp_gt_u32 vcc, 32, v1
v_mov_b32 v10, 0
v_mov_b32 v11, 0xf149f2ca
v_cndmask_b32 v{NEG}, v10, v11, vcc
v_mov_b32 v{NEG+1}, v{NEG}
v_mov_b32 v{NEG+2}, v{NEG}
v_mov_b32 v{NEG+3}, v{NEG}
v_add_u32 v14, s35, v{VLANE16}
s_branch L_ch_pD
L_ch_pS:
s_sub_u32 s38, s{SW}, 4               ; sw
s_lshl_b32 s34, s38, 10
v_add_u32 v{V_A3}, s34, v{VLANE16}
v_and_b32 v10, 15, v1                 ; e16
v_bfe_u32 v11, v1, 4, 1               ; gg
v_lshrrev_b32 v12, 5, v1              ; hi
s_mul_i32 s36, s{S_HEAD}, 6144
s_cmp_eq_u32 s{S_M}, 2
s_cbranch_scc1 L_ch_qst_v
; q/k unit: row = 4gg + hi + 2*(e16&1) (+8 for k); g = 2*(te%2) + (e16/4)%2; j0 = 4*(e16/8) + (e16 & 2)
v_lshl_add_u32 v13, v11, 2, v12
v_and_b32 v14, 1, v10
v_lshl_add_u32 v13, v14, 1, v13
s_lshl_b32 s34, s{S_M}, 3
v_add_u32 v13, s34, v13
v_bfe_u32 v14, v10, 2, 1
v_lshl_add_u32 v13, v14, 4, v13
v_lshlrev_b32 v13, 4, v13
v_lshrrev_b32 v14, 3, v10
v_lshl_add_u32 v13, v14, 3, v13
v_and_b32 v14, 2, v10
v_lshl_add_u32 v13, v14, 1, v13
s_lshl_b32 s34, s38, 10
s_add_u32 s34, s34, s36
v_add_u32 v{V_A4}, s34, v13
v_add_u32 v{V_A5}, 512, v{V_A4}
s_branch L_ch_qst_done
L_ch_qst_v:
; v unit: 4096 + u*1024 + clane*16 + (sw%2)*8 + hi*4; clane = 32 + gg*16 + e16 (even tile), gg*16 + e16 (odd tile)
v_lshl_add_u32 v13, v11, 4, v10
v_lshlrev_b32 v13, 4, v13
v_lshl_add_u32 v13, v12, 2, v13
s_and_b32 s34, s38, 1
s_lshl_b32 s34, s34, 3
s_lshr_b32 s35, s38, 1
s_lshl_b32 s35, s35, 10
s_add_u32 s34, s34, s35
s_add_u32 s34, s34, 4096
s_add_u32 s34, s34, s36
v_add_u32 v{V_A5}, s34, v13
v_add_u32 v{V_A4}, 512, v{V_A5}
L_ch_qst_done:
s_mov_b32 s34, 524288
buffer_load_dword v224, v{V_A4}, {WS}, s34 offen sc1
buffer_load_dword v225, v{V_A5}, {WS}, s34 offen sc1
s_mov_b32 s34, 720896
buffer_load_dword v224, v{V_A4}, {WS}, s34 offen sc1
buffer_load_dword v225, v{V_A5}, {WS}, s34 offen sc1
s_mov_b32 s34, 917504
buffer_load_dword v224, v{V_A4}, {WS}, s34 offen sc1
buffer_load_dword v225, v{V_A5}, {WS}, s34 offen sc1
s_mov_b32 s34, 1114112
buffer_load_dword v224, v{V_A4}, {WS}, s34 offen sc1
buffer_load_dword v225, v{V_A5}, {WS}, s34 offen sc1
v_mov_b32 v216, 0
v_mov_b32 v217, 0
v_mov_b32 v218, 0
v_mov_b32 v219, 0
v_mov_b32 v220, 0
v_mov_b32 v221, 0
v_mov_b32 v222, 0
v_mov_b32 v223, 0
v_bfe_u32 v10, v1, 2, 3               ; r
v_lshrrev_b32 v13, 5, v1              ; c / 4
v_and_b32 v12, 3, v1                  ; c % 4
v_lshl_add_u32 v11, v13, 2, v12       ; c
v_lshlrev_b32 v12, 4, v12
v_lshl_add_u32 v12, v13, 3, v12
v_add_u32 v12, v12, v10
v_lshlrev_b32 v12, 4, v12
s_and_b32 s35, s38, 1
s_lshl_b32 s36, s35, 10
s_add_u32 s36, s36, {L_RED}
v_add_u32 v{V_A6}, s36, v12
s_lshl_b32 s36, s{S_I}, 1
s_add_u32 s36, s36, s35               ; j = 2i + (wave&1)
s_lshr_b32 s37, s36, 3
s_lshl_b32 s37, s37, 14
s_and_b32 s36, s36, 7
s_lshl_b32 s36, s36, 10
s_add_u32 s36, s36, s37
s_mul_i32 s37, s{S_G}, 49152
s_add_u32 s36, s36, s37
v_add_u32 v{V_A7}, s36, v{VLANE16}
s_lshl_b32 s34, s{S_G}, 2
s_add_u32 s34, s34, s38
s_lshl_b32 s35, s34, 13
v_add_u32 v8, s35, v{VLANE16}
s_lshl_b32 s60, s38, 14
s_add_u32 s60, s60, {L_KV}
s_lshr_b32 s34, s34, 1
v_and_b32 v9, 1, v1
v_lshlrev_b32 v9, 4, v9
v_add_u32 v9, s34, v9
v_add_u32 v9, 16, v9
v_lshlrev_b32 v{V_A9}, 2, v9
s_cmp_ge_u32 s{S_I}, 10
s_cbranch_scc1 L_ch_nok0
s_mov_b32 s36, 1""")
    kv_wait(k, 36)
    k(f's_mov_b32 s36, {KX}\ns_mov_b32 s37, {VX}')
    kv_copies(k, 36, 37)
    k(f"""s_waitcnt vmcnt(0)
L_ch_nok0:
s_cmp_lg_u32 s{SW}, 6
s_cbranch_scc1 L_ch_pD
s_mul_i32 s36, s{S_GI}, 10
s_add_u32 s36, s36, s{S_I}            ; j
s_lshr_b32 s37, s36, 3
s_lshl_b32 s37, s37, 14
s_and_b32 s35, s36, 7
s_lshl_b32 s35, s35, 10
s_add_u32 s35, s35, s37
v_add_u32 v240, s35, v{VLANE16}""")
    for g in range(1, 8): k(f'v_add_u32 v{240+g}, 49152, v{239+g}')
    k(f"""
s_lshl_b32 s36, s36, 5                ; 32j
v_lshl_add_u32 v12, v11, 2, s36       ; d0
v_lshrrev_b32 v13, 6, v12
v_lshlrev_b32 v13, 10, v13
v_bfe_u32 v14, v12, 4, 2
v_lshl_add_u32 v14, v14, 4, v10
v_lshl_add_u32 v13, v14, 4, v13
v_bfe_u32 v14, v12, 2, 2
v_lshl_add_u32 v{V_A6}, v14, 2, v13
L_ch_pD:
v_add_u32 v{V_MF}, {L_MEMF}, v{VLANE16}
v_add_u32 v{V_MW}, {L_MEMF}, v{V_A3}
s_waitcnt vmcnt(0) lgkmcnt(0)""")

def delay(k, clks):
    n = clks // 4
    while n > 0:
        m = min(n, 16); k(f's_nop {m-1}'); n -= m

OPT = dict(dq=256, dp=512, dm=128, warm=1, dd=320, dw=1024, da=192, clrlate=0, lite=0, bsleep=0, osleep=0, xwarm=0, ds1=2048, place=0, sx=0, sm=0, sq=0, so=64, la=8, lb=56, help=0, dk=1024, outsc=0)
def interleave(k, mf, va, per=2):
    va = list(va)
    for m in mf:
        k(m)
        for _ in range(per):
            if va: k(va.pop(0))
    for x in va: k(x)

def chain_loop(k, sc, prof, tag, qdelay=0):
    T = tag
    late = []
    k(f'L_step{T}:')
    k('s_barrier')
    k(f's_cmp_lt_u32 s{SW}, 4\ns_cbranch_scc1 L_aw{T}')
    if prof: k('s_memrealtime s[80:81]')
    for i in range(10): k(f'ds_read_b128 {v(MF+4*i,4)}, v{V_MF} offset:{i*1024}')
    chain_offsets(k, 'q')
    for i in range(10):
        k(f's_waitcnt lgkmcnt({9-i})')
        k(f'v_smfmac_f32_16x16x64_bf16 {v(DA,4)}, {v(MF+4*i,4)}, {v(W1+8*i,8)}, v{V_IDX}')
        k(f'v_smfmac_f32_16x16x64_bf16 {v(DB,4)}, {v(MF+4*i,4)}, {v(W1+80+8*i,8)}, v{V_IDX}')
    k(f"""s_cmp_eq_u32 s{S_M}, 2
s_mov_b64 vcc, s[{M_EVEN}:{M_EVEN+1}]
v_permlane32_swap_b32 v{DA}, v{DA+1}
v_permlane32_swap_b32 v{DA+2}, v{DA+3}
v_add_f32 v{DA}, v{DA}, v{DA+1}
v_add_f32 v{DA+2}, v{DA+2}, v{DA+3}
v_permlane32_swap_b32 v{DB}, v{DB+1}
v_permlane32_swap_b32 v{DB+2}, v{DB+3}
v_add_f32 v{DB}, v{DB}, v{DB+1}
v_add_f32 v{DB+2}, v{DB+2}, v{DB+3}
s_cbranch_scc1 L_s1v{T}
v_cndmask_b32_dpp v224, v{DA+2}, v{DA}, vcc quad_perm:[1,0,3,2] row_mask:0xf bank_mask:0xf
v_cndmask_b32_dpp v226, v{DB+2}, v{DB}, vcc quad_perm:[1,0,3,2] row_mask:0xf bank_mask:0xf
s_mov_b64 vcc, s[{M_ODD}:{M_ODD+1}]
v_cndmask_b32_dpp v225, v{DA}, v{DA+2}, vcc quad_perm:[1,0,3,2] row_mask:0xf bank_mask:0xf
v_cndmask_b32_dpp v227, v{DB}, v{DB+2}, vcc quad_perm:[1,0,3,2] row_mask:0xf bank_mask:0xf
v_cvt_pk_bf16_f32 v12, v224, v225
v_cvt_pk_bf16_f32 v13, v226, v227
s_branch L_s1s{T}
L_s1v{T}:
v_cvt_pk_bf16_f32 v12, v{DA}, v{DA+2}
v_cvt_pk_bf16_f32 v13, v{DB}, v{DB+2}
L_s1s{T}:
buffer_store_dword v12, v{V_A4}, {WS}, s{S_QC} offen{sc}
buffer_store_dword v13, v{V_A5}, {WS}, s{S_QC} offen{sc}""")
    if prof: k('s_memrealtime s[82:83]')
    k(f"""s_cmp_eq_u32 s{SSTEP}, 63
s_cbranch_scc1 L_fin
s_cmp_ge_u32 s{S_I}, 10
s_cbranch_scc1 L_s1only{T}
s_barrier""")
    chain_offsets(k, 'r')
    clr = f"""v_mov_b32 v14, -1
buffer_store_dword v14, v{V_A4}, {WS}, s{S_QZ} offen{sc}
buffer_store_dword v14, v{V_A5}, {WS}, s{S_QZ} offen{sc}"""
    k(clr)
    for i in range(8): k(f'v_mov_b32 v{DA+i}, 0')
    KL = k.lab('kvl')
    k(f's_add_u32 s61, s{SSTEP}, 2\ns_mov_b32 s62, 1\ns_cmp_ge_u32 s{S_AVAIL}, s61\ns_cbranch_scc1 {KL}')
    k(f"""buffer_load_dword v13, v{V_A9}, {WS}, 0 offen sc1
s_waitcnt vmcnt(0)
v_readlane_b32 s34, v13, 0
v_readlane_b32 s35, v13, 1
s_min_u32 s{S_AVAIL}, s34, s35
s_cmp_ge_u32 s{S_AVAIL}, s61
s_cselect_b32 s62, 1, 0
{KL}:""")
    delay(k, OPT['dd'])
    KS = k.lab('kvs')
    k(f's_cmp_eq_u32 s62, 0\ns_cbranch_scc1 {KS}')
    if not NOKV: kv_copies(k, S_KXN, S_VXN)
    k(f'{KS}:')
    k('s_barrier')
    if prof: k('s_memrealtime s[88:89]')
    k(f's_cmp_ge_u32 s{SW}, 6\ns_cbranch_scc1 L_bw6{T}')
    for w in range(4): k(f'ds_read_b128 {v(176+4*w,4)}, v{V_A6} offset:{w*2048}')
    k(f"""s_waitcnt lgkmcnt(2)
v_pk_add_f32 v[176:177], v[176:177], v[180:181]
v_pk_add_f32 v[178:179], v[178:179], v[182:183]
s_waitcnt lgkmcnt(0)
v_pk_add_f32 v[184:185], v[184:185], v[188:189]
v_pk_add_f32 v[186:187], v[186:187], v[190:191]
v_pk_add_f32 v[176:177], v[176:177], v[184:185]
v_pk_add_f32 v[178:179], v[178:179], v[186:187]
buffer_store_dwordx4 v[176:179], v{V_A7}, {WS}, s{S_PC} offen sc1
{'s_memrealtime s[90:91]' if prof else ''}
v_mov_b32 v180, -1
v_mov_b32 v181, -1
v_mov_b32 v182, -1
v_mov_b32 v183, -1
buffer_store_dwordx4 v[180:183], v{V_A7}, {WS}, s{S_PZ} offen sc1
""")
    k(f's_branch L_b3{T}\nL_bw6{T}:')
    k(f's_cmp_lg_u32 s{SW}, 6\ns_cbranch_scc1 L_b3{T}')
    delay(k, OPT['dp'])
    if prof: k('s_memrealtime s[90:91]')
    spins = []
    for g in range(8): k(f'buffer_load_dwordx4 {v(176+4*g,4)}, v{240+g}, {WS}, s{S_PC} offen sc1')
    PR, PC, PB = k.lab('pps'), k.lab('ppc'), k.lab('ppb')
    k(f's_mov_b32 s39, 0\n{PC}:')
    for g in range(8):
        k(f's_waitcnt vmcnt({7-g})')
        if g == 0: k('v_mov_b32 v224, v176')
        else:
            k(f'v_max_u32 v224, v224, v{176+4*g}')
            k(f'v_pk_add_f32 v[176:177], v[176:177], {v(176+4*g,2)}\nv_pk_add_f32 v[178:179], v[178:179], {v(178+4*g,2)}')
    k(f'v_cmp_eq_u32 vcc, -1, v224\ns_cbranch_vccnz {PR}\n{PB}:')
    spins.append((PR, PC, PB, [f'buffer_load_dwordx4 {v(176+4*gg,4)}, v{240+gg}, {WS}, s{S_PC} offen sc1' for gg in range(8)], OPT['sx']))
    if prof: k('s_memrealtime s[92:93]\ns_mov_b32 s65, s39')
    k(f"""v_cvt_pk_bf16_f32 v176, v176, v177
v_cvt_pk_bf16_f32 v177, v178, v179
buffer_store_dword v176, v{V_A6}, {WS}, s{S_MEMN} offen{sc}
buffer_store_dword v177, v{V_A6}, {WS}, s{S_MEMN} offen offset:128{sc}
L_b3{T}:
s_barrier""")
    def mem_poll(sleep):
        A, D = k.lab('mA'), k.lab('mD')
        k(f's_cmp_ge_u32 s{SW}, 6\ns_cbranch_scc1 {A}')
        for n in (3, 2):
            srcs = [S_MEMN, S_MEMN4, S_MEMN8][:n]
            for i, sr in enumerate(srcs): k(f'buffer_load_dwordx4 {v(176+4*i,4)}, v{V_A3}, {WS}, s{sr} offen sc1')
            k('s_mov_b32 s39, 0')
            for i, sr in enumerate(srcs):
                R_, C_, B_ = k.lab('pms'), k.lab('pmc'), k.lab('pmb')
                k(f"""{C_}:
s_waitcnt vmcnt({n-1-i})
v_max3_u32 v224, v{176+4*i}, v{177+4*i}, v{178+4*i}
v_max_u32 v224, v224, v{179+4*i}
v_cmp_eq_u32 vcc, -1, v224
s_cbranch_vccnz {R_}
{B_}:
ds_write_b128 v{V_MW}, {v(176+4*i,4)} offset:{i*4096}""")
                spins.append((R_, C_, B_, [f'buffer_load_dwordx4 {v(176+4*ii,4)}, v{V_A3}, {WS}, s{srcs[ii]} offen sc1' for ii in range(i, n)], OPT['sm'] if sleep == 0 else OPT['so']))
            if n == 3: k(f's_branch {D}\n{A}:')
        k(f'{D}:')
    if prof: k('s_memrealtime s[94:95]')
    delay(k, OPT['dm'])
    mem_poll(0)
    if prof: k('s_mov_b32 s66, s39')
    KZ = k.lab('kvz')
    k(f's_cmp_lg_u32 s62, 0\ns_cbranch_scc1 {KZ}')
    kv_wait(k, 61)
    if not NOKV: kv_copies(k, S_KXN, S_VXN)
    k(f's_waitcnt vmcnt(0)\n{KZ}:')
    k(f"""s_cmp_lg_u32 s{SW}, 6
s_cbranch_scc1 L_next{T}
v_mov_b32 v14, -1
buffer_store_dword v14, v{V_A6}, {WS}, s{S_MEMZ} offen{sc}
buffer_store_dword v14, v{V_A6}, {WS}, s{S_MEMZ} offen offset:128{sc}
L_next{T}:""")
    if prof:
        k('s_memrealtime s[96:97]\ns_waitcnt lgkmcnt(0)\ns_mov_b32 m0, s40')
        pA, pD = k.lab('pfA'), k.lab('pfD')
        k(f's_cmp_lt_u32 s{SW}, 4\ns_cbranch_scc1 {pA}')
        for n, r in enumerate((80, 82, 88, 90, 92, 94, 96)): k(f'v_writelane_b32 v{248+n}, s{r}, m0')
        k('s_lshl_b32 s65, s65, 16\ns_or_b32 s65, s65, s66\nv_writelane_b32 v255, s65, m0')
        k(f's_branch {pD}\n{pA}:')
        for n, r in enumerate((80, 84, 86, 96)): k(f'v_writelane_b32 v{252+n}, s{r}, m0')
        pass
        k(f'{pD}:')
    if OPT['lite']:
        l1, l2 = k.lab('lt'), k.lab('lt')
        k(f"""s_cmp_eq_u32 s{SSTEP}, {OPT['la']}
s_cbranch_scc0 {l1}
s_memrealtime s[90:91]
s_memtime s[94:95]
{l1}:
s_cmp_eq_u32 s{SSTEP}, {OPT['lb']}
s_cbranch_scc0 {l2}
s_memrealtime s[92:93]
s_memtime s[96:97]
{l2}:""")
    if OPT['lite'] > 1:
        k(f's_memrealtime s[88:89]\ns_waitcnt lgkmcnt(0)\ns_mov_b32 m0, s{SSTEP}\nv_writelane_b32 v254, s88, m0')
    if DBGST:
        l4 = k.lab('d4')
        k(f's_cmp_lg_u32 s{SSTEP}, 4\ns_cbranch_scc1 {l4}')
        dstamp(k, 13, 0, 0, 6)
        k(f'{l4}:')
    k(f"""s_waitcnt lgkmcnt(0)
s_add_u32 s{SSTEP}, s{SSTEP}, 1
s_branch L_step{T}""")
    k(f'L_s1only{T}:')
    chain_offsets(k, 'r')
    k('s_mov_b32 s62, 1')
    k(f"""v_mov_b32 v14, -1
buffer_store_dword v14, v{V_A4}, {WS}, s{S_QZ} offen{sc}
buffer_store_dword v14, v{V_A5}, {WS}, s{S_QZ} offen{sc}""")
    for i in range(8): k(f'v_mov_b32 v{DA+i}, 0')
    delay(k, OPT['ds1'])
    mem_poll(1)
    k(f's_branch L_next{T}')
    k(f'L_aw{T}:')
    chain_offsets(k, 'qr')
    k(f"""s_cmp_ge_u32 s{S_I}, 10
s_cbranch_scc1 L_aidle{T}
s_cmp_eq_u32 s{SSTEP}, 63
s_cbranch_scc1 L_fin""")
    if prof: k('s_memrealtime s[80:81]')
    delay(k, OPT['da'])
    for i in range(8): k(f'ds_read_b128 {v(KXR+4*i,4)}, v14 offset:{i*1024}')
    k('s_waitcnt lgkmcnt(0)')
    for i in range(8): k(f'ds_read_b128 {v(VXR+4*i,4)}, v14 offset:{8192 + i*1024}')
    k('s_waitcnt lgkmcnt(0)')
    k('s_barrier')
    delay(k, OPT['dq'])
    LQ, LQD = k.lab('pq'), k.lab('pqd')
    k('s_mov_b32 s39, 0')
    for ks in range(4): k(f'buffer_load_dwordx4 {v(QK+4*ks,4)}, v{V_A3}, {WS}, s{S_QC} offen offset:{ks*1024} sc1')
    for u in range(2): k(f'buffer_load_dwordx4 {v(VM+4*u,4)}, v{V_A3}, {WS}, s{S_QC4} offen offset:{u*1024} sc1')
    k('s_waitcnt vmcnt(2)')
    LQM = k.lab('pqm')
    k(f'{LQM}:')
    mf = []
    for ks in range(4): mf.append(f'v_mfma_f32_16x16x32_bf16 {v(S0,4)}, {v(KXR+4*ks,4)}, {v(QK+4*ks,4)}, {"0" if ks == 0 else v(S0,4)}')
    for ks in range(4): mf.append(f'v_mfma_f32_16x16x32_bf16 {v(S1,4)}, {v(KXR+16+4*ks,4)}, {v(QK+4*ks,4)}, {"0" if ks == 0 else v(S1,4)}')
    for ks in range(4): mf.append(f'v_mfma_f32_16x16x32_bf16 {v(SM,4)}, {v(QK+4*ks,4)}, {v(QK+4*ks,4)}, {v(NEG,4) if ks == 0 else v(SM,4)}')
    chk = [f'v_max3_u32 v244, v{QK}, v{QK+1}, v{QK+2}'] + [f'v_max3_u32 v244, v244, v{QK+3+2*n}, v{QK+4+2*n}' for n in range(6)] + [f'v_max_u32 v244, v244, v{QK+15}']
    interleave(k, mf[:4], chk)
    k(mf[4]); k('v_cmp_eq_u32 vcc, -1, v244')
    QR = k.lab('pqr')
    k(mf[5]); k(f's_cbranch_vccnz {QR}')
    qspin = (QR, LQM)
    LQX = k.lab('pqx')
    k(f'{LQX}:')
    k(mf[6]); k(mf[7]); k(mf[8])
    k(f'v_max3_f32 v244, v{S0}, v{S0+1}, v{S0+2}')
    k(mf[9]); k(mf[10])
    k(f'v_max3_f32 v244, v244, v{S0+3}, v{S1}')
    k(mf[11])
    k(f"""v_max3_f32 v244, v244, v{S1+1}, v{S1+2}
v_max_f32 v244, v244, v{S1+3}""")
    if prof: k('s_memrealtime s[84:85]')
    k(f"""v_max3_f32 v244, v244, v{SM}, v{SM+1}
v_max3_f32 v244, v244, v{SM+2}, v{SM+3}
v_mov_b32 v245, v244
v_permlane16_swap_b32 v244, v245
v_max_f32 v244, v244, v245
v_mov_b32 v245, v244
v_permlane32_swap_b32 v244, v245
v_max_f32 v244, v244, v245
v_mul_f32 v244, s{S_NC}, v244""")
    for i in range(12): k(f'v_fma_f32 v{S0+i}, v{S0+i}, s{S_C}, v244')
    for i in range(12): k(f'v_exp_f32 v{S0+i}, v{S0+i}')
    k(f"""v_cvt_pk_bf16_f32 v{PX}, v{S0}, v{S0+1}
v_cvt_pk_bf16_f32 v{PX+1}, v{S0+2}, v{S0+3}
v_cvt_pk_bf16_f32 v{PX+2}, v{S1}, v{S1+1}
v_cvt_pk_bf16_f32 v{PX+3}, v{S1+2}, v{S1+3}
v_cvt_pk_bf16_f32 v{PM}, v{SM}, v{SM+2}
v_cvt_pk_bf16_f32 v{PM+1}, v{SM+1}, v{SM+3}""")
    mf = [f'v_mfma_f32_16x16x32_bf16 {v(O+4*te,4)}, {v(VXR+4*te,4)}, {v(PX,4)}, 0' for te in range(8)]
    va = [f'v_mov_b32 v188, v{PM}', f'v_mov_b32 v189, v{PM+1}', f'v_mov_b32 v{PM2}, 0', f'v_mov_b32 v{PM2+1}, 0',
          f'v_add_f32 v245, v{S0}, v{S0+1}', f'v_add_f32 v246, v{S0+2}, v{S0+3}',
          f'v_permlane32_swap_b32 v188, v{PM2}', f'v_permlane32_swap_b32 v189, v{PM2+1}',
          f'v_add_f32 v245, v245, v{S1}', f'v_add_f32 v246, v246, v{S1+1}', f'v_add_f32 v245, v245, v{S1+2}', f'v_add_f32 v246, v246, v{S1+3}',
          f'v_add_f32 v245, v245, v{SM}', f'v_add_f32 v246, v246, v{SM+1}', f'v_add_f32 v245, v245, v{SM+2}', f'v_add_f32 v246, v246, v{SM+3}']
    interleave(k, mf, va)
    LV, LVD = k.lab('pv'), k.lab('pvd')
    k(f's_mov_b32 s39, 0\ns_waitcnt vmcnt(0)\n{LV}:')
    umax_check(k, range(VM, VM+8), 247)
    k(f's_cbranch_vccz {LVD}')
    for u in range(2): k(f'buffer_load_dwordx4 {v(VM+4*u,4)}, v{V_A3}, {WS}, s{S_QC4} offen offset:{u*1024} sc1')
    k(f"""s_waitcnt vmcnt(0)
s_add_u32 s39, s39, 1
s_cmp_lt_u32 s39, s{SLIM}
s_cbranch_scc1 {LV}
s_mov_b32 s{SLIM}, 0
{LVD}:""")
    mf = []
    for te in range(8):
        u, t4 = te // 4, te % 4
        a = VM + 4*u + 2*(t4 // 2); b = PM if t4 % 2 == 0 else PM2
        mf.append(f'v_mfma_f32_16x16x16_bf16 {v(O+4*te,4)}, {v(a,2)}, {v(b,2)}, {v(O+4*te,4)}')
    def cv(te): return [f'v_cvt_pk_bf16_f32 v{OB+4*(te//2)+2*(te%2)}, v{O+4*te}, v{O+4*te+1}', f'v_cvt_pk_bf16_f32 v{OB+4*(te//2)+2*(te%2)+1}, v{O+4*te+2}, v{O+4*te+3}']
    va = ['v_add_f32 v245, v245, v246', 'v_mov_b32 v246, v245', 's_nop 0', 's_nop 0', 'v_permlane16_swap_b32 v245, v246', 'v_add_f32 v245, v245, v246',
          'v_mov_b32 v246, v245', 's_nop 0']
    interleave(k, mf[:4], va)
    k('v_permlane32_swap_b32 v245, v246')
    k(mf[4]); k('v_add_f32 v245, v245, v246'); k(cv(0)[0])
    k(mf[5]); k(cv(0)[1]); k('v_rcp_f32 v245, v245')
    k(mf[6]); k(cv(1)[0]); k(cv(1)[1])
    k(mf[7]); k(cv(2)[0]); k(cv(2)[1])
    mo = [[f'v_mfma_f32_16x16x32_bf16 {v(OA+4*ct,4)}, {v(WO+16*ct+4*ks,4)}, {v(OB+4*ks,4)}, {"0" if ks == 0 else v(OA+4*ct,4)}' for ct in range(4)] for ks in range(4)]
    interleave(k, mo[0], cv(3) + ['v_mov_b32_dpp v246, v245 row_shr:8 row_mask:0xf bank_mask:0xc'] + cv(4) + cv(5))
    interleave(k, mo[1], cv(6) + cv(7))
    interleave(k, mo[2], [])
    interleave(k, mo[3], [])
    for p in range(2):
        for i in range(4):
            k(f'v_mul_f32_dpp v{O+4*p+i}, v{OA+8*p+i}, v245 quad_perm:[0,1,2,3] row_mask:0xf bank_mask:0x3')
        for i in range(4):
            k(f'v_mul_f32_dpp v{O+4*p+i}, v{OA+8*p+4+i}, v246 row_shr:8 row_mask:0xf bank_mask:0xc')
        k(f'ds_write_b128 v{V_A5}, {v(O+4*p,4)} offset:{p*1024}')
    k('s_waitcnt lgkmcnt(0)')
    if prof: k('s_memrealtime s[86:87]')
    k('s_barrier')
    k(f's_barrier\ns_branch L_next{T}')
    def emit_spin(R_, C_, B_, loads, slp):
        k(f"""{R_}:
s_add_u32 s39, s39, 1
s_cmp_ge_u32 s39, s{SLIM}
s_cbranch_scc1 {R_}_t""")
        delay(k, slp)
        for x in loads: k(x)
        k(f's_branch {C_}\n{R_}_t:\ns_mov_b32 s{SLIM}, 0\ns_waitcnt vmcnt(0)\ns_branch {B_}')
    QR, LQM = qspin
    k(f"""{QR}:
s_add_u32 s39, s39, 1
s_cmp_ge_u32 s39, s{SLIM}
s_cbranch_scc1 {QR}_t""")
    delay(k, OPT['sq'])
    for ks in range(4): k(f'buffer_load_dwordx4 {v(QK+4*ks,4)}, v{V_A3}, {WS}, s{S_QC} offen offset:{ks*1024} sc1')
    k(f's_waitcnt vmcnt(0)\ns_branch {LQM}\n{QR}_t:\ns_mov_b32 s{SLIM}, 0\ns_branch {LQX}')
    late.append(lambda: [emit_spin(*x) for x in spins])
    k(f"""L_aidle{T}:
s_cmp_eq_u32 s{S_I}, 10
s_cbranch_scc0 L_awarm{T}""")
    def qloads():
        for ks in range(4): k(f'buffer_load_dwordx4 {v(QK+4*ks,4)}, v{V_A3}, {WS}, s{S_QC} offen offset:{ks*1024} sc1')
        for u in range(2): k(f'buffer_load_dwordx4 {v(VM+4*u,4)}, v{V_A3}, {WS}, s{S_QC4} offen offset:{u*1024} sc1')
    delay(k, OPT['dk'])
    poll(k, 'pk' + T, qloads, lambda: umax_check(k, list(range(QK, QK+16)) + list(range(VM, VM+8)), 244), sleep=2)
    for ks in range(4): k(f'buffer_store_dwordx4 {v(QK+4*ks,4)}, v{V_A3}, {WS}, s{S_KP} offen offset:{ks*1024} sc1')
    for u in range(2): k(f'buffer_store_dwordx4 {v(VM+4*u,4)}, v{V_A3}, {WS}, s{S_KP4} offen offset:{u*1024} sc1')
    k(f"""s_waitcnt vmcnt(0)
s_lshl_b32 s34, s{S_G}, 2
s_add_u32 s34, s34, s{SW}
s_lshl_b32 s34, s34, 2
s_add_u32 s34, s34, {F_KVM}
s_add_u32 s35, s{SSTEP}, 1
v_mov_b32 v244, s34
v_mov_b32 v245, s35
s_mov_b64 exec, 1
buffer_store_dword v245, v244, {WS}, 0 offen sc1
s_mov_b64 exec, -1
s_cmp_eq_u32 s{SSTEP}, 63
s_cbranch_scc1 L_fin
s_branch L_next{T}
L_awarm{T}:
s_cmp_eq_u32 s{SSTEP}, 63
s_cbranch_scc1 L_fin""")
    if OPT['warm']:
        W = k.lab('wsk')
        k(f's_add_u32 s36, s{SSTEP}, 3\ns_cmp_gt_u32 s36, 64\ns_cbranch_scc1 {W}')
        delay(k, OPT['dw'])
        k(f"""buffer_load_dword v13, v{V_A9}, {WS}, 0 offen sc1
s_waitcnt vmcnt(0)
v_readlane_b32 s34, v13, 0
v_readlane_b32 s35, v13, 1
s_min_u32 s34, s34, s35
s_cmp_lt_u32 s34, s36
s_cbranch_scc1 {W}
s_add_u32 s36, s{SSTEP}, 2
s_lshl_b32 s36, s36, 18
s_add_u32 s37, s36, {VX}
s_add_u32 s36, s36, {KX}""")
        kv_loads(k, 36, 37)
        k(f'{W}:')
    k(f's_branch L_next{T}')
    for f in late: f()

def chain_fin(k, prof):
    k('L_fin:')
    dstamp(k, 5, 0, 0)
    if OPT['lite']:
        k(f"""s_sub_u32 s34, s92, s90
v_mov_b32 v12, s34
s_lshl_b32 s34, s{SX}, 5
s_add_u32 s34, s34, s{SR}
s_lshl_b32 s34, s34, 3
s_add_u32 s34, s34, s{SW}
s_lshl_b32 s34, s34, 2
s_add_u32 s34, s34, 0x8800000
v_mov_b32 v10, s34
buffer_store_dword v12, v10, {WS}, 0 offen
s_sub_u32 s34, s96, s94
v_mov_b32 v12, s34
v_add_u32 v10, 0x10000, v10
buffer_store_dword v12, v10, {WS}, 0 offen""")
    if OPT['lite'] > 1:
        k(f"""s_lshl_b32 s34, s{SX}, 5
s_add_u32 s34, s34, s{SR}
s_lshl_b32 s34, s34, 3
s_add_u32 s34, s34, s{SW}
s_lshl_b32 s34, s34, 8
s_add_u32 s34, s34, 0x8a00000
v_lshlrev_b32 v10, 2, v1
v_add_u32 v10, s34, v10
buffer_store_dword v254, v10, {WS}, 0 offen""")
    if prof:
        k(f"""s_lshl_b32 s34, s{SX}, 5
s_add_u32 s34, s34, s{SR}
s_lshl_b32 s34, s34, 3
s_add_u32 s34, s34, s{SW}
s_lshl_b32 s34, s34, 11
s_add_u32 s34, s34, 0x8000000
v_lshlrev_b32 v10, 2, v1
v_add_u32 v10, s34, v10
s_cmp_lt_u32 s{SW}, 4
s_cbranch_scc1 L_fin0""")
        for n in range(8): k(f'buffer_store_dword v{248+n}, v10, {WS}, 0 offen offset:{n*256}')
        k('s_branch L_end\nL_fin0:')
        for n in range(4): k(f'buffer_store_dword v{252+n}, v10, {WS}, 0 offen offset:{n*256}')
    k('s_branch L_end')

def build(prof=False, roles=('chain',), keepflags=False, qdelay=0):
    k = Kern()
    import brole, proj, attout
    brole.validate = proj.validate = attout.validate = validate
    attout.calibrate = calibrate
    brole.help_prefetch = attout.help_prefetch = help_prefetch if OPT['help'] else (lambda k: None)
    start_phase(k, keepflags)
    on = lambda r: r in roles
    R = lambda r, l: l if on(r) else 'L_end'
    k(f'''s_cmp_ge_u32 s{SX}, 4
s_cbranch_scc1 L_hi
s_cmp_lt_u32 s{SR}, 24
s_cbranch_scc1 {R('chain', 'L_chain')}
s_lshl_b32 s41, s{SX}, 3
s_add_u32 s41, s41, s{SR}
s_add_u32 s41, s41, 8
s_branch {R('b', 'L_brole')}
L_hi:
s_sub_u32 s34, s{SX}, 4
s_mul_i32 s41, s34, 12
s_add_u32 s41, s41, s{SR}
s_cmp_lt_u32 s{SR}, 12
s_cbranch_scc1 {R('proj', 'L_proj')}
s_lshl_b32 s41, s34, 3
s_add_u32 s41, s41, s{SR}
s_sub_u32 s41, s41, 12
s_cmp_lt_u32 s{SR}, 20
s_cbranch_scc1 {R('b', 'L_brole')}
s_mul_i32 s41, s34, 10
s_add_u32 s41, s41, s{SR}
s_sub_u32 s41, s41, 20
s_cmp_lt_u32 s{SR}, 30
s_cbranch_scc1 {R('out', 'L_out')}
s_lshl_b32 s41, s34, 1
s_add_u32 s41, s41, s{SR}
s_sub_u32 s41, s41, 30
s_branch {R('att', 'L_att')}''')
    if on('proj'): proj_role(k)
    if on('att'): att_role(k)
    if on('out'): out_role(k)
    if on('b'): b_role(k)
    if on('chain'):
        chain_prologue(k)
        mark(k, 1)
        dstamp(k, 3, 0, 0)
        k(f's_cmp_lg_u32 s{SSLOW}, 0\ns_cbranch_scc1 L_stepS')
        chain_loop(k, '', prof, 'F', qdelay)
        chain_loop(k, ' sc1', False, 'S')
        chain_fin(k, prof)
    k('L_end:')
    dstamp(k, 9, 7, 20)
    dstamp(k, 11, 4, 12)
    dstamp(k, 7, 4, 0)
    if TL:
        k(f'''s_memrealtime s[82:83]
s_waitcnt lgkmcnt(0)
v_mov_b32 v20, s84
v_mov_b32 v21, s85
v_mov_b32 v22, s86
v_mov_b32 v23, s87
v_mov_b32 v24, s82
s_lshl_b32 s34, s{SX}, 5
s_add_u32 s34, s34, s{SR}
s_lshl_b32 s34, s34, 3
s_add_u32 s34, s34, s{SW}
s_lshl_b32 s34, s34, 5
s_add_u32 s34, s34, 0x8900000
v_mov_b32 v25, s34
s_mov_b64 exec, 1
buffer_store_dwordx4 v[20:23], v25, {WS}, 0 offen
buffer_store_dword v24, v25, {WS}, 0 offen offset:16''')
    k('L_exit:\ns_endpgm')
    body, nops = k.text()
    head = f'''; @launch grid=(256,1,1) block=(512,1,1) lds=163840
.amdgcn_target "amdgcn-amd-amdhsa--gfx950"
.text
.globl {NAME}
.p2align 8
.type {NAME},@function
{NAME}:
'''
    tail = f'''
.section .rodata,"a"
.p2align 6
.amdhsa_kernel {NAME}
  .amdhsa_next_free_vgpr 256
  .amdhsa_next_free_sgpr 102
  .amdhsa_accum_offset 256
  .amdhsa_group_segment_fixed_size 0
  .amdhsa_kernarg_size 104
  .amdhsa_user_sgpr_count 2
  .amdhsa_user_sgpr_kernarg_segment_ptr 1
  .amdhsa_system_sgpr_workgroup_id_x 1
.end_amdhsa_kernel
'''
    return head + '\n'.join(body) + tail, nops

if __name__ == '__main__':
    out = sys.argv[1]
    opts = dict(a.split('=') for a in sys.argv[2:] if '=' in a)
    if 'kvsc' in opts: KVSC = {'p': '', 's': ' sc1', 'n': ' nt', '0': ' sc0'}[opts['kvsc']]
    NOKV = 'nokv' in sys.argv[2:]
    TL = 'tl' in sys.argv[2:]
    DBGST = 'dbgst' in sys.argv[2:]
    import brole, proj, attout
    brole.mark = proj.mark = attout.mark = mark
    brole.BMODE = int(opts.get('bmode', 0))
    for o in OPT:
        if o in opts: OPT[o] = int(opts[o])
    proj.LITE = OPT['lite']; proj.PMARK = int(opts.get('pmark', -1))
    brole.OUTSC = attout.OUTSC = {0: '', 1: ' sc1', 2: ' nt', 3: ' sc0 sc1'}[OPT['outsc']]
    brole.SLEEP = OPT['bsleep']; attout.OSLEEP = OPT['osleep']; attout.XWARM = OPT['xwarm']
    txt, nops = build(prof='prof' in sys.argv[2:], keepflags='keepflags' in sys.argv[2:], qdelay=int(opts.get('qdelay', 0)), roles=opts.get('roles', 'chain').split(','))
    open(out, 'w').write(txt)
    print('wrote', out, 'lines', txt.count('\n'), 'nop states', nops)
```

```python
import math, struct
from dsl import v, s
from layout import *
from proj import srd
from attout import flag_wait
WS = 's[8:11]'
SX, SR, SW, SLIM = 28, 29, 30, 33
def f32bits(x): return struct.unpack('<I', struct.pack('<f', x))[0]
PW, ACC, XF, STG, WST = 16, 176, 192, 204, 232
XBUF = 41472

def stat_gemm(k, tag, colstride, wrow, xsrd, xsc, ntiles, typ, epilogue, nwaves):
    k('v_lshlrev_b32 v2, 4, v0')
    for i in range(5):
        k(f'''v_add_u32 v10, {512*i}, v0
v_mul_u32_u24 v11, 52429, v10
v_lshrrev_b32 v11, 22, v11
v_add_u32 v11, v11, v10
v_lshlrev_b32 v{3+i}, 4, v11''')
    k('s_mul_i32 s34, s47, 40960')
    for i in range(5):
        k(f'buffer_load_dwordx4 {v(STG+4*i,4)}, v2, {xsrd}, s34 offen{xsc}\ns_add_u32 s34, s34, 8192')
    k(f'''v_lshrrev_b32 v10, 4, v1
v_lshrrev_b32 v11, 1, v10             ; g2
v_and_b32 v10, 1, v10                 ; nh
v_bfe_u32 v14, v1, 2, 2               ; rr
v_lshl_add_u32 v11, v11, 3, v14
v_mul_u32_u24 v11, 320, v11
v_lshl_add_u32 v11, v10, 5, v11
v_and_b32 v10, 3, v1
v_lshl_add_u32 v11, v10, 3, v11
s_mul_i32 s34, s{SW}, {colstride}
v_add_u32 v14, s34, v11''')
    for i in range(3):
        k(f'''v_add_u32 v9, {512*i}, v0
v_mul_u32_u24 v13, 52429, v9
v_lshrrev_b32 v13, 20, v13
v_mul_u32_u24 v8, 20, v13
v_sub_u32 v8, v9, v8
v_mul_u32_u24 v13, {wrow}, v13
v_lshl_add_u32 v13, v8, 4, v13
v_add_u32 v{10+i}, s46, v13''')
    def ld(c):
        k(f's_mov_b32 s34, {64*c*wrow}')
        for i in range(3): k(f'buffer_load_dwordx4 {v(WST+12*(c%2)+4*i,4)}, v{10+i}, s[16:19], s34 offen')
    ld(0); ld(1)
    for c in range(10):
        buf = (c % 2)*24576
        k(f's_waitcnt vmcnt({3 if c < 9 else 0})')
        for i in range(3): k(f'ds_write_b128 v2, {v(WST+12*(c%2)+4*i,4)} offset:{buf + i*8192}')
        k('s_waitcnt lgkmcnt(0)')
        if c + 2 < 10: ld(c + 2)
        k('s_barrier')
        for ksl in range(4):
            for hh in range(2):
                k(f'ds_read_b64_tr_b16 {v(PW + 4*(4*c+ksl) + 2*hh, 2)}, v14 offset:{buf + ksl*16*320 + hh*4*320}')
        k('s_waitcnt lgkmcnt(0)')
    k(f'''s_barrier
v_and_b32 v10, 31, v1
v_mul_u32_u24 v10, 1296, v10
v_lshrrev_b32 v11, 5, v1
v_lshl_add_u32 v9, v11, 4, v10''')
    for i in range(5): k(f'ds_write_b128 v{3+i}, {v(STG+4*i,4)}')
    k('s_waitcnt lgkmcnt(0)\ns_add_u32 s34, s47, 1\ns_mul_i32 s34, s34, 40960')
    for i in range(5):
        k(f'buffer_load_dwordx4 {v(STG+4*i,4)}, v2, {xsrd}, s34 offen{xsc}\ns_add_u32 s34, s34, 8192')
    epilogue('setup')
    if tag == 'b1': validate(k)
    k(f'''s_mov_b32 s40, 0
s_waitcnt vmcnt(0)
s_barrier
L_{tag}_loop:
s_and_b32 s34, s40, 1
s_mul_i32 s35, s34, {XBUF}
v_add_u32 v10, s35, v9
s_xor_b32 s34, s34, 1
s_mul_i32 s35, s34, {XBUF}
s_cmp_ge_u32 s40, {ntiles-1}
s_cbranch_scc1 L_{tag}_nost''')
    for i in range(5): k(f'v_add_u32 v11, s35, v{3+i}\nds_write_b128 v11, {v(STG+4*i,4)}')
    k(f'''s_waitcnt lgkmcnt(0)
s_cmp_ge_u32 s40, {ntiles-2}
s_cbranch_scc1 L_{tag}_nost
s_add_u32 s34, s40, 2
s_add_u32 s34, s34, s47
s_mul_i32 s34, s34, 40960''')
    for i in range(5):
        k(f'buffer_load_dwordx4 {v(STG+4*i,4)}, v2, {xsrd}, s34 offen{xsc}')
        if i < 4: k('s_add_u32 s34, s34, 8192')
    k(f'L_{tag}_nost:')
    if nwaves < 8: k(f's_cmp_ge_u32 s{SW}, {nwaves}\ns_cbranch_scc1 L_{tag}_idle')
    variants = typ if isinstance(typ, (list, tuple)) else [typ]
    for vi, t in enumerate(variants):
        if len(variants) > 1 and vi == 0: k(f's_cmp_eq_u32 s42, 2\ns_cbranch_scc1 L_{tag}_v1')
        if vi == 1: k(f'L_{tag}_v1:')
        for i in range(2): k(f'ds_read_b128 {v(XF+4*i,4)}, v10 offset:{i*32}')
        for ks in range(40):
            if ks + 2 < 40: k(f'ds_read_b128 {v(XF+4*((ks+2)%3),4)}, v10 offset:{(ks+2)*32}')
            k(f's_waitcnt lgkmcnt({2 if ks + 2 < 40 else (1 if ks + 1 < 40 else 0)})')
            c = '0' if ks == 0 else v(ACC, 16)
            w, x = v(PW+4*ks, 4), v(XF+4*(ks % 3), 4)
            k(f'v_mfma_f32_32x32x16_bf16 {v(ACC,16)}, {w if t != "V" else x}, {x if t != "V" else w}, {c}')
        epilogue(t)
        if len(variants) > 1 and vi == 0: k(f's_branch L_{tag}_skip')
    k(f'''L_{tag}_skip:
s_waitcnt vmcnt({epilogue("nst")})
s_branch L_{tag}_bar
L_{tag}_idle:
s_waitcnt vmcnt(0)
L_{tag}_bar:
s_barrier
s_add_u32 s40, s40, 1
s_cmp_lt_u32 s40, {ntiles}
s_cbranch_scc1 L_{tag}_loop
s_waitcnt vmcnt(0)''')

BMODE = 0
WIDE = 1
OUTSC = ''
SLEEP = 0
mark = lambda k, n: None
def b_role(k):
    SC_, SM_ = 41, 42
    cB = f32bits(20**-0.5 * math.log2(math.e))
    k('L_brole:')
    help_prefetch(k)
    k(f'''
{''.join(['s_sleep 127' + chr(10)] * SLEEP)}s_load_dwordx2 s[4:5], s[0:1], 64
s_load_dwordx2 s[6:7], s[0:1], 56
s_waitcnt lgkmcnt(0)''')
    srd(k, 16, 4, 640*3840)
    srd(k, 20, 6, 2048*1280)
    k(f'''s_cmp_ge_u32 s{SC_}, {48 if BMODE != 2 else 0}
s_cbranch_scc1 L_b2v
; B1: gs = c % 12 (m = gs / 4, head octet = gs % 4), token quarter = c / 12
s_mul_i32 s34, s{SC_}, 43
s_lshr_b32 s34, s34, 9
s_mul_i32 s35, s34, 12
s_sub_u32 s35, s{SC_}, s35
s_lshl_b32 s47, s34, 4
s_lshr_b32 s{SM_}, s35, 2
s_and_b32 s43, s35, 3
s_mul_i32 s46, s{SM_}, 1280
s_mul_i32 s34, s43, 320
s_add_u32 s46, s46, s34''')
    def ep1(t):
        if t == 'nst': return 2
        if t == 'setup':
            k(f'''s_lshl_b32 s34, s43, 3
s_add_u32 s34, s34, s{SW}             ; head
s_lshl_b32 s34, s34, 17
s_mov_b32 s35, {QB >> 20}
s_cmp_eq_u32 s{SM_}, 0
s_cselect_b32 s35, s35, {KB >> 20}
s_cmp_eq_u32 s{SM_}, 2
s_cselect_b32 s35, {VB >> 20}, s35
s_lshl_b32 s35, s35, 20
s_add_u32 s44, s34, s35
v_lshlrev_b32 v8, 4, v1
s_mov_b32 s48, {cB:#x}
s_cmp_eq_u32 s{SM_}, 0
s_cselect_b32 s48, s48, 1.0
s_cselect_b32 s49, 0, 0x3f80
s_mov_b32 s50, 0
s_mov_b32 s51, -1
v_and_b32 v12, 31, v1
v_cmp_gt_u32 vcc, 20, v12
s_mov_b64 s[52:53], vcc
v_cmp_eq_u32 vcc, 20, v12
v_mov_b32 v13, 0x3f803f80
v_cndmask_b32 v13, 0, v13, vcc''')
            return
        if t == 'K':
            for i in range(12): k(f'v_mul_f32 v{ACC+i}, s48, v{ACC+i}')
            for n in range(6): k(f'v_cvt_pk_bf16_f32 v{224+n}, v{ACC+2*n}, v{ACC+2*n+1}')
            k(f'''v_mov_b32 v12, s49
v_cndmask_b32 v228, v228, v12, s[50:51]
v_cndmask_b32 v229, v229, 0, s[50:51]
v_mov_b32 v230, 0
v_mov_b32 v231, 0''')
        else:
            for n in range(8): k(f'v_cvt_pk_bf16_f32 v{224+n}, v{ACC+2*n}, v{ACC+2*n+1}')
            for n in range(8): k(f'v_cndmask_b32 v{224+n}, v13, v{224+n}, s[52:53]')
        k(f'''s_add_u32 s34, s40, s47
s_lshl_b32 s34, s34, 11
s_add_u32 s34, s34, s44
buffer_store_dwordx4 v[224:227], v8, {WS}, s34 offen sc1
buffer_store_dwordx4 v[228:231], v8, {WS}, s34 offen offset:1024 sc1''')
    stat_gemm(k, 'b1', 40, 3840, 's[20:23]', '', 16, ['K', 'V'], ep1, 8)
    k(f'''s_barrier
s_cmp_lg_u32 s{SW}, 0
s_cbranch_scc1 L_b2
s_lshl_b32 s34, s{SC_}, 2
s_add_u32 s34, s34, {F_B1}
v_mov_b32 v10, s34
v_mov_b32 v11, 1
s_mov_b64 exec, 1
buffer_store_dword v11, v10, {WS}, 0 offen sc1
s_mov_b64 exec, -1''')
    Q, O, KV, SA, SB, P, M, T = 16, 48, 112, 144, 160, 176, 184, 188
    k('s_branch L_b2\nL_b2v:')
    validate(k)
    if BMODE == 1: k('L_b2:\ns_branch L_end\nL_b2x:')
    k(f'''{'L_b2:' if BMODE != 1 else ''}
v_lshlrev_b32 v10, 2, v1
v_add_u32 v10, {F_B1}, v10
s_mov_b32 s36, 1''')
    if BMODE != 2: flag_wait(k, 'b1w', 10, 48, 36)
    mark(k, 1)
    k(f'''s_lshr_b32 s43, s{SC_}, 1             ; head
s_and_b32 s44, s{SC_}, 1
s_lshl_b32 s34, s43, 17
v_lshlrev_b32 v2, 4, v1
v_add_u32 v3, s34, v2
s_lshl_b32 s35, s44, 5
s_lshl_b32 s36, s{SW}, 2
s_add_u32 s35, s35, s36
s_lshl_b32 s36, s35, 11
s_add_u32 s36, s36, {QB}''')
    for qb in range(4):
        for ks in range(2): k(f'buffer_load_dwordx4 {v(Q+8*qb+4*ks,4)}, v3, {WS}, s36 offen offset:{ks*1024} sc1')
        if qb < 3: k('s_add_u32 s36, s36, 2048')
    k(f'''s_mov_b32 s45, s35
s_lshl_b32 s46, s{SW}, 11             ; w*2048
v_add_u32 v4, s46, v3''')
    def dma(chunk_sreg):
        k(f'''s_and_b32 s34, s{chunk_sreg}, 1
s_lshl_b32 s34, s34, 15
s_add_u32 s34, s34, s46
s_mov_b32 m0, s34
s_lshl_b32 s35, s{chunk_sreg}, 14
s_add_u32 s36, s35, {KB}
buffer_load_dwordx4 v4, {WS}, s36 offen sc1 lds
buffer_load_dwordx4 v4, {WS}, s36 offen offset:1024 sc1 lds
s_add_u32 m0, s34, 16384
s_add_u32 s36, s35, {VB}
buffer_load_dwordx4 v4, {WS}, s36 offen sc1 lds
buffer_load_dwordx4 v4, {WS}, s36 offen offset:1024 sc1 lds''')
    k('s_mov_b32 s40, 0')
    dma(40)
    for i in range(64): k(f'v_mov_b32 v{O+i}, 0')
    for i in range(4): k(f'v_mov_b32 v{M+i}, 0')
    k(f'''s_mov_b32 s50, 0
s_mov_b32 s51, -1                     ; lanes 32..63
s_mov_b32 s52, 0xff800000
s_mov_b32 s53, 0xff800000
L_b2_chunk:
s_waitcnt vmcnt(0)
s_barrier
s_cmp_ge_u32 s40, 7
s_cbranch_scc1 L_b2_nodma
s_add_u32 s37, s40, 1''')
    dma(37)
    k(f'''L_b2_nodma:
s_and_b32 s34, s40, 1
s_lshl_b32 s34, s34, 15
v_add_u32 v5, s34, v2
s_mov_b32 s47, 0''')
    def kvread(setn, kbl):
        for ks in range(2): k(f'ds_read_b128 {v(KV+16*setn+4*ks,4)}, v5 offset:{kbl*2048 + ks*1024}')
        for kk in range(2): k(f'ds_read_b128 {v(KV+16*setn+8+4*kk,4)}, v5 offset:{16384 + kbl*2048 + kk*1024}')
    def smfma(dst, setn, qb):
        k(f'v_mfma_f32_32x32x16_bf16 {v(dst,16)}, {v(KV+16*setn,4)}, {v(Q+8*qb,4)}, 0')
        k(f'v_mfma_f32_32x32x16_bf16 {v(dst,16)}, {v(KV+16*setn+4,4)}, {v(Q+8*qb+4,4)}, {v(dst,16)}')
    rare = []
    kvread(0, 0)
    k('s_waitcnt lgkmcnt(0)')
    smfma(SA, 0, 0)
    k('L_b2_pair:')
    for par in range(2):
        for qb in range(4):
            cur, nxt = (SA, SB) if qb % 2 == 0 else (SB, SA)
            if qb == 0:
                if par == 0: kvread(1, 1)
                else:
                    k('v_add_u32 v5, 4096, v5')
                    lab = k.lab('b2nr')
                    k(f's_cmp_eq_u32 s47, 3\ns_cbranch_scc1 {lab}')
                    kvread(0, 0)
                    k(f'{lab}:')
            if qb < 3: smfma(nxt, par, qb + 1)
            else:
                if par == 0:
                    k('s_waitcnt lgkmcnt(0)'); smfma(nxt, 1, 0)
                else:
                    lab = k.lab('b2ns')
                    k(f's_waitcnt lgkmcnt(0)\ns_cmp_eq_u32 s47, 3\ns_cbranch_scc1 {lab}')
                    smfma(nxt, 0, 0)
                    k(f'{lab}:')
            k(f'v_max3_f32 v{T}, v{cur}, v{cur+1}, v{cur+2}')
            for n in range(6): k(f'v_max3_f32 v{T}, v{T}, v{cur+3+2*n}, v{cur+4+2*n}')
            k(f'v_max_f32 v{T}, v{T}, v{cur+15}')
            R, B = k.lab('b2r'), k.lab('b2b')
            k(f'v_cmp_lt_f32 vcc, s52, v{T}\ns_cbranch_vccnz {R}\n{B}:')
            rare.append((R, B, cur, qb))
            for i in range(16): k(f'v_exp_f32 v{cur+i}, v{cur+i}')
            for n in range(8): k(f'v_cvt_pk_bf16_f32 v{P+n}, v{cur+2*n}, v{cur+2*n+1}')
            for kk in range(2):
                k(f'v_mfma_f32_32x32x16_bf16 {v(O+16*qb,16)}, {v(KV+16*par+8+4*kk,4)}, {v(P+4*kk,4)}, {v(O+16*qb,16)}')
        if par == 0: k('s_mov_b32 s52, 0x41200000\ns_mov_b32 s53, 0')
    k(f'''s_add_u32 s47, s47, 1
s_cmp_lt_u32 s47, 4
s_cbranch_scc1 L_b2_pair
s_add_u32 s40, s40, 1
s_cmp_lt_u32 s40, 8
s_cbranch_scc1 L_b2_chunk
s_branch L_b2_done''')
    for R, B, cur, qb in rare:
        k(f'''{R}:
v_mov_b32 v{T+1}, v{T}
v_permlane32_swap_b32 v{T}, v{T+1}
v_max_f32 v{T}, v{T}, v{T+1}
v_max_f32 v{T}, s53, v{T}
v_add_f32 v{T}, v{M+qb}, v{T}
v_cvt_pk_bf16_f32 v{T+1}, v{T}, v{T}
v_lshlrev_b32 v{T}, 16, v{T+1}
v_sub_f32 v{T+2}, v{T}, v{M+qb}
v_mov_b32 v{M+qb}, v{T}
v_and_b32 v{T+1}, 0xffff, v{T+1}
v_xor_b32 v{T+1}, 0x8000, v{T+1}
v_cndmask_b32 v{Q+8*qb+4}, v{Q+8*qb+4}, v{T+1}, s[50:51]''')
        for i in range(16): k(f'v_sub_f32 v{cur+i}, v{cur+i}, v{T+2}')
        k(f'v_sub_f32 v{T+2}, 0, v{T+2}\nv_exp_f32 v{T+2}, v{T+2}')
        for i in range(16): k(f'v_mul_f32 v{O+16*qb+i}, v{O+16*qb+i}, v{T+2}')
        k(f's_branch {B}')
    k('L_b2_done:')
    mark(k, 2)
    k(f'''v_and_b32 v10, 31, v1
v_lshrrev_b32 v11, 5, v1
v_mul_u32_u24 v10, 1280, v10
v_lshl_add_u32 v10, v11, 3, v10
s_mul_i32 s34, s43, 40
s_mul_i32 s35, s45, {32*1280}
s_add_u32 s34, s34, s35
s_add_u32 s34, s34, {OB}''')
    for qb in range(4):
        o = O + 16*qb
        k(f'''v_mov_b32 v{T}, v{o+8}
v_mov_b32 v{T+1}, v{o+8}
v_permlane32_swap_b32 v{T}, v{T+1}
v_rcp_f32 v{T+1}, v{T+1}''')
        for a in range(3):
            for b in range(4): k(f'v_mul_f32 v{o+4*a+b}, v{o+4*a+b}, v{T+1}')
            k(f'v_cvt_pk_bf16_f32 v{P+2*a}, v{o+4*a}, v{o+4*a+1}\nv_cvt_pk_bf16_f32 v{P+2*a+1}, v{o+4*a+2}, v{o+4*a+3}')
        k(f'''buffer_store_dwordx2 {v(P,2)}, v10, {WS}, s34 offen
buffer_store_dwordx2 {v(P+2,2)}, v10, {WS}, s34 offen offset:16
s_mov_b32 exec_hi, 0
buffer_store_dwordx2 {v(P+4,2)}, v10, {WS}, s34 offen offset:32
s_mov_b32 exec_hi, -1
s_add_u32 s34, s34, {32*1280}''')
    k(f'''s_waitcnt vmcnt(0)
s_barrier
s_cmp_lg_u32 s{SW}, 0
s_cbranch_scc1 L_b3
buffer_wbl2 sc1
s_waitcnt vmcnt(0)
s_lshl_b32 s34, s{SC_}, 2
s_add_u32 s34, s34, {F_B2}
v_mov_b32 v10, s34
v_mov_b32 v11, 1
s_mov_b64 exec, 1
buffer_store_dword v11, v10, {WS}, 0 offen sc1
s_mov_b64 exec, -1
L_b3:
s_load_dwordx2 s[4:5], s[0:1], 72
s_load_dwordx2 s[6:7], s[0:1], 80
s_waitcnt lgkmcnt(0)''')
    srd(k, 16, 4, 640*1280)
    srd(k, 24, 6, 2048*2560)
    k(f'''s_mov_b32 s20, s8
s_mov_b32 s21, s9
s_add_u32 s20, s20, {OB}
s_addc_u32 s21, s21, 0
s_mov_b32 s22, {2048*1280}
s_mov_b32 s23, 0x20000
v_lshlrev_b32 v10, 2, v1
v_add_u32 v10, {F_B2}, v10
s_mov_b32 s36, 1''')
    flag_wait(k, 'b2w', 10, 64, 36)
    k(f'''s_and_b32 s43, s{SC_}, 3
s_lshr_b32 s34, s{SC_}, 2
s_lshl_b32 s47, s34, 2
s_mul_i32 s46, s43, 320''')
    def ep3(t):
        if t == 'nst': return 2 if WIDE else 4
        if t == 'setup':
            k(f'''v_and_b32 v12, 31, v1
v_lshrrev_b32 v13, 5, v1
v_mul_u32_u24 v12, 2560, v12
v_lshl_add_u32 v12, v13, {4 if WIDE else 3}, v12
s_mul_i32 s34, s43, 320
s_lshl_b32 s35, s{SW}, 6
s_add_u32 s34, s34, s35
s_add_u32 s34, s34, 1280
v_add_u32 v8, s34, v12''')
            return
        for n in range(8): k(f'v_cvt_pk_bf16_f32 v{224+n}, v{ACC+2*n}, v{ACC+2*n+1}')
        k(f's_add_u32 s34, s40, s47\ns_mul_i32 s34, s34, {32*2560}')
        if WIDE:
            for p_ in range(2):
                k(f'v_permlane32_swap_b32 v{224+4*p_}, v{226+4*p_}\nv_permlane32_swap_b32 v{225+4*p_}, v{227+4*p_}')
                k(f'buffer_store_dwordx4 {v(224+4*p_,4)}, v8, s[24:27], s34 offen offset:{32*p_}{OUTSC}')
        else:
            for a in range(4): k(f'buffer_store_dwordx2 {v(224+2*a,2)}, v8, s[24:27], s34 offen offset:{16*a}')
    stat_gemm(k, 'b3', 64, 1280, 's[20:23]', ' sc1', 4, 'O', ep3, 5)
    k('s_branch L_end')
```

```python
import sys, math, struct
from dsl import Kern, v, s
from layout import *
from proj import proj_role
from attout import att_role, out_role
from brole import b_role

def f32bits(x): return struct.unpack('<I', struct.pack('<f', x))[0]

WS, DBG = 's[8:11]', 's[12:15]'
SX, SR, SW, SSLOW, SPAR, SLIM = 28, 29, 30, 31, 32, 33
SXCC, SRANK = 98, 99
SSTEP = 40
POLL_LIMIT = 1 << 17

def srd(k, base, ptr, nbytes):
    k(f'''s_mov_b32 s{base}, s{ptr}
s_and_b32 s{base+1}, s{ptr+1}, 0xffff
s_mov_b32 s{base+2}, {nbytes:#x}
s_mov_b32 s{base+3}, 0x20000''')

def poll(k, name, loads, check, cnt=39, sleep=0):
    L, D = k.lab(name), k.lab(name + 'd')
    k(f's_mov_b32 s{cnt}, 0\n{L}:')
    loads()
    k('s_waitcnt vmcnt(0)')
    check()
    k(f's_cbranch_vccz {D}')
    if sleep: k(f's_sleep {sleep}')
    k(f'''s_add_u32 s{cnt}, s{cnt}, 1
s_cmp_lt_u32 s{cnt}, s{SLIM}
s_cbranch_scc1 {L}
s_mov_b32 s{SLIM}, 0
{D}:''')

def umax_check(k, regs, tmp):
    r = list(regs)
    if len(r) == 1:
        k(f'v_cmp_eq_u32 vcc, -1, v{r[0]}'); return
    if len(r) == 2:
        k(f'v_max_u32 v{tmp}, v{r[0]}, v{r[1]}'); r = []
    else:
        k(f'v_max3_u32 v{tmp}, v{r[0]}, v{r[1]}, v{r[2]}'); r = r[3:]
    while len(r) >= 2:
        k(f'v_max3_u32 v{tmp}, v{tmp}, v{r[0]}, v{r[1]}'); r = r[2:]
    if r: k(f'v_max_u32 v{tmp}, v{tmp}, v{r[0]}')
    k(f'v_cmp_eq_u32 vcc, -1, v{tmp}')

TL = False
DBGST = False
def dstamp(k, word, cond_x, cond_r, wave=0):
    if not DBGST: return
    L = k.lab('ds')
    k(f'''s_cmp_lg_u32 s{SX}, {cond_x}
s_cbranch_scc1 {L}
s_cmp_lg_u32 s{SR}, {cond_r}
s_cbranch_scc1 {L}
s_cmp_lg_u32 s{SW}, {wave}
s_cbranch_scc1 {L}
s_memrealtime s[82:83]
s_waitcnt lgkmcnt(0)
v_mov_b32 v252, s82
v_mov_b32 v253, {word*4}
s_mov_b64 exec, 1
buffer_store_dword v252, v253, {DBG}, 0 offen
s_mov_b64 exec, -1
{L}:''')

def mark(k, n):
    if TL: k(f's_memrealtime s[82:83]\ns_waitcnt lgkmcnt(0)\ns_mov_b32 s{85+n}, s82')

def start_phase(k, keepflags=False):
    k(f'''
s_cmp_ge_u32 s2, 256
s_cbranch_scc1 L_exit
{'s_memrealtime s[84:85]' if TL else ''}
s_load_dwordx4 s[4:7], s[0:1], 88
s_getreg_b32 s{SXCC}, hwreg(HW_REG_XCC_ID)
s_and_b32 s{SXCC}, s{SXCC}, 15
v_and_b32 v1, 63, v0
v_lshrrev_b32 v2, 6, v0
v_readfirstlane_b32 s{SW}, v2
s_waitcnt lgkmcnt(0)''')
    srd(k, 8, 6, WS_BYTES)
    srd(k, 12, 4, 256)
    k(f'''
s_mov_b32 s{SLIM}, {POLL_LIMIT}
s_mov_b32 s{SSLOW}, 0
v_mov_b32 v9, 0
s_cmp_lg_u32 s{SW}, 0
s_cbranch_scc1 L_st_clr
s_lshl_b32 s35, s{SXCC}, 4
v_mov_b32 v8, s35
v_mov_b32 v9, 1
s_mov_b64 exec, 1
buffer_atomic_add v9, v8, {DBG}, 0 offen sc0
s_mov_b64 exec, -1
L_st_clr:
s_lshl_b32 s35, s2, 14
s_cmp_lt_u32 s35, 0x10000
s_cselect_b32 s36, 0, -1
v_mov_b32 v4, s36
v_mov_b32 v5, s36
v_mov_b32 v6, s36
v_mov_b32 v7, s36
v_lshlrev_b32 v2, 4, v0
s_add_u32 s36, s35, 8192
{'s_cmp_lt_u32 s35, 0x10000' if keepflags else ''}
{'s_cbranch_scc1 L_st_noclr' if keepflags else ''}
buffer_store_dwordx4 v[4:7], v2, {WS}, s35 offen sc1
buffer_store_dwordx4 v[4:7], v2, {WS}, s36 offen sc1
L_st_noclr:
s_cmp_lg_u32 s{SW}, 0
s_cbranch_scc1 L_st_w1
s_waitcnt vmcnt(2)
v_readfirstlane_b32 s35, v9
v_mov_b32 v4, s35
v_mov_b32 v8, 0
ds_write_b32 v8, v4
s_waitcnt lgkmcnt(0)
L_st_w1:
s_barrier
v_mov_b32 v8, 0
ds_read_b32 v4, v8
s_waitcnt lgkmcnt(0)
v_readfirstlane_b32 s{SRANK}, v4
s_min_u32 s{SR}, s{SRANK}, 31
s_and_b32 s{SX}, s{SXCC}, 7
s_waitcnt vmcnt(0)
s_barrier
s_cmp_lg_u32 s{SW}, 0
s_cbranch_scc1 L_dispatch
s_lshl_b32 s35, s{SXCC}, 4
s_add_u32 s35, s35, 8
v_mov_b32 v8, s35
v_mov_b32 v9, 1
s_mov_b64 exec, 1
buffer_atomic_add v9, v8, {DBG}, 0 offen
s_mov_b64 exec, -1
L_dispatch:''')
    dstamp(k, 15, 0, 0)
    if TL: k('s_memrealtime s[82:83]\ns_mov_b32 s86, 0\ns_mov_b32 s87, 0\ns_waitcnt lgkmcnt(0)\ns_mov_b32 s85, s82')

def help_prefetch(k):
    H, D = k.lab('hp'), k.lab('hpd')
    k(f'''s_cmp_ge_u32 s{SX}, 4
s_cbranch_scc1 {H}
; chain die: wave wg = (R-24)*8 + w; tasks wg + 64 j < 480: unit = t / 20, block of 16 rows = t % 20
s_sub_u32 s34, s{SR}, 24
s_lshl_b32 s34, s34, 3
s_add_u32 s34, s34, s{SW}
v_lshrrev_b32 v10, 2, v1
v_and_b32 v11, 3, v1
v_lshlrev_b32 v10, 13, v10
v_lshl_add_u32 v10, v11, 6, v10''')
    for j in range(8):
        sk = k.lab('hs')
        k(f'''s_add_u32 s35, s34, {64*j}
s_cmp_ge_u32 s35, 480
s_cbranch_scc1 {sk}
s_mul_i32 s36, s35, 3277
s_lshr_b32 s36, s36, 16               ; unit (0..23)
s_mul_i32 s37, s36, 20
s_sub_u32 s37, s35, s37               ; block
s_cmp_ge_u32 s36, 12
s_cselect_b32 s38, 1, 0
s_mul_i32 s39, s38, 12
s_sub_u32 s39, s36, s39               ; i
s_mul_i32 s44, s39, 11
s_lshr_b32 s44, s44, 5
s_mul_i32 s45, s44, 3
s_sub_u32 s45, s39, s45               ; m
s_lshl_b32 s46, s{SX}, 1
s_add_u32 s46, s46, s38
s_lshl_b32 s46, s46, 2
s_add_u32 s46, s46, s44               ; head
s_lshl_b32 s46, s46, 8
s_lshl_b32 s37, s37, 4
s_sub_u32 s37, 624, s37
s_lshl_b32 s37, s37, 13
s_add_u32 s46, s46, s37
s_lshl_b32 s45, s45, 3
s_add_u32 s45, s45, 16
s_load_dwordx2 s[4:5], s[0:1], s45
s_waitcnt lgkmcnt(0)''')
        srd(k, 16, 4, 640*8192)
        k(f'buffer_load_dword v{230+j}, v10, s[16:19], s46 offen\n{sk}:')
    k(f'''s_branch {D}
{H}:
; PROJ die: wave wg = (R-12)*8 + w; tasks wg + 160 j < 480: unit = t / 40, block of 8 rows = t % 40
s_sub_u32 s34, s{SR}, 12
s_lshl_b32 s34, s34, 3
s_add_u32 s34, s34, s{SW}
v_lshrrev_b32 v10, 3, v1
v_and_b32 v11, 7, v1
v_lshlrev_b32 v10, 13, v10
v_lshl_add_u32 v10, v11, 6, v10''')
    for j in range(3):
        k(f'''s_add_u32 s35, s34, {160*j}
s_mul_i32 s36, s35, 1639
s_lshr_b32 s36, s36, 16               ; unit (0..11)
s_mul_i32 s37, s36, 40
s_sub_u32 s37, s35, s37               ; block
s_sub_u32 s38, s{SX}, 4
s_mul_i32 s38, s38, 12
s_add_u32 s38, s38, s36               ; p
s_lshr_b32 s45, s38, 4                ; m
s_and_b32 s46, s38, 15
s_lshl_b32 s46, s46, 9
s_lshl_b32 s37, s37, 3
s_sub_u32 s37, 632, s37
s_lshl_b32 s37, s37, 13
s_add_u32 s46, s46, s37
s_lshl_b32 s45, s45, 3
s_add_u32 s45, s45, 16
s_min_u32 s45, s45, 32
s_load_dwordx2 s[4:5], s[0:1], s45
s_waitcnt lgkmcnt(0)''')
        srd(k, 16, 4, 640*8192)
        k(f'buffer_load_dword v{230+j}, v10, s[16:19], s46 offen')
    k(f'{D}:')

def validate(k, need_par=False):
    L, G, OK = k.lab('val'), k.lab('valg'), k.lab('valok')
    k(f'''s_cmp_lg_u32 s{SSLOW}, 0
s_cbranch_scc1 {OK}
v_lshlrev_b32 v10, 2, v1
s_mov_b32 s39, 0
{L}:
buffer_load_dword v11, v10, {DBG}, 0 offen sc1
s_waitcnt vmcnt(0)
v_cmp_eq_u32 vcc, 32, v11
s_and_b32 s34, vcc_lo, 0x55555555
s_cmp_eq_u32 s34, 0x55555555
s_cbranch_scc0 {G}_s
v_readlane_b32 s{SPAR}, v11, 1
s_mov_b32 s34, 0
{'s_cmp_lg_u32 s' + str(SPAR) + ', 0' if need_par else 's_cmp_eq_u32 s34, 0'}
s_cbranch_scc1 {G}
{G}_s:
s_mov_b32 s36, 0
s_mov_b32 s37, 0
s_mov_b32 s38, 0
s_mov_b32 s34, 0''')
    for i in range(16):
        k(f'''v_readlane_b32 s35, v11, {4*i+2}
s_add_u32 s38, s38, s35
v_readlane_b32 s35, v11, {4*i}
s_add_u32 s36, s36, s35
s_cmp_eq_u32 s35, {32 if i < 8 else 0}
s_cselect_b32 s97, 0, 1
s_or_b32 s34, s34, s97
s_cmp_gt_u32 s{SXCC}, {i}
s_cselect_b32 s35, s35, 0
s_add_u32 s37, s37, s35''')
    k(f'''v_readlane_b32 s{SPAR}, v11, 1
s_cmp_eq_u32 s36, 256
s_cselect_b32 s35, s38, 0
s_cmp_eq_u32 s35, 256''')
    if need_par:
        k(f'''s_cselect_b32 s35, s{SPAR}, 0
s_or_b32 s97, s35, s34
s_cmp_eq_u32 s36, 256
s_cselect_b32 s97, s97, 0
s_cmp_eq_u32 s38, 256
s_cselect_b32 s97, s97, 0
s_cmp_lg_u32 s97, 0''')
    k(f'''s_cbranch_scc1 {G}
s_sleep 2
s_add_u32 s39, s39, 1
s_cmp_lt_u32 s39, s{SLIM}
s_cbranch_scc1 {L}
s_mov_b32 s{SLIM}, 0
{G}:
s_and_b32 s{SPAR}, s{SPAR}, 2
s_lshl_b32 s{SPAR}, s{SPAR}, 12
s_cmp_eq_u32 s34, 0
s_cbranch_scc1 {OK}
s_mov_b32 s{SSLOW}, 1
s_mov_b32 s{SPAR}, 0
s_add_u32 s37, s37, s{SRANK}
s_and_b32 s37, s37, 255
s_lshr_b32 s{SX}, s37, 5
s_and_b32 s{SR}, s37, 31
s_barrier
s_branch L_dispatch
{OK}:''')

def calibrate(k):
    NS = OPT['ncal']
    k(f'''s_mov_b64 exec, 1
s_mov_b32 s36, -1
s_mov_b32 s37, -1
v_mov_b32 v9, -1
s_mov_b32 s48, 0
L_cal:''')
    for par in range(2):
        k(f'''s_lshl_b32 s38, s48, 8
s_add_u32 s38, s38, {PART + 0x190000 + par*8192:#x}
v_mov_b32 v8, s38
buffer_store_dword v9, v8, {WS}, 0 offen sc1
s_waitcnt vmcnt(0)
s_memtime s[44:45]
s_waitcnt lgkmcnt(0)
buffer_load_dword v9, v8, {WS}, 0 offen sc1
s_waitcnt vmcnt(0)
s_memtime s[46:47]
s_waitcnt lgkmcnt(0)
s_sub_u32 s38, s46, s44
s_min_u32 s{36+par}, s{36+par}, s38''')
    k(f'''s_add_u32 s48, s48, 1
s_cmp_lt_u32 s48, {NS}
s_cbranch_scc1 L_cal
s_cmp_lt_u32 s36, s37
s_cselect_b32 s38, 0, 1
s_cmp_ge_u32 s{SXCC}, 4
s_cselect_b32 s39, 1, 0
s_xor_b32 s38, s38, s39
s_add_u32 s38, s38, 1
{('s_mov_b32 s38, ' + str(OPT['forcepar'])) if OPT['forcepar'] else ''}
v_mov_b32 v9, s38
v_mov_b32 v8, 4
buffer_store_dword v9, v8, {DBG}, 0 offen sc1''')
    if OPT['caldbg']:
        k(f'''v_mov_b32 v9, s36
v_mov_b32 v8, 12
buffer_store_dword v9, v8, {DBG}, 0 offen
v_mov_b32 v9, s37
v_mov_b32 v8, 20
buffer_store_dword v9, v8, {DBG}, 0 offen''')
    k('s_waitcnt vmcnt(0)\ns_mov_b64 exec, -1')

def par_wait(k):
    L, D = k.lab('pw'), k.lab('pwd')
    k(f'''s_cmp_lg_u32 s{SSLOW}, 0
s_cbranch_scc1 {D}
s_mov_b32 s39, 0
v_mov_b32 v13, 4
{L}:
buffer_load_dword v12, v13, {DBG}, 0 offen sc1
s_waitcnt vmcnt(0)
v_readfirstlane_b32 s{SPAR}, v12
s_cmp_lg_u32 s{SPAR}, 0
s_cbranch_scc1 {L}_g
s_sleep 2
s_add_u32 s39, s39, 1
s_cmp_lt_u32 s39, s{SLIM}
s_cbranch_scc1 {L}
s_mov_b32 s{SLIM}, 0
{L}_g:
s_and_b32 s{SPAR}, s{SPAR}, 2
s_lshl_b32 s{SPAR}, s{SPAR}, 12
{D}:''')

L_KV, L_MEMF, L_RED = 0, 65536, 65536 + 10240
V_MF = 10
V_MW = 11
VLANE16 = 2
V_A3 = 3
V_A4 = 4
V_A5 = 5
V_A6 = 6
V_A7 = 7
V_A9 = 9
V_IDX = 15
WO, KXR, VXR, QK, VM, S0, S1, SM = 16, 80, 112, 144, 160, 168, 172, 176
PX, PM, PM2, O, OB, OA, NEG = 180, 184, 186, 192, 224, 144, 240
W1, MF, DA, DB = 16, 176, 216, 220
S_HEAD, S_M, S_I, S_G, S_GI = 41, 42, 43, 44, 45
S_MEMN, S_MEMN4, S_MEMN8, S_MEMZ = 46, 47, 48, 49
S_QC, S_QC4, S_QZ = 50, 51, 52
S_PC, S_PZ = 53, 54
S_KP = 55
S_KXN, S_VXN = 56, 57
S_AVAIL = 58
S_KP4 = 59
M_LO8, M_EVEN, M_ODD = 72, 74, 76
S_C, S_NC = 78, 79

def chain_offsets(k, part):
    if 'q' in part:
        k(f"""s_and_b32 s34, s{SSTEP}, 3
s_mul_i32 s{S_QC}, s34, 196608
s_add_u32 s{S_QC}, s{S_QC}, {QKVR}""")
    if 'r' in part:
        k(f"""s_and_b32 s34, s{SSTEP}, 3
s_add_u32 s{S_QC4}, s{S_QC}, 4096
s_mul_i32 s{S_PC}, s34, {8*3*16384}
s_add_u32 s{S_PC}, s{S_PC}, {PART}
s_add_u32 s{S_PC}, s{S_PC}, s{SPAR}
s_add_u32 s35, s{SSTEP}, 2
s_and_b32 s35, s35, 3
s_mul_i32 s{S_QZ}, s35, 196608
s_add_u32 s{S_QZ}, s{S_QZ}, {QKVR}
s_mul_i32 s{S_PZ}, s35, {8*3*16384}
s_add_u32 s{S_PZ}, s{S_PZ}, {PART}
s_add_u32 s{S_PZ}, s{S_PZ}, s{SPAR}
s_mul_i32 s36, s{SX}, 10240
s_add_u32 s36, s36, {MEMR}
s_add_u32 s35, s{SSTEP}, 1
s_and_b32 s35, s35, 3
s_mul_i32 s{S_MEMN}, s35, 40960
s_add_u32 s{S_MEMN}, s{S_MEMN}, s36
s_add_u32 s{S_MEMN4}, s{S_MEMN}, 4096
s_add_u32 s{S_MEMN8}, s{S_MEMN}, 8192
s_add_u32 s35, s{SSTEP}, 3
s_and_b32 s35, s35, 3
s_mul_i32 s{S_MEMZ}, s35, 40960
s_add_u32 s{S_MEMZ}, s{S_MEMZ}, s36
s_mul_i32 s{S_KP}, s{SSTEP}, 196608
s_add_u32 s{S_KP}, s{S_KP}, {KVMP}
s_add_u32 s{S_KP4}, s{S_KP}, 4096
s_add_u32 s35, s{SSTEP}, 1
s_lshl_b32 s35, s35, 18
s_add_u32 s{S_KXN}, s35, {KX}
s_add_u32 s{S_VXN}, s35, {VX}""")

def kv_wait(k, need_sreg):
    D = k.lab('kvok')
    k(f's_cmp_ge_u32 s{S_AVAIL}, s{need_sreg}\ns_cbranch_scc1 {D}')
    L = k.lab('kvp')
    k(f"""s_mov_b32 s39, 0
{L}:
buffer_load_dword v13, v{V_A9}, {WS}, 0 offen sc1
s_waitcnt vmcnt(0)
v_readlane_b32 s34, v13, 0
v_readlane_b32 s35, v13, 1
s_min_u32 s{S_AVAIL}, s34, s35
s_cmp_ge_u32 s{S_AVAIL}, s{need_sreg}
s_cbranch_scc1 {D}
s_sleep 2
s_add_u32 s39, s39, 1
s_cmp_lt_u32 s39, s{SLIM}
s_cbranch_scc1 {L}
s_mov_b32 s{SLIM}, 0
{D}:""")

KVSC = ' sc1'
NOKV = False
def kv_loads(k, skx, svx):
    k(f's_add_u32 s34, s{skx}, 4096\ns_add_u32 s35, s{svx}, 4096')
    for i in range(8):
        k(f'buffer_load_dwordx4 {v(KXR+4*i,4)}, v{V_A4}, {WS}, s{skx if i < 4 else 34} offen offset:{(i%4)*1024}{KVSC}')
    for i in range(8):
        k(f'buffer_load_dwordx4 {v(VXR+4*i,4)}, v{V_A4}, {WS}, s{svx if i < 4 else 35} offen offset:{(i%4)*1024}{KVSC}')

def kv_dma(k, skx, svx, second=False):
    for part, sb in ((0, skx), (1, svx)):
        for hlf in range(2):
            k(f's_add_u32 m0, s60, {part*8192 + hlf*4096 - (16384 if second else 0)}' if not second else f's_sub_u32 m0, s60, {16384 - part*8192 - hlf*4096}')
            if second: k(f's_sub_u32 s34, s{sb}, {8192 - hlf*4096}')
            else: k(f's_add_u32 s34, s{sb}, {hlf*4096}')
            for i in range(4):
                k(f'buffer_load_dwordx4 v8, {WS}, s34 offen offset:{i*1024}{KVSC} lds')

def kv_copies(k, skx, svx):
    A, D = k.lab('kc'), k.lab('kd')
    k(f's_cmp_eq_u32 s{SW}, 6\ns_cbranch_scc1 {D}')
    kv_dma(k, skx, svx)
    k(f's_cmp_eq_u32 s{SW}, 7\ns_cbranch_scc0 {D}')
    kv_dma(k, skx, svx, second=True)
    k(f'{D}:')

def chain_prologue(k):
    k(f"""
L_chain:
; i = R % 12, gi = R / 12, hl = i / 3, m = i % 3
s_cmp_ge_u32 s{SR}, 12
s_cselect_b32 s{S_GI}, 1, 0
s_mul_i32 s34, s{S_GI}, 12
s_sub_u32 s{S_I}, s{SR}, s34
s_mul_i32 s34, s{S_I}, 11
s_lshr_b32 s34, s34, 5
s_mul_i32 s35, s34, 3
s_sub_u32 s{S_M}, s{S_I}, s35
s_lshl_b32 s{S_G}, s{SX}, 1
s_add_u32 s{S_G}, s{S_G}, s{S_GI}
s_lshl_b32 s35, s{S_G}, 2
s_add_u32 s{S_HEAD}, s35, s34
s_lshl_b32 s34, s{S_M}, 3
s_add_u32 s34, s34, 16
s_load_dwordx2 s[4:5], s[0:1], s34
s_load_dwordx2 s[6:7], s[0:1], 40
s_load_dwordx2 s[36:37], s[0:1], 8
s_waitcnt lgkmcnt(0)""")
    srd(k, 16, 4, 640*8192)
    srd(k, 20, 6, 4096*1280)
    srd(k, 24, 36, 8*1280)
    STG = 176
    k(f"""
v_lshlrev_b32 v{VLANE16}, 4, v1
s_mov_b32 s{M_LO8}, 0x00ff00ff
s_mov_b32 s{M_LO8+1}, 0x00ff00ff
s_mov_b32 s{M_EVEN}, 0x55555555
s_mov_b32 s{M_EVEN+1}, 0x55555555
s_mov_b32 s{M_ODD}, 0xaaaaaaaa
s_mov_b32 s{M_ODD+1}, 0xaaaaaaaa
s_mov_b32 s{S_C}, {f32bits(128**-0.5 * math.log2(math.e)):#x}
s_mov_b32 s{S_NC}, {f32bits(-(128**-0.5) * math.log2(math.e)):#x}
v_and_b32 v10, 8, v1
v_cmp_eq_u32 vcc, 0, v10
v_mov_b32 v10, 0xeeee
v_mov_b32 v11, 0x4444
v_cndmask_b32 v{V_IDX}, v10, v11, vcc
s_cmp_ge_u32 s{SW}, 4
s_cbranch_scc1 L_ch_ldw""")
    for rnd in range(3):
        k(f"""v_add_u32 v10, {256*rnd}, v0
v_lshrrev_b32 v11, 6, v10
v_bfe_u32 v12, v10, 4, 2
v_and_b32 v13, 7, v10
v_bfe_u32 v14, v10, 3, 1
v_mul_u32_u24 v13, 1280, v13
v_lshl_add_u32 v13, v11, 7, v13
v_lshl_add_u32 v13, v12, 5, v13
v_lshl_add_u32 v13, v14, 2, v13
buffer_load_dword v{144+4*rnd}, v13, s[24:27], 0 offen
buffer_load_dword v{145+4*rnd}, v13, s[24:27], 0 offen offset:8
buffer_load_dword v{146+4*rnd}, v13, s[24:27], 0 offen offset:16
buffer_load_dword v{147+4*rnd}, v13, s[24:27], 0 offen offset:24""")
    k(f"""s_cmp_ge_u32 s{S_I}, 10
s_cbranch_scc1 L_ch_ldw
v_lshrrev_b32 v10, 3, v1
v_and_b32 v11, 7, v1
v_mul_u32_u24 v12, 1280, v10
v_lshl_add_u32 v12, v11, 4, v12
s_lshl_b32 s34, s{S_G}, 2
s_add_u32 s34, s34, s{SW}
s_mul_i32 s34, s34, {128*1280}
s_lshl_b32 s35, s{S_I}, 7
s_add_u32 s34, s34, s35
v_add_u32 v12, s34, v12""")
    for i in range(16):
        k(f's_mov_b32 s34, {8*i*1280}\nbuffer_load_dwordx4 {v(80+4*i,4)}, v12, s[20:23], s34 offen')
    k(f"""L_ch_ldw:
v_lshrrev_b32 v10, 4, v0
v_and_b32 v11, 15, v0
v_lshlrev_b32 v12, 13, v10
v_lshl_add_u32 v12, v11, 4, v12
s_lshl_b32 s34, s{S_HEAD}, 8
v_add_u32 v12, s34, v12""")
    for c in range(5):
        for kk in range(4):
            k(f's_mov_b32 s34, {(128*c + 32*kk)*8192}\nbuffer_load_dwordx4 {v(STG+16*c+4*kk,4)}, v12, s[16:19], s34 offen')
    k(f"""
; LDS write address: r*256 + ((c16/2 + f) % 8)*32 + (c16%2)*16, f = 2*(r%4) + ((r>>3)&1)
v_and_b32 v13, 3, v10
v_lshlrev_b32 v13, 1, v13
v_bfe_u32 v14, v10, 3, 1
v_add_u32 v13, v13, v14
v_lshrrev_b32 v14, 1, v11
v_add_u32 v13, v13, v14
v_and_b32 v13, 7, v13
v_lshlrev_b32 v13, 5, v13
v_and_b32 v14, 1, v11
v_lshl_add_u32 v13, v14, 4, v13
v_lshl_add_u32 v13, v10, 8, v13
; transposing read addresses (tiles 2sw, 2sw+1): (8g+rr)*256 + ((te + 2rr + (g&1)) % 8)*32 + 8*(i%4)
v_lshrrev_b32 v10, 4, v1
v_bfe_u32 v11, v1, 2, 2
v_lshl_add_u32 v14, v10, 3, v11
v_lshlrev_b32 v14, 8, v14
v_and_b32 v8, 3, v1
v_lshl_add_u32 v14, v8, 3, v14
v_and_b32 v10, 1, v10
v_lshl_add_u32 v10, v11, 1, v10
s_and_b32 s34, s{SW}, 3
s_lshl_b32 s34, s34, 1
v_add_u32 v10, s34, v10
v_add_u32 v11, 1, v10
v_and_b32 v10, 7, v10
v_and_b32 v11, 7, v11
v_lshl_add_u32 v8, v11, 5, v14
v_lshl_add_u32 v14, v10, 5, v14
v_lshrrev_b32 v10, 3, v1
v_and_b32 v11, 7, v1
v_lshrrev_b32 v4, 1, v11
v_lshrrev_b32 v5, 1, v10
v_add_u32 v4, v4, v5
v_and_b32 v4, 3, v4
v_lshlrev_b32 v4, 5, v4
v_and_b32 v5, 1, v11
v_lshl_add_u32 v4, v5, 4, v4
v_lshl_add_u32 v4, v10, 7, v4
s_lshl_b32 s34, s{SW}, 14
s_add_u32 s34, s34, 98304
v_add_u32 v4, s34, v4
v_lshrrev_b32 v10, 4, v1
v_bfe_u32 v11, v1, 2, 2
v_lshl_add_u32 v6, v10, 2, v11
v_lshlrev_b32 v5, 7, v6
v_add_u32 v5, s34, v5
v_and_b32 v10, 3, v1
v_lshl_add_u32 v5, v10, 3, v5
v_lshrrev_b32 v6, 1, v6""")
    for c in range(5):
        buf = (c % 2)*32768
        k(f's_waitcnt vmcnt({16 - 4*c})')
        for kk in range(4):
            k(f'ds_write_b128 v13, {v(STG+16*c+4*kk,4)} offset:{buf + kk*8192}')
        k('s_waitcnt lgkmcnt(0)\ns_barrier')
        sa, sk = k.lab('w1a'), k.lab('w1s')
        k(f's_cmp_lt_u32 s{SW}, 4\ns_cbranch_scc1 {sa}')
        for t, ad in ((0, 14), (1, 8)):
            for ksl in range(4):
                for hh in range(2):
                    k(f'ds_read_b64_tr_b16 {v(W1 + 80*t + 4*(4*c+ksl) + 2*hh, 2)}, v{ad} offset:{buf + ksl*8192 + hh*1024}')
            k('s_waitcnt lgkmcnt(0)')
        k(f's_branch {sk}\n{sa}:')
        if c == 0:
            for rnd in range(3):
                k(f'v_add_u32 v10, {256*rnd}, v0\nv_lshlrev_b32 v10, 4, v10\nv_add_u32 v10, {L_MEMF}, v10\nds_write_b128 v10, {v(144+4*rnd,4)}')
            k('s_waitcnt lgkmcnt(0)')
        if c in (1, 2, 3):
            k(f's_cmp_ge_u32 s{S_I}, 10\ns_cbranch_scc1 {sk}')
            if c == 1:
                for i in range(16): k(f'ds_write_b128 v4, {v(80+4*i,4)} offset:{i*1024}')
                k('s_waitcnt lgkmcnt(0)')
            else:
                for ct in (2*(c-2), 2*(c-2)+1):
                    k(f'v_add_u32 v10, {ct}, v6\nv_and_b32 v10, 3, v10\nv_lshl_add_u32 v10, v10, 5, v5')
                    for ks in range(4):
                        for hh in range(2):
                            k(f'ds_read_b64_tr_b16 {v(WO + 16*ct + 4*ks + 2*hh, 2)}, v10 offset:{(32*ks + 16*hh)*128}')
                    k('s_waitcnt lgkmcnt(0)')
        k(f'{sk}:')
    k('s_barrier')
    validate(k)
    k(f"""s_mov_b32 s{SSTEP}, 0
s_mov_b32 s{S_AVAIL}, 0
s_cmp_ge_u32 s{SW}, 4
s_cbranch_scc1 L_ch_pS
s_lshl_b32 s34, s{S_G}, 2
s_add_u32 s34, s34, s{SW}
s_mul_i32 s35, s34, 6144
v_add_u32 v{V_A3}, s35, v{VLANE16}
s_lshl_b32 s35, s34, 13
v_add_u32 v{V_A4}, s35, v{VLANE16}
s_lshl_b32 s35, s{SW}, 11
s_add_u32 s35, s35, {L_RED}
v_add_u32 v{V_A5}, s35, v{VLANE16}
s_lshl_b32 s35, s{SW}, 14
s_add_u32 s35, s35, {L_KV}
s_lshr_b32 s34, s34, 1
v_and_b32 v10, 1, v1
v_lshlrev_b32 v10, 4, v10
v_add_u32 v10, s34, v10
v_add_u32 v10, 16, v10
v_lshlrev_b32 v{V_A9}, 2, v10
v_cmp_gt_u32 vcc, 32, v1
v_mov_b32 v10, 0
v_mov_b32 v11, 0xf149f2ca
v_cndmask_b32 v{NEG}, v10, v11, vcc
v_mov_b32 v{NEG+1}, v{NEG}
v_mov_b32 v{NEG+2}, v{NEG}
v_mov_b32 v{NEG+3}, v{NEG}
v_add_u32 v14, s35, v{VLANE16}
s_branch L_ch_pD
L_ch_pS:
s_sub_u32 s38, s{SW}, 4               ; sw
s_lshl_b32 s34, s38, 10
v_add_u32 v{V_A3}, s34, v{VLANE16}
v_and_b32 v10, 15, v1                 ; e16
v_bfe_u32 v11, v1, 4, 1               ; gg
v_lshrrev_b32 v12, 5, v1              ; hi
s_mul_i32 s36, s{S_HEAD}, 6144
s_cmp_eq_u32 s{S_M}, 2
s_cbranch_scc1 L_ch_qst_v
; q/k unit: row = 4gg + hi + 2*(e16&1) (+8 for k); g = 2*(te%2) + (e16/4)%2; j0 = 4*(e16/8) + (e16 & 2)
v_lshl_add_u32 v13, v11, 2, v12
v_and_b32 v14, 1, v10
v_lshl_add_u32 v13, v14, 1, v13
s_lshl_b32 s34, s{S_M}, 3
v_add_u32 v13, s34, v13
v_bfe_u32 v14, v10, 2, 1
v_lshl_add_u32 v13, v14, 4, v13
v_lshlrev_b32 v13, 4, v13
v_lshrrev_b32 v14, 3, v10
v_lshl_add_u32 v13, v14, 3, v13
v_and_b32 v14, 2, v10
v_lshl_add_u32 v13, v14, 1, v13
s_lshl_b32 s34, s38, 10
s_add_u32 s34, s34, s36
v_add_u32 v{V_A4}, s34, v13
v_add_u32 v{V_A5}, 512, v{V_A4}
s_branch L_ch_qst_done
L_ch_qst_v:
; v unit: 4096 + u*1024 + clane*16 + (sw%2)*8 + hi*4; clane = 32 + gg*16 + e16 (even tile), gg*16 + e16 (odd tile)
v_lshl_add_u32 v13, v11, 4, v10
v_lshlrev_b32 v13, 4, v13
v_lshl_add_u32 v13, v12, 2, v13
s_and_b32 s34, s38, 1
s_lshl_b32 s34, s34, 3
s_lshr_b32 s35, s38, 1
s_lshl_b32 s35, s35, 10
s_add_u32 s34, s34, s35
s_add_u32 s34, s34, 4096
s_add_u32 s34, s34, s36
v_add_u32 v{V_A5}, s34, v13
v_add_u32 v{V_A4}, 512, v{V_A5}
L_ch_qst_done:
s_mov_b32 s34, 524288
buffer_load_dword v224, v{V_A4}, {WS}, s34 offen sc1
buffer_load_dword v225, v{V_A5}, {WS}, s34 offen sc1
s_mov_b32 s34, 720896
buffer_load_dword v224, v{V_A4}, {WS}, s34 offen sc1
buffer_load_dword v225, v{V_A5}, {WS}, s34 offen sc1
s_mov_b32 s34, 917504
buffer_load_dword v224, v{V_A4}, {WS}, s34 offen sc1
buffer_load_dword v225, v{V_A5}, {WS}, s34 offen sc1
s_mov_b32 s34, 1114112
buffer_load_dword v224, v{V_A4}, {WS}, s34 offen sc1
buffer_load_dword v225, v{V_A5}, {WS}, s34 offen sc1
v_mov_b32 v216, 0
v_mov_b32 v217, 0
v_mov_b32 v218, 0
v_mov_b32 v219, 0
v_mov_b32 v220, 0
v_mov_b32 v221, 0
v_mov_b32 v222, 0
v_mov_b32 v223, 0
v_bfe_u32 v10, v1, 2, 3               ; r
v_lshrrev_b32 v13, 5, v1              ; c / 4
v_and_b32 v12, 3, v1                  ; c % 4
v_lshl_add_u32 v11, v13, 2, v12       ; c
v_lshlrev_b32 v12, 4, v12
v_lshl_add_u32 v12, v13, 3, v12
v_add_u32 v12, v12, v10
v_lshlrev_b32 v12, 4, v12
s_and_b32 s35, s38, 1
s_lshl_b32 s36, s35, 10
s_add_u32 s36, s36, {L_RED}
v_add_u32 v{V_A6}, s36, v12
s_lshl_b32 s36, s{S_I}, 1
s_add_u32 s36, s36, s35               ; j = 2i + (wave&1)
s_lshr_b32 s37, s36, 3
s_lshl_b32 s37, s37, 14
s_and_b32 s36, s36, 7
s_lshl_b32 s36, s36, 10
s_add_u32 s36, s36, s37
s_mul_i32 s37, s{S_G}, 49152
s_add_u32 s36, s36, s37
v_add_u32 v{V_A7}, s36, v{VLANE16}
s_lshl_b32 s34, s{S_G}, 2
s_add_u32 s34, s34, s38
s_lshl_b32 s35, s34, 13
v_add_u32 v8, s35, v{VLANE16}
s_lshl_b32 s60, s38, 14
s_add_u32 s60, s60, {L_KV}
s_lshr_b32 s34, s34, 1
v_and_b32 v9, 1, v1
v_lshlrev_b32 v9, 4, v9
v_add_u32 v9, s34, v9
v_add_u32 v9, 16, v9
v_lshlrev_b32 v{V_A9}, 2, v9
s_cmp_ge_u32 s{S_I}, 10
s_cbranch_scc1 L_ch_nok0
s_mov_b32 s36, 1""")
    kv_wait(k, 36)
    k(f's_mov_b32 s36, {KX}\ns_mov_b32 s37, {VX}')
    kv_copies(k, 36, 37)
    k(f"""s_waitcnt vmcnt(0)
L_ch_nok0:
s_cmp_lg_u32 s{SW}, 6
s_cbranch_scc1 L_ch_pD
s_mul_i32 s36, s{S_GI}, 10
s_add_u32 s36, s36, s{S_I}            ; j
s_lshr_b32 s37, s36, 3
s_lshl_b32 s37, s37, 14
s_and_b32 s35, s36, 7
s_lshl_b32 s35, s35, 10
s_add_u32 s35, s35, s37
v_add_u32 v240, s35, v{VLANE16}""")
    for g in range(1, 8): k(f'v_add_u32 v{240+g}, 49152, v{239+g}')
    k(f"""
s_lshl_b32 s36, s36, 5                ; 32j
v_lshl_add_u32 v12, v11, 2, s36       ; d0
v_lshrrev_b32 v13, 6, v12
v_lshlrev_b32 v13, 10, v13
v_bfe_u32 v14, v12, 4, 2
v_lshl_add_u32 v14, v14, 4, v10
v_lshl_add_u32 v13, v14, 4, v13
v_bfe_u32 v14, v12, 2, 2
v_lshl_add_u32 v{V_A6}, v14, 2, v13
L_ch_pD:
v_add_u32 v{V_MF}, {L_MEMF}, v{VLANE16}
v_add_u32 v{V_MW}, {L_MEMF}, v{V_A3}""")
    par_wait(k)
    k('s_waitcnt vmcnt(0) lgkmcnt(0)')

def delay(k, clks):
    n = clks // 4
    while n > 0:
        m = min(n, 16); k(f's_nop {m-1}'); n -= m

OPT = dict(dq=256, dp=512, dm=128, warm=1, dd=320, dw=1024, da=192, clrlate=0, lite=0, bsleep=0, osleep=0, xwarm=0, ds1=2048, place=0, sx=0, sm=0, sq=0, so=64, la=8, lb=56, help=0, dk=1024, outsc=0, ncal=8, caldbg=0, calsleep=0, forcepar=0)
def interleave(k, mf, va, per=2):
    va = list(va)
    for m in mf:
        k(m)
        for _ in range(per):
            if va: k(va.pop(0))
    for x in va: k(x)

def chain_loop(k, sc, prof, tag, qdelay=0):
    T = tag
    late = []
    k(f'L_step{T}:')
    k('s_barrier')
    k(f's_cmp_lt_u32 s{SW}, 4\ns_cbranch_scc1 L_aw{T}')
    if prof: k('s_memrealtime s[80:81]')
    for i in range(10): k(f'ds_read_b128 {v(MF+4*i,4)}, v{V_MF} offset:{i*1024}')
    chain_offsets(k, 'q')
    for i in range(10):
        k(f's_waitcnt lgkmcnt({9-i})')
        k(f'v_smfmac_f32_16x16x64_bf16 {v(DA,4)}, {v(MF+4*i,4)}, {v(W1+8*i,8)}, v{V_IDX}')
        k(f'v_smfmac_f32_16x16x64_bf16 {v(DB,4)}, {v(MF+4*i,4)}, {v(W1+80+8*i,8)}, v{V_IDX}')
    k(f"""s_cmp_eq_u32 s{S_M}, 2
s_mov_b64 vcc, s[{M_EVEN}:{M_EVEN+1}]
v_permlane32_swap_b32 v{DA}, v{DA+1}
v_permlane32_swap_b32 v{DA+2}, v{DA+3}
v_add_f32 v{DA}, v{DA}, v{DA+1}
v_add_f32 v{DA+2}, v{DA+2}, v{DA+3}
v_permlane32_swap_b32 v{DB}, v{DB+1}
v_permlane32_swap_b32 v{DB+2}, v{DB+3}
v_add_f32 v{DB}, v{DB}, v{DB+1}
v_add_f32 v{DB+2}, v{DB+2}, v{DB+3}
s_cbranch_scc1 L_s1v{T}
v_cndmask_b32_dpp v224, v{DA+2}, v{DA}, vcc quad_perm:[1,0,3,2] row_mask:0xf bank_mask:0xf
v_cndmask_b32_dpp v226, v{DB+2}, v{DB}, vcc quad_perm:[1,0,3,2] row_mask:0xf bank_mask:0xf
s_mov_b64 vcc, s[{M_ODD}:{M_ODD+1}]
v_cndmask_b32_dpp v225, v{DA}, v{DA+2}, vcc quad_perm:[1,0,3,2] row_mask:0xf bank_mask:0xf
v_cndmask_b32_dpp v227, v{DB}, v{DB+2}, vcc quad_perm:[1,0,3,2] row_mask:0xf bank_mask:0xf
v_cvt_pk_bf16_f32 v12, v224, v225
v_cvt_pk_bf16_f32 v13, v226, v227
s_branch L_s1s{T}
L_s1v{T}:
v_cvt_pk_bf16_f32 v12, v{DA}, v{DA+2}
v_cvt_pk_bf16_f32 v13, v{DB}, v{DB+2}
L_s1s{T}:
buffer_store_dword v12, v{V_A4}, {WS}, s{S_QC} offen{sc}
buffer_store_dword v13, v{V_A5}, {WS}, s{S_QC} offen{sc}""")
    if prof: k('s_memrealtime s[82:83]')
    k(f"""s_cmp_eq_u32 s{SSTEP}, 63
s_cbranch_scc1 L_fin
s_cmp_ge_u32 s{S_I}, 10
s_cbranch_scc1 L_s1only{T}
s_barrier""")
    chain_offsets(k, 'r')
    clr = f"""v_mov_b32 v14, -1
buffer_store_dword v14, v{V_A4}, {WS}, s{S_QZ} offen{sc}
buffer_store_dword v14, v{V_A5}, {WS}, s{S_QZ} offen{sc}"""
    k(clr)
    for i in range(8): k(f'v_mov_b32 v{DA+i}, 0')
    KL = k.lab('kvl')
    k(f's_add_u32 s61, s{SSTEP}, 2\ns_mov_b32 s62, 1\ns_cmp_ge_u32 s{S_AVAIL}, s61\ns_cbranch_scc1 {KL}')
    k(f"""buffer_load_dword v13, v{V_A9}, {WS}, 0 offen sc1
s_waitcnt vmcnt(0)
v_readlane_b32 s34, v13, 0
v_readlane_b32 s35, v13, 1
s_min_u32 s{S_AVAIL}, s34, s35
s_cmp_ge_u32 s{S_AVAIL}, s61
s_cselect_b32 s62, 1, 0
{KL}:""")
    delay(k, OPT['dd'])
    KS = k.lab('kvs')
    k(f's_cmp_eq_u32 s62, 0\ns_cbranch_scc1 {KS}')
    if not NOKV: kv_copies(k, S_KXN, S_VXN)
    k(f'{KS}:')
    k('s_barrier')
    if prof: k('s_memrealtime s[88:89]')
    k(f's_cmp_ge_u32 s{SW}, 6\ns_cbranch_scc1 L_bw6{T}')
    for w in range(4): k(f'ds_read_b128 {v(176+4*w,4)}, v{V_A6} offset:{w*2048}')
    k(f"""s_waitcnt lgkmcnt(2)
v_pk_add_f32 v[176:177], v[176:177], v[180:181]
v_pk_add_f32 v[178:179], v[178:179], v[182:183]
s_waitcnt lgkmcnt(0)
v_pk_add_f32 v[184:185], v[184:185], v[188:189]
v_pk_add_f32 v[186:187], v[186:187], v[190:191]
v_pk_add_f32 v[176:177], v[176:177], v[184:185]
v_pk_add_f32 v[178:179], v[178:179], v[186:187]
buffer_store_dwordx4 v[176:179], v{V_A7}, {WS}, s{S_PC} offen sc1
{'s_memrealtime s[90:91]' if prof else ''}
v_mov_b32 v180, -1
v_mov_b32 v181, -1
v_mov_b32 v182, -1
v_mov_b32 v183, -1
buffer_store_dwordx4 v[180:183], v{V_A7}, {WS}, s{S_PZ} offen sc1
""")
    k(f's_branch L_b3{T}\nL_bw6{T}:')
    k(f's_cmp_lg_u32 s{SW}, 6\ns_cbranch_scc1 L_b3{T}')
    delay(k, OPT['dp'])
    if prof: k('s_memrealtime s[90:91]')
    spins = []
    for g in range(8): k(f'buffer_load_dwordx4 {v(176+4*g,4)}, v{240+g}, {WS}, s{S_PC} offen sc1')
    PR, PC, PB = k.lab('pps'), k.lab('ppc'), k.lab('ppb')
    k(f's_mov_b32 s39, 0\n{PC}:')
    for g in range(8):
        k(f's_waitcnt vmcnt({7-g})')
        if g == 0: k('v_mov_b32 v224, v176')
        else:
            k(f'v_max_u32 v224, v224, v{176+4*g}')
            k(f'v_pk_add_f32 v[176:177], v[176:177], {v(176+4*g,2)}\nv_pk_add_f32 v[178:179], v[178:179], {v(178+4*g,2)}')
    k(f'v_cmp_eq_u32 vcc, -1, v224\ns_cbranch_vccnz {PR}\n{PB}:')
    spins.append((PR, PC, PB, [f'buffer_load_dwordx4 {v(176+4*gg,4)}, v{240+gg}, {WS}, s{S_PC} offen sc1' for gg in range(8)], OPT['sx']))
    if prof: k('s_memrealtime s[92:93]\ns_mov_b32 s65, s39')
    k(f"""v_cvt_pk_bf16_f32 v176, v176, v177
v_cvt_pk_bf16_f32 v177, v178, v179
buffer_store_dword v176, v{V_A6}, {WS}, s{S_MEMN} offen{sc}
buffer_store_dword v177, v{V_A6}, {WS}, s{S_MEMN} offen offset:128{sc}
L_b3{T}:
s_barrier""")
    def mem_poll(sleep):
        A, D = k.lab('mA'), k.lab('mD')
        k(f's_cmp_ge_u32 s{SW}, 6\ns_cbranch_scc1 {A}')
        for n in (3, 2):
            srcs = [S_MEMN, S_MEMN4, S_MEMN8][:n]
            for i, sr in enumerate(srcs): k(f'buffer_load_dwordx4 {v(176+4*i,4)}, v{V_A3}, {WS}, s{sr} offen sc1')
            k('s_mov_b32 s39, 0')
            for i, sr in enumerate(srcs):
                R_, C_, B_ = k.lab('pms'), k.lab('pmc'), k.lab('pmb')
                k(f"""{C_}:
s_waitcnt vmcnt({n-1-i})
v_max3_u32 v224, v{176+4*i}, v{177+4*i}, v{178+4*i}
v_max_u32 v224, v224, v{179+4*i}
v_cmp_eq_u32 vcc, -1, v224
s_cbranch_vccnz {R_}
{B_}:
ds_write_b128 v{V_MW}, {v(176+4*i,4)} offset:{i*4096}""")
                spins.append((R_, C_, B_, [f'buffer_load_dwordx4 {v(176+4*ii,4)}, v{V_A3}, {WS}, s{srcs[ii]} offen sc1' for ii in range(i, n)], OPT['sm'] if sleep == 0 else OPT['so']))
            if n == 3: k(f's_branch {D}\n{A}:')
        k(f'{D}:')
    if prof: k('s_memrealtime s[94:95]')
    delay(k, OPT['dm'])
    mem_poll(0)
    if prof: k('s_mov_b32 s66, s39')
    KZ = k.lab('kvz')
    k(f's_cmp_lg_u32 s62, 0\ns_cbranch_scc1 {KZ}')
    kv_wait(k, 61)
    if not NOKV: kv_copies(k, S_KXN, S_VXN)
    k(f's_waitcnt vmcnt(0)\n{KZ}:')
    k(f"""s_cmp_lg_u32 s{SW}, 6
s_cbranch_scc1 L_next{T}
v_mov_b32 v14, -1
buffer_store_dword v14, v{V_A6}, {WS}, s{S_MEMZ} offen{sc}
buffer_store_dword v14, v{V_A6}, {WS}, s{S_MEMZ} offen offset:128{sc}
L_next{T}:""")
    if prof:
        k('s_memrealtime s[96:97]\ns_waitcnt lgkmcnt(0)\ns_mov_b32 m0, s40')
        pA, pD = k.lab('pfA'), k.lab('pfD')
        k(f's_cmp_lt_u32 s{SW}, 4\ns_cbranch_scc1 {pA}')
        for n, r in enumerate((80, 82, 88, 90, 92, 94, 96)): k(f'v_writelane_b32 v{248+n}, s{r}, m0')
        k('s_lshl_b32 s65, s65, 16\ns_or_b32 s65, s65, s66\nv_writelane_b32 v255, s65, m0')
        k(f's_branch {pD}\n{pA}:')
        for n, r in enumerate((80, 84, 86, 96)): k(f'v_writelane_b32 v{252+n}, s{r}, m0')
        pass
        k(f'{pD}:')
    if OPT['lite']:
        l1, l2 = k.lab('lt'), k.lab('lt')
        k(f"""s_cmp_eq_u32 s{SSTEP}, {OPT['la']}
s_cbranch_scc0 {l1}
s_memrealtime s[90:91]
s_memtime s[94:95]
{l1}:
s_cmp_eq_u32 s{SSTEP}, {OPT['lb']}
s_cbranch_scc0 {l2}
s_memrealtime s[92:93]
s_memtime s[96:97]
{l2}:""")
    if OPT['lite'] > 1:
        k(f's_memrealtime s[88:89]\ns_waitcnt lgkmcnt(0)\ns_mov_b32 m0, s{SSTEP}\nv_writelane_b32 v254, s88, m0')
    if DBGST:
        l4 = k.lab('d4')
        k(f's_cmp_lg_u32 s{SSTEP}, 4\ns_cbranch_scc1 {l4}')
        dstamp(k, 13, 0, 0, 6)
        k(f'{l4}:')
    k(f"""s_waitcnt lgkmcnt(0)
s_add_u32 s{SSTEP}, s{SSTEP}, 1
s_branch L_step{T}""")
    k(f'L_s1only{T}:')
    chain_offsets(k, 'r')
    k('s_mov_b32 s62, 1')
    k(f"""v_mov_b32 v14, -1
buffer_store_dword v14, v{V_A4}, {WS}, s{S_QZ} offen{sc}
buffer_store_dword v14, v{V_A5}, {WS}, s{S_QZ} offen{sc}""")
    for i in range(8): k(f'v_mov_b32 v{DA+i}, 0')
    delay(k, OPT['ds1'])
    mem_poll(1)
    k(f's_branch L_next{T}')
    k(f'L_aw{T}:')
    chain_offsets(k, 'qr')
    k(f"""s_cmp_ge_u32 s{S_I}, 10
s_cbranch_scc1 L_aidle{T}
s_cmp_eq_u32 s{SSTEP}, 63
s_cbranch_scc1 L_fin""")
    if prof: k('s_memrealtime s[80:81]')
    delay(k, OPT['da'])
    for i in range(8): k(f'ds_read_b128 {v(KXR+4*i,4)}, v14 offset:{i*1024}')
    k('s_waitcnt lgkmcnt(0)')
    for i in range(8): k(f'ds_read_b128 {v(VXR+4*i,4)}, v14 offset:{8192 + i*1024}')
    k('s_waitcnt lgkmcnt(0)')
    k('s_barrier')
    delay(k, OPT['dq'])
    LQ, LQD = k.lab('pq'), k.lab('pqd')
    k('s_mov_b32 s39, 0')
    for ks in range(4): k(f'buffer_load_dwordx4 {v(QK+4*ks,4)}, v{V_A3}, {WS}, s{S_QC} offen offset:{ks*1024} sc1')
    for u in range(2): k(f'buffer_load_dwordx4 {v(VM+4*u,4)}, v{V_A3}, {WS}, s{S_QC4} offen offset:{u*1024} sc1')
    k('s_waitcnt vmcnt(2)')
    LQM = k.lab('pqm')
    k(f'{LQM}:')
    mf = []
    for ks in range(4): mf.append(f'v_mfma_f32_16x16x32_bf16 {v(S0,4)}, {v(KXR+4*ks,4)}, {v(QK+4*ks,4)}, {"0" if ks == 0 else v(S0,4)}')
    for ks in range(4): mf.append(f'v_mfma_f32_16x16x32_bf16 {v(S1,4)}, {v(KXR+16+4*ks,4)}, {v(QK+4*ks,4)}, {"0" if ks == 0 else v(S1,4)}')
    for ks in range(4): mf.append(f'v_mfma_f32_16x16x32_bf16 {v(SM,4)}, {v(QK+4*ks,4)}, {v(QK+4*ks,4)}, {v(NEG,4) if ks == 0 else v(SM,4)}')
    chk = [f'v_max3_u32 v244, v{QK}, v{QK+1}, v{QK+2}'] + [f'v_max3_u32 v244, v244, v{QK+3+2*n}, v{QK+4+2*n}' for n in range(6)] + [f'v_max_u32 v244, v244, v{QK+15}']
    interleave(k, mf[:4], chk)
    k(mf[4]); k('v_cmp_eq_u32 vcc, -1, v244')
    QR = k.lab('pqr')
    k(mf[5]); k(f's_cbranch_vccnz {QR}')
    qspin = (QR, LQM)
    LQX = k.lab('pqx')
    k(f'{LQX}:')
    k(mf[6]); k(mf[7]); k(mf[8])
    k(f'v_max3_f32 v244, v{S0}, v{S0+1}, v{S0+2}')
    k(mf[9]); k(mf[10])
    k(f'v_max3_f32 v244, v244, v{S0+3}, v{S1}')
    k(mf[11])
    k(f"""v_max3_f32 v244, v244, v{S1+1}, v{S1+2}
v_max_f32 v244, v244, v{S1+3}""")
    if prof: k('s_memrealtime s[84:85]')
    k(f"""v_max3_f32 v244, v244, v{SM}, v{SM+1}
v_max3_f32 v244, v244, v{SM+2}, v{SM+3}
v_mov_b32 v245, v244
v_permlane16_swap_b32 v244, v245
v_max_f32 v244, v244, v245
v_mov_b32 v245, v244
v_permlane32_swap_b32 v244, v245
v_max_f32 v244, v244, v245
v_mul_f32 v244, s{S_NC}, v244""")
    for i in range(12): k(f'v_fma_f32 v{S0+i}, v{S0+i}, s{S_C}, v244')
    for i in range(12): k(f'v_exp_f32 v{S0+i}, v{S0+i}')
    k(f"""v_cvt_pk_bf16_f32 v{PX}, v{S0}, v{S0+1}
v_cvt_pk_bf16_f32 v{PX+1}, v{S0+2}, v{S0+3}
v_cvt_pk_bf16_f32 v{PX+2}, v{S1}, v{S1+1}
v_cvt_pk_bf16_f32 v{PX+3}, v{S1+2}, v{S1+3}
v_cvt_pk_bf16_f32 v{PM}, v{SM}, v{SM+2}
v_cvt_pk_bf16_f32 v{PM+1}, v{SM+1}, v{SM+3}""")
    mf = [f'v_mfma_f32_16x16x32_bf16 {v(O+4*te,4)}, {v(VXR+4*te,4)}, {v(PX,4)}, 0' for te in range(8)]
    va = [f'v_mov_b32 v188, v{PM}', f'v_mov_b32 v189, v{PM+1}', f'v_mov_b32 v{PM2}, 0', f'v_mov_b32 v{PM2+1}, 0',
          f'v_add_f32 v245, v{S0}, v{S0+1}', f'v_add_f32 v246, v{S0+2}, v{S0+3}',
          f'v_permlane32_swap_b32 v188, v{PM2}', f'v_permlane32_swap_b32 v189, v{PM2+1}',
          f'v_add_f32 v245, v245, v{S1}', f'v_add_f32 v246, v246, v{S1+1}', f'v_add_f32 v245, v245, v{S1+2}', f'v_add_f32 v246, v246, v{S1+3}',
          f'v_add_f32 v245, v245, v{SM}', f'v_add_f32 v246, v246, v{SM+1}', f'v_add_f32 v245, v245, v{SM+2}', f'v_add_f32 v246, v246, v{SM+3}']
    interleave(k, mf, va)
    LV, LVD = k.lab('pv'), k.lab('pvd')
    k(f's_mov_b32 s39, 0\ns_waitcnt vmcnt(0)\n{LV}:')
    umax_check(k, range(VM, VM+8), 247)
    k(f's_cbranch_vccz {LVD}')
    for u in range(2): k(f'buffer_load_dwordx4 {v(VM+4*u,4)}, v{V_A3}, {WS}, s{S_QC4} offen offset:{u*1024} sc1')
    k(f"""s_waitcnt vmcnt(0)
s_add_u32 s39, s39, 1
s_cmp_lt_u32 s39, s{SLIM}
s_cbranch_scc1 {LV}
s_mov_b32 s{SLIM}, 0
{LVD}:""")
    mf = []
    for te in range(8):
        u, t4 = te // 4, te % 4
        a = VM + 4*u + 2*(t4 // 2); b = PM if t4 % 2 == 0 else PM2
        mf.append(f'v_mfma_f32_16x16x16_bf16 {v(O+4*te,4)}, {v(a,2)}, {v(b,2)}, {v(O+4*te,4)}')
    def cv(te): return [f'v_cvt_pk_bf16_f32 v{OB+4*(te//2)+2*(te%2)}, v{O+4*te}, v{O+4*te+1}', f'v_cvt_pk_bf16_f32 v{OB+4*(te//2)+2*(te%2)+1}, v{O+4*te+2}, v{O+4*te+3}']
    va = ['v_add_f32 v245, v245, v246', 'v_mov_b32 v246, v245', 's_nop 0', 's_nop 0', 'v_permlane16_swap_b32 v245, v246', 'v_add_f32 v245, v245, v246',
          'v_mov_b32 v246, v245', 's_nop 0']
    interleave(k, mf[:4], va)
    k('v_permlane32_swap_b32 v245, v246')
    k(mf[4]); k('v_add_f32 v245, v245, v246'); k(cv(0)[0])
    k(mf[5]); k(cv(0)[1]); k('v_rcp_f32 v245, v245')
    k(mf[6]); k(cv(1)[0]); k(cv(1)[1])
    k(mf[7]); k(cv(2)[0]); k(cv(2)[1])
    mo = [[f'v_mfma_f32_16x16x32_bf16 {v(OA+4*ct,4)}, {v(WO+16*ct+4*ks,4)}, {v(OB+4*ks,4)}, {"0" if ks == 0 else v(OA+4*ct,4)}' for ct in range(4)] for ks in range(4)]
    interleave(k, mo[0], cv(3) + ['v_mov_b32_dpp v246, v245 row_shr:8 row_mask:0xf bank_mask:0xc'] + cv(4) + cv(5))
    interleave(k, mo[1], cv(6) + cv(7))
    interleave(k, mo[2], [])
    interleave(k, mo[3], [])
    for p in range(2):
        for i in range(4):
            k(f'v_mul_f32_dpp v{O+4*p+i}, v{OA+8*p+i}, v245 quad_perm:[0,1,2,3] row_mask:0xf bank_mask:0x3')
        for i in range(4):
            k(f'v_mul_f32_dpp v{O+4*p+i}, v{OA+8*p+4+i}, v246 row_shr:8 row_mask:0xf bank_mask:0xc')
        k(f'ds_write_b128 v{V_A5}, {v(O+4*p,4)} offset:{p*1024}')
    k('s_waitcnt lgkmcnt(0)')
    if prof: k('s_memrealtime s[86:87]')
    k('s_barrier')
    k(f's_barrier\ns_branch L_next{T}')
    def emit_spin(R_, C_, B_, loads, slp):
        k(f"""{R_}:
s_add_u32 s39, s39, 1
s_cmp_ge_u32 s39, s{SLIM}
s_cbranch_scc1 {R_}_t""")
        delay(k, slp)
        for x in loads: k(x)
        k(f's_branch {C_}\n{R_}_t:\ns_mov_b32 s{SLIM}, 0\ns_waitcnt vmcnt(0)\ns_branch {B_}')
    QR, LQM = qspin
    k(f"""{QR}:
s_add_u32 s39, s39, 1
s_cmp_ge_u32 s39, s{SLIM}
s_cbranch_scc1 {QR}_t""")
    delay(k, OPT['sq'])
    for ks in range(4): k(f'buffer_load_dwordx4 {v(QK+4*ks,4)}, v{V_A3}, {WS}, s{S_QC} offen offset:{ks*1024} sc1')
    k(f's_waitcnt vmcnt(0)\ns_branch {LQM}\n{QR}_t:\ns_mov_b32 s{SLIM}, 0\ns_branch {LQX}')
    late.append(lambda: [emit_spin(*x) for x in spins])
    k(f"""L_aidle{T}:
s_cmp_eq_u32 s{S_I}, 10
s_cbranch_scc0 L_awarm{T}""")
    def qloads():
        for ks in range(4): k(f'buffer_load_dwordx4 {v(QK+4*ks,4)}, v{V_A3}, {WS}, s{S_QC} offen offset:{ks*1024} sc1')
        for u in range(2): k(f'buffer_load_dwordx4 {v(VM+4*u,4)}, v{V_A3}, {WS}, s{S_QC4} offen offset:{u*1024} sc1')
    delay(k, OPT['dk'])
    poll(k, 'pk' + T, qloads, lambda: umax_check(k, list(range(QK, QK+16)) + list(range(VM, VM+8)), 244), sleep=2)
    for ks in range(4): k(f'buffer_store_dwordx4 {v(QK+4*ks,4)}, v{V_A3}, {WS}, s{S_KP} offen offset:{ks*1024} sc1')
    for u in range(2): k(f'buffer_store_dwordx4 {v(VM+4*u,4)}, v{V_A3}, {WS}, s{S_KP4} offen offset:{u*1024} sc1')
    k(f"""s_waitcnt vmcnt(0)
s_lshl_b32 s34, s{S_G}, 2
s_add_u32 s34, s34, s{SW}
s_lshl_b32 s34, s34, 2
s_add_u32 s34, s34, {F_KVM}
s_add_u32 s35, s{SSTEP}, 1
v_mov_b32 v244, s34
v_mov_b32 v245, s35
s_mov_b64 exec, 1
buffer_store_dword v245, v244, {WS}, 0 offen sc1
s_mov_b64 exec, -1
s_cmp_eq_u32 s{SSTEP}, 63
s_cbranch_scc1 L_fin
s_branch L_next{T}
L_awarm{T}:
s_cmp_eq_u32 s{SSTEP}, 63
s_cbranch_scc1 L_fin""")
    if OPT['warm']:
        W = k.lab('wsk')
        k(f's_add_u32 s36, s{SSTEP}, 3\ns_cmp_gt_u32 s36, 64\ns_cbranch_scc1 {W}')
        delay(k, OPT['dw'])
        k(f"""buffer_load_dword v13, v{V_A9}, {WS}, 0 offen sc1
s_waitcnt vmcnt(0)
v_readlane_b32 s34, v13, 0
v_readlane_b32 s35, v13, 1
s_min_u32 s34, s34, s35
s_cmp_lt_u32 s34, s36
s_cbranch_scc1 {W}
s_add_u32 s36, s{SSTEP}, 2
s_lshl_b32 s36, s36, 18
s_add_u32 s37, s36, {VX}
s_add_u32 s36, s36, {KX}""")
        kv_loads(k, 36, 37)
        k(f'{W}:')
    k(f's_branch L_next{T}')
    for f in late: f()

def chain_fin(k, prof):
    k('L_fin:')
    dstamp(k, 5, 0, 0)
    if OPT['lite']:
        k(f"""s_sub_u32 s34, s92, s90
v_mov_b32 v12, s34
s_lshl_b32 s34, s{SX}, 5
s_add_u32 s34, s34, s{SR}
s_lshl_b32 s34, s34, 3
s_add_u32 s34, s34, s{SW}
s_lshl_b32 s34, s34, 2
s_add_u32 s34, s34, 0x8800000
v_mov_b32 v10, s34
buffer_store_dword v12, v10, {WS}, 0 offen
s_sub_u32 s34, s96, s94
v_mov_b32 v12, s34
v_add_u32 v10, 0x10000, v10
buffer_store_dword v12, v10, {WS}, 0 offen""")
    if OPT['lite'] > 1:
        k(f"""s_lshl_b32 s34, s{SX}, 5
s_add_u32 s34, s34, s{SR}
s_lshl_b32 s34, s34, 3
s_add_u32 s34, s34, s{SW}
s_lshl_b32 s34, s34, 8
s_add_u32 s34, s34, 0x8a00000
v_lshlrev_b32 v10, 2, v1
v_add_u32 v10, s34, v10
buffer_store_dword v254, v10, {WS}, 0 offen""")
    if prof:
        k(f"""s_lshl_b32 s34, s{SX}, 5
s_add_u32 s34, s34, s{SR}
s_lshl_b32 s34, s34, 3
s_add_u32 s34, s34, s{SW}
s_lshl_b32 s34, s34, 11
s_add_u32 s34, s34, 0x8000000
v_lshlrev_b32 v10, 2, v1
v_add_u32 v10, s34, v10
s_cmp_lt_u32 s{SW}, 4
s_cbranch_scc1 L_fin0""")
        for n in range(8): k(f'buffer_store_dword v{248+n}, v10, {WS}, 0 offen offset:{n*256}')
        k('s_branch L_end\nL_fin0:')
        for n in range(4): k(f'buffer_store_dword v{252+n}, v10, {WS}, 0 offen offset:{n*256}')
    k('s_branch L_end')

def build(prof=False, roles=('chain',), keepflags=False, qdelay=0):
    k = Kern()
    import brole, proj, attout
    brole.validate = proj.validate = attout.validate = validate
    attout.calibrate = calibrate
    attout.CALSLEEP = OPT['calsleep']
    brole.help_prefetch = attout.help_prefetch = help_prefetch if OPT['help'] else (lambda k: None)
    start_phase(k, keepflags)
    on = lambda r: r in roles
    R = lambda r, l: l if on(r) else 'L_end'
    k(f'''s_cmp_ge_u32 s{SX}, 4
s_cbranch_scc1 L_hi
s_cmp_lt_u32 s{SR}, 24
s_cbranch_scc1 {R('chain', 'L_chain')}
s_lshl_b32 s41, s{SX}, 3
s_add_u32 s41, s41, s{SR}
s_add_u32 s41, s41, 8
s_branch {R('b', 'L_brole')}
L_hi:
s_sub_u32 s34, s{SX}, 4
s_mul_i32 s41, s34, 12
s_add_u32 s41, s41, s{SR}
s_cmp_lt_u32 s{SR}, 12
s_cbranch_scc1 {R('proj', 'L_proj')}
s_lshl_b32 s41, s34, 3
s_add_u32 s41, s41, s{SR}
s_sub_u32 s41, s41, 12
s_cmp_lt_u32 s{SR}, 20
s_cbranch_scc1 {R('b', 'L_brole')}
s_mul_i32 s41, s34, 10
s_add_u32 s41, s41, s{SR}
s_sub_u32 s41, s41, 20
s_cmp_lt_u32 s{SR}, 30
s_cbranch_scc1 {R('out', 'L_out')}
s_lshl_b32 s41, s34, 1
s_add_u32 s41, s41, s{SR}
s_sub_u32 s41, s41, 30
s_branch {R('att', 'L_att')}''')
    if on('proj'): proj_role(k)
    if on('att'): att_role(k)
    if on('out'): out_role(k)
    if on('b'): b_role(k)
    if on('chain'):
        chain_prologue(k)
        mark(k, 1)
        dstamp(k, 3, 0, 0)
        k(f's_cmp_lg_u32 s{SSLOW}, 0\ns_cbranch_scc1 L_stepS')
        chain_loop(k, '', prof, 'F', qdelay)
        chain_loop(k, ' sc1', False, 'S')
        chain_fin(k, prof)
    k('L_end:')
    dstamp(k, 9, 7, 20)
    dstamp(k, 11, 4, 12)
    dstamp(k, 7, 4, 0)
    if TL:
        k(f'''s_memrealtime s[82:83]
s_waitcnt lgkmcnt(0)
v_mov_b32 v20, s84
v_mov_b32 v21, s85
v_mov_b32 v22, s86
v_mov_b32 v23, s87
v_mov_b32 v24, s82
s_lshl_b32 s34, s{SX}, 5
s_add_u32 s34, s34, s{SR}
s_lshl_b32 s34, s34, 3
s_add_u32 s34, s34, s{SW}
s_lshl_b32 s34, s34, 5
s_add_u32 s34, s34, 0x8900000
v_mov_b32 v25, s34
s_mov_b64 exec, 1
buffer_store_dwordx4 v[20:23], v25, {WS}, 0 offen
buffer_store_dword v24, v25, {WS}, 0 offen offset:16''')
    k('L_exit:\ns_endpgm')
    body, nops = k.text()
    head = f'''; @launch grid=(256,1,1) block=(512,1,1) lds=163840
.amdgcn_target "amdgcn-amd-amdhsa--gfx950"
.text
.globl {NAME}
.p2align 8
.type {NAME},@function
{NAME}:
'''
    tail = f'''
.section .rodata,"a"
.p2align 6
.amdhsa_kernel {NAME}
  .amdhsa_next_free_vgpr 256
  .amdhsa_next_free_sgpr 102
  .amdhsa_accum_offset 256
  .amdhsa_group_segment_fixed_size 0
  .amdhsa_kernarg_size 104
  .amdhsa_user_sgpr_count 2
  .amdhsa_user_sgpr_kernarg_segment_ptr 1
  .amdhsa_system_sgpr_workgroup_id_x 1
.end_amdhsa_kernel
'''
    return head + '\n'.join(body) + tail, nops

if __name__ == '__main__':
    out = sys.argv[1]
    opts = dict(a.split('=') for a in sys.argv[2:] if '=' in a)
    if 'kvsc' in opts: KVSC = {'p': '', 's': ' sc1', 'n': ' nt', '0': ' sc0'}[opts['kvsc']]
    NOKV = 'nokv' in sys.argv[2:]
    TL = 'tl' in sys.argv[2:]
    DBGST = 'dbgst' in sys.argv[2:]
    import brole, proj, attout
    brole.mark = proj.mark = attout.mark = mark
    brole.BMODE = int(opts.get('bmode', 0))
    for o in OPT:
        if o in opts: OPT[o] = int(opts[o])
    proj.LITE = OPT['lite']; proj.PMARK = int(opts.get('pmark', -1))
    brole.OUTSC = attout.OUTSC = {0: '', 1: ' sc1', 2: ' nt', 3: ' sc0 sc1'}[OPT['outsc']]
    brole.SLEEP = OPT['bsleep']; attout.OSLEEP = OPT['osleep']; attout.XWARM = OPT['xwarm']
    txt, nops = build(prof='prof' in sys.argv[2:], keepflags='keepflags' in sys.argv[2:], qdelay=int(opts.get('qdelay', 0)), roles=opts.get('roles', 'chain').split(','))
    open(out, 'w').write(txt)
    print('wrote', out, 'lines', txt.count('\n'), 'nop states', nops)
```

```python
from dsl import v, s
from layout import *
WS = 's[8:11]'
SX, SR, SW, SLIM = 28, 29, 30, 33
PW = 16
ACC2 = [176, 192]
STG2 = [208, 228]
XFR = [12, 248, 252]
XBUF = 41472

def srd(k, base, ptr, nbytes):
    k(f'''s_mov_b32 s{base}, s{ptr}
s_and_b32 s{base+1}, s{ptr+1}, 0xffff
s_mov_b32 s{base+2}, {nbytes:#x}
s_mov_b32 s{base+3}, 0x20000''')

mark = lambda k, n: None
LITE = 0
PMARK = -1
EARLY = 3
SELFP = 1
from_attout = None
def proj_role(k):
    from attout import flag_wait
    SP, SM_, SHP, SSEG, SOUT, SFLAG = 41, 42, 43, 40, 44, 45
    k(f'''
L_proj:
s_lshr_b32 s{SM_}, s{SP}, 4
s_and_b32 s{SHP}, s{SP}, 15
s_lshl_b32 s34, s{SM_}, 3
s_add_u32 s34, s34, 16
s_load_dwordx2 s[4:5], s[0:1], s34
s_load_dwordx2 s[6:7], s[0:1], 0
s_waitcnt lgkmcnt(0)''')
    srd(k, 16, 4, 640*8192)
    srd(k, 20, 6, 2048*1280)
    k('v_lshlrev_b32 v2, 4, v0')
    for i in range(5):
        k(f'''v_add_u32 v10, {512*i}, v0
v_mul_u32_u24 v11, 52429, v10
v_lshrrev_b32 v11, 22, v11
v_add_u32 v11, v11, v10
v_lshlrev_b32 v{3+i}, 4, v11''')
    WS0 = 83968
    k(f's_cmp_lg_u32 s{SM_}, 0\ns_cselect_b32 s49, {SELFP}, 0\ns_mul_i32 s50, s49, 40960')
    def xload(sg, seg):
        for i in range(5):
            k(f's_add_u32 s34, s50, {seg*40960 + i*8192}\nbuffer_load_dwordx4 {v(STG2[sg]+4*i,4)}, v2, s[20:23], s34 offen')
    xload(0, 0)
    k(f'''v_lshrrev_b32 v10, 5, v0
v_and_b32 v11, 31, v0
v_lshlrev_b32 v12, 13, v10
v_lshl_add_u32 v12, v11, 4, v12
s_lshl_b32 s34, s{SHP}, 9
v_add_u32 v12, s34, v12''')
    raw = lambda c: PW + 16*(c + 1)
    for c in range(10):
        for kk in range(4):
            k(f's_mov_b32 s34, {(64*c + 16*kk)*8192}\nbuffer_load_dwordx4 {v(raw(c)+4*kk,4)}, v12, s[16:19], s34 offen')
    xload(1, 1)
    k(f'''v_and_b32 v13, 3, v10
v_lshlrev_b32 v13, 1, v13
v_lshrrev_b32 v14, 1, v11
v_add_u32 v13, v13, v14
v_and_b32 v13, 15, v13
v_lshlrev_b32 v13, 5, v13
v_and_b32 v14, 1, v11
v_lshl_add_u32 v13, v14, 4, v13
v_lshl_add_u32 v13, v10, 9, v13
v_add_u32 v13, {WS0}, v13
v_lshrrev_b32 v10, 4, v1
v_lshrrev_b32 v11, 1, v10             ; g2
v_and_b32 v10, 1, v10                 ; nh
v_bfe_u32 v14, v1, 2, 2               ; rr
v_lshl_add_u32 v11, v11, 3, v14
v_lshlrev_b32 v11, 9, v11
v_lshl_add_u32 v10, v14, 1, v10
s_lshl_b32 s34, s{SW}, 1
v_add_u32 v10, s34, v10
v_and_b32 v10, 15, v10
v_lshl_add_u32 v11, v10, 5, v11
v_and_b32 v10, 3, v1
v_lshl_add_u32 v14, v10, 3, v11
v_add_u32 v14, {WS0}, v14
s_lshr_b32 s34, s{SW}, 2
s_lshl_b32 s35, s{SHP}, 1
s_add_u32 s34, s34, s35               ; head
s_lshl_b32 s34, s34, 13
s_and_b32 s35, s{SW}, 3               ; e group
v_lshrrev_b32 v10, 5, v1              ; hi
v_and_b32 v11, 15, v1
v_lshl_add_u32 v11, v10, 4, v11
v_lshlrev_b32 v11, 4, v11
v_bfe_u32 v10, v1, 4, 1
s_cmp_eq_u32 s{SM_}, 2
s_cbranch_scc1 L_pj_ov
s_lshl_b32 s35, s35, 10
v_lshl_add_u32 v11, v10, 12, v11
s_branch L_pj_od
L_pj_ov:
s_lshl_b32 s35, s35, 11
v_lshl_add_u32 v11, v10, 10, v11
L_pj_od:
s_add_u32 s34, s34, s35
v_add_u32 v8, s34, v11
s_add_u32 s35, s{SM_}, 2
s_cmp_eq_u32 s{SM_}, 0
s_cselect_b32 s35, 3, s{SM_}
s_lshl_b32 s{SOUT}, s35, 24
s_lshl_b32 s{SFLAG}, s{SP}, 2
v_and_b32 v10, 31, v1
v_mul_u32_u24 v10, 1296, v10
v_lshrrev_b32 v11, 5, v1
v_lshl_add_u32 v9, v11, 4, v10
s_waitcnt vmcnt(45)''')
    for i in range(5): k(f'ds_write_b128 v{3+i}, {v(STG2[0]+4*i,4)}')
    k('s_waitcnt lgkmcnt(0)')
    xload(0, 2)
    A0 = ACC2[1]
    def wr(c):
        k(f's_waitcnt vmcnt({46 - 4*c})')
        for kk in range(4): k(f'ds_write_b128 v13, {v(raw(c)+4*kk,4)} offset:{(c % 2)*32768 + kk*8192}')
    wr(0)
    k('s_waitcnt lgkmcnt(0)\ns_barrier')
    for c in range(10):
        buf = (c % 2)*32768
        if c == PMARK: mark(k, 2)
        if c + 1 < 10: wr(c + 1)
        for ksl in range(4):
            for hh in range(2):
                k(f'ds_read_b64_tr_b16 {v(PW + 4*(4*c+ksl) + 2*hh, 2)}, v14 offset:{buf + ksl*8192 + hh*2048}')
        for half in range(2):
            for q in range(2): k(f'ds_read_b128 {v(XFR[1+q],4)}, v9 offset:{(4*c + 2*half + q)*32}')
            k('s_waitcnt lgkmcnt(0)')
            lv, ld = k.lab('p0v'), k.lab('p0d')
            k(f's_cmp_eq_u32 s{SM_}, 2\ns_cbranch_scc1 {lv}')
            for t in ('K', 'V'):
                if t == 'V': k(f's_branch {ld}\n{lv}:')
                for q in range(2):
                    ks = 4*c + 2*half + q
                    w, x = v(PW+4*ks, 4), v(XFR[1+q], 4)
                    k(f'v_mfma_f32_32x32x16_bf16 {v(A0,16)}, {w if t == "K" else x}, {x if t == "K" else w}, {"0" if ks == 0 else v(A0,16)}')
            k(f'{ld}:')
        k('s_barrier')
    validate(k)
    mark(k, 1)
    def pack_ops(typ, acc):
        order = [(0, 0), (0, 1), (1, 0), (1, 1), (2, 0), (2, 1), (3, 0), (3, 1)] if typ == 'K' else [(0, 0), (0, 1), (2, 0), (2, 1), (1, 0), (1, 1), (3, 0), (3, 1)]
        return [f'v_cvt_pk_bf16_f32 v{acc+n}, v{acc+4*a+2*h}, v{acc+4*a+2*h+1}' for n, (a, h) in enumerate(order)]
    def flag(val):
        lab = k.lab('pjf')
        k(f'''s_cmp_lg_u32 s{SW}, 0
s_cbranch_scc1 {lab}
v_mov_b32 v10, s{SFLAG}
v_mov_b32 v11, {val}
s_mov_b64 exec, 1
buffer_store_dword v11, v10, {WS}, 0 offen sc1
s_mov_b64 exec, -1
{lab}:''')
    k(f's_cmp_eq_u32 s{SM_}, 2\ns_cbranch_scc1 L_pj_s0V')
    for typ in ('K', 'V'):
        k(f'L_pj_s0{typ}:')
        for f in pack_ops(typ, A0): k(f)
        k(f'''s_lshl_b32 s47, s49, 18
s_add_u32 s47, s47, s{SOUT}
buffer_store_dwordx4 v[{A0}:{A0+3}], v8, {WS}, s47 offen sc1
buffer_store_dwordx4 v[{A0+4}:{A0+7}], v8, {WS}, s47 offen offset:512 sc1
s_waitcnt vmcnt(2)''')
        for i in range(5): k(f'ds_write_b128 v{3+i}, {v(STG2[1]+4*i,4)} offset:{XBUF}')
        k('s_waitcnt lgkmcnt(0)')
        xload(1, 3)
        if SELFP:
            nw = k.lab('pjw')
            k(f'''s_cmp_eq_u32 s49, 0
s_cbranch_scc1 {nw}
s_lshl_b32 s34, s{SHP}, 2
s_add_u32 s34, s34, s{SM_}
s_sub_u32 s34, s34, 1
s_lshl_b32 s34, s34, 2
s_add_u32 s34, s34, {F_KV0}
v_lshlrev_b32 v10, 3, v1
v_add_u32 v10, s34, v10
s_mov_b32 s36, 1''')
            flag_wait(k, 'pjw', 10, 2, 36, tmp=11, sleep=2)
            k(f'{nw}:')
        k('s_waitcnt vmcnt(5)\ns_barrier' if not SELFP else 's_waitcnt vmcnt(0)\ns_barrier')
        k(f's_add_u32 s{SSEG}, s49, 1')
        flag(f's{SSEG}')
        k(f's_branch L_pj_par1{typ}')
    for typ in ('K', 'V'):
        k(f'L_pj_loop{typ}:')
        for par in range(2):
            if par == 1: k(f'L_pj_par1{typ}:')
            acc, prev = ACC2[par], ACC2[1 - par]
            stg = STG2[1 - par]
            rb, wb = par*XBUF, (1 - par)*XBUF
            k(f'''s_add_u32 s34, s{SSEG}, 3
s_min_u32 s34, s34, 63
s_mul_i32 s46, s34, 40960
s_sub_u32 s34, s{SSEG}, 1
s_lshl_b32 s47, s34, 18
s_add_u32 s47, s47, s{SOUT}''')
            fill = {}
            pk = pack_ops(typ, prev)
            for i in range(5): fill[1 + 2*i] = [f'ds_write_b128 v{3+i}, {v(stg+4*i,4)} offset:{wb}']
            fill[2] = pk[0:2]; fill[4] = pk[2:4]; fill[6] = pk[4:6]; fill[8] = pk[6:8]
            st = [f'buffer_store_dwordx4 v[{prev}:{prev+3}], v8, {WS}, s47 offen sc1', f'buffer_store_dwordx4 v[{prev+4}:{prev+7}], v8, {WS}, s47 offen offset:512 sc1']
            for i in range(5): fill[11 + i] = [f's_add_u32 s48, s46, {i*8192}', f'buffer_load_dwordx4 {v(stg+4*i,4)}, v2, s[20:23], s48 offen']
            for i in range(2): k(f'ds_read_b128 {v(XFR[i],4)}, v9 offset:{rb + i*32}')
            for ks in range(40):
                if ks + 2 < 40: k(f'ds_read_b128 {v(XFR[(ks+2)%3],4)}, v9 offset:{rb + (ks+2)*32}')
                k(f's_waitcnt lgkmcnt({2 if ks + 2 < 40 else (1 if ks + 1 < 40 else 0)})')
                c = '0' if ks == 0 else v(acc, 16)
                w, x = v(PW+4*ks, 4), v(XFR[ks % 3], 4)
                k(f'v_mfma_f32_32x32x16_bf16 {v(acc,16)}, {w if typ == "K" else x}, {x if typ == "K" else w}, {c}')
                for f in fill.get(ks, []): k(f)
                if ks == 16:
                    lab2 = k.lab('pjm')
                    k(f's_cmp_gt_u32 s{SSEG}, {EARLY + 1}\ns_cbranch_scc1 {lab2}\ns_waitcnt vmcnt(5)\ns_barrier')
                    flag(f's{SSEG}')
                    k(f'{lab2}:')
                if ks == 10:
                    lab = k.lab('pjs')
                    k(f's_cmp_le_u32 s{SSEG}, {EARLY + 1}\ns_cbranch_scc1 {lab}')
                    for f in st: k(f)
                    k(f'{lab}:')
            e0 = k.lab('pje')
            k(f's_cmp_gt_u32 s{SSEG}, {EARLY}\ns_cbranch_scc1 {e0}')
            for f in pack_ops(typ, acc): k(f)
            k(f'''s_lshl_b32 s47, s{SSEG}, 18
s_add_u32 s47, s47, s{SOUT}
buffer_store_dwordx4 v[{acc}:{acc+3}], v8, {WS}, s47 offen sc1
buffer_store_dwordx4 v[{acc+4}:{acc+7}], v8, {WS}, s47 offen offset:512 sc1
s_waitcnt vmcnt(7)
s_barrier
s_branch {e0}_d
{e0}:''')
            k('s_waitcnt vmcnt(5)\ns_barrier')
            flag(f's{SSEG}')
            k(f'{e0}_d:')
            if LITE:
                l1, l2 = k.lab('lt'), k.lab('lt')
                k(f'''s_cmp_eq_u32 s{SSEG}, 8
s_cbranch_scc0 {l1}
s_memrealtime s[90:91]
s_memtime s[94:95]
s_waitcnt lgkmcnt(0)
{l1}:
s_cmp_eq_u32 s{SSEG}, 56
s_cbranch_scc0 {l2}
s_memrealtime s[92:93]
s_memtime s[96:97]
s_waitcnt lgkmcnt(0)
{l2}:''')
            k(f's_add_u32 s{SSEG}, s{SSEG}, 1')
            if par == 1: k(f's_cmp_lt_u32 s{SSEG}, 64\ns_cbranch_scc1 L_pj_loop{typ}')
            else: k(f's_cmp_ge_u32 s{SSEG}, 64\ns_cbranch_scc1 L_pj_fin0{typ}')
        for par in (1, 0):
            if par == 0: k(f's_branch L_pj_fin{typ}\nL_pj_fin0{typ}:')
            for f in pack_ops(typ, ACC2[par]): k(f)
            k(f'''s_mov_b32 s47, 63
s_lshl_b32 s47, s47, 18
s_add_u32 s47, s47, s{SOUT}
buffer_store_dwordx4 v[{ACC2[par]}:{ACC2[par]+3}], v8, {WS}, s47 offen sc1
buffer_store_dwordx4 v[{ACC2[par]+4}:{ACC2[par]+7}], v8, {WS}, s47 offen offset:512 sc1''')
        k(f'''L_pj_fin{typ}:
s_waitcnt vmcnt(0)
s_barrier''')
        flag('64')
        if LITE:
            k(f'''s_sub_u32 s34, s92, s90
v_mov_b32 v12, s34
s_lshl_b32 s34, s{SX}, 5
s_add_u32 s34, s34, s{SR}
s_lshl_b32 s34, s34, 3
s_add_u32 s34, s34, s{SW}
s_lshl_b32 s34, s34, 2
s_add_u32 s34, s34, 0x8800000
v_mov_b32 v10, s34
buffer_store_dword v12, v10, {WS}, 0 offen
s_sub_u32 s34, s96, s94
v_mov_b32 v12, s34
v_add_u32 v10, 0x10000, v10
buffer_store_dword v12, v10, {WS}, 0 offen''')
        k('s_branch L_end')
```

```python
import sys, math, struct
from dsl import Kern, v, s
from layout import *
from proj import proj_role
from attout import att_role, out_role
from brole import b_role

def f32bits(x): return struct.unpack('<I', struct.pack('<f', x))[0]

WS, DBG = 's[8:11]', 's[12:15]'
SX, SR, SW, SSLOW, SPAR, SLIM = 28, 29, 30, 31, 32, 33
SXCC, SRANK = 98, 99
SSTEP = 40
POLL_LIMIT = 1 << 17

def srd(k, base, ptr, nbytes):
    k(f'''s_mov_b32 s{base}, s{ptr}
s_and_b32 s{base+1}, s{ptr+1}, 0xffff
s_mov_b32 s{base+2}, {nbytes:#x}
s_mov_b32 s{base+3}, 0x20000''')

def poll(k, name, loads, check, cnt=39, sleep=0):
    L, D = k.lab(name), k.lab(name + 'd')
    k(f's_mov_b32 s{cnt}, 0\n{L}:')
    loads()
    k('s_waitcnt vmcnt(0)')
    check()
    k(f's_cbranch_vccz {D}')
    if sleep: k(f's_sleep {sleep}')
    k(f'''s_add_u32 s{cnt}, s{cnt}, 1
s_cmp_lt_u32 s{cnt}, s{SLIM}
s_cbranch_scc1 {L}
s_mov_b32 s{SLIM}, 0
{D}:''')

def umax_check(k, regs, tmp):
    r = list(regs)
    if len(r) == 1:
        k(f'v_cmp_eq_u32 vcc, -1, v{r[0]}'); return
    if len(r) == 2:
        k(f'v_max_u32 v{tmp}, v{r[0]}, v{r[1]}'); r = []
    else:
        k(f'v_max3_u32 v{tmp}, v{r[0]}, v{r[1]}, v{r[2]}'); r = r[3:]
    while len(r) >= 2:
        k(f'v_max3_u32 v{tmp}, v{tmp}, v{r[0]}, v{r[1]}'); r = r[2:]
    if r: k(f'v_max_u32 v{tmp}, v{tmp}, v{r[0]}')
    k(f'v_cmp_eq_u32 vcc, -1, v{tmp}')

TL = False
DBGST = False
def dstamp(k, word, cond_x, cond_r, wave=0):
    if not DBGST: return
    L = k.lab('ds')
    k(f'''s_cmp_lg_u32 s{SX}, {cond_x}
s_cbranch_scc1 {L}
s_cmp_lg_u32 s{SR}, {cond_r}
s_cbranch_scc1 {L}
s_cmp_lg_u32 s{SW}, {wave}
s_cbranch_scc1 {L}
s_memrealtime s[82:83]
s_waitcnt lgkmcnt(0)
v_mov_b32 v252, s82
v_mov_b32 v253, {word*4}
s_mov_b64 exec, 1
buffer_store_dword v252, v253, {DBG}, 0 offen
s_mov_b64 exec, -1
{L}:''')

def mark(k, n):
    if TL: k(f's_memrealtime s[82:83]\ns_waitcnt lgkmcnt(0)\ns_mov_b32 s{85+n}, s82')

def start_phase(k, keepflags=False):
    k(f'''
s_cmp_ge_u32 s2, 256
s_cbranch_scc1 L_exit
{'s_memrealtime s[84:85]' if TL else ''}
s_load_dwordx4 s[4:7], s[0:1], 88
s_getreg_b32 s{SXCC}, hwreg(HW_REG_XCC_ID)
s_and_b32 s{SXCC}, s{SXCC}, 15
v_and_b32 v1, 63, v0
v_lshrrev_b32 v2, 6, v0
v_readfirstlane_b32 s{SW}, v2
s_waitcnt lgkmcnt(0)''')
    srd(k, 8, 6, WS_BYTES)
    srd(k, 12, 4, 256)
    k(f'''
s_mov_b32 s{SLIM}, {POLL_LIMIT}
s_mov_b32 s{SSLOW}, 0
v_mov_b32 v9, 0
s_cmp_lg_u32 s{SW}, 0
s_cbranch_scc1 L_st_clr
s_lshl_b32 s35, s{SXCC}, 4
v_mov_b32 v8, s35
v_mov_b32 v9, 1
s_mov_b64 exec, 1
buffer_atomic_add v9, v8, {DBG}, 0 offen sc0
s_mov_b64 exec, -1
L_st_clr:
s_lshl_b32 s35, s2, 14
s_cmp_lt_u32 s35, 0x10000
s_cselect_b32 s36, 0, -1
v_mov_b32 v4, s36
v_mov_b32 v5, s36
v_mov_b32 v6, s36
v_mov_b32 v7, s36
v_lshlrev_b32 v2, 4, v0
s_add_u32 s36, s35, 8192
{'s_cmp_lt_u32 s35, 0x10000' if keepflags else ''}
{'s_cbranch_scc1 L_st_noclr' if keepflags else ''}
buffer_store_dwordx4 v[4:7], v2, {WS}, s35 offen sc1
buffer_store_dwordx4 v[4:7], v2, {WS}, s36 offen sc1
L_st_noclr:
s_cmp_lg_u32 s{SW}, 0
s_cbranch_scc1 L_st_w1
s_waitcnt vmcnt(2)
v_readfirstlane_b32 s35, v9
v_mov_b32 v4, s35
v_mov_b32 v8, 0
ds_write_b32 v8, v4
s_waitcnt lgkmcnt(0)
L_st_w1:
s_barrier
v_mov_b32 v8, 0
ds_read_b32 v4, v8
s_waitcnt lgkmcnt(0)
v_readfirstlane_b32 s{SRANK}, v4
s_min_u32 s{SR}, s{SRANK}, 31
s_and_b32 s{SX}, s{SXCC}, 7
s_waitcnt vmcnt(0)
s_barrier
s_cmp_lg_u32 s{SW}, 0
s_cbranch_scc1 L_dispatch
s_lshl_b32 s35, s{SXCC}, 4
s_add_u32 s35, s35, 8
v_mov_b32 v8, s35
v_mov_b32 v9, 1
s_mov_b64 exec, 1
buffer_atomic_add v9, v8, {DBG}, 0 offen
s_mov_b64 exec, -1
L_dispatch:''')
    dstamp(k, 15, 0, 0)
    if TL: k('s_memrealtime s[82:83]\ns_mov_b32 s86, 0\ns_mov_b32 s87, 0\ns_waitcnt lgkmcnt(0)\ns_mov_b32 s85, s82')

def help_prefetch(k):
    H, D = k.lab('hp'), k.lab('hpd')
    k(f'''s_cmp_ge_u32 s{SX}, 4
s_cbranch_scc1 {H}
; chain die: wave wg = (R-24)*8 + w; tasks wg + 64 j < 480: unit = t / 20, block of 16 rows = t % 20
s_sub_u32 s34, s{SR}, 24
s_lshl_b32 s34, s34, 3
s_add_u32 s34, s34, s{SW}
v_lshrrev_b32 v10, 2, v1
v_and_b32 v11, 3, v1
v_lshlrev_b32 v10, 13, v10
v_lshl_add_u32 v10, v11, 6, v10''')
    for j in range(8):
        sk = k.lab('hs')
        k(f'''s_add_u32 s35, s34, {64*j}
s_cmp_ge_u32 s35, 480
s_cbranch_scc1 {sk}
s_mul_i32 s36, s35, 3277
s_lshr_b32 s36, s36, 16               ; unit (0..23)
s_mul_i32 s37, s36, 20
s_sub_u32 s37, s35, s37               ; block
s_cmp_ge_u32 s36, 12
s_cselect_b32 s38, 1, 0
s_mul_i32 s39, s38, 12
s_sub_u32 s39, s36, s39               ; i
s_mul_i32 s44, s39, 11
s_lshr_b32 s44, s44, 5
s_mul_i32 s45, s44, 3
s_sub_u32 s45, s39, s45               ; m
s_lshl_b32 s46, s{SX}, 1
s_add_u32 s46, s46, s38
s_lshl_b32 s46, s46, 2
s_add_u32 s46, s46, s44               ; head
s_lshl_b32 s46, s46, 8
s_lshl_b32 s37, s37, 4
s_sub_u32 s37, 624, s37
s_lshl_b32 s37, s37, 13
s_add_u32 s46, s46, s37
s_lshl_b32 s45, s45, 3
s_add_u32 s45, s45, 16
s_load_dwordx2 s[4:5], s[0:1], s45
s_waitcnt lgkmcnt(0)''')
        srd(k, 16, 4, 640*8192)
        k(f'buffer_load_dword v{230+j}, v10, s[16:19], s46 offen\n{sk}:')
    k(f'''s_branch {D}
{H}:
; PROJ die: wave wg = (R-12)*8 + w; tasks wg + 160 j < 480: unit = t / 40, block of 8 rows = t % 40
s_sub_u32 s34, s{SR}, 12
s_lshl_b32 s34, s34, 3
s_add_u32 s34, s34, s{SW}
v_lshrrev_b32 v10, 3, v1
v_and_b32 v11, 7, v1
v_lshlrev_b32 v10, 13, v10
v_lshl_add_u32 v10, v11, 6, v10''')
    for j in range(3):
        k(f'''s_add_u32 s35, s34, {160*j}
s_mul_i32 s36, s35, 1639
s_lshr_b32 s36, s36, 16               ; unit (0..11)
s_mul_i32 s37, s36, 40
s_sub_u32 s37, s35, s37               ; block
s_sub_u32 s38, s{SX}, 4
s_mul_i32 s38, s38, 12
s_add_u32 s38, s38, s36               ; p
s_lshr_b32 s45, s38, 4                ; m
s_and_b32 s46, s38, 15
s_lshl_b32 s46, s46, 9
s_lshl_b32 s37, s37, 3
s_sub_u32 s37, 632, s37
s_lshl_b32 s37, s37, 13
s_add_u32 s46, s46, s37
s_lshl_b32 s45, s45, 3
s_add_u32 s45, s45, 16
s_min_u32 s45, s45, 32
s_load_dwordx2 s[4:5], s[0:1], s45
s_waitcnt lgkmcnt(0)''')
        srd(k, 16, 4, 640*8192)
        k(f'buffer_load_dword v{230+j}, v10, s[16:19], s46 offen')
    k(f'{D}:')

def validate(k, need_par=False):
    L, G, OK = k.lab('val'), k.lab('valg'), k.lab('valok')
    k(f'''s_cmp_lg_u32 s{SSLOW}, 0
s_cbranch_scc1 {OK}
v_lshlrev_b32 v10, 2, v1
s_mov_b32 s39, 0
{L}:
buffer_load_dword v11, v10, {DBG}, 0 offen sc1
s_waitcnt vmcnt(0)
v_cmp_eq_u32 vcc, 32, v11
s_and_b32 s34, vcc_lo, 0x55555555
s_cmp_eq_u32 s34, 0x55555555
s_cbranch_scc0 {G}_s
v_readlane_b32 s{SPAR}, v11, 1
s_mov_b32 s34, 0
{'s_cmp_lg_u32 s' + str(SPAR) + ', 0' if need_par else 's_cmp_eq_u32 s34, 0'}
s_cbranch_scc1 {G}
{G}_s:
s_mov_b32 s36, 0
s_mov_b32 s37, 0
s_mov_b32 s38, 0
s_mov_b32 s34, 0''')
    for i in range(16):
        k(f'''v_readlane_b32 s35, v11, {4*i+2}
s_add_u32 s38, s38, s35
v_readlane_b32 s35, v11, {4*i}
s_add_u32 s36, s36, s35
s_cmp_eq_u32 s35, {32 if i < 8 else 0}
s_cselect_b32 s97, 0, 1
s_or_b32 s34, s34, s97
s_cmp_gt_u32 s{SXCC}, {i}
s_cselect_b32 s35, s35, 0
s_add_u32 s37, s37, s35''')
    k(f'''v_readlane_b32 s{SPAR}, v11, 1
s_cmp_eq_u32 s36, 256
s_cselect_b32 s35, s38, 0
s_cmp_eq_u32 s35, 256''')
    if need_par:
        k(f'''s_cselect_b32 s35, s{SPAR}, 0
s_or_b32 s97, s35, s34
s_cmp_eq_u32 s36, 256
s_cselect_b32 s97, s97, 0
s_cmp_eq_u32 s38, 256
s_cselect_b32 s97, s97, 0
s_cmp_lg_u32 s97, 0''')
    k(f'''s_cbranch_scc1 {G}
s_sleep 2
s_add_u32 s39, s39, 1
s_cmp_lt_u32 s39, s{SLIM}
s_cbranch_scc1 {L}
s_mov_b32 s{SLIM}, 0
{G}:
s_and_b32 s{SPAR}, s{SPAR}, 2
s_lshl_b32 s{SPAR}, s{SPAR}, 12
s_cmp_eq_u32 s34, 0
s_cbranch_scc1 {OK}
s_mov_b32 s{SSLOW}, 1
s_mov_b32 s{SPAR}, 0
s_add_u32 s37, s37, s{SRANK}
s_and_b32 s37, s37, 255
s_lshr_b32 s{SX}, s37, 5
s_and_b32 s{SR}, s37, 31
s_barrier
s_branch L_dispatch
{OK}:''')

def calibrate(k):
    NS = OPT['ncal']
    k(f'''s_mov_b64 exec, 1
s_mov_b32 s36, -1
s_mov_b32 s37, -1
v_mov_b32 v9, -1
s_mov_b32 s48, 0
L_cal:''')
    for par in range(2):
        k(f'''s_lshl_b32 s38, s48, 8
s_add_u32 s38, s38, {PART + 0x190000 + par*8192:#x}
v_mov_b32 v8, s38
buffer_store_dword v9, v8, {WS}, 0 offen sc1
s_waitcnt vmcnt(0)
s_memtime s[44:45]
s_waitcnt lgkmcnt(0)
buffer_load_dword v9, v8, {WS}, 0 offen sc1
s_waitcnt vmcnt(0)
s_memtime s[46:47]
s_waitcnt lgkmcnt(0)
s_sub_u32 s38, s46, s44
s_min_u32 s{36+par}, s{36+par}, s38''')
    k(f'''s_add_u32 s48, s48, 1
s_cmp_lt_u32 s48, {NS}
s_cbranch_scc1 L_cal
s_cmp_lt_u32 s36, s37
s_cselect_b32 s38, 0, 1
s_cmp_ge_u32 s{SXCC}, 4
s_cselect_b32 s39, 1, 0
s_xor_b32 s38, s38, s39
s_add_u32 s38, s38, 1
{('s_mov_b32 s38, ' + str(OPT['forcepar'])) if OPT['forcepar'] else ''}
v_mov_b32 v9, s38
v_mov_b32 v8, 4
buffer_store_dword v9, v8, {DBG}, 0 offen sc1''')
    if OPT['caldbg']:
        k(f'''v_mov_b32 v9, s36
v_mov_b32 v8, 12
buffer_store_dword v9, v8, {DBG}, 0 offen
v_mov_b32 v9, s37
v_mov_b32 v8, 20
buffer_store_dword v9, v8, {DBG}, 0 offen''')
    k('s_waitcnt vmcnt(0)\ns_mov_b64 exec, -1')

def par_wait(k):
    L, D = k.lab('pw'), k.lab('pwd')
    k(f'''s_cmp_lg_u32 s{SSLOW}, 0
s_cbranch_scc1 {D}
s_mov_b32 s39, 0
v_mov_b32 v13, 4
{L}:
buffer_load_dword v12, v13, {DBG}, 0 offen sc1
s_waitcnt vmcnt(0)
v_readfirstlane_b32 s{SPAR}, v12
s_cmp_lg_u32 s{SPAR}, 0
s_cbranch_scc1 {L}_g
s_sleep 2
s_add_u32 s39, s39, 1
s_cmp_lt_u32 s39, s{SLIM}
s_cbranch_scc1 {L}
s_mov_b32 s{SLIM}, 0
{L}_g:
s_and_b32 s{SPAR}, s{SPAR}, 2
s_lshl_b32 s{SPAR}, s{SPAR}, 12
{D}:''')

L_KV, L_MEMF, L_RED = 0, 65536, 65536 + 10240
V_MF = 10
V_MW = 11
VLANE16 = 2
V_A3 = 3
V_A4 = 4
V_A5 = 5
V_A6 = 6
V_A7 = 7
V_A9 = 9
V_IDX = 15
WO, KXR, VXR, QK, VM, S0, S1, SM = 16, 80, 112, 144, 160, 168, 172, 176
PX, PM, PM2, O, OB, OA, NEG = 180, 184, 186, 192, 224, 144, 240
W1, MF, DA, DB = 16, 176, 216, 220
S_HEAD, S_M, S_I, S_G, S_GI = 41, 42, 43, 44, 45
S_MEMN, S_MEMN4, S_MEMN8, S_MEMZ = 46, 47, 48, 49
S_QC, S_QC4, S_QZ = 50, 51, 52
S_PC, S_PZ = 53, 54
S_KP = 55
S_KXN, S_VXN = 56, 57
S_AVAIL = 58
S_KP4 = 59
M_LO8, M_EVEN, M_ODD = 72, 74, 76
S_C, S_NC = 78, 79

def chain_offsets(k, part):
    if 'q' in part:
        k(f"""s_and_b32 s34, s{SSTEP}, 3
s_mul_i32 s{S_QC}, s34, 196608
s_add_u32 s{S_QC}, s{S_QC}, {QKVR}""")
    if 'r' in part:
        k(f"""s_and_b32 s34, s{SSTEP}, 3
s_add_u32 s{S_QC4}, s{S_QC}, 4096
s_mul_i32 s{S_PC}, s34, {8*3*16384}
s_add_u32 s{S_PC}, s{S_PC}, {PART}
s_add_u32 s{S_PC}, s{S_PC}, s{SPAR}
s_add_u32 s35, s{SSTEP}, 2
s_and_b32 s35, s35, 3
s_mul_i32 s{S_QZ}, s35, 196608
s_add_u32 s{S_QZ}, s{S_QZ}, {QKVR}
s_mul_i32 s{S_PZ}, s35, {8*3*16384}
s_add_u32 s{S_PZ}, s{S_PZ}, {PART}
s_add_u32 s{S_PZ}, s{S_PZ}, s{SPAR}
s_mul_i32 s36, s{SX}, 10240
s_add_u32 s36, s36, {MEMR}
s_add_u32 s35, s{SSTEP}, 1
s_and_b32 s35, s35, 3
s_mul_i32 s{S_MEMN}, s35, 40960
s_add_u32 s{S_MEMN}, s{S_MEMN}, s36
s_add_u32 s{S_MEMN4}, s{S_MEMN}, 4096
s_add_u32 s{S_MEMN8}, s{S_MEMN}, 8192
s_add_u32 s35, s{SSTEP}, 3
s_and_b32 s35, s35, 3
s_mul_i32 s{S_MEMZ}, s35, 40960
s_add_u32 s{S_MEMZ}, s{S_MEMZ}, s36
s_mul_i32 s{S_KP}, s{SSTEP}, 196608
s_add_u32 s{S_KP}, s{S_KP}, {KVMP}
s_add_u32 s{S_KP4}, s{S_KP}, 4096
s_add_u32 s35, s{SSTEP}, 1
s_lshl_b32 s35, s35, 18
s_add_u32 s{S_KXN}, s35, {KX}
s_add_u32 s{S_VXN}, s35, {VX}""")

def kv_wait(k, need_sreg):
    D = k.lab('kvok')
    k(f's_cmp_ge_u32 s{S_AVAIL}, s{need_sreg}\ns_cbranch_scc1 {D}')
    L = k.lab('kvp')
    k(f"""s_mov_b32 s39, 0
{L}:
buffer_load_dword v13, v{V_A9}, {WS}, 0 offen sc1
s_waitcnt vmcnt(0)
v_readlane_b32 s34, v13, 0
v_readlane_b32 s35, v13, 1
s_min_u32 s{S_AVAIL}, s34, s35
s_cmp_ge_u32 s{S_AVAIL}, s{need_sreg}
s_cbranch_scc1 {D}
s_sleep 2
s_add_u32 s39, s39, 1
s_cmp_lt_u32 s39, s{SLIM}
s_cbranch_scc1 {L}
s_mov_b32 s{SLIM}, 0
{D}:""")

KVSC = ' sc1'
NOKV = False
def kv_loads(k, skx, svx):
    k(f's_add_u32 s34, s{skx}, 4096\ns_add_u32 s35, s{svx}, 4096')
    for i in range(8):
        k(f'buffer_load_dwordx4 {v(KXR+4*i,4)}, v{V_A4}, {WS}, s{skx if i < 4 else 34} offen offset:{(i%4)*1024}{KVSC}')
    for i in range(8):
        k(f'buffer_load_dwordx4 {v(VXR+4*i,4)}, v{V_A4}, {WS}, s{svx if i < 4 else 35} offen offset:{(i%4)*1024}{KVSC}')

def kv_dma(k, skx, svx, second=False):
    for part, sb in ((0, skx), (1, svx)):
        for hlf in range(2):
            k(f's_add_u32 m0, s60, {part*8192 + hlf*4096 - (16384 if second else 0)}' if not second else f's_sub_u32 m0, s60, {16384 - part*8192 - hlf*4096}')
            if second: k(f's_sub_u32 s34, s{sb}, {8192 - hlf*4096}')
            else: k(f's_add_u32 s34, s{sb}, {hlf*4096}')
            for i in range(4):
                k(f'buffer_load_dwordx4 v8, {WS}, s34 offen offset:{i*1024}{KVSC} lds')

def kv_copies(k, skx, svx):
    A, D = k.lab('kc'), k.lab('kd')
    k(f's_cmp_eq_u32 s{SW}, 6\ns_cbranch_scc1 {D}')
    kv_dma(k, skx, svx)
    k(f's_cmp_eq_u32 s{SW}, 7\ns_cbranch_scc0 {D}')
    kv_dma(k, skx, svx, second=True)
    k(f'{D}:')

def chain_selfproj(k):
    D, A, V_, E = k.lab('sp'), k.lab('spa'), k.lab('spv'), k.lab('spe')
    AC, XF = 176, 192
    k(f"""s_cmp_eq_u32 s{S_M}, 0
s_cbranch_scc1 {D}
s_cmp_lt_u32 s{SW}, 4
s_cbranch_scc1 {A}
v_and_b32 v10, 15, v1
v_mul_u32_u24 v10, 1296, v10
v_lshrrev_b32 v11, 4, v1
v_lshl_add_u32 v10, v11, 4, v10
v_add_u32 v10, 98304, v10
v_lshlrev_b32 v11, 4, v1
s_lshl_b32 s34, s{S_HEAD}, 13
v_add_u32 v11, s34, v11
s_sub_u32 s38, s{SW}, 4
s_cmp_eq_u32 s{S_M}, 2
s_cbranch_scc1 {V_}""")
    for typ in ('K', 'V'):
        if typ == 'V': k(f'{V_}:')
        for ks in range(20):
            b = XF + 8*(ks % 2)
            if ks == 0:
                for tt in range(2): k(f'ds_read_b128 {v(b+4*tt,4)}, v10 offset:{tt*16*1296}')
            if ks + 1 < 20:
                nb = XF + 8*((ks+1) % 2)
                for tt in range(2): k(f'ds_read_b128 {v(nb+4*tt,4)}, v10 offset:{tt*16*1296 + (ks+1)*64}')
            k(f's_waitcnt lgkmcnt({2 if ks + 1 < 20 else 0})')
            for t in range(2):
                for tt in range(2):
                    a = v(AC + 8*t + 4*tt, 4); w = v(W1 + 80*t + 4*ks, 4); x = v(b+4*tt, 4)
                    k(f'v_mfma_f32_16x16x32_bf16 {a}, {w if typ == "K" else x}, {x if typ == "K" else w}, {"0" if ks == 0 else a}')
        P = 208
        if typ == 'K':
            k(f's_lshl_b32 s34, s38, 10\ns_add_u32 s34, s34, {KX}')
            for tt in range(2):
                for t in range(2):
                    a = AC + 8*t + 4*tt
                    k(f'v_cvt_pk_bf16_f32 v{P+4*tt+2*t}, v{a}, v{a+1}\nv_cvt_pk_bf16_f32 v{P+4*tt+2*t+1}, v{a+2}, v{a+3}')
                k(f'v_permlane32_swap_b32 v{P+4*tt}, v{P+4*tt+2}\nv_permlane32_swap_b32 v{P+4*tt+1}, v{P+4*tt+3}')
                k(f'buffer_store_dwordx4 {v(P+4*tt,4)}, v11, {WS}, s34 offen sc1')
                if tt == 0: k('s_add_u32 s34, s34, 4096')
            k(f's_branch {E}')
        else:
            k(f's_lshl_b32 s34, s38, 11\ns_add_u32 s34, s34, {VX}')
            for t in range(2):
                for tt in range(2):
                    a = AC + 8*t + 4*tt
                    k(f'v_cvt_pk_bf16_f32 v{P+4*t+2*tt}, v{a}, v{a+1}\nv_cvt_pk_bf16_f32 v{P+4*t+2*tt+1}, v{a+2}, v{a+3}')
                k(f'buffer_store_dwordx4 {v(P+4*t,4)}, v11, {WS}, s34 offen offset:{t*1024} sc1')
    k(f"""{E}:
s_waitcnt vmcnt(0)
{A}:
s_barrier
s_cmp_lg_u32 s{SW}, 4
s_cbranch_scc1 {D}
s_lshl_b32 s34, s{S_HEAD}, 1
s_add_u32 s34, s34, s{S_M}
s_sub_u32 s34, s34, 1
s_lshl_b32 s34, s34, 2
s_add_u32 s34, s34, {F_KV0}
v_mov_b32 v10, s34
v_mov_b32 v11, 1
s_mov_b64 exec, 1
buffer_store_dword v11, v10, {WS}, 0 offen sc1
s_mov_b64 exec, -1
{D}:""")

def chain_prologue(k):
    k(f"""
L_chain:
; i = R % 12, gi = R / 12, hl = i / 3, m = i % 3
s_cmp_ge_u32 s{SR}, 12
s_cselect_b32 s{S_GI}, 1, 0
s_mul_i32 s34, s{S_GI}, 12
s_sub_u32 s{S_I}, s{SR}, s34
s_mul_i32 s34, s{S_I}, 11
s_lshr_b32 s34, s34, 5
s_mul_i32 s35, s34, 3
s_sub_u32 s{S_M}, s{S_I}, s35
s_lshl_b32 s{S_G}, s{SX}, 1
s_add_u32 s{S_G}, s{S_G}, s{S_GI}
s_lshl_b32 s35, s{S_G}, 2
s_add_u32 s{S_HEAD}, s35, s34
s_lshl_b32 s34, s{S_M}, 3
s_add_u32 s34, s34, 16
s_load_dwordx2 s[4:5], s[0:1], s34
s_load_dwordx2 s[6:7], s[0:1], 40
s_load_dwordx2 s[36:37], s[0:1], 8
s_waitcnt lgkmcnt(0)""")
    srd(k, 16, 4, 640*8192)
    srd(k, 20, 6, 4096*1280)
    srd(k, 24, 36, 8*1280)
    STG = 176
    k(f"""
v_lshlrev_b32 v{VLANE16}, 4, v1
s_mov_b32 s{M_LO8}, 0x00ff00ff
s_mov_b32 s{M_LO8+1}, 0x00ff00ff
s_mov_b32 s{M_EVEN}, 0x55555555
s_mov_b32 s{M_EVEN+1}, 0x55555555
s_mov_b32 s{M_ODD}, 0xaaaaaaaa
s_mov_b32 s{M_ODD+1}, 0xaaaaaaaa
s_mov_b32 s{S_C}, {f32bits(128**-0.5 * math.log2(math.e)):#x}
s_mov_b32 s{S_NC}, {f32bits(-(128**-0.5) * math.log2(math.e)):#x}
s_mov_b32 s66, s{S_C}
s_mov_b32 s67, s{S_C}
v_and_b32 v10, 8, v1
v_cmp_eq_u32 vcc, 0, v10
v_mov_b32 v10, 0xeeee
v_mov_b32 v11, 0x4444
v_cndmask_b32 v{V_IDX}, v10, v11, vcc
s_cmp_ge_u32 s{SW}, 4
s_cbranch_scc1 L_ch_ldw""")
    for rnd in range(3):
        k(f"""v_add_u32 v10, {256*rnd}, v0
v_lshrrev_b32 v11, 6, v10
v_bfe_u32 v12, v10, 4, 2
v_and_b32 v13, 7, v10
v_bfe_u32 v14, v10, 3, 1
v_mul_u32_u24 v13, 1280, v13
v_lshl_add_u32 v13, v11, 7, v13
v_lshl_add_u32 v13, v12, 5, v13
v_lshl_add_u32 v13, v14, 2, v13
buffer_load_dword v{144+4*rnd}, v13, s[24:27], 0 offen
buffer_load_dword v{145+4*rnd}, v13, s[24:27], 0 offen offset:8
buffer_load_dword v{146+4*rnd}, v13, s[24:27], 0 offen offset:16
buffer_load_dword v{147+4*rnd}, v13, s[24:27], 0 offen offset:24""")
    if OPT['selfp']:
        k(f"""s_cmp_eq_u32 s{S_M}, 0
s_cbranch_scc1 L_ch_nox
s_load_dwordx2 s[4:5], s[0:1], 0
s_waitcnt lgkmcnt(0)""")
        srd(k, 24, 4, 2048*1280)
        k('v_lshlrev_b32 v10, 4, v0')
        for i in range(10): k(f's_mov_b32 s34, {i*4096}\nbuffer_load_dwordx4 {v(16+4*i,4)}, v10, s[24:27], s34 offen')
        k('L_ch_nox:')
    k(f"""s_cmp_ge_u32 s{S_I}, 10
s_cbranch_scc1 L_ch_ldw
v_lshrrev_b32 v10, 3, v1
v_and_b32 v11, 7, v1
v_mul_u32_u24 v12, 1280, v10
v_lshl_add_u32 v12, v11, 4, v12
s_lshl_b32 s34, s{S_G}, 2
s_add_u32 s34, s34, s{SW}
s_mul_i32 s34, s34, {128*1280}
s_lshl_b32 s35, s{S_I}, 7
s_add_u32 s34, s34, s35
v_add_u32 v12, s34, v12""")
    for i in range(16):
        k(f's_mov_b32 s34, {8*i*1280}\nbuffer_load_dwordx4 {v(80+4*i,4)}, v12, s[20:23], s34 offen')
    k(f"""L_ch_ldw:
v_lshrrev_b32 v10, 4, v0
v_and_b32 v11, 15, v0
v_lshlrev_b32 v12, 13, v10
v_lshl_add_u32 v12, v11, 4, v12
s_lshl_b32 s34, s{S_HEAD}, 8
v_add_u32 v12, s34, v12""")
    for c in range(5):
        for kk in range(4):
            k(f's_mov_b32 s34, {(128*c + 32*kk)*8192}\nbuffer_load_dwordx4 {v(STG+16*c+4*kk,4)}, v12, s[16:19], s34 offen')
    k(f"""
; LDS write address: r*256 + ((c16/2 + f) % 8)*32 + (c16%2)*16, f = 2*(r%4) + ((r>>3)&1)
v_and_b32 v13, 3, v10
v_lshlrev_b32 v13, 1, v13
v_bfe_u32 v14, v10, 3, 1
v_add_u32 v13, v13, v14
v_lshrrev_b32 v14, 1, v11
v_add_u32 v13, v13, v14
v_and_b32 v13, 7, v13
v_lshlrev_b32 v13, 5, v13
v_and_b32 v14, 1, v11
v_lshl_add_u32 v13, v14, 4, v13
v_lshl_add_u32 v13, v10, 8, v13
; transposing read addresses (tiles 2sw, 2sw+1): (8g+rr)*256 + ((te + 2rr + (g&1)) % 8)*32 + 8*(i%4)
v_lshrrev_b32 v10, 4, v1
v_bfe_u32 v11, v1, 2, 2
v_lshl_add_u32 v14, v10, 3, v11
v_lshlrev_b32 v14, 8, v14
v_and_b32 v8, 3, v1
v_lshl_add_u32 v14, v8, 3, v14
v_and_b32 v10, 1, v10
v_lshl_add_u32 v10, v11, 1, v10
s_and_b32 s34, s{SW}, 3
s_lshl_b32 s34, s34, 1
v_add_u32 v10, s34, v10
v_add_u32 v11, 1, v10
v_and_b32 v10, 7, v10
v_and_b32 v11, 7, v11
v_lshl_add_u32 v8, v11, 5, v14
v_lshl_add_u32 v14, v10, 5, v14
v_lshrrev_b32 v10, 3, v1
v_and_b32 v11, 7, v1
v_lshrrev_b32 v4, 1, v11
v_lshrrev_b32 v5, 1, v10
v_add_u32 v4, v4, v5
v_and_b32 v4, 3, v4
v_lshlrev_b32 v4, 5, v4
v_and_b32 v5, 1, v11
v_lshl_add_u32 v4, v5, 4, v4
v_lshl_add_u32 v4, v10, 7, v4
s_lshl_b32 s34, s{SW}, 14
s_add_u32 s34, s34, 98304
v_add_u32 v4, s34, v4
v_lshrrev_b32 v10, 4, v1
v_bfe_u32 v11, v1, 2, 2
v_lshl_add_u32 v6, v10, 2, v11
v_lshlrev_b32 v5, 7, v6
v_add_u32 v5, s34, v5
v_and_b32 v10, 3, v1
v_lshl_add_u32 v5, v10, 3, v5
v_lshrrev_b32 v6, 1, v6""")
    for c in range(5):
        buf = (c % 2)*32768
        k(f's_waitcnt vmcnt({16 - 4*c})')
        for kk in range(4):
            k(f'ds_write_b128 v13, {v(STG+16*c+4*kk,4)} offset:{buf + kk*8192}')
        k('s_waitcnt lgkmcnt(0)\ns_barrier')
        sa, sk = k.lab('w1a'), k.lab('w1s')
        k(f's_cmp_lt_u32 s{SW}, 4\ns_cbranch_scc1 {sa}')
        for t, ad in ((0, 14), (1, 8)):
            for ksl in range(4):
                for hh in range(2):
                    k(f'ds_read_b64_tr_b16 {v(W1 + 80*t + 4*(4*c+ksl) + 2*hh, 2)}, v{ad} offset:{buf + ksl*8192 + hh*1024}')
            k('s_waitcnt lgkmcnt(0)')
        k(f's_branch {sk}\n{sa}:')
        if c == 0:
            for rnd in range(3):
                k(f'v_add_u32 v10, {256*rnd}, v0\nv_lshlrev_b32 v10, 4, v10\nv_add_u32 v10, {L_MEMF}, v10\nds_write_b128 v10, {v(144+4*rnd,4)}')
            k('s_waitcnt lgkmcnt(0)')
        if c == 0 and OPT['selfp']:
            k(f's_cmp_eq_u32 s{S_M}, 0\ns_cbranch_scc1 {sk}')
            for i in range(10):
                k(f"""v_add_u32 v10, {256*i}, v0
v_mul_u32_u24 v11, 52429, v10
v_lshrrev_b32 v11, 22, v11
v_add_u32 v11, v11, v10
v_lshlrev_b32 v11, 4, v11
v_add_u32 v11, 98304, v11
ds_write_b128 v11, {v(16+4*i,4)}""")
            k('s_waitcnt lgkmcnt(0)')
        if not OPT['selfp']:
            if c in (1, 2, 3):
                k(f's_cmp_ge_u32 s{S_I}, 10\ns_cbranch_scc1 {sk}')
                if c == 1:
                    for i in range(16): k(f'ds_write_b128 v4, {v(80+4*i,4)} offset:{i*1024}')
                    k('s_waitcnt lgkmcnt(0)')
                else:
                    for ct in (2*(c-2), 2*(c-2)+1):
                        k(f'v_add_u32 v10, {ct}, v6\nv_and_b32 v10, 3, v10\nv_lshl_add_u32 v10, v10, 5, v5')
                        for ks in range(4):
                            for hh in range(2):
                                k(f'ds_read_b64_tr_b16 {v(WO + 16*ct + 4*ks + 2*hh, 2)}, v10 offset:{(32*ks + 16*hh)*128}')
                        k('s_waitcnt lgkmcnt(0)')
        k(f'{sk}:')
    k('s_barrier')
    validate(k)
    if OPT['selfp']:
        chain_selfproj(k)
        sk = k.lab('wo')
        k(f's_cmp_ge_u32 s{SW}, 4\ns_cbranch_scc1 {sk}\ns_cmp_ge_u32 s{S_I}, 10\ns_cbranch_scc1 {sk}')
        for i in range(16): k(f'ds_write_b128 v4, {v(80+4*i,4)} offset:{i*1024}')
        k('s_waitcnt lgkmcnt(0)')
        for ct in range(4):
            k(f'v_add_u32 v10, {ct}, v6\nv_and_b32 v10, 3, v10\nv_lshl_add_u32 v10, v10, 5, v5')
            for ks in range(4):
                for hh in range(2):
                    k(f'ds_read_b64_tr_b16 {v(WO + 16*ct + 4*ks + 2*hh, 2)}, v10 offset:{(32*ks + 16*hh)*128}')
            k('s_waitcnt lgkmcnt(0)')
        k(f'{sk}:')
    k(f"""s_mov_b32 s{SSTEP}, 0
s_mov_b32 s{S_AVAIL}, 0
s_cmp_ge_u32 s{SW}, 4
s_cbranch_scc1 L_ch_pS
s_lshl_b32 s34, s{S_G}, 2
s_add_u32 s34, s34, s{SW}
s_mul_i32 s35, s34, 6144
v_add_u32 v{V_A3}, s35, v{VLANE16}
s_lshl_b32 s35, s34, 13
v_add_u32 v{V_A4}, s35, v{VLANE16}
s_lshl_b32 s35, s{SW}, 11
s_add_u32 s35, s35, {L_RED}
v_add_u32 v{V_A5}, s35, v{VLANE16}
s_lshl_b32 s35, s{SW}, 14
s_add_u32 s35, s35, {L_KV}
s_lshr_b32 s34, s34, 1
v_and_b32 v10, 1, v1
v_lshlrev_b32 v10, 4, v10
v_add_u32 v10, s34, v10
v_add_u32 v10, 16, v10
v_lshlrev_b32 v{V_A9}, 2, v10
v_cmp_gt_u32 vcc, 32, v1
v_mov_b32 v10, 0
v_mov_b32 v11, 0xf149f2ca
v_cndmask_b32 v{NEG}, v10, v11, vcc
v_mov_b32 v{NEG+1}, v{NEG}
v_mov_b32 v{NEG+2}, v{NEG}
v_mov_b32 v{NEG+3}, v{NEG}
v_add_u32 v14, s35, v{VLANE16}
s_branch L_ch_pD
L_ch_pS:
s_sub_u32 s38, s{SW}, 4               ; sw
s_lshl_b32 s34, s38, 10
v_add_u32 v{V_A3}, s34, v{VLANE16}
v_and_b32 v10, 15, v1                 ; e16
v_bfe_u32 v11, v1, 4, 1               ; gg
v_lshrrev_b32 v12, 5, v1              ; hi
s_mul_i32 s36, s{S_HEAD}, 6144
s_cmp_eq_u32 s{S_M}, 2
s_cbranch_scc1 L_ch_qst_v
; q/k unit: row = 4gg + hi + 2*(e16&1) (+8 for k); g = 2*(te%2) + (e16/4)%2; j0 = 4*(e16/8) + (e16 & 2)
v_lshl_add_u32 v13, v11, 2, v12
v_and_b32 v14, 1, v10
v_lshl_add_u32 v13, v14, 1, v13
s_lshl_b32 s34, s{S_M}, 3
v_add_u32 v13, s34, v13
v_bfe_u32 v14, v10, 2, 1
v_lshl_add_u32 v13, v14, 4, v13
v_lshlrev_b32 v13, 4, v13
v_lshrrev_b32 v14, 3, v10
v_lshl_add_u32 v13, v14, 3, v13
v_and_b32 v14, 2, v10
v_lshl_add_u32 v13, v14, 1, v13
s_lshl_b32 s34, s38, 10
s_add_u32 s34, s34, s36
v_add_u32 v{V_A4}, s34, v13
v_add_u32 v{V_A5}, 512, v{V_A4}
s_branch L_ch_qst_done
L_ch_qst_v:
; v unit: 4096 + u*1024 + clane*16 + (sw%2)*8 + hi*4; clane = 32 + gg*16 + e16 (even tile), gg*16 + e16 (odd tile)
v_lshl_add_u32 v13, v11, 4, v10
v_lshlrev_b32 v13, 4, v13
v_lshl_add_u32 v13, v12, 2, v13
s_and_b32 s34, s38, 1
s_lshl_b32 s34, s34, 3
s_lshr_b32 s35, s38, 1
s_lshl_b32 s35, s35, 10
s_add_u32 s34, s34, s35
s_add_u32 s34, s34, 4096
s_add_u32 s34, s34, s36
v_add_u32 v{V_A5}, s34, v13
v_add_u32 v{V_A4}, 512, v{V_A5}
L_ch_qst_done:
s_mov_b32 s34, 524288
buffer_load_dword v224, v{V_A4}, {WS}, s34 offen sc1
buffer_load_dword v225, v{V_A5}, {WS}, s34 offen sc1
s_mov_b32 s34, 720896
buffer_load_dword v224, v{V_A4}, {WS}, s34 offen sc1
buffer_load_dword v225, v{V_A5}, {WS}, s34 offen sc1
s_mov_b32 s34, 917504
buffer_load_dword v224, v{V_A4}, {WS}, s34 offen sc1
buffer_load_dword v225, v{V_A5}, {WS}, s34 offen sc1
s_mov_b32 s34, 1114112
buffer_load_dword v224, v{V_A4}, {WS}, s34 offen sc1
buffer_load_dword v225, v{V_A5}, {WS}, s34 offen sc1
v_mov_b32 v216, 0
v_mov_b32 v217, 0
v_mov_b32 v218, 0
v_mov_b32 v219, 0
v_mov_b32 v220, 0
v_mov_b32 v221, 0
v_mov_b32 v222, 0
v_mov_b32 v223, 0
v_bfe_u32 v10, v1, 2, 3               ; r
v_lshrrev_b32 v13, 5, v1              ; c / 4
v_and_b32 v12, 3, v1                  ; c % 4
v_lshl_add_u32 v11, v13, 2, v12       ; c
v_lshlrev_b32 v12, 4, v12
v_lshl_add_u32 v12, v13, 3, v12
v_add_u32 v12, v12, v10
v_lshlrev_b32 v12, 4, v12
s_and_b32 s35, s38, 1
s_lshl_b32 s36, s35, 10
s_add_u32 s36, s36, {L_RED}
v_add_u32 v{V_A6}, s36, v12
s_lshl_b32 s36, s{S_I}, 1
s_add_u32 s36, s36, s35               ; j = 2i + (wave&1)
s_lshr_b32 s37, s36, 3
s_lshl_b32 s37, s37, 14
s_and_b32 s36, s36, 7
s_lshl_b32 s36, s36, 10
s_add_u32 s36, s36, s37
s_mul_i32 s37, s{S_G}, 49152
s_add_u32 s36, s36, s37
v_add_u32 v{V_A7}, s36, v{VLANE16}
s_lshl_b32 s34, s{S_G}, 2
s_add_u32 s34, s34, s38
s_lshl_b32 s35, s34, 13
v_add_u32 v8, s35, v{VLANE16}
s_lshl_b32 s60, s38, 14
s_add_u32 s60, s60, {L_KV}
s_lshr_b32 s34, s34, 1
v_and_b32 v9, 1, v1
v_lshlrev_b32 v9, 4, v9
v_add_u32 v9, s34, v9
v_add_u32 v9, 16, v9
v_lshlrev_b32 v{V_A9}, 2, v9
s_cmp_ge_u32 s{S_I}, 10
s_cbranch_scc1 L_ch_nok0
s_mov_b32 s36, 1""")
    if OPT['selfp']:
        from attout import flag_wait
        k(f"""s_lshl_b32 s34, s{S_G}, 2
s_add_u32 s34, s34, s38
{'s_cmp_eq_u32 s' + str(SW) + ', 7'}
s_cselect_b32 s35, 1, 0
s_sub_u32 s34, s34, s35
s_lshl_b32 s34, s34, 3
s_add_u32 s34, s34, {F_KV0}
v_lshlrev_b32 v12, 2, v1
v_add_u32 v12, s34, v12""")
        flag_wait(k, 'kv0', 12, 4, 36, tmp=13, sleep=1)
    else: kv_wait(k, 36)
    k(f's_mov_b32 s36, {KX}\ns_mov_b32 s37, {VX}')
    kv_copies(k, 36, 37)
    k(f"""s_waitcnt vmcnt(0)
L_ch_nok0:
s_cmp_lg_u32 s{SW}, 6
s_cbranch_scc1 L_ch_pD
s_mul_i32 s36, s{S_GI}, 10
s_add_u32 s36, s36, s{S_I}            ; j
s_lshr_b32 s37, s36, 3
s_lshl_b32 s37, s37, 14
s_and_b32 s35, s36, 7
s_lshl_b32 s35, s35, 10
s_add_u32 s35, s35, s37
v_add_u32 v240, s35, v{VLANE16}""")
    for g in range(1, 8): k(f'v_add_u32 v{240+g}, 49152, v{239+g}')
    k(f"""
s_lshl_b32 s36, s36, 5                ; 32j
v_lshl_add_u32 v12, v11, 2, s36       ; d0
v_lshrrev_b32 v13, 6, v12
v_lshlrev_b32 v13, 10, v13
v_bfe_u32 v14, v12, 4, 2
v_lshl_add_u32 v14, v14, 4, v10
v_lshl_add_u32 v13, v14, 4, v13
v_bfe_u32 v14, v12, 2, 2
v_lshl_add_u32 v{V_A6}, v14, 2, v13
L_ch_pD:
v_add_u32 v{V_MF}, {L_MEMF}, v{VLANE16}
v_add_u32 v{V_MW}, {L_MEMF}, v{V_A3}""")
    par_wait(k)
    k('s_waitcnt vmcnt(0) lgkmcnt(0)')

def delay(k, clks):
    if OPT['slp']:
        n = clks // 64
        while n > 0:
            m_ = min(n, 127); k(f's_sleep {m_}'); n -= m_
        clks = clks % 64
    n = clks // 4
    while n > 0:
        m_ = min(n, 16); k(f's_nop {m_-1}'); n -= m_

OPT = dict(dq=256, dp=512, dm=128, warm=1, dd=320, dw=1024, da=192, clrlate=0, lite=0, bsleep=0, osleep=0, xwarm=0, ds1=2048, place=0, sx=0, sm=0, sq=0, so=64, la=8, lb=56, help=0, dk=1024, outsc=0, ncal=8, caldbg=0, calsleep=0, forcepar=0, dv=64, slp=0, p2=0, selfp=1)
def interleave(k, mf, va, per=2):
    va = list(va)
    for m in mf:
        k(m)
        for _ in range(per):
            if va: k(va.pop(0))
    for x in va: k(x)

def chain_loop(k, sc, prof, tag, qdelay=0):
    T = tag
    late = []
    k(f'L_step{T}:')
    k('s_barrier')
    k(f's_cmp_lt_u32 s{SW}, 4\ns_cbranch_scc1 L_aw{T}')
    if prof: k('s_memrealtime s[80:81]')
    for i in range(10): k(f'ds_read_b128 {v(MF+4*i,4)}, v{V_MF} offset:{i*1024}')
    chain_offsets(k, 'q')
    for i in range(10):
        k(f's_waitcnt lgkmcnt({9-i})')
        k(f'v_smfmac_f32_16x16x64_bf16 {v(DA,4)}, {v(MF+4*i,4)}, {v(W1+8*i,8)}, v{V_IDX}')
        k(f'v_smfmac_f32_16x16x64_bf16 {v(DB,4)}, {v(MF+4*i,4)}, {v(W1+80+8*i,8)}, v{V_IDX}')
    k(f"""s_cmp_eq_u32 s{S_M}, 2
s_mov_b64 vcc, s[{M_EVEN}:{M_EVEN+1}]
v_permlane32_swap_b32 v{DA}, v{DA+1}
v_permlane32_swap_b32 v{DA+2}, v{DA+3}
v_add_f32 v{DA}, v{DA}, v{DA+1}
v_add_f32 v{DA+2}, v{DA+2}, v{DA+3}
v_permlane32_swap_b32 v{DB}, v{DB+1}
v_permlane32_swap_b32 v{DB+2}, v{DB+3}
v_add_f32 v{DB}, v{DB}, v{DB+1}
v_add_f32 v{DB+2}, v{DB+2}, v{DB+3}
s_cbranch_scc1 L_s1v{T}
v_cndmask_b32_dpp v224, v{DA+2}, v{DA}, vcc quad_perm:[1,0,3,2] row_mask:0xf bank_mask:0xf
v_cndmask_b32_dpp v226, v{DB+2}, v{DB}, vcc quad_perm:[1,0,3,2] row_mask:0xf bank_mask:0xf
s_mov_b64 vcc, s[{M_ODD}:{M_ODD+1}]
v_cndmask_b32_dpp v225, v{DA}, v{DA+2}, vcc quad_perm:[1,0,3,2] row_mask:0xf bank_mask:0xf
v_cndmask_b32_dpp v227, v{DB}, v{DB+2}, vcc quad_perm:[1,0,3,2] row_mask:0xf bank_mask:0xf
v_cvt_pk_bf16_f32 v12, v224, v225
v_cvt_pk_bf16_f32 v13, v226, v227
s_branch L_s1s{T}
L_s1v{T}:
v_cvt_pk_bf16_f32 v12, v{DA}, v{DA+2}
v_cvt_pk_bf16_f32 v13, v{DB}, v{DB+2}
L_s1s{T}:
buffer_store_dword v12, v{V_A4}, {WS}, s{S_QC} offen{sc}
buffer_store_dword v13, v{V_A5}, {WS}, s{S_QC} offen{sc}""")
    if prof: k('s_memrealtime s[82:83]')
    k(f"""s_cmp_eq_u32 s{SSTEP}, 63
s_cbranch_scc1 L_fin
s_cmp_ge_u32 s{S_I}, 10
s_cbranch_scc1 L_s1only{T}
s_barrier""")
    chain_offsets(k, 'r')
    clr = f"""v_mov_b32 v14, -1
buffer_store_dword v14, v{V_A4}, {WS}, s{S_QZ} offen{sc}
buffer_store_dword v14, v{V_A5}, {WS}, s{S_QZ} offen{sc}"""
    k(clr)
    for i in range(8): k(f'v_mov_b32 v{DA+i}, 0')
    KL = k.lab('kvl')
    k(f's_add_u32 s61, s{SSTEP}, 2\ns_mov_b32 s62, 1\ns_cmp_ge_u32 s{S_AVAIL}, s61\ns_cbranch_scc1 {KL}')
    k(f"""buffer_load_dword v13, v{V_A9}, {WS}, 0 offen sc1
s_waitcnt vmcnt(0)
v_readlane_b32 s34, v13, 0
v_readlane_b32 s35, v13, 1
s_min_u32 s{S_AVAIL}, s34, s35
s_cmp_ge_u32 s{S_AVAIL}, s61
s_cselect_b32 s62, 1, 0
{KL}:""")
    delay(k, OPT['dd'])
    KS = k.lab('kvs')
    k(f's_cmp_eq_u32 s62, 0\ns_cbranch_scc1 {KS}')
    if not NOKV: kv_copies(k, S_KXN, S_VXN)
    k(f'{KS}:')
    k('s_barrier')
    if prof: k('s_memrealtime s[88:89]')
    k(f's_cmp_ge_u32 s{SW}, 6\ns_cbranch_scc1 L_bw6{T}')
    for w in range(4): k(f'ds_read_b128 {v(176+4*w,4)}, v{V_A6} offset:{w*2048}')
    k(f"""s_waitcnt lgkmcnt(2)
v_pk_add_f32 v[176:177], v[176:177], v[180:181]
v_pk_add_f32 v[178:179], v[178:179], v[182:183]
s_waitcnt lgkmcnt(0)
v_pk_add_f32 v[184:185], v[184:185], v[188:189]
v_pk_add_f32 v[186:187], v[186:187], v[190:191]
v_pk_add_f32 v[176:177], v[176:177], v[184:185]
v_pk_add_f32 v[178:179], v[178:179], v[186:187]
buffer_store_dwordx4 v[176:179], v{V_A7}, {WS}, s{S_PC} offen sc1
{'s_memrealtime s[90:91]' if prof else ''}
v_mov_b32 v180, -1
v_mov_b32 v181, -1
v_mov_b32 v182, -1
v_mov_b32 v183, -1
buffer_store_dwordx4 v[180:183], v{V_A7}, {WS}, s{S_PZ} offen sc1
""")
    k(f's_branch L_b3{T}\nL_bw6{T}:')
    k(f's_cmp_lg_u32 s{SW}, 6\ns_cbranch_scc1 L_b3{T}')
    delay(k, OPT['dp'])
    if prof: k('s_memrealtime s[90:91]')
    spins = []
    for g in range(8): k(f'buffer_load_dwordx4 {v(176+4*g,4)}, v{240+g}, {WS}, s{S_PC} offen sc1')
    PR, PC, PB = k.lab('pps'), k.lab('ppc'), k.lab('ppb')
    k(f's_mov_b32 s39, 0\n{PC}:')
    for g in range(8):
        k(f's_waitcnt vmcnt({7-g})')
        if g == 0: k('v_mov_b32 v224, v176')
        else:
            k(f'v_max_u32 v224, v224, v{176+4*g}')
            k(f'v_pk_add_f32 v[176:177], v[176:177], {v(176+4*g,2)}\nv_pk_add_f32 v[178:179], v[178:179], {v(178+4*g,2)}')
    k(f'v_cmp_eq_u32 vcc, -1, v224\ns_cbranch_vccnz {PR}\n{PB}:')
    spins.append((PR, PC, PB, [f'buffer_load_dwordx4 {v(176+4*gg,4)}, v{240+gg}, {WS}, s{S_PC} offen sc1' for gg in range(8)], OPT['sx']))
    if prof: k('s_memrealtime s[92:93]\ns_mov_b32 s63, s39')
    k(f"""v_cvt_pk_bf16_f32 v176, v176, v177
v_cvt_pk_bf16_f32 v177, v178, v179
buffer_store_dword v176, v{V_A6}, {WS}, s{S_MEMN} offen{sc}
buffer_store_dword v177, v{V_A6}, {WS}, s{S_MEMN} offen offset:128{sc}
L_b3{T}:
s_barrier""")
    def mem_poll(sleep):
        A, D = k.lab('mA'), k.lab('mD')
        k(f's_cmp_ge_u32 s{SW}, 6\ns_cbranch_scc1 {A}')
        for n in (3, 2):
            srcs = [S_MEMN, S_MEMN4, S_MEMN8][:n]
            for i, sr in enumerate(srcs): k(f'buffer_load_dwordx4 {v(176+4*i,4)}, v{V_A3}, {WS}, s{sr} offen sc1')
            k('s_mov_b32 s39, 0')
            for i, sr in enumerate(srcs):
                R_, C_, B_ = k.lab('pms'), k.lab('pmc'), k.lab('pmb')
                k(f"""{C_}:
s_waitcnt vmcnt({n-1-i})
v_max3_u32 v224, v{176+4*i}, v{177+4*i}, v{178+4*i}
v_max_u32 v224, v224, v{179+4*i}
v_cmp_eq_u32 vcc, -1, v224
s_cbranch_vccnz {R_}
{B_}:
ds_write_b128 v{V_MW}, {v(176+4*i,4)} offset:{i*4096}""")
                spins.append((R_, C_, B_, [f'buffer_load_dwordx4 {v(176+4*ii,4)}, v{V_A3}, {WS}, s{srcs[ii]} offen sc1' for ii in range(i, n)], OPT['sm'] if sleep == 0 else OPT['so']))
            if n == 3: k(f's_branch {D}\n{A}:')
        k(f'{D}:')
    if prof: k('s_memrealtime s[94:95]')
    delay(k, OPT['dm'])
    mem_poll(0)
    if prof: k('s_mov_b32 s64, s39')
    KZ = k.lab('kvz')
    k(f's_cmp_lg_u32 s62, 0\ns_cbranch_scc1 {KZ}')
    kv_wait(k, 61)
    if not NOKV: kv_copies(k, S_KXN, S_VXN)
    k(f's_waitcnt vmcnt(0)\n{KZ}:')
    k(f"""s_cmp_lg_u32 s{SW}, 6
s_cbranch_scc1 L_next{T}
v_mov_b32 v14, -1
buffer_store_dword v14, v{V_A6}, {WS}, s{S_MEMZ} offen{sc}
buffer_store_dword v14, v{V_A6}, {WS}, s{S_MEMZ} offen offset:128{sc}
L_next{T}:""")
    if prof:
        k('s_memrealtime s[96:97]\ns_waitcnt lgkmcnt(0)\ns_mov_b32 m0, s40')
        pA, pD = k.lab('pfA'), k.lab('pfD')
        k(f's_cmp_lt_u32 s{SW}, 4\ns_cbranch_scc1 {pA}')
        for n, r in enumerate((80, 82, 88, 90, 92, 94, 96)): k(f'v_writelane_b32 v{248+n}, s{r}, m0')
        k('s_lshl_b32 s63, s63, 16\ns_or_b32 s63, s63, s64\nv_writelane_b32 v255, s63, m0')
        k(f's_branch {pD}\n{pA}:')
        for n, r in enumerate((80, 84, 86, 96)): k(f'v_writelane_b32 v{252+n}, s{r}, m0')
        pass
        k(f'{pD}:')
    if OPT['lite']:
        l1, l2 = k.lab('lt'), k.lab('lt')
        k(f"""s_cmp_eq_u32 s{SSTEP}, {OPT['la']}
s_cbranch_scc0 {l1}
s_memrealtime s[90:91]
s_memtime s[94:95]
{l1}:
s_cmp_eq_u32 s{SSTEP}, {OPT['lb']}
s_cbranch_scc0 {l2}
s_memrealtime s[92:93]
s_memtime s[96:97]
{l2}:""")
    if OPT['lite'] > 1:
        k(f's_memrealtime s[88:89]\ns_waitcnt lgkmcnt(0)\ns_mov_b32 m0, s{SSTEP}\nv_writelane_b32 v254, s88, m0')
    if DBGST:
        l4 = k.lab('d4')
        k(f's_cmp_lg_u32 s{SSTEP}, 4\ns_cbranch_scc1 {l4}')
        dstamp(k, 13, 0, 0, 6)
        k(f'{l4}:')
    k(f"""s_waitcnt lgkmcnt(0)
s_add_u32 s{SSTEP}, s{SSTEP}, 1
s_branch L_step{T}""")
    k(f'L_s1only{T}:')
    chain_offsets(k, 'r')
    k('s_mov_b32 s62, 1')
    k(f"""v_mov_b32 v14, -1
buffer_store_dword v14, v{V_A4}, {WS}, s{S_QZ} offen{sc}
buffer_store_dword v14, v{V_A5}, {WS}, s{S_QZ} offen{sc}""")
    for i in range(8): k(f'v_mov_b32 v{DA+i}, 0')
    delay(k, OPT['ds1'])
    mem_poll(1)
    k(f's_branch L_next{T}')
    k(f'L_aw{T}:')
    chain_offsets(k, 'qr')
    k(f"""s_cmp_ge_u32 s{S_I}, 10
s_cbranch_scc1 L_aidle{T}
s_cmp_eq_u32 s{SSTEP}, 63
s_cbranch_scc1 L_fin""")
    if prof: k('s_memrealtime s[80:81]')
    delay(k, OPT['da'])
    for i in range(8): k(f'ds_read_b128 {v(KXR+4*i,4)}, v14 offset:{i*1024}')
    k('s_waitcnt lgkmcnt(0)')
    for i in range(8): k(f'ds_read_b128 {v(VXR+4*i,4)}, v14 offset:{8192 + i*1024}')
    k('s_waitcnt lgkmcnt(0)')
    k('s_barrier')
    delay(k, OPT['dq'])
    k('s_mov_b32 s39, 0')
    for ks in range(4): k(f'buffer_load_dwordx4 {v(QK+4*ks,4)}, v{V_A3}, {WS}, s{S_QC} offen offset:{ks*1024} sc1')
    delay(k, OPT['dv'])
    for u in range(2): k(f'buffer_load_dwordx4 {v(VM+4*u,4)}, v{V_A3}, {WS}, s{S_QC4} offen offset:{u*1024} sc1')
    k('s_waitcnt vmcnt(2)')
    LQM = k.lab('pqm')
    k(f'{LQM}:')
    if OPT['p2']: k('s_memtime s[80:81]')
    mf = []
    for ks in range(4): mf.append(f'v_mfma_f32_16x16x32_bf16 {v(S0,4)}, {v(KXR+4*ks,4)}, {v(QK+4*ks,4)}, {"0" if ks == 0 else v(S0,4)}')
    for ks in range(4): mf.append(f'v_mfma_f32_16x16x32_bf16 {v(S1,4)}, {v(KXR+16+4*ks,4)}, {v(QK+4*ks,4)}, {"0" if ks == 0 else v(S1,4)}')
    for ks in range(4): mf.append(f'v_mfma_f32_16x16x32_bf16 {v(SM,4)}, {v(QK+4*ks,4)}, {v(QK+4*ks,4)}, {v(NEG,4) if ks == 0 else v(SM,4)}')
    chk = [f'v_max3_u32 v244, v{QK}, v{QK+1}, v{QK+2}'] + [f'v_max3_u32 v244, v244, v{QK+3+2*n}, v{QK+4+2*n}' for n in range(6)] + [f'v_max_u32 v244, v244, v{QK+15}']
    interleave(k, mf[:4], chk)
    k(mf[4]); k('v_cmp_eq_u32 vcc, -1, v244')
    QR = k.lab('pqr')
    k(mf[5]); k(f's_cbranch_vccnz {QR}')
    qspin = (QR, LQM)
    LQX = k.lab('pqx')
    k(f'{LQX}:')
    k(mf[6]); k(f'v_mov_b32 v{PM2}, 0\nv_mov_b32 v{PM2+1}, 0')
    k(mf[7])
    k(mf[8]); k(f'v_max3_f32 v244, v{S0}, v{S0+1}, v{S0+2}')
    k(mf[9]); k(mf[10])
    k(f'v_max3_f32 v244, v244, v{S0+3}, v{S1}')
    k(mf[11])
    if OPT['p2']: k('s_memtime s[82:83]')
    k(f"""v_max3_f32 v244, v244, v{S1+1}, v{S1+2}
v_max_f32 v244, v244, v{S1+3}""")
    if prof: k('s_memrealtime s[84:85]')
    k(f"""v_max3_f32 v244, v244, v{SM}, v{SM+1}
v_max3_f32 v244, v244, v{SM+2}, v{SM+3}
v_mov_b32 v245, v244
v_permlane16_swap_b32 v244, v245
v_max_f32 v244, v244, v245
v_mov_b32 v245, v244
v_permlane32_swap_b32 v244, v245
v_max_f32 v244, v244, v245
v_mul_f32 v244, s{S_NC}, v244
v_mul_f32 v245, 1.0, v244""")
    if OPT['p2']: k('s_memtime s[84:85]')
    for i in range(0, 12, 2): k(f'v_pk_fma_f32 {v(S0+i,2)}, {v(S0+i,2)}, s[66:67], v[244:245]')
    for i in range(8): k(f'v_exp_f32 v{S0+i}, v{S0+i}')
    k(f"""v_cvt_pk_bf16_f32 v{PX}, v{S0}, v{S0+1}
v_cvt_pk_bf16_f32 v{PX+1}, v{S0+2}, v{S0+3}
v_cvt_pk_bf16_f32 v{PX+2}, v{S1}, v{S1+1}
v_cvt_pk_bf16_f32 v{PX+3}, v{S1+2}, v{S1+3}""")
    VR, VB = k.lab('pvr'), k.lab('pvb')
    k('s_waitcnt vmcnt(0)')
    k(f'v_max3_u32 v247, v{VM}, v{VM+1}, v{VM+2}\nv_max3_u32 v247, v247, v{VM+3}, v{VM+4}')
    if OPT['p2']: k('s_memtime s[86:87]')
    mf = [f'v_mfma_f32_16x16x32_bf16 {v(O+4*te,4)}, {v(VXR+4*te,4)}, {v(PX,4)}, 0' for te in range(8)]
    k(mf[0]); k(f'v_exp_f32 v{SM}, v{SM}\nv_max3_u32 v247, v247, v{VM+5}, v{VM+6}')
    k(mf[1]); k(f'v_exp_f32 v{SM+1}, v{SM+1}\nv_max_u32 v247, v247, v{VM+7}')
    k(mf[2]); k(f'v_exp_f32 v{SM+2}, v{SM+2}\nv_add_f32 v245, v{S0}, v{S0+1}')
    k(mf[3]); k(f'v_exp_f32 v{SM+3}, v{SM+3}\nv_add_f32 v246, v{S0+2}, v{S0+3}')
    k(mf[4]); k(f'v_cvt_pk_bf16_f32 v{PM}, v{SM}, v{SM+2}\nv_cvt_pk_bf16_f32 v{PM+1}, v{SM+1}, v{SM+3}\nv_cmp_eq_u32 vcc, -1, v247')
    k(mf[5]); k(f'v_mov_b32 v188, v{PM}\nv_mov_b32 v189, v{PM+1}')
    k(mf[6]); k(f'v_add_f32 v245, v245, v{S1}\nv_add_f32 v246, v246, v{S1+1}')
    k(mf[7]); k(f'v_permlane32_swap_b32 v188, v{PM2}\nv_permlane32_swap_b32 v189, v{PM2+1}')
    k(f's_cbranch_vccnz {VR}\n{VB}:')
    mf = []
    for te in range(8):
        u, t4 = te // 4, te % 4
        a = VM + 4*u + 2*(t4 // 2); b = PM if t4 % 2 == 0 else PM2
        mf.append(f'v_mfma_f32_16x16x16_bf16 {v(O+4*te,4)}, {v(a,2)}, {v(b,2)}, {v(O+4*te,4)}')
    def cv(te): return [f'v_cvt_pk_bf16_f32 v{OB+4*(te//2)+2*(te%2)}, v{O+4*te}, v{O+4*te+1}', f'v_cvt_pk_bf16_f32 v{OB+4*(te//2)+2*(te%2)+1}, v{O+4*te+2}, v{O+4*te+3}']
    if OPT['p2']: k('s_memtime s[88:89]')
    k(mf[0]); k(f'v_add_f32 v245, v245, v{SM}\nv_add_f32 v246, v246, v{SM+1}')
    k(mf[1]); k(f'v_add_f32 v245, v245, v{SM+2}\nv_add_f32 v246, v246, v{SM+3}')
    k(mf[2]); k(f'v_add_f32 v245, v245, v{S1+2}\nv_add_f32 v246, v246, v{S1+3}')
    k(mf[3]); k('v_add_f32 v245, v245, v246\nv_mov_b32 v246, v245')
    for n in range(4):
        k(mf[4+n])
        for x in cv(n): k(x)
    mo = [[f'v_mfma_f32_16x16x32_bf16 {v(OA+4*ct,4)}, {v(WO+16*ct+4*ks,4)}, {v(OB+4*ks,4)}, {"0" if ks == 0 else v(OA+4*ct,4)}' for ct in range(4)] for ks in range(4)]
    if OPT['p2']: k('s_memtime s[90:91]')
    k(mo[0][0]); k('v_permlane16_swap_b32 v245, v246')
    k(mo[0][1]); k(cv(4)[0]); k(cv(4)[1])
    k(mo[0][2]); k(cv(5)[0]); k(cv(5)[1])
    k(mo[0][3]); k('v_add_f32 v245, v245, v246\nv_mov_b32 v246, v245')
    k(mo[1][0]); k(cv(6)[0]); k(cv(6)[1])
    k(mo[1][1]); k(cv(7)[0]); k(cv(7)[1])
    k(mo[1][2]); k('v_permlane32_swap_b32 v245, v246')
    k(mo[1][3]); k('v_add_f32 v245, v245, v246')
    k(mo[2][0]); k('v_rcp_f32 v245, v245')
    k(mo[3][0]); k(mo[2][1]); k('v_mov_b32 v244, v245')
    for x in (mo[3][1], mo[2][2], mo[3][2], mo[2][3], mo[3][3]): k(x)
    if OPT['p2']: k('s_memtime s[92:93]')
    for p in range(2):
        for i in range(0, 8, 2): k(f'v_pk_mul_f32 {v(OA+8*p+i,2)}, {v(OA+8*p+i,2)}, v[244:245]')
        for i in range(4):
            k(f'v_mov_b32_dpp v{OA+8*p+i}, v{OA+8*p+4+i} row_shr:8 row_mask:0xf bank_mask:0xc')
        k(f'ds_write_b128 v{V_A5}, {v(OA+8*p,4)} offset:{p*1024}')
    if OPT['p2']: k('s_memtime s[94:95]')
    k('s_waitcnt lgkmcnt(0)')
    if prof: k('s_memrealtime s[86:87]')
    if OPT['p2']:
        k('s_memtime s[96:97]\ns_waitcnt lgkmcnt(0)\ns_mov_b32 m0, s40')
        for n in range(8): k(f's_sub_u32 s34, s{82+2*n}, s{80+2*n}\nv_writelane_b32 v{248+n}, s34, m0')
    k('s_barrier')
    k(f's_barrier\ns_branch L_next{T}')
    def emit_spin(R_, C_, B_, loads, slp):
        k(f"""{R_}:
s_add_u32 s39, s39, 1
s_cmp_ge_u32 s39, s{SLIM}
s_cbranch_scc1 {R_}_t""")
        delay(k, slp)
        for x in loads: k(x)
        k(f's_branch {C_}\n{R_}_t:\ns_mov_b32 s{SLIM}, 0\ns_waitcnt vmcnt(0)\ns_branch {B_}')
    QR, LQM = qspin
    k(f"""{QR}:
s_add_u32 s39, s39, 1
s_cmp_ge_u32 s39, s{SLIM}
s_cbranch_scc1 {QR}_t""")
    delay(k, OPT['sq'])
    for ks in range(4): k(f'buffer_load_dwordx4 {v(QK+4*ks,4)}, v{V_A3}, {WS}, s{S_QC} offen offset:{ks*1024} sc1')
    k(f's_waitcnt vmcnt(0)\ns_branch {LQM}\n{QR}_t:\ns_mov_b32 s{SLIM}, 0\ns_branch {LQX}')
    k(f"""{VR}:
s_add_u32 s39, s39, 1
s_cmp_ge_u32 s39, s{SLIM}
s_cbranch_scc1 {VR}_t""")
    for u in range(2): k(f'buffer_load_dwordx4 {v(VM+4*u,4)}, v{V_A3}, {WS}, s{S_QC4} offen offset:{u*1024} sc1')
    k('s_waitcnt vmcnt(0)')
    umax_check(k, range(VM, VM+8), 247)
    k(f's_cbranch_vccnz {VR}\ns_branch {VB}\n{VR}_t:\ns_mov_b32 s{SLIM}, 0\ns_branch {VB}')
    late.append(lambda: [emit_spin(*x) for x in spins])
    k(f"""L_aidle{T}:
s_cmp_eq_u32 s{S_I}, 10
s_cbranch_scc0 L_awarm{T}""")
    def qloads():
        for ks in range(4): k(f'buffer_load_dwordx4 {v(QK+4*ks,4)}, v{V_A3}, {WS}, s{S_QC} offen offset:{ks*1024} sc1')
        for u in range(2): k(f'buffer_load_dwordx4 {v(VM+4*u,4)}, v{V_A3}, {WS}, s{S_QC4} offen offset:{u*1024} sc1')
    delay(k, OPT['dk'])
    poll(k, 'pk' + T, qloads, lambda: umax_check(k, list(range(QK, QK+16)) + list(range(VM, VM+8)), 244), sleep=2)
    for ks in range(4): k(f'buffer_store_dwordx4 {v(QK+4*ks,4)}, v{V_A3}, {WS}, s{S_KP} offen offset:{ks*1024} sc1')
    for u in range(2): k(f'buffer_store_dwordx4 {v(VM+4*u,4)}, v{V_A3}, {WS}, s{S_KP4} offen offset:{u*1024} sc1')
    k(f"""s_waitcnt vmcnt(0)
s_lshl_b32 s34, s{S_G}, 2
s_add_u32 s34, s34, s{SW}
s_lshl_b32 s34, s34, 2
s_add_u32 s34, s34, {F_KVM}
s_add_u32 s35, s{SSTEP}, 1
v_mov_b32 v244, s34
v_mov_b32 v245, s35
s_mov_b64 exec, 1
buffer_store_dword v245, v244, {WS}, 0 offen sc1
s_mov_b64 exec, -1
s_cmp_eq_u32 s{SSTEP}, 63
s_cbranch_scc1 L_fin
s_branch L_next{T}
L_awarm{T}:
s_cmp_eq_u32 s{SSTEP}, 63
s_cbranch_scc1 L_fin""")
    if OPT['warm']:
        W = k.lab('wsk')
        k(f's_add_u32 s36, s{SSTEP}, 3\ns_cmp_gt_u32 s36, 64\ns_cbranch_scc1 {W}')
        delay(k, OPT['dw'])
        k(f"""buffer_load_dword v13, v{V_A9}, {WS}, 0 offen sc1
s_waitcnt vmcnt(0)
v_readlane_b32 s34, v13, 0
v_readlane_b32 s35, v13, 1
s_min_u32 s34, s34, s35
s_cmp_lt_u32 s34, s36
s_cbranch_scc1 {W}
s_add_u32 s36, s{SSTEP}, 2
s_lshl_b32 s36, s36, 18
s_add_u32 s37, s36, {VX}
s_add_u32 s36, s36, {KX}""")
        kv_loads(k, 36, 37)
        k(f'{W}:')
    k(f's_branch L_next{T}')
    for f in late: f()

def chain_fin(k, prof):
    k('L_fin:')
    if OPT['p2']:
        k(f"""s_lshl_b32 s34, s{SX}, 5
s_add_u32 s34, s34, s{SR}
s_lshl_b32 s34, s34, 3
s_add_u32 s34, s34, s{SW}
s_lshl_b32 s34, s34, 11
s_add_u32 s34, s34, 0x8000000
v_lshlrev_b32 v10, 2, v1
v_add_u32 v10, s34, v10""")
        for n in range(8): k(f'buffer_store_dword v{248+n}, v10, {WS}, 0 offen offset:{n*256}')
    dstamp(k, 5, 0, 0)
    if OPT['lite']:
        k(f"""s_sub_u32 s34, s92, s90
v_mov_b32 v12, s34
s_lshl_b32 s34, s{SX}, 5
s_add_u32 s34, s34, s{SR}
s_lshl_b32 s34, s34, 3
s_add_u32 s34, s34, s{SW}
s_lshl_b32 s34, s34, 2
s_add_u32 s34, s34, 0x8800000
v_mov_b32 v10, s34
buffer_store_dword v12, v10, {WS}, 0 offen
s_sub_u32 s34, s96, s94
v_mov_b32 v12, s34
v_add_u32 v10, 0x10000, v10
buffer_store_dword v12, v10, {WS}, 0 offen""")
    if OPT['lite'] > 1:
        k(f"""s_lshl_b32 s34, s{SX}, 5
s_add_u32 s34, s34, s{SR}
s_lshl_b32 s34, s34, 3
s_add_u32 s34, s34, s{SW}
s_lshl_b32 s34, s34, 8
s_add_u32 s34, s34, 0x8a00000
v_lshlrev_b32 v10, 2, v1
v_add_u32 v10, s34, v10
buffer_store_dword v254, v10, {WS}, 0 offen""")
    if prof:
        k(f"""s_lshl_b32 s34, s{SX}, 5
s_add_u32 s34, s34, s{SR}
s_lshl_b32 s34, s34, 3
s_add_u32 s34, s34, s{SW}
s_lshl_b32 s34, s34, 11
s_add_u32 s34, s34, 0x8000000
v_lshlrev_b32 v10, 2, v1
v_add_u32 v10, s34, v10
s_cmp_lt_u32 s{SW}, 4
s_cbranch_scc1 L_fin0""")
        for n in range(8): k(f'buffer_store_dword v{248+n}, v10, {WS}, 0 offen offset:{n*256}')
        k('s_branch L_end\nL_fin0:')
        for n in range(4): k(f'buffer_store_dword v{252+n}, v10, {WS}, 0 offen offset:{n*256}')
    k('s_branch L_end')

def build(prof=False, roles=('chain',), keepflags=False, qdelay=0):
    k = Kern()
    import brole, proj, attout
    brole.validate = proj.validate = attout.validate = validate
    attout.calibrate = calibrate
    attout.CALSLEEP = OPT['calsleep']
    brole.help_prefetch = attout.help_prefetch = help_prefetch if OPT['help'] else (lambda k: None)
    start_phase(k, keepflags)
    on = lambda r: r in roles
    R = lambda r, l: l if on(r) else 'L_end'
    k(f'''s_cmp_ge_u32 s{SX}, 4
s_cbranch_scc1 L_hi
s_cmp_lt_u32 s{SR}, 24
s_cbranch_scc1 {R('chain', 'L_chain')}
s_lshl_b32 s41, s{SX}, 3
s_add_u32 s41, s41, s{SR}
s_add_u32 s41, s41, 8
s_branch {R('b', 'L_brole')}
L_hi:
s_sub_u32 s34, s{SX}, 4
s_mul_i32 s41, s34, 12
s_add_u32 s41, s41, s{SR}
s_cmp_lt_u32 s{SR}, 12
s_cbranch_scc1 {R('proj', 'L_proj')}
s_lshl_b32 s41, s34, 3
s_add_u32 s41, s41, s{SR}
s_sub_u32 s41, s41, 12
s_cmp_lt_u32 s{SR}, 20
s_cbranch_scc1 {R('b', 'L_brole')}
s_mul_i32 s41, s34, 10
s_add_u32 s41, s41, s{SR}
s_sub_u32 s41, s41, 20
s_cmp_lt_u32 s{SR}, 30
s_cbranch_scc1 {R('out', 'L_out')}
s_lshl_b32 s41, s34, 1
s_add_u32 s41, s41, s{SR}
s_sub_u32 s41, s41, 30
s_branch {R('att', 'L_att')}''')
    if on('proj'): proj_role(k)
    if on('att'): att_role(k)
    if on('out'): out_role(k)
    if on('b'): b_role(k)
    if on('chain'):
        chain_prologue(k)
        mark(k, 1)
        dstamp(k, 3, 0, 0)
        k(f's_cmp_lg_u32 s{SSLOW}, 0\ns_cbranch_scc1 L_stepS')
        chain_loop(k, '', prof, 'F', qdelay)
        chain_loop(k, ' sc1', False, 'S')
        chain_fin(k, prof)
    k('L_end:')
    dstamp(k, 9, 7, 20)
    dstamp(k, 11, 4, 12)
    dstamp(k, 7, 4, 0)
    if TL:
        k(f'''s_memrealtime s[82:83]
s_waitcnt lgkmcnt(0)
v_mov_b32 v20, s84
v_mov_b32 v21, s85
v_mov_b32 v22, s86
v_mov_b32 v23, s87
v_mov_b32 v24, s82
s_lshl_b32 s34, s{SX}, 5
s_add_u32 s34, s34, s{SR}
s_lshl_b32 s34, s34, 3
s_add_u32 s34, s34, s{SW}
s_lshl_b32 s34, s34, 5
s_add_u32 s34, s34, 0x8900000
v_mov_b32 v25, s34
s_mov_b64 exec, 1
buffer_store_dwordx4 v[20:23], v25, {WS}, 0 offen
buffer_store_dword v24, v25, {WS}, 0 offen offset:16''')
    k('L_exit:\ns_endpgm')
    body, nops = k.text()
    head = f'''; @launch grid=(256,1,1) block=(512,1,1) lds=163840
.amdgcn_target "amdgcn-amd-amdhsa--gfx950"
.text
.globl {NAME}
.p2align 8
.type {NAME},@function
{NAME}:
'''
    tail = f'''
.section .rodata,"a"
.p2align 6
.amdhsa_kernel {NAME}
  .amdhsa_next_free_vgpr 256
  .amdhsa_next_free_sgpr 102
  .amdhsa_accum_offset 256
  .amdhsa_group_segment_fixed_size 0
  .amdhsa_kernarg_size 104
  .amdhsa_user_sgpr_count 2
  .amdhsa_user_sgpr_kernarg_segment_ptr 1
  .amdhsa_system_sgpr_workgroup_id_x 1
.end_amdhsa_kernel
'''
    return head + '\n'.join(body) + tail, nops

if __name__ == '__main__':
    out = sys.argv[1]
    opts = dict(a.split('=') for a in sys.argv[2:] if '=' in a)
    if 'kvsc' in opts: KVSC = {'p': '', 's': ' sc1', 'n': ' nt', '0': ' sc0'}[opts['kvsc']]
    NOKV = 'nokv' in sys.argv[2:]
    TL = 'tl' in sys.argv[2:]
    DBGST = 'dbgst' in sys.argv[2:]
    import brole, proj, attout
    brole.mark = proj.mark = attout.mark = mark
    brole.BMODE = int(opts.get('bmode', 0))
    for o in OPT:
        if o in opts: OPT[o] = int(opts[o])
    proj.SELFP = OPT['selfp']
    proj.LITE = OPT['lite']; proj.PMARK = int(opts.get('pmark', -1))
    brole.OUTSC = attout.OUTSC = {0: '', 1: ' sc1', 2: ' nt', 3: ' sc0 sc1'}[OPT['outsc']]
    brole.SLEEP = OPT['bsleep']; attout.OSLEEP = OPT['osleep']; attout.XWARM = OPT['xwarm']
    txt, nops = build(prof='prof' in sys.argv[2:], keepflags='keepflags' in sys.argv[2:], qdelay=int(opts.get('qdelay', 0)), roles=opts.get('roles', 'chain').split(','))
    open(out, 'w').write(txt)
    print('wrote', out, 'lines', txt.count('\n'), 'nop states', nops)
```

```python
import math, struct
from dsl import v, s
from layout import *
import proj
from proj import srd
WS = 's[8:11]'
SX, SR, SW, SLIM = 28, 29, 30, 33
def f32bits(x): return struct.unpack('<I', struct.pack('<f', x))[0]

def flag_wait(k, name, vaddr, nl, sneed, soff='0', tmp=13, sleep=8):
    L, D = k.lab(name), k.lab(name + 'd')
    k(f'''s_mov_b32 s39, 0
s_mov_b64 s[70:71], exec
s_mov_b32 exec_lo, {((1 << nl) - 1) & 0xffffffff:#x}
s_mov_b32 exec_hi, {((1 << nl) - 1) >> 32:#x}
{L}:
buffer_load_dword v{tmp}, v{vaddr}, {WS}, {soff} offen sc1
s_waitcnt vmcnt(0)
v_cmp_gt_u32 vcc, s{sneed}, v{tmp}
s_cbranch_vccz {D}
s_sleep {sleep}
s_add_u32 s39, s39, 1
s_cmp_lt_u32 s39, s{SLIM}
s_cbranch_scc1 {L}
s_mov_b32 s{SLIM}, 0
{D}:
s_mov_b64 exec, s[70:71]''')

mark = lambda k, n: None
OSLEEP = 0
CALSLEEP = 0
OUTSC = ''
XWARM = 0
def att_role(k):
    QX_, KX_, VX_, QM, VM, NEG, DIAG = 16, 48, 80, 112, 128, 136, 140
    S0, S1, SM, PX, PM, PM2, O, T = 144, 148, 152, 156, 160, 162, 168, 200
    SH, SS, SC, SNC = 42, 40, 78, 79
    k('L_att:')
    help_prefetch(k)
    k(f'''
s_lshl_b32 s34, s41, 3
s_add_u32 s34, s34, s{SW}
s_and_b32 s{SH}, s34, 31
s_lshr_b32 s{SS}, s34, 5
s_mov_b32 s{SC}, {f32bits(128**-0.5 * math.log2(math.e)):#x}
s_mov_b32 s{SNC}, {f32bits(-(128**-0.5) * math.log2(math.e)):#x}
v_lshlrev_b32 v2, 4, v1
s_lshl_b32 s34, s{SH}, 13
v_add_u32 v3, s34, v2
s_mul_i32 s34, s{SH}, 6144
v_add_u32 v4, s34, v2
; masks
v_cmp_gt_u32 vcc, 32, v1
v_mov_b32 v10, 0
v_mov_b32 v11, 0xf149f2ca
v_cndmask_b32 v{NEG}, v10, v11, vcc
v_mov_b32 v{NEG+1}, v{NEG}
v_mov_b32 v{NEG+2}, v{NEG}
v_mov_b32 v{NEG+3}, v{NEG}
v_lshrrev_b32 v12, 4, v1
v_lshlrev_b32 v12, 2, v12             ; 4g
v_and_b32 v13, 15, v1''')
    for i in range(4):
        k(f'v_add_u32 v14, {i}, v12\nv_cmp_gt_u32 vcc, v14, v13\nv_cndmask_b32 v{DIAG+i}, v10, v11, vcc')
    validate(k)
    k(f's_cmp_lg_u32 s41, 0\ns_cbranch_scc1 L_att_par')
    for _ in range(CALSLEEP): k('s_sleep 127')
    calibrate(k)
    k('L_att_par:')
    par_wait(k)
    k(f'''; flag addresses: lanes 0..2 -> q/k/v projection flags; v6 -> persisted k_m/v_m count
s_lshr_b32 s34, s{SH}, 1
v_lshlrev_b32 v5, 4, v1
v_add_u32 v5, s34, v5
v_lshlrev_b32 v5, 2, v5
v_add_u32 v5, s100, v5
s_lshl_b32 s34, s{SH}, 7
s_add_u32 s34, s34, {F_KVM}
s_add_u32 s34, s34, s100
v_mov_b32 v6, s34''')
    k('L_att_warm:')
    if XWARM == 1:
        k('s_load_dwordx2 s[4:5], s[0:1], 0\ns_waitcnt lgkmcnt(0)')
        srd(k, 16, 4, 2048*1280)
        k('s_lshl_b32 s34, s41, 9\nv_add_u32 v10, s34, v0\nv_lshlrev_b32 v10, 6, v10')
        for i in range(10): k(f's_mov_b32 s34, {i*4096*64}\nbuffer_load_dword v{210+i}, v10, s[16:19], s34 offen')
        k('s_waitcnt vmcnt(0)')
    k(f'''L_att_task:
s_add_u32 s45, s{SS}, 1''')
    flag_wait(k, 'atw', 5, 3, 45)
    k(f'''s_lshl_b32 s34, s{SS}, 18
s_add_u32 s35, s34, {QX}
s_add_u32 s36, s34, {KX}
s_add_u32 s37, s34, {VX}''')
    for base, sreg in ((QX_, 35), (KX_, 36), (VX_, 37)):
        for i in range(8):
            if i == 4: k(f's_add_u32 s{sreg}, s{sreg}, 4096')
            k(f'buffer_load_dwordx4 {v(base+4*i,4)}, v3, {WS}, s{sreg} offen offset:{(i%4)*1024} sc1')
    flag_wait(k, 'atm', 6, 1, 45, sleep=2)
    k(f's_mul_i32 s38, s{SS}, 196608\ns_add_u32 s38, s38, {KVMP}')
    for i in range(4): k(f'buffer_load_dwordx4 {v(QM+4*i,4)}, v4, {WS}, s38 offen offset:{i*1024} sc1')
    k('s_add_u32 s38, s38, 4096')
    for i in range(2): k(f'buffer_load_dwordx4 {v(VM+4*i,4)}, v4, {WS}, s38 offen offset:{i*1024} sc1')
    k(f's_lshl_b32 s44, s{SS}, 18\ns_add_u32 s44, s44, {OX}')
    for qt in range(2):
        k('s_waitcnt vmcnt(2)' if qt == 0 else '')
        q = lambda ks: v(QX_ + 16*qt + 4*ks, 4)
        for ks in range(4):
            k(f'v_mfma_f32_16x16x32_bf16 {v(S0,4)}, {v(KX_+4*ks,4)}, {q(ks)}, {(v(DIAG,4) if qt == 0 else "0") if ks == 0 else v(S0,4)}')
            if qt == 1: k(f'v_mfma_f32_16x16x32_bf16 {v(S1,4)}, {v(KX_+16+4*ks,4)}, {q(ks)}, {v(DIAG,4) if ks == 0 else v(S1,4)}')
            k(f'v_mfma_f32_16x16x32_bf16 {v(SM,4)}, {v(QM+4*ks,4)}, {q(ks)}, {v(NEG,4) if ks == 0 else v(SM,4)}')
        vals = list(range(S0, S0+4)) + (list(range(S1, S1+4)) if qt == 1 else []) + list(range(SM, SM+4))
        k(f'v_max3_f32 v{T}, v{vals[0]}, v{vals[1]}, v{vals[2]}')
        r = vals[3:]
        while len(r) >= 2: k(f'v_max3_f32 v{T}, v{T}, v{r[0]}, v{r[1]}'); r = r[2:]
        if r: k(f'v_max_f32 v{T}, v{T}, v{r[0]}')
        for sw in ('16', '32'):
            k(f'v_mov_b32 v{T+1}, v{T}\nv_permlane{sw}_swap_b32 v{T}, v{T+1}\nv_max_f32 v{T}, v{T}, v{T+1}')
        k(f'v_mul_f32 v{T}, s{SNC}, v{T}')
        for x in vals: k(f'v_fma_f32 v{x}, v{x}, s{SC}, v{T}')
        for x in vals: k(f'v_exp_f32 v{x}, v{x}')
        k(f'v_add_f32 v{T}, v{vals[0]}, v{vals[1]}')
        for x in vals[2:]: k(f'v_add_f32 v{T}, v{T}, v{x}')
        for sw in ('16', '32'):
            k(f'v_mov_b32 v{T+1}, v{T}\nv_permlane{sw}_swap_b32 v{T}, v{T+1}\nv_add_f32 v{T}, v{T}, v{T+1}')
        k(f'v_rcp_f32 v{T}, v{T}')
        for x in vals: k(f'v_mul_f32 v{x}, v{x}, v{T}')
        k(f'v_cvt_pk_bf16_f32 v{PX}, v{S0}, v{S0+1}\nv_cvt_pk_bf16_f32 v{PX+1}, v{S0+2}, v{S0+3}')
        if qt == 1: k(f'v_cvt_pk_bf16_f32 v{PX+2}, v{S1}, v{S1+1}\nv_cvt_pk_bf16_f32 v{PX+3}, v{S1+2}, v{S1+3}')
        else: k(f'v_mov_b32 v{PX+2}, 0\nv_mov_b32 v{PX+3}, 0')
        k(f'''v_cvt_pk_bf16_f32 v{PM}, v{SM}, v{SM+2}
v_cvt_pk_bf16_f32 v{PM+1}, v{SM+1}, v{SM+3}
v_mov_b32 v{T+2}, v{PM}
v_mov_b32 v{T+3}, v{PM+1}
v_mov_b32 v{PM2}, 0
v_mov_b32 v{PM2+1}, 0
v_permlane32_swap_b32 v{T+2}, v{PM2}
v_permlane32_swap_b32 v{T+3}, v{PM2+1}''')
        if qt == 0: k('s_waitcnt vmcnt(0)')
        for te in range(8): k(f'v_mfma_f32_16x16x32_bf16 {v(O+4*te,4)}, {v(VX_+4*te,4)}, {v(PX,4)}, 0')
        for te in range(8):
            u, t4 = te // 4, te % 4
            k(f'v_mfma_f32_16x16x16_bf16 {v(O+4*te,4)}, {v(VM+4*u+2*(t4//2),2)}, {v(PM if t4 % 2 == 0 else PM2,2)}, {v(O+4*te,4)}')
        for ks in range(4):
            d = 204 + 4*ks
            for h in range(2):
                te = 2*ks + h
                k(f'v_cvt_pk_bf16_f32 v{d+2*h}, v{O+4*te}, v{O+4*te+1}\nv_cvt_pk_bf16_f32 v{d+2*h+1}, v{O+4*te+2}, v{O+4*te+3}')
            k(f'buffer_store_dwordx4 {v(d,4)}, v3, {WS}, s44 offen offset:{ks*1024} sc1')
        k('s_add_u32 s44, s44, 4096')
    k(f'''s_waitcnt vmcnt(0)
s_lshl_b32 s34, s{SS}, 5
s_add_u32 s34, s34, s{SH}
s_lshl_b32 s34, s34, 2
s_add_u32 s34, s34, s101
v_mov_b32 v10, s34
v_mov_b32 v11, 1
s_mov_b64 exec, 1
buffer_store_dword v11, v10, {WS}, 0 offen sc1
s_mov_b64 exec, -1
s_add_u32 s{SS}, s{SS}, 2
s_cmp_lt_u32 s{SS}, 64
s_cbranch_scc1 L_att_task
s_branch L_end''')

def out_role(k):
    W, XB, ACC = 16, 144, 240
    SS, SNJ, SQT = 40, 42, 43
    k('L_out:')
    if proj.MINI:
        k('s_cmp_ge_u32 s41, 32\ns_cbranch_scc1 L_o_nomini\ns_add_u32 s44, s41, 32')
        proj.mini_proj(k, 'o', 44)
        k('L_o_nomini:')
    help_prefetch(k)
    if XWARM == 2:
        k('s_load_dwordx2 s[4:5], s[0:1], 0\ns_waitcnt lgkmcnt(0)')
        srd(k, 16, 4, 2048*1280)
        k('s_lshl_b32 s34, s41, 9\nv_add_u32 v10, s34, v0\nv_lshlrev_b32 v10, 6, v10')
        for i in range(2): k(f's_mov_b32 s34, {i*20480*64}\nbuffer_load_dword v{210+i}, v10, s[16:19], s34 offen')
    k(f'''
{''.join(['s_sleep 127' + chr(10)] * OSLEEP)}s_cmp_ge_u32 s41, 20
s_cselect_b32 s{SQT}, 1, 0
s_mul_i32 s34, s{SQT}, 20
s_sub_u32 s{SNJ}, s41, s34
s_load_dwordx2 s[4:5], s[0:1], 40
s_load_dwordx2 s[6:7], s[0:1], 80
s_waitcnt lgkmcnt(0)''')
    srd(k, 16, 4, 4096*1280)
    srd(k, 20, 6, 2048*2560)
    k(f'''v_lshrrev_b32 v10, 2, v1
v_and_b32 v11, 3, v1
v_mul_u32_u24 v12, 1280, v10
v_lshl_add_u32 v12, v11, 4, v12
s_lshl_b32 s34, s{SW}, 9
s_mul_i32 s34, s34, 1280
s_lshl_b32 s35, s{SNJ}, 6
s_add_u32 s34, s34, s35
v_add_u32 v12, s34, v12
s_lshl_b32 s34, s{SW}, 13
v_lshl_add_u32 v13, v1, 4, s34
v_lshrrev_b32 v10, 4, v1              ; g
v_bfe_u32 v11, v1, 2, 2               ; rr
v_lshl_add_u32 v10, v10, 2, v11
v_lshlrev_b32 v10, 6, v10
v_and_b32 v11, 3, v1
v_lshl_add_u32 v10, v11, 3, v10
v_add_u32 v14, s34, v10''')
    def wld(hh4):
        for i in range(8):
            k(f's_mov_b32 s34, {(128*hh4 + 16*i)*1280}\nbuffer_load_dwordx4 {v(XB+32*(hh4%2)+4*i,4)}, v12, s[16:19], s34 offen')
    wld(0); wld(1)
    for hh4 in range(4):
        k(f's_waitcnt vmcnt({8 if hh4 < 3 else 0})')
        for i in range(8): k(f'ds_write_b128 v13, {v(XB+32*(hh4%2)+4*i,4)} offset:{i*1024}')
        k('s_waitcnt lgkmcnt(0)')
        if hh4 + 2 < 4: wld(hh4 + 2)
        for ct in range(2):
            for ks in range(4):
                for hh in range(2):
                    k(f'ds_read_b64_tr_b16 {v(W + 64*ct + 4*(4*hh4+ks) + 2*hh, 2)}, v14 offset:{(32*ks + 16*hh)*64 + ct*32}')
            k('s_waitcnt lgkmcnt(0)')
    k(f'''s_barrier
v_lshlrev_b32 v2, 4, v1
s_lshl_b32 s34, s{SW}, 15             ; 4 heads * 8192
s_lshl_b32 s35, s{SQT}, 12
s_add_u32 s34, s34, s35
v_add_u32 v3, s34, v2
s_lshl_b32 s34, s{SW}, 11
v_add_u32 v6, s34, v2
; reducer (wave 0): token = lane/4, quarter = lane%4
v_lshrrev_b32 v10, 2, v1
v_and_b32 v11, 3, v1
v_lshrrev_b32 v12, 1, v11             ; ct
v_and_b32 v13, 1, v11
v_lshlrev_b32 v13, 5, v13             ; (2*(qd%2))*16
v_add_u32 v13, v13, v10
v_lshlrev_b32 v13, 4, v13
v_lshl_add_u32 v7, v12, 10, v13       ; ct*1024
s_lshl_b32 s34, s{SQT}, 4
v_add_u32 v10, s34, v10
v_mul_u32_u24 v10, 2560, v10
v_lshl_add_u32 v10, v11, 4, v10
s_lshl_b32 s34, s{SNJ}, 6
v_add_u32 v8, s34, v10
s_mov_b32 s45, 1
s_mov_b32 s46, 0
s_mov_b32 s{SS}, 0''')
    validate(k)
    par_wait(k)
    k('v_lshlrev_b32 v5, 2, v1\nv_add_u32 v5, s101, v5')
    mark(k, 1)
    k(f'''L_out_seg:
s_lshl_b32 s37, s{SS}, 7
s_cmp_lg_u32 s{SW}, 7
s_cbranch_scc1 L_out_go''')
    flag_wait(k, 'otw', 5, 32, 45, soff='s37', sleep=3)
    k('L_out_go:\ns_barrier')
    k(f's_lshl_b32 s34, s{SS}, 18\ns_add_u32 s34, s34, {OX}')
    for h in range(4):
        k(f's_add_u32 s35, s34, {h*8192}')
        for ks in range(4): k(f'buffer_load_dwordx4 {v(XB+16*h+4*ks,4)}, v3, {WS}, s35 offen offset:{ks*1024} sc1')
    for h in range(4):
        k(f's_waitcnt vmcnt({12 - 4*h})')
        for ks in range(4):
            for ct in range(2):
                a_ = v(ACC + 4*ct, 4)
                k(f'v_mfma_f32_16x16x32_bf16 {a_}, {v(W+64*ct+4*(4*h+ks),4)}, {v(XB+16*h+4*ks,4)}, {"0" if h == 0 and ks == 0 else a_}')
    k('v_add_u32 v10, s46, v6')
    for ct in range(2): k(f'ds_write_b128 v10, {v(ACC+4*ct,4)} offset:{ct*1024}')
    k(f'''s_waitcnt lgkmcnt(0)
s_barrier
s_cmp_ge_u32 s{SW}, 1
s_cbranch_scc1 L_out_nx
v_add_u32 v10, s46, v7''')
    for c in range(2):
        for w in range(8): k(f'ds_read_b128 {v(XB+32*c+4*w,4)}, v10 offset:{w*2048 + c*256}')
        k('s_waitcnt lgkmcnt(0)')
        b = XB + 32*c
        for x, y in ((0, 4), (8, 12), (16, 20), (24, 28), (0, 8), (16, 24), (0, 16)):
            k(f'v_pk_add_f32 {v(b+x,2)}, {v(b+x,2)}, {v(b+y,2)}\nv_pk_add_f32 {v(b+x+2,2)}, {v(b+x+2,2)}, {v(b+y+2,2)}')
        k(f'v_cvt_pk_bf16_f32 v{224+2*c}, v{b}, v{b+1}\nv_cvt_pk_bf16_f32 v{225+2*c}, v{b+2}, v{b+3}')
    k(f'''s_mul_i32 s34, s{SS}, {32*2560}
buffer_store_dwordx4 v[224:227], v8, s[20:23], s34 offen{OUTSC}
L_out_nx:
s_xor_b32 s46, s46, 0x4000
s_add_u32 s{SS}, s{SS}, 1
s_cmp_lt_u32 s{SS}, 64
s_cbranch_scc1 L_out_seg
s_branch L_end''')
```

```python
import math, struct
from dsl import v, s
from layout import *
import proj
from proj import srd
from attout import flag_wait
WS = 's[8:11]'
SX, SR, SW, SLIM = 28, 29, 30, 33
def f32bits(x): return struct.unpack('<I', struct.pack('<f', x))[0]
PW, ACC, XF, STG, WST = 16, 176, 192, 204, 232
XBUF = 41472

def stat_gemm(k, tag, colstride, wrow, xsrd, xsc, ntiles, typ, epilogue, nwaves):
    k('v_lshlrev_b32 v2, 4, v0')
    for i in range(5):
        k(f'''v_add_u32 v10, {512*i}, v0
v_mul_u32_u24 v11, 52429, v10
v_lshrrev_b32 v11, 22, v11
v_add_u32 v11, v11, v10
v_lshlrev_b32 v{3+i}, 4, v11''')
    k('s_mul_i32 s34, s47, 40960')
    for i in range(5):
        k(f'buffer_load_dwordx4 {v(STG+4*i,4)}, v2, {xsrd}, s34 offen{xsc}\ns_add_u32 s34, s34, 8192')
    k(f'''v_lshrrev_b32 v10, 4, v1
v_lshrrev_b32 v11, 1, v10             ; g2
v_and_b32 v10, 1, v10                 ; nh
v_bfe_u32 v14, v1, 2, 2               ; rr
v_lshl_add_u32 v11, v11, 3, v14
v_mul_u32_u24 v11, 320, v11
v_lshl_add_u32 v11, v10, 5, v11
v_and_b32 v10, 3, v1
v_lshl_add_u32 v11, v10, 3, v11
s_mul_i32 s34, s{SW}, {colstride}
v_add_u32 v14, s34, v11''')
    for i in range(3):
        k(f'''v_add_u32 v9, {512*i}, v0
v_mul_u32_u24 v13, 52429, v9
v_lshrrev_b32 v13, 20, v13
v_mul_u32_u24 v8, 20, v13
v_sub_u32 v8, v9, v8
v_mul_u32_u24 v13, {wrow}, v13
v_lshl_add_u32 v13, v8, 4, v13
v_add_u32 v{10+i}, s46, v13''')
    def ld(c):
        k(f's_mov_b32 s34, {64*c*wrow}')
        for i in range(3): k(f'buffer_load_dwordx4 {v(WST+12*(c%2)+4*i,4)}, v{10+i}, s[16:19], s34 offen')
    ld(0); ld(1)
    for c in range(10):
        buf = (c % 2)*24576
        k(f's_waitcnt vmcnt({3 if c < 9 else 0})')
        for i in range(3): k(f'ds_write_b128 v2, {v(WST+12*(c%2)+4*i,4)} offset:{buf + i*8192}')
        k('s_waitcnt lgkmcnt(0)')
        if c + 2 < 10: ld(c + 2)
        k('s_barrier')
        for ksl in range(4):
            for hh in range(2):
                k(f'ds_read_b64_tr_b16 {v(PW + 4*(4*c+ksl) + 2*hh, 2)}, v14 offset:{buf + ksl*16*320 + hh*4*320}')
        k('s_waitcnt lgkmcnt(0)')
    k(f'''s_barrier
v_and_b32 v10, 31, v1
v_mul_u32_u24 v10, 1296, v10
v_lshrrev_b32 v11, 5, v1
v_lshl_add_u32 v9, v11, 4, v10''')
    for i in range(5): k(f'ds_write_b128 v{3+i}, {v(STG+4*i,4)}')
    k('s_waitcnt lgkmcnt(0)\ns_add_u32 s34, s47, 1\ns_mul_i32 s34, s34, 40960')
    for i in range(5):
        k(f'buffer_load_dwordx4 {v(STG+4*i,4)}, v2, {xsrd}, s34 offen{xsc}\ns_add_u32 s34, s34, 8192')
    if tag == 'b1': validate(k)
    epilogue('setup')
    k(f'''s_mov_b32 s40, 0
s_waitcnt vmcnt(0)
s_barrier
L_{tag}_loop:
s_and_b32 s34, s40, 1
s_mul_i32 s35, s34, {XBUF}
v_add_u32 v10, s35, v9
s_xor_b32 s34, s34, 1
s_mul_i32 s35, s34, {XBUF}
s_cmp_ge_u32 s40, {ntiles-1}
s_cbranch_scc1 L_{tag}_nost''')
    for i in range(5): k(f'v_add_u32 v11, s35, v{3+i}\nds_write_b128 v11, {v(STG+4*i,4)}')
    k(f'''s_waitcnt lgkmcnt(0)
s_cmp_ge_u32 s40, {ntiles-2}
s_cbranch_scc1 L_{tag}_nost
s_add_u32 s34, s40, 2
s_add_u32 s34, s34, s47
s_mul_i32 s34, s34, 40960''')
    for i in range(5):
        k(f'buffer_load_dwordx4 {v(STG+4*i,4)}, v2, {xsrd}, s34 offen{xsc}')
        if i < 4: k('s_add_u32 s34, s34, 8192')
    k(f'L_{tag}_nost:')
    if nwaves < 8: k(f's_cmp_ge_u32 s{SW}, {nwaves}\ns_cbranch_scc1 L_{tag}_idle')
    variants = typ if isinstance(typ, (list, tuple)) else [typ]
    for vi, t in enumerate(variants):
        if len(variants) > 1 and vi == 0: k(f's_cmp_eq_u32 s42, 2\ns_cbranch_scc1 L_{tag}_v1')
        if vi == 1: k(f'L_{tag}_v1:')
        for i in range(2): k(f'ds_read_b128 {v(XF+4*i,4)}, v10 offset:{i*32}')
        for ks in range(40):
            if ks + 2 < 40: k(f'ds_read_b128 {v(XF+4*((ks+2)%3),4)}, v10 offset:{(ks+2)*32}')
            k(f's_waitcnt lgkmcnt({2 if ks + 2 < 40 else (1 if ks + 1 < 40 else 0)})')
            c = '0' if ks == 0 else v(ACC, 16)
            w, x = v(PW+4*ks, 4), v(XF+4*(ks % 3), 4)
            k(f'v_mfma_f32_32x32x16_bf16 {v(ACC,16)}, {w if t != "V" else x}, {x if t != "V" else w}, {c}')
        epilogue(t)
        if len(variants) > 1 and vi == 0: k(f's_branch L_{tag}_skip')
    k(f'''L_{tag}_skip:
s_waitcnt vmcnt({epilogue("nst")})
s_branch L_{tag}_bar
L_{tag}_idle:
s_waitcnt vmcnt(0)
L_{tag}_bar:
s_barrier
s_add_u32 s40, s40, 1
s_cmp_lt_u32 s40, {ntiles}
s_cbranch_scc1 L_{tag}_loop
s_waitcnt vmcnt(0)''')

BMODE = 0
WIDE = 1
OUTSC = ''
SLEEP = 0
mark = lambda k, n: None
def b_role(k):
    SC_, SM_ = 41, 42
    cB = f32bits(20**-0.5 * math.log2(math.e))
    k('L_brole:')
    if proj.MINI:
        k('s_cmp_ge_u32 s41, 32\ns_cbranch_scc1 L_b_nomini')
        proj.mini_proj(k, 'b', 41)
        k('L_b_nomini:')
    help_prefetch(k)
    k(f'''
{''.join(['s_sleep 127' + chr(10)] * SLEEP)}s_load_dwordx2 s[4:5], s[0:1], 64
s_load_dwordx2 s[6:7], s[0:1], 56
s_waitcnt lgkmcnt(0)''')
    srd(k, 16, 4, 640*3840)
    srd(k, 20, 6, 2048*1280)
    k(f'''s_cmp_ge_u32 s{SC_}, {48 if BMODE != 2 else 0}
s_cbranch_scc1 L_b2v
; B1: gs = c % 12 (m = gs / 4, head octet = gs % 4), token quarter = c / 12
s_mul_i32 s34, s{SC_}, 43
s_lshr_b32 s34, s34, 9
s_mul_i32 s35, s34, 12
s_sub_u32 s35, s{SC_}, s35
s_lshl_b32 s47, s34, 4
s_lshr_b32 s{SM_}, s35, 2
s_and_b32 s43, s35, 3
s_mul_i32 s46, s{SM_}, 1280
s_mul_i32 s34, s43, 320
s_add_u32 s46, s46, s34''')
    def ep1(t):
        if t == 'nst': return 2
        if t == 'setup':
            k(f'''s_lshl_b32 s34, s43, 3
s_add_u32 s34, s34, s{SW}             ; head
s_lshl_b32 s34, s34, 17
s_mov_b32 s35, {QB >> 20}
s_cmp_eq_u32 s{SM_}, 0
s_cselect_b32 s35, s35, {KB >> 20}
s_cmp_eq_u32 s{SM_}, 2
s_cselect_b32 s35, {VB >> 20}, s35
s_lshl_b32 s35, s35, 20
s_add_u32 s44, s34, s35
v_lshlrev_b32 v8, 4, v1
s_mov_b32 s48, {cB:#x}
s_cmp_eq_u32 s{SM_}, 0
s_cselect_b32 s48, s48, 1.0
s_cselect_b32 s49, 0, 0x3f80
s_mov_b32 s50, 0
s_mov_b32 s51, -1
v_and_b32 v12, 31, v1
v_cmp_gt_u32 vcc, 20, v12
s_mov_b64 s[52:53], vcc
v_cmp_eq_u32 vcc, 20, v12
v_mov_b32 v13, 0x3f803f80
v_cndmask_b32 v13, 0, v13, vcc''')
            return
        if t == 'K':
            for i in range(12): k(f'v_mul_f32 v{ACC+i}, s48, v{ACC+i}')
            for n in range(6): k(f'v_cvt_pk_bf16_f32 v{224+n}, v{ACC+2*n}, v{ACC+2*n+1}')
            k(f'''v_mov_b32 v12, s49
v_cndmask_b32 v228, v228, v12, s[50:51]
v_cndmask_b32 v229, v229, 0, s[50:51]
v_mov_b32 v230, 0
v_mov_b32 v231, 0''')
        else:
            for n in range(8): k(f'v_cvt_pk_bf16_f32 v{224+n}, v{ACC+2*n}, v{ACC+2*n+1}')
            for n in range(8): k(f'v_cndmask_b32 v{224+n}, v13, v{224+n}, s[52:53]')
        k(f'''s_add_u32 s34, s40, s47
s_lshl_b32 s34, s34, 11
s_add_u32 s34, s34, s44
buffer_store_dwordx4 v[224:227], v8, {WS}, s34 offen sc1
buffer_store_dwordx4 v[228:231], v8, {WS}, s34 offen offset:1024 sc1''')
    stat_gemm(k, 'b1', 40, 3840, 's[20:23]', '', 16, ['K', 'V'], ep1, 8)
    k(f'''s_barrier
s_cmp_lg_u32 s{SW}, 0
s_cbranch_scc1 L_b2
s_lshl_b32 s34, s{SC_}, 2
s_add_u32 s34, s34, {F_B1}
s_add_u32 s34, s34, s100
v_mov_b32 v10, s34
v_mov_b32 v11, 1
s_mov_b64 exec, 1
buffer_store_dword v11, v10, {WS}, 0 offen sc1
s_mov_b64 exec, -1''')
    Q, O, KV, SA, SB, P, M, T = 16, 48, 112, 144, 160, 176, 184, 188
    k('s_branch L_b2\nL_b2v:')
    validate(k)
    if BMODE == 1: k('L_b2:\ns_branch L_end\nL_b2x:')
    k(f'''{'L_b2:' if BMODE != 1 else ''}
v_lshlrev_b32 v10, 2, v1
v_add_u32 v10, {F_B1}, v10
v_add_u32 v10, s100, v10
s_mov_b32 s36, 1''')
    if BMODE != 2: flag_wait(k, 'b1w', 10, 48, 36)
    mark(k, 1)
    k(f'''s_lshr_b32 s43, s{SC_}, 1             ; head
s_and_b32 s44, s{SC_}, 1
s_lshl_b32 s34, s43, 17
v_lshlrev_b32 v2, 4, v1
v_add_u32 v3, s34, v2
s_lshl_b32 s35, s44, 5
s_lshl_b32 s36, s{SW}, 2
s_add_u32 s35, s35, s36
s_lshl_b32 s36, s35, 11
s_add_u32 s36, s36, {QB}''')
    for qb in range(4):
        for ks in range(2): k(f'buffer_load_dwordx4 {v(Q+8*qb+4*ks,4)}, v3, {WS}, s36 offen offset:{ks*1024} sc1')
        if qb < 3: k('s_add_u32 s36, s36, 2048')
    k(f'''s_mov_b32 s45, s35
s_lshl_b32 s46, s{SW}, 11             ; w*2048
v_add_u32 v4, s46, v3''')
    def dma(chunk_sreg):
        k(f'''s_and_b32 s34, s{chunk_sreg}, 1
s_lshl_b32 s34, s34, 15
s_add_u32 s34, s34, s46
s_mov_b32 m0, s34
s_lshl_b32 s35, s{chunk_sreg}, 14
s_add_u32 s36, s35, {KB}
buffer_load_dwordx4 v4, {WS}, s36 offen sc1 lds
buffer_load_dwordx4 v4, {WS}, s36 offen offset:1024 sc1 lds
s_add_u32 m0, s34, 16384
s_add_u32 s36, s35, {VB}
buffer_load_dwordx4 v4, {WS}, s36 offen sc1 lds
buffer_load_dwordx4 v4, {WS}, s36 offen offset:1024 sc1 lds''')
    k('s_mov_b32 s40, 0')
    dma(40)
    for i in range(64): k(f'v_mov_b32 v{O+i}, 0')
    for i in range(4): k(f'v_mov_b32 v{M+i}, 0')
    k(f'''s_mov_b32 s50, 0
s_mov_b32 s51, -1                     ; lanes 32..63
s_mov_b32 s52, 0xff800000
s_mov_b32 s53, 0xff800000
L_b2_chunk:
s_waitcnt vmcnt(0)
s_barrier
s_cmp_ge_u32 s40, 7
s_cbranch_scc1 L_b2_nodma
s_add_u32 s37, s40, 1''')
    dma(37)
    k(f'''L_b2_nodma:
s_and_b32 s34, s40, 1
s_lshl_b32 s34, s34, 15
v_add_u32 v5, s34, v2
s_mov_b32 s47, 0''')
    def kvread(setn, kbl):
        for ks in range(2): k(f'ds_read_b128 {v(KV+16*setn+4*ks,4)}, v5 offset:{kbl*2048 + ks*1024}')
        for kk in range(2): k(f'ds_read_b128 {v(KV+16*setn+8+4*kk,4)}, v5 offset:{16384 + kbl*2048 + kk*1024}')
    def smfma(dst, setn, qb):
        k(f'v_mfma_f32_32x32x16_bf16 {v(dst,16)}, {v(KV+16*setn,4)}, {v(Q+8*qb,4)}, 0')
        k(f'v_mfma_f32_32x32x16_bf16 {v(dst,16)}, {v(KV+16*setn+4,4)}, {v(Q+8*qb+4,4)}, {v(dst,16)}')
    rare = []
    kvread(0, 0)
    k('s_waitcnt lgkmcnt(0)')
    smfma(SA, 0, 0)
    k('L_b2_pair:')
    for par in range(2):
        for qb in range(4):
            cur, nxt = (SA, SB) if qb % 2 == 0 else (SB, SA)
            if qb == 0:
                if par == 0: kvread(1, 1)
                else:
                    k('v_add_u32 v5, 4096, v5')
                    lab = k.lab('b2nr')
                    k(f's_cmp_eq_u32 s47, 3\ns_cbranch_scc1 {lab}')
                    kvread(0, 0)
                    k(f'{lab}:')
            if qb < 3: smfma(nxt, par, qb + 1)
            else:
                if par == 0:
                    k('s_waitcnt lgkmcnt(0)'); smfma(nxt, 1, 0)
                else:
                    lab = k.lab('b2ns')
                    k(f's_waitcnt lgkmcnt(0)\ns_cmp_eq_u32 s47, 3\ns_cbranch_scc1 {lab}')
                    smfma(nxt, 0, 0)
                    k(f'{lab}:')
            k(f'v_max3_f32 v{T}, v{cur}, v{cur+1}, v{cur+2}')
            for n in range(6): k(f'v_max3_f32 v{T}, v{T}, v{cur+3+2*n}, v{cur+4+2*n}')
            k(f'v_max_f32 v{T}, v{T}, v{cur+15}')
            R, B = k.lab('b2r'), k.lab('b2b')
            k(f'v_cmp_lt_f32 vcc, s52, v{T}\ns_cbranch_vccnz {R}\n{B}:')
            rare.append((R, B, cur, qb))
            for i in range(16): k(f'v_exp_f32 v{cur+i}, v{cur+i}')
            for n in range(8): k(f'v_cvt_pk_bf16_f32 v{P+n}, v{cur+2*n}, v{cur+2*n+1}')
            for kk in range(2):
                k(f'v_mfma_f32_32x32x16_bf16 {v(O+16*qb,16)}, {v(KV+16*par+8+4*kk,4)}, {v(P+4*kk,4)}, {v(O+16*qb,16)}')
        if par == 0: k('s_mov_b32 s52, 0x41200000\ns_mov_b32 s53, 0')
    k(f'''s_add_u32 s47, s47, 1
s_cmp_lt_u32 s47, 4
s_cbranch_scc1 L_b2_pair
s_add_u32 s40, s40, 1
s_cmp_lt_u32 s40, 8
s_cbranch_scc1 L_b2_chunk
s_branch L_b2_done''')
    for R, B, cur, qb in rare:
        k(f'''{R}:
v_mov_b32 v{T+1}, v{T}
v_permlane32_swap_b32 v{T}, v{T+1}
v_max_f32 v{T}, v{T}, v{T+1}
v_max_f32 v{T}, s53, v{T}
v_add_f32 v{T}, v{M+qb}, v{T}
v_cvt_pk_bf16_f32 v{T+1}, v{T}, v{T}
v_lshlrev_b32 v{T}, 16, v{T+1}
v_sub_f32 v{T+2}, v{T}, v{M+qb}
v_mov_b32 v{M+qb}, v{T}
v_and_b32 v{T+1}, 0xffff, v{T+1}
v_xor_b32 v{T+1}, 0x8000, v{T+1}
v_cndmask_b32 v{Q+8*qb+4}, v{Q+8*qb+4}, v{T+1}, s[50:51]''')
        for i in range(16): k(f'v_sub_f32 v{cur+i}, v{cur+i}, v{T+2}')
        k(f'v_sub_f32 v{T+2}, 0, v{T+2}\nv_exp_f32 v{T+2}, v{T+2}')
        for i in range(16): k(f'v_mul_f32 v{O+16*qb+i}, v{O+16*qb+i}, v{T+2}')
        k(f's_branch {B}')
    k('L_b2_done:')
    mark(k, 2)
    k(f'''v_and_b32 v10, 31, v1
v_lshrrev_b32 v11, 5, v1
v_mul_u32_u24 v10, 1280, v10
v_lshl_add_u32 v10, v11, 3, v10
s_mul_i32 s34, s43, 40
s_mul_i32 s35, s45, {32*1280}
s_add_u32 s34, s34, s35
s_add_u32 s34, s34, {OB}''')
    for qb in range(4):
        o = O + 16*qb
        k(f'''v_mov_b32 v{T}, v{o+8}
v_mov_b32 v{T+1}, v{o+8}
v_permlane32_swap_b32 v{T}, v{T+1}
v_rcp_f32 v{T+1}, v{T+1}''')
        for a in range(3):
            for b in range(4): k(f'v_mul_f32 v{o+4*a+b}, v{o+4*a+b}, v{T+1}')
            k(f'v_cvt_pk_bf16_f32 v{P+2*a}, v{o+4*a}, v{o+4*a+1}\nv_cvt_pk_bf16_f32 v{P+2*a+1}, v{o+4*a+2}, v{o+4*a+3}')
        k(f'''buffer_store_dwordx2 {v(P,2)}, v10, {WS}, s34 offen
buffer_store_dwordx2 {v(P+2,2)}, v10, {WS}, s34 offen offset:16
s_mov_b32 exec_hi, 0
buffer_store_dwordx2 {v(P+4,2)}, v10, {WS}, s34 offen offset:32
s_mov_b32 exec_hi, -1
s_add_u32 s34, s34, {32*1280}''')
    k(f'''s_waitcnt vmcnt(0)
s_barrier
s_cmp_lg_u32 s{SW}, 0
s_cbranch_scc1 L_b3
buffer_wbl2 sc1
s_waitcnt vmcnt(0)
s_lshl_b32 s34, s{SC_}, 2
s_add_u32 s34, s34, {F_B2}
s_add_u32 s34, s34, s100
v_mov_b32 v10, s34
v_mov_b32 v11, 1
s_mov_b64 exec, 1
buffer_store_dword v11, v10, {WS}, 0 offen sc1
s_mov_b64 exec, -1
L_b3:
s_load_dwordx2 s[4:5], s[0:1], 72
s_load_dwordx2 s[6:7], s[0:1], 80
s_waitcnt lgkmcnt(0)''')
    srd(k, 16, 4, 640*1280)
    srd(k, 24, 6, 2048*2560)
    k(f'''s_mov_b32 s20, s8
s_mov_b32 s21, s9
s_add_u32 s20, s20, {OB}
s_addc_u32 s21, s21, 0
s_mov_b32 s22, {2048*1280}
s_mov_b32 s23, 0x20000
v_lshlrev_b32 v10, 2, v1
v_add_u32 v10, {F_B2}, v10
v_add_u32 v10, s100, v10
s_mov_b32 s36, 1''')
    flag_wait(k, 'b2w', 10, 64, 36)
    k(f'''s_and_b32 s43, s{SC_}, 3
s_lshr_b32 s34, s{SC_}, 2
s_lshl_b32 s47, s34, 2
s_mul_i32 s46, s43, 320''')
    def ep3(t):
        if t == 'nst': return 2 if WIDE else 4
        if t == 'setup':
            k(f'''v_and_b32 v12, 31, v1
v_lshrrev_b32 v13, 5, v1
v_mul_u32_u24 v12, 2560, v12
v_lshl_add_u32 v12, v13, {4 if WIDE else 3}, v12
s_mul_i32 s34, s43, 320
s_lshl_b32 s35, s{SW}, 6
s_add_u32 s34, s34, s35
s_add_u32 s34, s34, 1280
v_add_u32 v8, s34, v12''')
            return
        for n in range(8): k(f'v_cvt_pk_bf16_f32 v{224+n}, v{ACC+2*n}, v{ACC+2*n+1}')
        k(f's_add_u32 s34, s40, s47\ns_mul_i32 s34, s34, {32*2560}')
        if WIDE:
            for p_ in range(2):
                k(f'v_permlane32_swap_b32 v{224+4*p_}, v{226+4*p_}\nv_permlane32_swap_b32 v{225+4*p_}, v{227+4*p_}')
                k(f'buffer_store_dwordx4 {v(224+4*p_,4)}, v8, s[24:27], s34 offen offset:{32*p_}{OUTSC}')
        else:
            for a in range(4): k(f'buffer_store_dwordx2 {v(224+2*a,2)}, v8, s[24:27], s34 offen offset:{16*a}')
    stat_gemm(k, 'b3', 64, 1280, 's[20:23]', ' sc1', 4, 'O', ep3, 5)
    k('s_branch L_end')
```

```python
import numpy as np
NAME = 'concat_heads__memory_aug_recurrent_mem_tr__mha_block__prompt_kernel'
WS_BYTES = 0x10000000
FLG0 = 0x3A0000
FLG1 = 0x3A4000
F_PROJ = 0x8000
F_KV0  = 0x0100
F_B1   = 0x0200
F_B2   = 0x0300
F_KV12 = 0x0400
F_KVM  = 0x1000
F_O    = 0x0000
MEMR = 0x20000
QKVR = 0x80000
PART = 0x200000
CLR_BYTES = 0x400000
KX   = 0x1000000
VX   = 0x2000000
QX   = 0x3000000
OX   = 0x4000000
KVMP = 0x5000000
KB   = 0x6000000
VB   = 0x6400000
OB   = 0x6800000
QB   = 0x6C00000
SENT = 0xFFFFFFFF

def e_perm(ks, g, j):
    return 32*ks + 16*(g//2) + 8*(j//4) + 4*(g % 2) + j % 4
def key_perm(g, j):
    return 4*g + j if j < 4 else 16 + 4*g + (j - 4)
def eo_perm(ks, g, j):
    return 32*ks + 4*g + j if j < 4 else 32*ks + 16 + 4*g + (j - 4)

def kfrag(k):
    out = np.empty((2, 4, 64, 8), dtype=k.dtype)
    for kt in range(2):
        for ks in range(4):
            for l in range(64):
                g, n = l // 16, l % 16
                out[kt, ks, l] = [k[16*kt + n, e_perm(ks, g, j)] for j in range(8)]
    return out
def vfrag(vv):
    out = np.empty((8, 64, 8), dtype=vv.dtype)
    for te in range(8):
        for l in range(64):
            g, n = l // 16, l % 16
            out[te, l] = [vv[key_perm(g, j), 16*te + n] for j in range(8)]
    return out
_KIDX = None
def kfrag_all(k):
    tok = np.empty((2, 4, 64, 8), dtype=np.int64); e = np.empty_like(tok)
    for kt in range(2):
        for ks in range(4):
            for l in range(64):
                for j in range(8):
                    tok[kt, ks, l, j] = 16*kt + l % 16; e[kt, ks, l, j] = e_perm(ks, l // 16, j)
    return k[..., tok.ravel(), e.ravel()]
def vfrag_all(vv):
    tok = np.empty((8, 64, 8), dtype=np.int64); e = np.empty_like(tok)
    for te in range(8):
        for l in range(64):
            for j in range(8):
                tok[te, l, j] = key_perm(l // 16, j); e[te, l, j] = 16*te + l % 16
    return vv[..., tok.ravel(), e.ravel()]
def qkv_block_index():
    idx = np.empty((3072, 3), dtype=np.int64)
    for ks in range(4):
        for l in range(64):
            g, n = l // 16, l % 16
            for j in range(8):
                idx[ks*512 + l*8 + j] = (0 if n < 8 else 1, n % 8, e_perm(ks, g, j))
    for u in range(2):
        for l in range(64):
            gg, e16, lo = (l // 16) % 2, l % 16, l < 32
            for pr in range(2):
                te = 4*u + 2*pr + (1 if lo else 0)
                for j in range(4):
                    idx[2048 + u*512 + l*8 + pr*4 + j] = (2, 4*gg + (0, 2, 1, 3)[j], 16*te + e16)
    return idx
def mem_frag_index():
    idx = np.empty((5120, 2), dtype=np.int64)
    for ks in range(10):
        for l in range(64):
            ga, r16 = l // 16, l % 16
            for j in range(8):
                q, p = j // 2, j % 2
                idx[ks*512 + l*8 + j] = (r16 % 8, 64*ks + 16*ga + 4*q + p + (2 if r16 >= 8 else 0))
    return idx
```

```python
from dsl import v, s
from layout import *
WS = 's[8:11]'
SX, SR, SW, SLIM = 28, 29, 30, 33
PW = 16
ACC2 = [176, 192]
STG2 = [208, 228]
XFR = [12, 248, 252]
XBUF = 41472

def srd(k, base, ptr, nbytes):
    k(f'''s_mov_b32 s{base}, s{ptr}
s_and_b32 s{base+1}, s{ptr+1}, 0xffff
s_mov_b32 s{base+2}, {nbytes:#x}
s_mov_b32 s{base+3}, 0x20000''')

mark = lambda k, n: None
LITE = 0
PMARK = -1
EARLY = 5
MINI = 1
PSLEEP = 0
WNT = ''
WNT2 = ''
SELFP = 1
from_attout = None
def proj_role(k):
    from attout import flag_wait
    SP, SM_, SHP, SSEG, SOUT, SFLAG = 41, 42, 43, 40, 44, 45
    k(f'''
L_proj:
s_lshr_b32 s{SM_}, s{SP}, 4
s_and_b32 s{SHP}, s{SP}, 15
s_lshl_b32 s34, s{SM_}, 3
s_add_u32 s34, s34, 16
s_load_dwordx2 s[4:5], s[0:1], s34
s_load_dwordx2 s[6:7], s[0:1], 0
s_waitcnt lgkmcnt(0)''')
    srd(k, 16, 4, 640*8192)
    srd(k, 20, 6, 2048*1280)
    k('v_lshlrev_b32 v2, 4, v0')
    for i in range(5):
        k(f'''v_add_u32 v10, {512*i}, v0
v_mul_u32_u24 v11, 52429, v10
v_lshrrev_b32 v11, 22, v11
v_add_u32 v11, v11, v10
v_lshlrev_b32 v{3+i}, 4, v11''')
    WS0 = 83968
    k(f's_cmp_lg_u32 s{SM_}, 0\ns_cselect_b32 s49, {3 if MINI else SELFP}, 0\ns_mul_i32 s50, s49, 40960')
    def xload(sg, seg):
        for i in range(5):
            k(f's_add_u32 s34, s50, {seg*40960 + i*8192}\nbuffer_load_dwordx4 {v(STG2[sg]+4*i,4)}, v2, s[20:23], s34 offen')
    xload(0, 0)
    k(f'''v_lshrrev_b32 v10, 5, v0
v_and_b32 v11, 31, v0
v_lshlrev_b32 v12, 13, v10
v_lshl_add_u32 v12, v11, 4, v12
s_lshl_b32 s34, s{SHP}, 9
v_add_u32 v12, s34, v12''')
    if PSLEEP: k(f's_sleep {PSLEEP}')
    raw = lambda c: PW + 16*(c + 1)
    for c in range(10):
        for kk in range(4):
            k(f's_mov_b32 s34, {(64*c + 16*kk)*8192}\nbuffer_load_dwordx4 {v(raw(c)+4*kk,4)}, v12, s[16:19], s34 offen{WNT if c < 5 else WNT2}')
    xload(1, 1)
    k(f'''v_and_b32 v13, 3, v10
v_lshlrev_b32 v13, 1, v13
v_lshrrev_b32 v14, 1, v11
v_add_u32 v13, v13, v14
v_and_b32 v13, 15, v13
v_lshlrev_b32 v13, 5, v13
v_and_b32 v14, 1, v11
v_lshl_add_u32 v13, v14, 4, v13
v_lshl_add_u32 v13, v10, 9, v13
v_add_u32 v13, {WS0}, v13
v_lshrrev_b32 v10, 4, v1
v_lshrrev_b32 v11, 1, v10             ; g2
v_and_b32 v10, 1, v10                 ; nh
v_bfe_u32 v14, v1, 2, 2               ; rr
v_lshl_add_u32 v11, v11, 3, v14
v_lshlrev_b32 v11, 9, v11
v_lshl_add_u32 v10, v14, 1, v10
s_lshl_b32 s34, s{SW}, 1
v_add_u32 v10, s34, v10
v_and_b32 v10, 15, v10
v_lshl_add_u32 v11, v10, 5, v11
v_and_b32 v10, 3, v1
v_lshl_add_u32 v14, v10, 3, v11
v_add_u32 v14, {WS0}, v14
s_lshr_b32 s34, s{SW}, 2
s_lshl_b32 s35, s{SHP}, 1
s_add_u32 s34, s34, s35               ; head
s_lshl_b32 s34, s34, 13
s_and_b32 s35, s{SW}, 3               ; e group
v_lshrrev_b32 v10, 5, v1              ; hi
v_and_b32 v11, 15, v1
v_lshl_add_u32 v11, v10, 4, v11
v_lshlrev_b32 v11, 4, v11
v_bfe_u32 v10, v1, 4, 1
s_cmp_eq_u32 s{SM_}, 2
s_cbranch_scc1 L_pj_ov
s_lshl_b32 s35, s35, 10
v_lshl_add_u32 v11, v10, 12, v11
s_branch L_pj_od
L_pj_ov:
s_lshl_b32 s35, s35, 11
v_lshl_add_u32 v11, v10, 10, v11
L_pj_od:
s_add_u32 s34, s34, s35
v_add_u32 v8, s34, v11
s_add_u32 s35, s{SM_}, 2
s_cmp_eq_u32 s{SM_}, 0
s_cselect_b32 s35, 3, s{SM_}
s_lshl_b32 s{SOUT}, s35, 24
v_and_b32 v10, 31, v1
v_mul_u32_u24 v10, 1296, v10
v_lshrrev_b32 v11, 5, v1
v_lshl_add_u32 v9, v11, 4, v10
s_waitcnt vmcnt(45)''')
    for i in range(5): k(f'ds_write_b128 v{3+i}, {v(STG2[0]+4*i,4)}')
    k('s_waitcnt lgkmcnt(0)')
    xload(0, 2)
    A0 = ACC2[1]
    def wr(c):
        k(f's_waitcnt vmcnt({46 - 4*c})')
        for kk in range(4): k(f'ds_write_b128 v13, {v(raw(c)+4*kk,4)} offset:{(c % 2)*32768 + kk*8192}')
    wr(0)
    k('s_waitcnt lgkmcnt(0)\ns_barrier')
    for c in range(10):
        buf = (c % 2)*32768
        if c == PMARK: mark(k, 2)
        if c + 1 < 10: wr(c + 1)
        for ksl in range(4):
            for hh in range(2):
                k(f'ds_read_b64_tr_b16 {v(PW + 4*(4*c+ksl) + 2*hh, 2)}, v14 offset:{buf + ksl*8192 + hh*2048}')
        for half in range(2):
            for q in range(2): k(f'ds_read_b128 {v(XFR[1+q],4)}, v9 offset:{(4*c + 2*half + q)*32}')
            k('s_waitcnt lgkmcnt(0)')
            lv, ld = k.lab('p0v'), k.lab('p0d')
            k(f's_cmp_eq_u32 s{SM_}, 2\ns_cbranch_scc1 {lv}')
            for t in ('K', 'V'):
                if t == 'V': k(f's_branch {ld}\n{lv}:')
                for q in range(2):
                    ks = 4*c + 2*half + q
                    w, x = v(PW+4*ks, 4), v(XFR[1+q], 4)
                    k(f'v_mfma_f32_32x32x16_bf16 {v(A0,16)}, {w if t == "K" else x}, {x if t == "K" else w}, {"0" if ks == 0 else v(A0,16)}')
            k(f'{ld}:')
        k('s_barrier')
    validate(k)
    k(f's_lshl_b32 s{SFLAG}, s{SP}, 7\ns_add_u32 s{SFLAG}, s{SFLAG}, {F_PROJ}\ns_add_u32 s{SFLAG}, s{SFLAG}, s100')
    mark(k, 1)
    def pack_ops(typ, acc):
        order = [(0, 0), (0, 1), (1, 0), (1, 1), (2, 0), (2, 1), (3, 0), (3, 1)] if typ == 'K' else [(0, 0), (0, 1), (2, 0), (2, 1), (1, 0), (1, 1), (3, 0), (3, 1)]
        return [f'v_cvt_pk_bf16_f32 v{acc+n}, v{acc+4*a+2*h}, v{acc+4*a+2*h+1}' for n, (a, h) in enumerate(order)]
    def flag(val):
        lab = k.lab('pjf')
        k(f'''s_cmp_lg_u32 s{SW}, 0
s_cbranch_scc1 {lab}
v_mov_b32 v10, s{SFLAG}
v_mov_b32 v11, {val}
s_mov_b64 exec, 1
buffer_store_dword v11, v10, {WS}, 0 offen sc1
s_mov_b64 exec, -1
{lab}:''')
        if LITE > 2:
            k('s_memrealtime s[82:83]\ns_waitcnt lgkmcnt(0)')
            for n in range(1, 7): k(f's_cmp_eq_u32 s{SSEG}, {n}\ns_cselect_b32 s{60+n}, s82, s{60+n}')
    k(f's_cmp_eq_u32 s{SM_}, 2\ns_cbranch_scc1 L_pj_s0V')
    for typ in ('K', 'V'):
        k(f'L_pj_s0{typ}:')
        for f in pack_ops(typ, A0): k(f)
        k(f'''s_lshl_b32 s47, s49, 18
s_add_u32 s47, s47, s{SOUT}
buffer_store_dwordx4 v[{A0}:{A0+3}], v8, {WS}, s47 offen sc1
buffer_store_dwordx4 v[{A0+4}:{A0+7}], v8, {WS}, s47 offen offset:512 sc1
s_waitcnt vmcnt(2)''')
        for i in range(5): k(f'ds_write_b128 v{3+i}, {v(STG2[1]+4*i,4)} offset:{XBUF}')
        k('s_waitcnt lgkmcnt(0)')
        xload(1, 3)
        if SELFP or MINI:
            nw = k.lab('pjw')
            k(f'''s_cmp_eq_u32 s49, 0
s_cbranch_scc1 {nw}
s_lshl_b32 s34, s{SHP}, 2
s_add_u32 s34, s34, s{SM_}
s_sub_u32 s34, s34, 1
s_lshl_b32 s34, s34, 2
s_add_u32 s34, s34, {F_KV12 if MINI else F_KV0}
s_add_u32 s34, s34, s100
v_lshlrev_b32 v10, 3, v1
v_add_u32 v10, s34, v10
s_mov_b32 s36, {3 if MINI else 1}''')
            flag_wait(k, 'pjw', 10, 2, 36, tmp=11, sleep=2)
            k(f'{nw}:')
        k('s_waitcnt vmcnt(5)\ns_barrier' if not (SELFP or MINI) else 's_waitcnt vmcnt(0)\ns_barrier')
        k(f's_add_u32 s{SSEG}, s49, 1')
        flag(f's{SSEG}')
        k(f's_branch L_pj_par1{typ}')
    for typ in ('K', 'V'):
        k(f'L_pj_loop{typ}:')
        for par in range(2):
            if par == 1: k(f'L_pj_par1{typ}:')
            acc, prev = ACC2[par], ACC2[1 - par]
            stg = STG2[1 - par]
            rb, wb = par*XBUF, (1 - par)*XBUF
            k(f'''s_add_u32 s34, s{SSEG}, 3
s_min_u32 s34, s34, 63
s_mul_i32 s46, s34, 40960
s_sub_u32 s34, s{SSEG}, 1
s_lshl_b32 s47, s34, 18
s_add_u32 s47, s47, s{SOUT}''')
            fill = {}
            pk = pack_ops(typ, prev)
            for i in range(5): fill[1 + 2*i] = [f'ds_write_b128 v{3+i}, {v(stg+4*i,4)} offset:{wb}']
            fill[2] = pk[0:2]; fill[4] = pk[2:4]; fill[6] = pk[4:6]; fill[8] = pk[6:8]
            st = [f'buffer_store_dwordx4 v[{prev}:{prev+3}], v8, {WS}, s47 offen sc1', f'buffer_store_dwordx4 v[{prev+4}:{prev+7}], v8, {WS}, s47 offen offset:512 sc1']
            for i in range(5): fill[11 + i] = [f's_add_u32 s48, s46, {i*8192}', f'buffer_load_dwordx4 {v(stg+4*i,4)}, v2, s[20:23], s48 offen']
            for i in range(2): k(f'ds_read_b128 {v(XFR[i],4)}, v9 offset:{rb + i*32}')
            for ks in range(40):
                if ks + 2 < 40: k(f'ds_read_b128 {v(XFR[(ks+2)%3],4)}, v9 offset:{rb + (ks+2)*32}')
                k(f's_waitcnt lgkmcnt({2 if ks + 2 < 40 else (1 if ks + 1 < 40 else 0)})')
                c = '0' if ks == 0 else v(acc, 16)
                w, x = v(PW+4*ks, 4), v(XFR[ks % 3], 4)
                k(f'v_mfma_f32_32x32x16_bf16 {v(acc,16)}, {w if typ == "K" else x}, {x if typ == "K" else w}, {c}')
                for f in fill.get(ks, []): k(f)
                if ks == 16:
                    lab2 = k.lab('pjm')
                    k(f's_cmp_gt_u32 s{SSEG}, {EARLY + 1}\ns_cbranch_scc1 {lab2}\ns_waitcnt vmcnt(5)\ns_barrier')
                    flag(f's{SSEG}')
                    k(f'{lab2}:')
                if ks == 10:
                    lab = k.lab('pjs')
                    k(f's_cmp_le_u32 s{SSEG}, {EARLY + 1}\ns_cbranch_scc1 {lab}')
                    for f in st: k(f)
                    k(f'{lab}:')
            e0 = k.lab('pje')
            k(f's_cmp_gt_u32 s{SSEG}, {EARLY}\ns_cbranch_scc1 {e0}')
            for f in pack_ops(typ, acc): k(f)
            k(f'''s_lshl_b32 s47, s{SSEG}, 18
s_add_u32 s47, s47, s{SOUT}
buffer_store_dwordx4 v[{acc}:{acc+3}], v8, {WS}, s47 offen sc1
buffer_store_dwordx4 v[{acc+4}:{acc+7}], v8, {WS}, s47 offen offset:512 sc1
s_waitcnt vmcnt(7)
s_barrier
s_branch {e0}_d
{e0}:''')
            k('s_waitcnt vmcnt(5)\ns_barrier')
            flag(f's{SSEG}')
            k(f'{e0}_d:')
            if LITE:
                l1, l2 = k.lab('lt'), k.lab('lt')
                k(f'''s_cmp_eq_u32 s{SSEG}, 8
s_cbranch_scc0 {l1}
s_memrealtime s[90:91]
s_memtime s[94:95]
s_waitcnt lgkmcnt(0)
{l1}:
s_cmp_eq_u32 s{SSEG}, 56
s_cbranch_scc0 {l2}
s_memrealtime s[92:93]
s_memtime s[96:97]
s_waitcnt lgkmcnt(0)
{l2}:''')
            k(f's_add_u32 s{SSEG}, s{SSEG}, 1')
            if par == 1: k(f's_cmp_lt_u32 s{SSEG}, 64\ns_cbranch_scc1 L_pj_loop{typ}')
            else: k(f's_cmp_ge_u32 s{SSEG}, 64\ns_cbranch_scc1 L_pj_fin0{typ}')
        for par in (1, 0):
            if par == 0: k(f's_branch L_pj_fin{typ}\nL_pj_fin0{typ}:')
            for f in pack_ops(typ, ACC2[par]): k(f)
            k(f'''s_mov_b32 s47, 63
s_lshl_b32 s47, s47, 18
s_add_u32 s47, s47, s{SOUT}
buffer_store_dwordx4 v[{ACC2[par]}:{ACC2[par]+3}], v8, {WS}, s47 offen sc1
buffer_store_dwordx4 v[{ACC2[par]+4}:{ACC2[par]+7}], v8, {WS}, s47 offen offset:512 sc1''')
        k(f'''L_pj_fin{typ}:
s_waitcnt vmcnt(0)
s_barrier''')
        flag('64')
        if LITE > 2:
            k(f'''s_lshl_b32 s34, s{SX}, 5
s_add_u32 s34, s34, s{SR}
s_lshl_b32 s34, s34, 3
s_add_u32 s34, s34, s{SW}
s_lshl_b32 s34, s34, 5
s_add_u32 s34, s34, 0x8b00000
v_mov_b32 v10, s34''')
            for n in range(1, 7): k(f'v_mov_b32 v11, s{60+n}\nbuffer_store_dword v11, v10, {WS}, 0 offen offset:{4*n}')
        if LITE:
            k(f'''s_sub_u32 s34, s92, s90
v_mov_b32 v12, s34
s_lshl_b32 s34, s{SX}, 5
s_add_u32 s34, s34, s{SR}
s_lshl_b32 s34, s34, 3
s_add_u32 s34, s34, s{SW}
s_lshl_b32 s34, s34, 2
s_add_u32 s34, s34, 0x8800000
v_mov_b32 v10, s34
buffer_store_dword v12, v10, {WS}, 0 offen
s_sub_u32 s34, s96, s94
v_mov_b32 v12, s34
v_add_u32 v10, 0x10000, v10
buffer_store_dword v12, v10, {WS}, 0 offen''')
        k('s_branch L_end')


def mini_proj(k, tag, unit_sreg):
    WS0 = 83968
    XS, RAW, ACC = 136, 176, 176
    XFm = [4, 8]
    k(f'''s_lshr_b32 s42, s{unit_sreg}, 1          ; head
s_and_b32 s43, s{unit_sreg}, 1
s_add_u32 s43, s43, 1                 ; m
s_lshl_b32 s34, s43, 3
s_add_u32 s34, s34, 16
s_load_dwordx2 s[4:5], s[0:1], s34
s_load_dwordx2 s[6:7], s[0:1], 0
s_waitcnt lgkmcnt(0)''')
    srd(k, 16, 4, 640*8192)
    srd(k, 20, 6, 2048*1280)
    k('v_lshlrev_b32 v2, 4, v0')
    for i in range(5): k(f's_mov_b32 s34, {i*8192}\nbuffer_load_dwordx4 {v(XS+4*i,4)}, v2, s[20:23], s34 offen')
    k(f'''v_lshrrev_b32 v10, 4, v0
v_and_b32 v11, 15, v0
v_lshlrev_b32 v12, 13, v10
v_lshl_add_u32 v12, v11, 4, v12
s_lshl_b32 s34, s42, 8
v_add_u32 v12, s34, v12''')
    for c in range(5):
        for kk in range(4):
            k(f's_mov_b32 s34, {(128*c + 32*kk)*8192}\nbuffer_load_dwordx4 {v(RAW+16*c+4*kk,4)}, v12, s[16:19], s34 offen')
    for i in range(5): k(f's_mov_b32 s34, {40960 + i*8192}\nbuffer_load_dwordx4 {v(212+4*i if False else XS+20+4*i,4)}, v2, s[20:23], s34 offen')
    k(f'''; LDS write address of the weights: r*256 + ((c16/2 + f) % 8)*32 + (c16%2)*16, f = 2*(r%4) + ((r>>3)&1)
v_and_b32 v13, 3, v10
v_lshlrev_b32 v13, 1, v13
v_bfe_u32 v14, v10, 3, 1
v_add_u32 v13, v13, v14
v_lshrrev_b32 v14, 1, v11
v_add_u32 v13, v13, v14
v_and_b32 v13, 7, v13
v_lshlrev_b32 v13, 5, v13
v_and_b32 v14, 1, v11
v_lshl_add_u32 v13, v14, 4, v13
v_lshl_add_u32 v13, v10, 8, v13
v_add_u32 v13, {WS0}, v13
; transposing read: row 8*g2 + rr (+ 4*hh + 16*k-step), 32-byte block (2*cg + nh + 2*rr + g2) % 8
v_lshrrev_b32 v10, 4, v1
v_lshrrev_b32 v11, 1, v10             ; g2
v_and_b32 v10, 1, v10                 ; nh
v_bfe_u32 v14, v1, 2, 2               ; rr
v_lshl_add_u32 v12, v11, 3, v14
v_lshlrev_b32 v12, 8, v12
v_lshl_add_u32 v10, v14, 1, v10
v_add_u32 v10, v10, v11
s_and_b32 s34, s{SW}, 3
s_lshl_b32 s34, s34, 1
v_add_u32 v10, s34, v10
v_and_b32 v10, 7, v10
v_lshl_add_u32 v14, v10, 5, v12
v_and_b32 v10, 3, v1
v_lshl_add_u32 v14, v10, 3, v14
v_add_u32 v14, {WS0}, v14
v_and_b32 v10, 31, v1
v_mul_u32_u24 v10, 1296, v10
v_lshrrev_b32 v11, 5, v1
v_lshl_add_u32 v3, v11, 4, v10
s_waitcnt vmcnt(25)''')
    for sg in range(1):
        for i in range(5):
            k(f'''v_add_u32 v10, {512*i}, v0
v_mul_u32_u24 v11, 52429, v10
v_lshrrev_b32 v11, 22, v11
v_add_u32 v11, v11, v10
v_lshlrev_b32 v11, 4, v11
ds_write_b128 v11, {v(XS+20*sg+4*i,4)} offset:{sg*XBUF}''')
    for c in range(5):
        buf = (c % 2)*32768
        k(f's_waitcnt vmcnt({16 - 4*c + 5 + (5 if c > 2 else 0)})')
        for kk in range(4): k(f'ds_write_b128 v13, {v(RAW+16*c+4*kk,4)} offset:{buf + kk*8192}')
        if c == 4:
            k('s_waitcnt vmcnt(5)')
            for i in range(5):
                k(f'''v_add_u32 v10, {512*i}, v0
v_mul_u32_u24 v11, 52429, v10
v_lshrrev_b32 v11, 22, v11
v_add_u32 v11, v11, v10
v_lshlrev_b32 v11, 4, v11
ds_write_b128 v11, {v(XS+20+4*i,4)} offset:{XBUF}''')
        k('s_waitcnt lgkmcnt(0)')
        if c == 2:
            for i in range(5): k(f's_mov_b32 s34, {2*40960 + i*8192}\nbuffer_load_dwordx4 {v(192+4*i,4)}, v2, s[20:23], s34 offen')
        k('s_barrier')
        for ksl in range(8):
            for hh in range(2):
                k(f'ds_read_b64_tr_b16 {v(PW + 4*(8*c+ksl) + 2*hh, 2)}, v14 offset:{buf + ksl*4096 + hh*1024}')
            if ksl % 4 == 3: k('s_waitcnt lgkmcnt(0)')
        idle = k.lab('mpi')
        k(f's_waitcnt lgkmcnt(0)\ns_cmp_ge_u32 s{SW}, 4\ns_cbranch_scc1 {idle}')
        for q in range(0, 8, 2):
            for e in range(2): k(f'ds_read_b128 {v(XFm[e],4)}, v3 offset:{(8*c + q + e)*32}')
            k('s_waitcnt lgkmcnt(0)')
            lv, ld = k.lab('mpv'), k.lab('mpd')
            k(f's_cmp_eq_u32 s43, 2\ns_cbranch_scc1 {lv}')
            for t in ('K', 'V'):
                if t == 'V': k(f's_branch {ld}\n{lv}:')
                for e in range(2):
                    ks = 8*c + q + e
                    w, x = v(PW+4*ks, 4), v(XFm[e], 4)
                    k(f'v_mfma_f32_32x32x16_bf16 {v(ACC,16)}, {w if t == "K" else x}, {x if t == "K" else w}, {"0" if ks == 0 else v(ACC,16)}')
            k(f'{ld}:')
        k(f'{idle}:')
    validate(k)
    def emit(rnd):
        tg = f'{tag}{rnd}'
        k(f'''s_lshl_b32 s34, s42, 13
s_and_b32 s35, s{SW}, 3               ; e group
v_lshrrev_b32 v10, 5, v1              ; hi
v_and_b32 v11, 15, v1
v_lshl_add_u32 v11, v10, 4, v11
v_lshlrev_b32 v11, 4, v11
v_bfe_u32 v10, v1, 4, 1
s_lshr_b32 s36, s{SW}, 2
s_sub_u32 s36, {2*rnd}, s36
{'s_mov_b32 s36, 0' if rnd == 0 else ''}
s_lshl_b32 s36, s36, 18               ; segment
s_lshl_b32 s37, s43, 24
s_add_u32 s36, s36, s37
s_cmp_eq_u32 s43, 2
s_cbranch_scc1 L_mp_v{tg}
s_lshl_b32 s35, s35, 10
v_lshl_add_u32 v11, v10, 12, v11''')
        for typ in ('K', 'V'):
            if typ == 'V':
                k(f's_branch L_mp_s{tg}\nL_mp_v{tg}:\ns_lshl_b32 s35, s35, 11\nv_lshl_add_u32 v11, v10, 10, v11')
            order = [(0, 0), (0, 1), (1, 0), (1, 1), (2, 0), (2, 1), (3, 0), (3, 1)] if typ == 'K' else [(0, 0), (0, 1), (2, 0), (2, 1), (1, 0), (1, 1), (3, 0), (3, 1)]
            for n, (a, h) in enumerate(order): k(f'v_cvt_pk_bf16_f32 v{ACC+n}, v{ACC+4*a+2*h}, v{ACC+4*a+2*h+1}')
        k(f'''L_mp_s{tg}:
s_add_u32 s34, s34, s35
v_add_u32 v11, s34, v11
buffer_store_dwordx4 v[{ACC}:{ACC+3}], v11, {WS}, s36 offen sc1
buffer_store_dwordx4 v[{ACC+4}:{ACC+7}], v11, {WS}, s36 offen offset:512 sc1''')
    def flag(val):
        lab = k.lab('mpf')
        k(f'''s_waitcnt vmcnt(0)
s_barrier
s_cmp_lg_u32 s{SW}, 0
s_cbranch_scc1 {lab}
s_lshl_b32 s34, s{unit_sreg}, 2
s_add_u32 s34, s34, {F_KV12}
s_add_u32 s34, s34, s100
v_mov_b32 v10, s34
v_mov_b32 v11, {val}
s_mov_b64 exec, 1
buffer_store_dword v11, v10, {WS}, 0 offen sc1
s_mov_b64 exec, -1
{lab}:''')
    sk = k.lab('mpq')
    k(f's_cmp_ge_u32 s{SW}, 4\ns_cbranch_scc1 {sk}')
    emit(0)
    k(f'{sk}:')
    k('s_waitcnt vmcnt(0)\ns_barrier')
    for src, off in ((192, 0),):
        for i in range(5):
            k(f'''v_add_u32 v10, {512*i}, v0
v_mul_u32_u24 v11, 52429, v10
v_lshrrev_b32 v11, 22, v11
v_add_u32 v11, v11, v10
v_lshlrev_b32 v11, 4, v11
ds_write_b128 v11, {v(src+4*i,4)} offset:{off}''')
    k('s_waitcnt lgkmcnt(0)')
    flag(1)
    k(f's_lshr_b32 s34, s{SW}, 2\ns_mul_i32 s34, s34, {XBUF}\nv_add_u32 v3, s34, v3')
    lv, ld = k.lab('mpv'), k.lab('mpd')
    k(f's_cmp_eq_u32 s43, 2\ns_cbranch_scc1 {lv}')
    for t in ('K', 'V'):
        if t == 'V': k(f's_branch {ld}\n{lv}:')
        k(f'ds_read_b128 {v(XFm[0],4)}, v3')
        for ks in range(40):
            if ks + 1 < 40: k(f'ds_read_b128 {v(XFm[(ks+1)%2],4)}, v3 offset:{(ks+1)*32}')
            k(f's_waitcnt lgkmcnt({1 if ks + 1 < 40 else 0})')
            w, x = v(PW+4*ks, 4), v(XFm[ks % 2], 4)
            k(f'v_mfma_f32_32x32x16_bf16 {v(ACC,16)}, {w if t == "K" else x}, {x if t == "K" else w}, {"0" if ks == 0 else v(ACC,16)}')
    k(f'{ld}:')
    emit(1)
    flag(3)
    k('s_barrier')
```

```python
import sys, math, struct
from dsl import Kern, v, s
from layout import *
from proj import proj_role
from attout import att_role, out_role
from brole import b_role

def f32bits(x): return struct.unpack('<I', struct.pack('<f', x))[0]

WS, DBG = 's[8:11]', 's[12:15]'
SX, SR, SW, SSLOW, SPAR, SLIM = 28, 29, 30, 31, 32, 33
SXCC, SRANK = 98, 99
SFL0, SFL1 = 100, 101
SSTEP = 40
POLL_LIMIT = 1 << 17

def srd(k, base, ptr, nbytes):
    k(f'''s_mov_b32 s{base}, s{ptr}
s_and_b32 s{base+1}, s{ptr+1}, 0xffff
s_mov_b32 s{base+2}, {nbytes:#x}
s_mov_b32 s{base+3}, 0x20000''')

def poll(k, name, loads, check, cnt=39, sleep=0):
    L, D = k.lab(name), k.lab(name + 'd')
    k(f's_mov_b32 s{cnt}, 0\n{L}:')
    loads()
    k('s_waitcnt vmcnt(0)')
    check()
    k(f's_cbranch_vccz {D}')
    if sleep: k(f's_sleep {sleep}')
    k(f'''s_add_u32 s{cnt}, s{cnt}, 1
s_cmp_lt_u32 s{cnt}, s{SLIM}
s_cbranch_scc1 {L}
s_mov_b32 s{SLIM}, 0
{D}:''')

def umax_check(k, regs, tmp):
    r = list(regs)
    if len(r) == 1:
        k(f'v_cmp_eq_u32 vcc, -1, v{r[0]}'); return
    if len(r) == 2:
        k(f'v_max_u32 v{tmp}, v{r[0]}, v{r[1]}'); r = []
    else:
        k(f'v_max3_u32 v{tmp}, v{r[0]}, v{r[1]}, v{r[2]}'); r = r[3:]
    while len(r) >= 2:
        k(f'v_max3_u32 v{tmp}, v{tmp}, v{r[0]}, v{r[1]}'); r = r[2:]
    if r: k(f'v_max_u32 v{tmp}, v{tmp}, v{r[0]}')
    k(f'v_cmp_eq_u32 vcc, -1, v{tmp}')

TL = False
DBGST = False
def dstamp(k, word, cond_x, cond_r, wave=0):
    if not DBGST: return
    L = k.lab('ds')
    k(f'''s_cmp_lg_u32 s{SX}, {cond_x}
s_cbranch_scc1 {L}
s_cmp_lg_u32 s{SR}, {cond_r}
s_cbranch_scc1 {L}
s_cmp_lg_u32 s{SW}, {wave}
s_cbranch_scc1 {L}
s_memrealtime s[82:83]
s_waitcnt lgkmcnt(0)
v_mov_b32 v252, s82
v_mov_b32 v253, {word*4}
s_mov_b64 exec, 1
buffer_store_dword v252, v253, {DBG}, 0 offen
s_mov_b64 exec, -1
{L}:''')

def mark(k, n):
    if TL: k(f's_memrealtime s[82:83]\ns_waitcnt lgkmcnt(0)\ns_mov_b32 s{85+n}, s82')

FAKE = '''; test only: workgroups 0..40 claim die 3, which makes the counts uneven and forces the placement-independent path
s_cmp_lt_u32 s2, 41
s_cselect_b32 s98, 3, s98'''
def start_phase(k, keepflags=False):
    k(f'''
s_cmp_ge_u32 s2, 256
s_cbranch_scc1 L_exit
{'s_memrealtime s[84:85]' if TL else ''}
s_load_dwordx4 s[4:7], s[0:1], 88
s_getreg_b32 s{SXCC}, hwreg(HW_REG_XCC_ID)
s_and_b32 s{SXCC}, s{SXCC}, 15
{FAKE if OPT['fakex'] else ''}
v_and_b32 v1, 63, v0
v_lshrrev_b32 v2, 6, v0
v_readfirstlane_b32 s{SW}, v2
s_waitcnt lgkmcnt(0)''')
    srd(k, 8, 6, WS_BYTES)
    srd(k, 12, 4, 256)
    k(f'''
s_mov_b32 s{SLIM}, {POLL_LIMIT}
s_mov_b32 s{SSLOW}, 0
v_mov_b32 v9, 0
s_cmp_lg_u32 s{SW}, 0
s_cbranch_scc1 L_st_clr
s_lshl_b32 s35, s{SXCC}, 4
v_mov_b32 v8, s35
v_mov_b32 v9, 1
s_mov_b64 exec, 1
buffer_atomic_add v9, v8, {DBG}, 0 offen sc0
s_mov_b64 exec, -1
L_st_clr:
s_lshl_b32 s35, s2, 14
s_sub_u32 s36, s35, {FLG0}
s_cmp_lt_u32 s36, 0x8000
s_cselect_b32 s36, 0, -1
v_mov_b32 v4, s36
v_mov_b32 v5, s36
v_mov_b32 v6, s36
v_mov_b32 v7, s36
v_lshlrev_b32 v2, 4, v0
s_add_u32 s36, s35, 8192
{'s_cmp_lt_u32 s35, 0x10000' if keepflags else ''}
{'s_cbranch_scc1 L_st_noclr' if keepflags else ''}
buffer_store_dwordx4 v[4:7], v2, {WS}, s35 offen sc1
buffer_store_dwordx4 v[4:7], v2, {WS}, s36 offen sc1
L_st_noclr:
s_cmp_lg_u32 s{SW}, 0
s_cbranch_scc1 L_st_w1
s_waitcnt vmcnt(2)
v_readfirstlane_b32 s35, v9
v_mov_b32 v4, s35
v_mov_b32 v8, 0
ds_write_b32 v8, v4
s_waitcnt lgkmcnt(0)
L_st_w1:
s_barrier
v_mov_b32 v8, 0
ds_read_b32 v4, v8
s_waitcnt lgkmcnt(0)
v_readfirstlane_b32 s{SRANK}, v4
; speculative placement: id = 32 * die + rank (checked against the final counts before any hand-off)
s_min_u32 s{SR}, s{SRANK}, 31
s_and_b32 s{SX}, s{SXCC}, 7
s_waitcnt vmcnt(0)
s_barrier
s_cmp_lg_u32 s{SW}, 0
s_cbranch_scc1 L_dispatch
s_lshl_b32 s35, s{SXCC}, 4
s_add_u32 s35, s35, 8
v_mov_b32 v8, s35
v_mov_b32 v9, 1
s_mov_b64 exec, 1
buffer_atomic_add v9, v8, {DBG}, 0 offen
s_mov_b64 exec, -1
L_dispatch:''')
    dstamp(k, 15, 0, 0)
    if TL: k('s_memrealtime s[82:83]\ns_mov_b32 s86, 0\ns_mov_b32 s87, 0\ns_waitcnt lgkmcnt(0)\ns_mov_b32 s85, s82')

def help_prefetch(k):
    H, D = k.lab('hp'), k.lab('hpd')
    k(f'''s_cmp_ge_u32 s{SX}, 4
s_cbranch_scc1 {H}
; chain die: wave wg = (R-24)*8 + w; tasks wg + 64 j < 480: unit = t / 20, block of 16 rows = t % 20
s_sub_u32 s34, s{SR}, 24
s_lshl_b32 s34, s34, 3
s_add_u32 s34, s34, s{SW}
v_lshrrev_b32 v10, 2, v1
v_and_b32 v11, 3, v1
v_lshlrev_b32 v10, 13, v10
v_lshl_add_u32 v10, v11, 6, v10''')
    for j in range(8):
        sk = k.lab('hs')
        k(f'''s_add_u32 s35, s34, {64*j}
s_cmp_ge_u32 s35, 480
s_cbranch_scc1 {sk}
s_mul_i32 s36, s35, 3277
s_lshr_b32 s36, s36, 16               ; unit (0..23)
s_mul_i32 s37, s36, 20
s_sub_u32 s37, s35, s37               ; block
s_cmp_ge_u32 s36, 12
s_cselect_b32 s38, 1, 0
s_mul_i32 s39, s38, 12
s_sub_u32 s39, s36, s39               ; i
s_mul_i32 s44, s39, 11
s_lshr_b32 s44, s44, 5
s_mul_i32 s45, s44, 3
s_sub_u32 s45, s39, s45               ; m
s_lshl_b32 s46, s{SX}, 1
s_add_u32 s46, s46, s38
s_lshl_b32 s46, s46, 2
s_add_u32 s46, s46, s44               ; head
s_lshl_b32 s46, s46, 8
s_lshl_b32 s37, s37, 4
s_sub_u32 s37, 624, s37
s_lshl_b32 s37, s37, 13
s_add_u32 s46, s46, s37
s_lshl_b32 s45, s45, 3
s_add_u32 s45, s45, 16
s_load_dwordx2 s[4:5], s[0:1], s45
s_waitcnt lgkmcnt(0)''')
        srd(k, 16, 4, 640*8192)
        k(f'buffer_load_dword v{230+j}, v10, s[16:19], s46 offen\n{sk}:')
    k(f'''s_branch {D}
{H}:
; PROJ die: wave wg = (R-12)*8 + w; tasks wg + 160 j < 480: unit = t / 40, block of 8 rows = t % 40
s_sub_u32 s34, s{SR}, 12
s_lshl_b32 s34, s34, 3
s_add_u32 s34, s34, s{SW}
v_lshrrev_b32 v10, 3, v1
v_and_b32 v11, 7, v1
v_lshlrev_b32 v10, 13, v10
v_lshl_add_u32 v10, v11, 6, v10''')
    for j in range(3):
        k(f'''s_add_u32 s35, s34, {160*j}
s_mul_i32 s36, s35, 1639
s_lshr_b32 s36, s36, 16               ; unit (0..11)
s_mul_i32 s37, s36, 40
s_sub_u32 s37, s35, s37               ; block
s_sub_u32 s38, s{SX}, 4
s_mul_i32 s38, s38, 12
s_add_u32 s38, s38, s36               ; p
s_lshr_b32 s45, s38, 4                ; m
s_and_b32 s46, s38, 15
s_lshl_b32 s46, s46, 9
s_lshl_b32 s37, s37, 3
s_sub_u32 s37, 632, s37
s_lshl_b32 s37, s37, 13
s_add_u32 s46, s46, s37
s_lshl_b32 s45, s45, 3
s_add_u32 s45, s45, 16
s_min_u32 s45, s45, 32
s_load_dwordx2 s[4:5], s[0:1], s45
s_waitcnt lgkmcnt(0)''')
        srd(k, 16, 4, 640*8192)
        k(f'buffer_load_dword v{230+j}, v10, s[16:19], s46 offen')
    k(f'{D}:')

def validate(k, need_par=False):
    L, G, OK = k.lab('val'), k.lab('valg'), k.lab('valok')
    k(f'''s_cmp_lg_u32 s{SSLOW}, 0
s_cbranch_scc1 {OK}
v_lshlrev_b32 v10, 2, v1
s_mov_b32 s39, 0
{L}:
buffer_load_dword v11, v10, {DBG}, 0 offen sc1
s_waitcnt vmcnt(0)
v_cmp_eq_u32 vcc, 32, v11
s_and_b32 s34, vcc_lo, 0x55555555
s_cmp_eq_u32 s34, 0x55555555
s_cbranch_scc0 {G}_s
v_readlane_b32 s{SPAR}, v11, 1
s_mov_b32 s34, 0
{'s_cmp_lg_u32 s' + str(SPAR) + ', 0' if need_par else 's_cmp_eq_u32 s34, 0'}
s_cbranch_scc1 {G}
{G}_s:
s_mov_b32 s36, 0
s_mov_b32 s37, 0
s_mov_b32 s38, 0
s_mov_b32 s34, 0''')
    for i in range(16):
        k(f'''v_readlane_b32 s35, v11, {4*i+2}
s_add_u32 s38, s38, s35
v_readlane_b32 s35, v11, {4*i}
s_add_u32 s36, s36, s35
s_cmp_eq_u32 s35, {32 if i < 8 else 0}
s_cselect_b32 s97, 0, 1
s_or_b32 s34, s34, s97
s_cmp_gt_u32 s{SXCC}, {i}
s_cselect_b32 s35, s35, 0
s_add_u32 s37, s37, s35''')
    k(f'''v_readlane_b32 s{SPAR}, v11, 1
s_cmp_eq_u32 s36, 256
s_cselect_b32 s35, s38, 0
s_cmp_eq_u32 s35, 256''')
    if need_par:
        k(f'''s_cselect_b32 s35, s{SPAR}, 0
s_or_b32 s97, s35, s34
s_cmp_eq_u32 s36, 256
s_cselect_b32 s97, s97, 0
s_cmp_eq_u32 s38, 256
s_cselect_b32 s97, s97, 0
s_cmp_lg_u32 s97, 0''')
    k(f'''s_cbranch_scc1 {G}
s_sleep 2
s_add_u32 s39, s39, 1
s_cmp_lt_u32 s39, s{SLIM}
s_cbranch_scc1 {L}
s_mov_b32 s{SLIM}, 0
{G}:
s_and_b32 s{SPAR}, s{SPAR}, 2
s_lshl_b32 s{SPAR}, s{SPAR}, 12
s_cmp_eq_u32 s34, 0
s_cbranch_scc1 {OK}
s_mov_b32 s{SSLOW}, 1
s_mov_b32 s{SPAR}, 0
s_add_u32 s37, s37, s{SRANK}
s_and_b32 s37, s37, 255
s_lshr_b32 s{SX}, s37, 5
s_and_b32 s{SR}, s37, 31
s_barrier
s_branch L_dispatch
{OK}:''')

def calibrate(k):
    NS = OPT['ncal']
    k(f'''s_mov_b64 exec, 1
s_mov_b32 s36, -1
s_mov_b32 s37, -1
v_mov_b32 v9, -1
s_mul_i32 s48, s{SW}, {NS}
s_add_u32 s49, s48, {NS}
L_cal:''')
    for par in range(2):
        k(f'''s_lshl_b32 s38, s48, 8
s_add_u32 s38, s38, {PART + 0x190000 + par*8192:#x}
v_mov_b32 v8, s38
buffer_store_dword v9, v8, {WS}, 0 offen sc1
s_waitcnt vmcnt(0)
s_memtime s[44:45]
s_waitcnt lgkmcnt(0)
buffer_load_dword v9, v8, {WS}, 0 offen sc1
s_waitcnt vmcnt(0)
s_memtime s[46:47]
s_waitcnt lgkmcnt(0)
s_sub_u32 s38, s46, s44
s_min_u32 s{36+par}, s{36+par}, s38''')
    k(f'''s_add_u32 s48, s48, 1
s_cmp_lt_u32 s48, s49
s_cbranch_scc1 L_cal
v_mov_b32 v10, s36
v_mov_b32 v11, s37
s_lshl_b32 s38, s{SW}, 3
v_mov_b32 v8, s38
ds_write_b64 v8, v[10:11]
s_waitcnt lgkmcnt(0)
s_mov_b64 exec, -1
s_barrier
s_cmp_lg_u32 s{SW}, 0
s_cbranch_scc1 L_cal_d
v_lshlrev_b32 v8, 2, v1
ds_read_b32 v9, v8
s_waitcnt lgkmcnt(0)
s_mov_b32 s36, -1
s_mov_b32 s37, -1''')
    for w in range(8):
        k(f'v_readlane_b32 s38, v9, {2*w}\ns_min_u32 s36, s36, s38\nv_readlane_b32 s38, v9, {2*w+1}\ns_min_u32 s37, s37, s38')
    k(f'''s_cmp_lt_u32 s36, s37
s_cselect_b32 s38, 0, 1
s_cmp_ge_u32 s{SXCC}, 4
s_cselect_b32 s39, 1, 0
s_xor_b32 s38, s38, s39
s_add_u32 s38, s38, 1
{('s_mov_b32 s38, ' + str(OPT['forcepar'])) if OPT['forcepar'] else ''}
v_mov_b32 v9, s38
v_mov_b32 v8, 4
s_mov_b64 exec, 1
buffer_store_dword v9, v8, {DBG}, 0 offen sc1''')
    if OPT['caldbg'] == 1:
        k(f'''v_mov_b32 v9, s36
v_mov_b32 v8, 12
buffer_store_dword v9, v8, {DBG}, 0 offen
v_mov_b32 v9, s37
v_mov_b32 v8, 20
buffer_store_dword v9, v8, {DBG}, 0 offen''')
    k('s_waitcnt vmcnt(0)\ns_mov_b64 exec, -1\nL_cal_d:')

def par_wait(k):
    L, D = k.lab('pw'), k.lab('pwd')
    k(f'''s_cmp_lg_u32 s{SSLOW}, 0
s_cbranch_scc1 {D}
s_mov_b32 s39, 0
v_mov_b32 v13, 4
{L}:
buffer_load_dword v12, v13, {DBG}, 0 offen sc1
s_waitcnt vmcnt(0)
v_readfirstlane_b32 s{SPAR}, v12
s_cmp_lg_u32 s{SPAR}, 0
s_cbranch_scc1 {L}_g
s_sleep 2
s_add_u32 s39, s39, 1
s_cmp_lt_u32 s39, s{SLIM}
s_cbranch_scc1 {L}
s_mov_b32 s{SLIM}, 0
{L}_g:
s_and_b32 s{SPAR}, s{SPAR}, 2
s_lshl_b32 s{SPAR}, s{SPAR}, 12
{D}:
s_xor_b32 s{SFL0}, s{SPAR}, 8192
s_add_u32 s{SFL1}, s{SFL0}, {FLG1}
s_add_u32 s{SFL0}, s{SFL0}, {FLG0}''')

L_KV, L_MEMF, L_RED = 0, 65536, 65536 + 10240
V_MF = 10
V_MW = 11
VLANE16 = 2
V_A3 = 3
V_A4 = 4
V_A5 = 5
V_A6 = 6
V_A7 = 7
V_A9 = 9
V_IDX = 15
WO, KXR, VXR, QK, VM, S0, S1, SM = 16, 80, 112, 144, 160, 168, 172, 176
PX, PM, PM2, O, OB, OA, NEG = 180, 184, 186, 192, 224, 144, 240
W1, MF, DA, DB = 16, 176, 216, 220
S_HEAD, S_M, S_I, S_G, S_GI = 41, 42, 43, 44, 45
S_MEMN, S_MEMN4, S_MEMN8, S_MEMZ = 46, 47, 48, 49
S_QC, S_QC4, S_QZ = 50, 51, 52
S_PC, S_PZ = 53, 54
S_KP = 55
S_KXN, S_VXN = 56, 57
S_AVAIL = 58
S_KP4 = 59
M_LO8, M_EVEN, M_ODD = 72, 74, 76
S_C, S_NC = 78, 79

def chain_offsets(k, part):
    if 'q' in part:
        k(f"""s_and_b32 s34, s{SSTEP}, 3
s_mul_i32 s{S_QC}, s34, 196608
s_add_u32 s{S_QC}, s{S_QC}, {QKVR}""")
    if 'r' in part:
        k(f"""s_and_b32 s34, s{SSTEP}, 3
s_add_u32 s{S_QC4}, s{S_QC}, 4096
s_mul_i32 s{S_PC}, s34, {8*3*16384}
s_add_u32 s{S_PC}, s{S_PC}, {PART}
s_add_u32 s{S_PC}, s{S_PC}, s{SPAR}
s_add_u32 s35, s{SSTEP}, 2
s_and_b32 s35, s35, 3
s_mul_i32 s{S_QZ}, s35, 196608
s_add_u32 s{S_QZ}, s{S_QZ}, {QKVR}
s_mul_i32 s{S_PZ}, s35, {8*3*16384}
s_add_u32 s{S_PZ}, s{S_PZ}, {PART}
s_add_u32 s{S_PZ}, s{S_PZ}, s{SPAR}
s_mul_i32 s36, s{SX}, 10240
s_add_u32 s36, s36, {MEMR}
s_add_u32 s35, s{SSTEP}, 1
s_and_b32 s35, s35, 3
s_mul_i32 s{S_MEMN}, s35, 40960
s_add_u32 s{S_MEMN}, s{S_MEMN}, s36
s_add_u32 s{S_MEMN4}, s{S_MEMN}, 4096
s_add_u32 s{S_MEMN8}, s{S_MEMN}, 8192
s_add_u32 s35, s{SSTEP}, 3
s_and_b32 s35, s35, 3
s_mul_i32 s{S_MEMZ}, s35, 40960
s_add_u32 s{S_MEMZ}, s{S_MEMZ}, s36
s_mul_i32 s{S_KP}, s{SSTEP}, 196608
s_add_u32 s{S_KP}, s{S_KP}, {KVMP}
s_add_u32 s{S_KP4}, s{S_KP}, 4096
s_add_u32 s35, s{SSTEP}, 1
s_lshl_b32 s35, s35, 18
s_add_u32 s{S_KXN}, s35, {KX}
s_add_u32 s{S_VXN}, s35, {VX}""")

def kv_wait(k, need_sreg):
    D = k.lab('kvok')
    k(f's_cmp_ge_u32 s{S_AVAIL}, s{need_sreg}\ns_cbranch_scc1 {D}')
    L = k.lab('kvp')
    k(f"""s_mov_b32 s39, 0
{L}:
buffer_load_dword v13, v{V_A9}, {WS}, 0 offen sc1
s_waitcnt vmcnt(0)
v_readlane_b32 s34, v13, 0
v_readlane_b32 s35, v13, 1
s_min_u32 s{S_AVAIL}, s34, s35
s_cmp_ge_u32 s{S_AVAIL}, s{need_sreg}
s_cbranch_scc1 {D}
s_sleep 2
s_add_u32 s39, s39, 1
s_cmp_lt_u32 s39, s{SLIM}
s_cbranch_scc1 {L}
s_mov_b32 s{SLIM}, 0
{D}:""")

KVSC = ' sc1'
NOKV = False
def kv_loads(k, skx, svx):
    k(f's_add_u32 s34, s{skx}, 4096\ns_add_u32 s35, s{svx}, 4096')
    for i in range(8):
        k(f'buffer_load_dwordx4 {v(KXR+4*i,4)}, v{V_A4}, {WS}, s{skx if i < 4 else 34} offen offset:{(i%4)*1024}{KVSC}')
    for i in range(8):
        k(f'buffer_load_dwordx4 {v(VXR+4*i,4)}, v{V_A4}, {WS}, s{svx if i < 4 else 35} offen offset:{(i%4)*1024}{KVSC}')

def kv_dma(k, skx, svx, second=False):
    for part, sb in ((0, skx), (1, svx)):
        for hlf in range(2):
            k(f's_add_u32 m0, s60, {part*8192 + hlf*4096 - (16384 if second else 0)}' if not second else f's_sub_u32 m0, s60, {16384 - part*8192 - hlf*4096}')
            if second: k(f's_sub_u32 s34, s{sb}, {8192 - hlf*4096}')
            else: k(f's_add_u32 s34, s{sb}, {hlf*4096}')
            for i in range(4):
                k(f'buffer_load_dwordx4 v8, {WS}, s34 offen offset:{i*1024}{KVSC} lds')

def kv_copies(k, skx, svx):
    A, D = k.lab('kc'), k.lab('kd')
    k(f's_cmp_eq_u32 s{SW}, 6\ns_cbranch_scc1 {D}')
    kv_dma(k, skx, svx)
    k(f's_cmp_eq_u32 s{SW}, 7\ns_cbranch_scc0 {D}')
    kv_dma(k, skx, svx, second=True)
    k(f'{D}:')

def chain_selfproj(k):
    D, A, V_, E = k.lab('sp'), k.lab('spa'), k.lab('spv'), k.lab('spe')
    AC, XF = 176, 192
    k(f"""s_cmp_eq_u32 s{S_M}, 0
s_cbranch_scc1 {D}
s_cmp_lt_u32 s{SW}, 4
s_cbranch_scc1 {A}
v_and_b32 v10, 15, v1
v_mul_u32_u24 v10, 1296, v10
v_lshrrev_b32 v11, 4, v1
v_lshl_add_u32 v10, v11, 4, v10
v_add_u32 v10, 98304, v10
v_lshlrev_b32 v11, 4, v1
s_lshl_b32 s34, s{S_HEAD}, 13
v_add_u32 v11, s34, v11
s_sub_u32 s38, s{SW}, 4
s_cmp_eq_u32 s{S_M}, 2
s_cbranch_scc1 {V_}""")
    for typ in ('K', 'V'):
        if typ == 'V': k(f'{V_}:')
        for ks in range(20):
            b = XF + 8*(ks % 2)
            if ks == 0:
                for tt in range(2): k(f'ds_read_b128 {v(b+4*tt,4)}, v10 offset:{tt*16*1296}')
            if ks + 1 < 20:
                nb = XF + 8*((ks+1) % 2)
                for tt in range(2): k(f'ds_read_b128 {v(nb+4*tt,4)}, v10 offset:{tt*16*1296 + (ks+1)*64}')
            k(f's_waitcnt lgkmcnt({2 if ks + 1 < 20 else 0})')
            for t in range(2):
                for tt in range(2):
                    a = v(AC + 8*t + 4*tt, 4); w = v(W1 + 80*t + 4*ks, 4); x = v(b+4*tt, 4)
                    k(f'v_mfma_f32_16x16x32_bf16 {a}, {w if typ == "K" else x}, {x if typ == "K" else w}, {"0" if ks == 0 else a}')
        P = 208
        if typ == 'K':
            k(f's_lshl_b32 s34, s38, 10\ns_add_u32 s34, s34, {KX}')
            for tt in range(2):
                for t in range(2):
                    a = AC + 8*t + 4*tt
                    k(f'v_cvt_pk_bf16_f32 v{P+4*tt+2*t}, v{a}, v{a+1}\nv_cvt_pk_bf16_f32 v{P+4*tt+2*t+1}, v{a+2}, v{a+3}')
                k(f'v_permlane32_swap_b32 v{P+4*tt}, v{P+4*tt+2}\nv_permlane32_swap_b32 v{P+4*tt+1}, v{P+4*tt+3}')
                k(f'buffer_store_dwordx4 {v(P+4*tt,4)}, v11, {WS}, s34 offen sc1')
                if tt == 0: k('s_add_u32 s34, s34, 4096')
            k(f's_branch {E}')
        else:
            k(f's_lshl_b32 s34, s38, 11\ns_add_u32 s34, s34, {VX}')
            for t in range(2):
                for tt in range(2):
                    a = AC + 8*t + 4*tt
                    k(f'v_cvt_pk_bf16_f32 v{P+4*t+2*tt}, v{a}, v{a+1}\nv_cvt_pk_bf16_f32 v{P+4*t+2*tt+1}, v{a+2}, v{a+3}')
                k(f'buffer_store_dwordx4 {v(P+4*t,4)}, v11, {WS}, s34 offen offset:{t*1024} sc1')
    k(f"""{E}:
s_waitcnt vmcnt(0)
v_mov_b32 v10, 90112
v_mov_b32 v11, 1
s_mov_b64 exec, 1
ds_add_rtn_u32 v11, v10, v11
s_waitcnt lgkmcnt(0)
v_readfirstlane_b32 s35, v11
s_mov_b64 exec, -1
s_cmp_lg_u32 s35, 3
s_cbranch_scc1 {D}
s_lshl_b32 s34, s{S_HEAD}, 1
s_add_u32 s34, s34, s{S_M}
s_sub_u32 s34, s34, 1
s_lshl_b32 s34, s34, 2
s_add_u32 s34, s34, {F_KV0}
s_add_u32 s34, s34, s{SFL0}
v_mov_b32 v10, s34
v_mov_b32 v11, 1
s_mov_b64 exec, 1
buffer_store_dword v11, v10, {WS}, 0 offen sc1
s_mov_b64 exec, -1
s_branch {D}
{A}:
s_waitcnt vmcnt(0)
v_mov_b32 v10, 90112
{A}_w:
ds_read_b32 v11, v10
s_waitcnt lgkmcnt(0)
v_readfirstlane_b32 s35, v11
s_cmp_ge_u32 s35, 4
s_cbranch_scc1 {D}
s_sleep 1
s_branch {A}_w
{D}:""")

def chain_prologue(k):
    k(f"""
L_chain:
; i = R % 12, gi = R / 12, hl = i / 3, m = i % 3
s_cmp_ge_u32 s{SR}, 12
s_cselect_b32 s{S_GI}, 1, 0
s_mul_i32 s34, s{S_GI}, 12
s_sub_u32 s{S_I}, s{SR}, s34
s_mul_i32 s34, s{S_I}, 11
s_lshr_b32 s34, s34, 5
s_mul_i32 s35, s34, 3
s_sub_u32 s{S_M}, s{S_I}, s35
s_lshl_b32 s{S_G}, s{SX}, 1
s_add_u32 s{S_G}, s{S_G}, s{S_GI}
s_lshl_b32 s35, s{S_G}, 2
s_add_u32 s{S_HEAD}, s35, s34
s_lshl_b32 s34, s{S_M}, 3
s_add_u32 s34, s34, 16
s_load_dwordx2 s[4:5], s[0:1], s34
s_load_dwordx2 s[6:7], s[0:1], 40
s_load_dwordx2 s[36:37], s[0:1], 8
s_waitcnt lgkmcnt(0)""")
    srd(k, 16, 4, 640*8192)
    srd(k, 20, 6, 4096*1280)
    srd(k, 24, 36, 8*1280)
    STG = 176
    k(f"""
v_lshlrev_b32 v{VLANE16}, 4, v1
s_mov_b32 s{M_LO8}, 0x00ff00ff
s_mov_b32 s{M_LO8+1}, 0x00ff00ff
s_mov_b32 s{M_EVEN}, 0x55555555
s_mov_b32 s{M_EVEN+1}, 0x55555555
s_mov_b32 s{M_ODD}, 0xaaaaaaaa
s_mov_b32 s{M_ODD+1}, 0xaaaaaaaa
s_mov_b32 s{S_C}, {f32bits(128**-0.5 * math.log2(math.e)):#x}
s_mov_b32 s{S_NC}, {f32bits(-(128**-0.5) * math.log2(math.e)):#x}
s_mov_b32 s66, s{S_C}
s_mov_b32 s67, s{S_C}
v_and_b32 v10, 8, v1
v_cmp_eq_u32 vcc, 0, v10
v_mov_b32 v10, 0xeeee
v_mov_b32 v11, 0x4444
v_cndmask_b32 v{V_IDX}, v10, v11, vcc
v_mov_b32 v10, 90112
v_mov_b32 v11, 0
ds_write_b32 v10, v11
s_cmp_ge_u32 s{SW}, 4
s_cbranch_scc1 L_ch_ldw""")
    for rnd in range(3):
        k(f"""v_add_u32 v10, {256*rnd}, v0
v_lshrrev_b32 v11, 6, v10
v_bfe_u32 v12, v10, 4, 2
v_and_b32 v13, 7, v10
v_bfe_u32 v14, v10, 3, 1
v_mul_u32_u24 v13, 1280, v13
v_lshl_add_u32 v13, v11, 7, v13
v_lshl_add_u32 v13, v12, 5, v13
v_lshl_add_u32 v13, v14, 2, v13
buffer_load_dword v{144+4*rnd}, v13, s[24:27], 0 offen
buffer_load_dword v{145+4*rnd}, v13, s[24:27], 0 offen offset:8
buffer_load_dword v{146+4*rnd}, v13, s[24:27], 0 offen offset:16
buffer_load_dword v{147+4*rnd}, v13, s[24:27], 0 offen offset:24""")
    if OPT['selfp']:
        k(f"""s_cmp_eq_u32 s{S_M}, 0
s_cbranch_scc1 L_ch_nox
s_load_dwordx2 s[4:5], s[0:1], 0
s_waitcnt lgkmcnt(0)""")
        srd(k, 24, 4, 2048*1280)
        k('v_lshlrev_b32 v10, 4, v0')
        for i in range(10): k(f's_mov_b32 s34, {i*4096}\nbuffer_load_dwordx4 {v(16+4*i,4)}, v10, s[24:27], s34 offen')
        k('L_ch_nox:')
    k(f"""L_ch_ldw:
v_lshrrev_b32 v10, 4, v0
v_and_b32 v11, 15, v0
v_lshlrev_b32 v12, 13, v10
v_lshl_add_u32 v12, v11, 4, v12
s_lshl_b32 s34, s{S_HEAD}, 8
v_add_u32 v12, s34, v12""")
    for c in range(5):
        for kk in range(4):
            k(f's_mov_b32 s34, {(128*c + 32*kk)*8192}\nbuffer_load_dwordx4 {v(STG+16*c+4*kk,4)}, v12, s[16:19], s34 offen')
    k(f's_mov_b32 s63, 0\ns_cmp_ge_u32 s{SW}, 4\ns_cbranch_scc1 L_ch_nowo_ld')
    k(f"""s_cmp_ge_u32 s{S_I}, 10
s_cbranch_scc1 L_ch_nowo_ld
v_lshrrev_b32 v4, 3, v1
v_and_b32 v5, 7, v1
v_mul_u32_u24 v6, 1280, v4
v_lshl_add_u32 v6, v5, 4, v6
s_lshl_b32 s34, s{S_G}, 2
s_add_u32 s34, s34, s{SW}
s_mul_i32 s34, s34, {128*1280}
s_lshl_b32 s35, s{S_I}, 7
s_add_u32 s34, s34, s35
v_add_u32 v6, s34, v6
s_mov_b32 s63, 1""")
    for i in range(16):
        k(f's_mov_b32 s34, {8*i*1280}\nbuffer_load_dwordx4 {v(80+4*i,4)}, v6, s[20:23], s34 offen')
    k('L_ch_nowo_ld:')
    k(f"""
; LDS write address: r*256 + ((c16/2 + f) % 8)*32 + (c16%2)*16, f = 2*(r%4) + ((r>>3)&1)
v_and_b32 v13, 3, v10
v_lshlrev_b32 v13, 1, v13
v_bfe_u32 v14, v10, 3, 1
v_add_u32 v13, v13, v14
v_lshrrev_b32 v14, 1, v11
v_add_u32 v13, v13, v14
v_and_b32 v13, 7, v13
v_lshlrev_b32 v13, 5, v13
v_and_b32 v14, 1, v11
v_lshl_add_u32 v13, v14, 4, v13
v_lshl_add_u32 v13, v10, 8, v13
; transposing read addresses (tiles 2sw, 2sw+1): (8g+rr)*256 + ((te + 2rr + (g&1)) % 8)*32 + 8*(i%4)
v_lshrrev_b32 v10, 4, v1
v_bfe_u32 v11, v1, 2, 2
v_lshl_add_u32 v14, v10, 3, v11
v_lshlrev_b32 v14, 8, v14
v_and_b32 v8, 3, v1
v_lshl_add_u32 v14, v8, 3, v14
v_and_b32 v10, 1, v10
v_lshl_add_u32 v10, v11, 1, v10
s_and_b32 s34, s{SW}, 3
s_lshl_b32 s34, s34, 1
v_add_u32 v10, s34, v10
v_add_u32 v11, 1, v10
v_and_b32 v10, 7, v10
v_and_b32 v11, 7, v11
v_lshl_add_u32 v8, v11, 5, v14
v_lshl_add_u32 v14, v10, 5, v14
v_lshrrev_b32 v10, 3, v1
v_and_b32 v11, 7, v1
v_lshrrev_b32 v4, 1, v11
v_lshrrev_b32 v5, 1, v10
v_add_u32 v4, v4, v5
v_and_b32 v4, 3, v4
v_lshlrev_b32 v4, 5, v4
v_and_b32 v5, 1, v11
v_lshl_add_u32 v4, v5, 4, v4
v_lshl_add_u32 v4, v10, 7, v4
s_lshl_b32 s34, s{SW}, 14
s_add_u32 s34, s34, 98304
v_add_u32 v4, s34, v4
v_lshrrev_b32 v10, 4, v1
v_bfe_u32 v11, v1, 2, 2
v_lshl_add_u32 v6, v10, 2, v11
v_lshlrev_b32 v5, 7, v6
v_add_u32 v5, s34, v5
v_and_b32 v10, 3, v1
v_lshl_add_u32 v5, v10, 3, v5
v_lshrrev_b32 v6, 1, v6""")
    for c in range(5):
        buf = (c % 2)*32768
        wa, wb_ = k.lab('wv'), k.lab('wv')
        k(f's_cmp_eq_u32 s63, 0\ns_cbranch_scc1 {wa}\ns_waitcnt vmcnt({32 - 4*c})\ns_branch {wb_}\n{wa}:\ns_waitcnt vmcnt({16 - 4*c})\n{wb_}:')
        for kk in range(4):
            k(f'ds_write_b128 v13, {v(STG+16*c+4*kk,4)} offset:{buf + kk*8192}')
        k('s_waitcnt lgkmcnt(0)\ns_barrier')
        sa, sk = k.lab('w1a'), k.lab('w1s')
        k(f's_cmp_lt_u32 s{SW}, 4\ns_cbranch_scc1 {sa}')
        for t, ad in ((0, 14), (1, 8)):
            for ksl in range(4):
                for hh in range(2):
                    k(f'ds_read_b64_tr_b16 {v(W1 + 80*t + 4*(4*c+ksl) + 2*hh, 2)}, v{ad} offset:{buf + ksl*8192 + hh*1024}')
            k('s_waitcnt lgkmcnt(0)')
        k(f's_branch {sk}\n{sa}:')
        if c == 0:
            for rnd in range(3):
                k(f'v_add_u32 v10, {256*rnd}, v0\nv_lshlrev_b32 v10, 4, v10\nv_add_u32 v10, {L_MEMF}, v10\nds_write_b128 v10, {v(144+4*rnd,4)}')
            k('s_waitcnt lgkmcnt(0)')
        if c == 0 and OPT['selfp']:
            k(f's_cmp_eq_u32 s{S_M}, 0\ns_cbranch_scc1 {sk}')
            for i in range(10):
                k(f"""v_add_u32 v10, {256*i}, v0
v_mul_u32_u24 v11, 52429, v10
v_lshrrev_b32 v11, 22, v11
v_add_u32 v11, v11, v10
v_lshlrev_b32 v11, 4, v11
v_add_u32 v11, 98304, v11
ds_write_b128 v11, {v(16+4*i,4)}""")
            k('s_waitcnt lgkmcnt(0)')
        k(f'{sk}:')
    k('s_barrier')
    validate(k)
    par_wait(k)
    if OPT['selfp']: chain_selfproj(k)
    if True:
        sk = k.lab('wo')
        k(f's_cmp_ge_u32 s{SW}, 4\ns_cbranch_scc1 {sk}\ns_cmp_ge_u32 s{S_I}, 10\ns_cbranch_scc1 {sk}\ns_waitcnt vmcnt(0)')
        for i in range(16): k(f'ds_write_b128 v4, {v(80+4*i,4)} offset:{i*1024}')
        k('s_waitcnt lgkmcnt(0)')
        for ct in range(4):
            k(f'v_add_u32 v10, {ct}, v6\nv_and_b32 v10, 3, v10\nv_lshl_add_u32 v10, v10, 5, v5')
            for ks in range(4):
                for hh in range(2):
                    k(f'ds_read_b64_tr_b16 {v(WO + 16*ct + 4*ks + 2*hh, 2)}, v10 offset:{(32*ks + 16*hh)*128}')
            k('s_waitcnt lgkmcnt(0)')
        k(f'{sk}:')
    k(f"""s_mov_b32 s{SSTEP}, 0
s_mov_b32 s{S_AVAIL}, 0
s_cmp_ge_u32 s{SW}, 4
s_cbranch_scc1 L_ch_pS
s_lshl_b32 s34, s{S_G}, 2
s_add_u32 s34, s34, s{SW}
s_mul_i32 s35, s34, 6144
v_add_u32 v{V_A3}, s35, v{VLANE16}
s_lshl_b32 s35, s34, 13
v_add_u32 v{V_A4}, s35, v{VLANE16}
s_lshl_b32 s35, s{SW}, 11
s_add_u32 s35, s35, {L_RED}
v_add_u32 v{V_A5}, s35, v{VLANE16}
s_lshl_b32 s35, s{SW}, 14
s_add_u32 s35, s35, {L_KV}
s_lshr_b32 s34, s34, 1
v_and_b32 v10, 1, v1
v_lshlrev_b32 v10, 4, v10
v_add_u32 v10, s34, v10
v_add_u32 v10, 16, v10
v_lshlrev_b32 v{V_A9}, 2, v10
v_add_u32 v{V_A9}, s{SFL0}, v{V_A9}
v_cmp_gt_u32 vcc, 32, v1
v_mov_b32 v10, 0
v_mov_b32 v11, 0xf149f2ca
v_cndmask_b32 v{NEG}, v10, v11, vcc
v_mov_b32 v{NEG+1}, v{NEG}
v_mov_b32 v{NEG+2}, v{NEG}
v_mov_b32 v{NEG+3}, v{NEG}
v_add_u32 v14, s35, v{VLANE16}
s_branch L_ch_pD
L_ch_pS:
s_sub_u32 s38, s{SW}, 4               ; sw
s_lshl_b32 s34, s38, 10
v_add_u32 v{V_A3}, s34, v{VLANE16}
v_and_b32 v10, 15, v1                 ; e16
v_bfe_u32 v11, v1, 4, 1               ; gg
v_lshrrev_b32 v12, 5, v1              ; hi
s_mul_i32 s36, s{S_HEAD}, 6144
s_cmp_eq_u32 s{S_M}, 2
s_cbranch_scc1 L_ch_qst_v
; q/k unit: row = 4gg + hi + 2*(e16&1) (+8 for k); g = 2*(te%2) + (e16/4)%2; j0 = 4*(e16/8) + (e16 & 2)
v_lshl_add_u32 v13, v11, 2, v12
v_and_b32 v14, 1, v10
v_lshl_add_u32 v13, v14, 1, v13
s_lshl_b32 s34, s{S_M}, 3
v_add_u32 v13, s34, v13
v_bfe_u32 v14, v10, 2, 1
v_lshl_add_u32 v13, v14, 4, v13
v_lshlrev_b32 v13, 4, v13
v_lshrrev_b32 v14, 3, v10
v_lshl_add_u32 v13, v14, 3, v13
v_and_b32 v14, 2, v10
v_lshl_add_u32 v13, v14, 1, v13
s_lshl_b32 s34, s38, 10
s_add_u32 s34, s34, s36
v_add_u32 v{V_A4}, s34, v13
v_add_u32 v{V_A5}, 512, v{V_A4}
s_branch L_ch_qst_done
L_ch_qst_v:
; v unit: 4096 + u*1024 + clane*16 + (sw%2)*8 + hi*4; clane = 32 + gg*16 + e16 (even tile), gg*16 + e16 (odd tile)
v_lshl_add_u32 v13, v11, 4, v10
v_lshlrev_b32 v13, 4, v13
v_lshl_add_u32 v13, v12, 2, v13
s_and_b32 s34, s38, 1
s_lshl_b32 s34, s34, 3
s_lshr_b32 s35, s38, 1
s_lshl_b32 s35, s35, 10
s_add_u32 s34, s34, s35
s_add_u32 s34, s34, 4096
s_add_u32 s34, s34, s36
v_add_u32 v{V_A5}, s34, v13
v_add_u32 v{V_A4}, 512, v{V_A5}
L_ch_qst_done:
s_mov_b32 s34, 524288
buffer_load_dword v224, v{V_A4}, {WS}, s34 offen sc1
buffer_load_dword v225, v{V_A5}, {WS}, s34 offen sc1
s_mov_b32 s34, 720896
buffer_load_dword v224, v{V_A4}, {WS}, s34 offen sc1
buffer_load_dword v225, v{V_A5}, {WS}, s34 offen sc1
s_mov_b32 s34, 917504
buffer_load_dword v224, v{V_A4}, {WS}, s34 offen sc1
buffer_load_dword v225, v{V_A5}, {WS}, s34 offen sc1
s_mov_b32 s34, 1114112
buffer_load_dword v224, v{V_A4}, {WS}, s34 offen sc1
buffer_load_dword v225, v{V_A5}, {WS}, s34 offen sc1
v_mov_b32 v216, 0
v_mov_b32 v217, 0
v_mov_b32 v218, 0
v_mov_b32 v219, 0
v_mov_b32 v220, 0
v_mov_b32 v221, 0
v_mov_b32 v222, 0
v_mov_b32 v223, 0
v_bfe_u32 v10, v1, 2, 3               ; r
v_lshrrev_b32 v13, 5, v1              ; c / 4
v_and_b32 v12, 3, v1                  ; c % 4
v_lshl_add_u32 v11, v13, 2, v12       ; c
v_lshlrev_b32 v12, 4, v12
v_lshl_add_u32 v12, v13, 3, v12
v_add_u32 v12, v12, v10
v_lshlrev_b32 v12, 4, v12
s_and_b32 s35, s38, 1
s_lshl_b32 s36, s35, 10
s_add_u32 s36, s36, {L_RED}
v_add_u32 v{V_A6}, s36, v12
s_lshl_b32 s36, s{S_I}, 1
s_add_u32 s36, s36, s35               ; j = 2i + (wave&1)
s_lshr_b32 s37, s36, 3
s_lshl_b32 s37, s37, 14
s_add_u32 s36, s36, s{S_G}
s_and_b32 s36, s36, 7
s_lshl_b32 s36, s36, 10
s_add_u32 s36, s36, s37
s_mul_i32 s37, s{S_G}, 49152
s_add_u32 s36, s36, s37
v_add_u32 v{V_A7}, s36, v{VLANE16}
s_lshl_b32 s34, s{S_G}, 2
s_add_u32 s34, s34, s38
s_lshl_b32 s35, s34, 13
v_add_u32 v8, s35, v{VLANE16}
s_lshl_b32 s60, s38, 14
s_add_u32 s60, s60, {L_KV}
s_lshr_b32 s34, s34, 1
v_and_b32 v9, 1, v1
v_lshlrev_b32 v9, 4, v9
v_add_u32 v9, s34, v9
v_add_u32 v9, 16, v9
v_lshlrev_b32 v{V_A9}, 2, v9
v_add_u32 v{V_A9}, s{SFL0}, v{V_A9}
s_cmp_ge_u32 s{S_I}, 10
s_cbranch_scc1 L_ch_nok0
s_mov_b32 s36, 1""")
    if OPT['selfp'] or OPT['mini']:
        from attout import flag_wait
        from layout import F_KV12
        k(f"""s_lshl_b32 s34, s{S_G}, 2
s_add_u32 s34, s34, s38
{'s_cmp_eq_u32 s' + str(SW) + ', 7'}
s_cselect_b32 s35, 1, 0
s_sub_u32 s34, s34, s35
s_lshl_b32 s34, s34, 3
s_add_u32 s34, s34, {F_KV12 if OPT['mini'] else F_KV0}
s_add_u32 s34, s34, s{SFL0}
v_lshlrev_b32 v12, 2, v1
v_add_u32 v12, s34, v12""")
        flag_wait(k, 'kv0', 12, 4, 36, tmp=13, sleep=1)
    else: kv_wait(k, 36)
    k(f's_mov_b32 s36, {KX}\ns_mov_b32 s37, {VX}')
    kv_copies(k, 36, 37)
    if OPT['mini']:
        from layout import F_KV12
        k('v_mov_b32 v238, v12')
    k(f"""s_waitcnt vmcnt(0)
L_ch_nok0:
s_cmp_lg_u32 s{SW}, 6
s_cbranch_scc1 L_ch_pD
s_mul_i32 s36, s{S_GI}, 10
s_add_u32 s36, s36, s{S_I}            ; j
s_lshr_b32 s37, s36, 3
s_lshl_b32 s37, s37, 14""")
    for g in range(8):
        k(f"""s_add_u32 s35, s36, {g}
s_and_b32 s35, s35, 7
s_lshl_b32 s35, s35, 10
s_add_u32 s35, s35, s37
s_add_u32 s35, s35, {g*49152}
v_add_u32 v{240+g}, s35, v{VLANE16}""")
    k(f"""
s_lshl_b32 s36, s36, 5                ; 32j
v_lshl_add_u32 v12, v11, 2, s36       ; d0
v_lshrrev_b32 v13, 6, v12
v_lshlrev_b32 v13, 10, v13
v_bfe_u32 v14, v12, 4, 2
v_lshl_add_u32 v14, v14, 4, v10
v_lshl_add_u32 v13, v14, 4, v13
v_bfe_u32 v14, v12, 2, 2
v_lshl_add_u32 v{V_A6}, v14, 2, v13
L_ch_pD:
v_add_u32 v{V_MF}, {L_MEMF}, v{VLANE16}
v_add_u32 v{V_MW}, {L_MEMF}, v{V_A3}""")
    k('s_waitcnt vmcnt(0) lgkmcnt(0)')

def delay(k, clks):
    if OPT['slp']:
        n = clks // 64
        while n > 0:
            m_ = min(n, 127); k(f's_sleep {m_}'); n -= m_
        clks = clks % 64
    n = clks // 4
    while n > 0:
        m_ = min(n, 16); k(f's_nop {m_-1}'); n -= m_

OPT = dict(dq=256, dp=512, dm=128, warm=1, dd=320, dw=1024, da=192, clrlate=0, lite=0, bsleep=0, osleep=0, xwarm=0, ds1=2048, place=0, sx=0, sm=0, sq=0, so=64, la=8, lb=56, help=0, dk=1024, outsc=0, ncal=2, caldbg=0, calsleep=0, forcepar=0, dv=64, slp=0, p2=0, selfp=1, fakex=0, prio=1, p3=0, wnt=0, psleep=0, mini=1)
def interleave(k, mf, va, per=2):
    va = list(va)
    for m in mf:
        k(m)
        for _ in range(per):
            if va: k(va.pop(0))
    for x in va: k(x)

def chain_loop(k, sc, prof, tag, qdelay=0):
    T = tag
    late = []
    k(f'L_step{T}:')
    k('s_barrier')
    k(f's_cmp_lt_u32 s{SW}, 4\ns_cbranch_scc1 L_aw{T}')
    if OPT['prio']: k('s_setprio 3')
    if OPT['p3']: k('s_memtime s[80:81]')
    for i in range(10): k(f'ds_read_b128 {v(MF+4*i,4)}, v{V_MF} offset:{i*1024}')
    chain_offsets(k, 'q')
    for i in range(10):
        k(f's_waitcnt lgkmcnt({9-i})')
        k(f'v_smfmac_f32_16x16x64_bf16 {v(DA,4)}, {v(MF+4*i,4)}, {v(W1+8*i,8)}, v{V_IDX}')
        k(f'v_smfmac_f32_16x16x64_bf16 {v(DB,4)}, {v(MF+4*i,4)}, {v(W1+80+8*i,8)}, v{V_IDX}')
    if OPT['p3']: k('s_memtime s[82:83]')
    k(f"""s_cmp_eq_u32 s{S_M}, 2
s_mov_b64 vcc, s[{M_EVEN}:{M_EVEN+1}]
v_permlane32_swap_b32 v{DA}, v{DA+1}
v_permlane32_swap_b32 v{DA+2}, v{DA+3}
v_add_f32 v{DA}, v{DA}, v{DA+1}
v_add_f32 v{DA+2}, v{DA+2}, v{DA+3}
v_permlane32_swap_b32 v{DB}, v{DB+1}
v_permlane32_swap_b32 v{DB+2}, v{DB+3}
v_add_f32 v{DB}, v{DB}, v{DB+1}
v_add_f32 v{DB+2}, v{DB+2}, v{DB+3}
s_cbranch_scc1 L_s1v{T}
v_cndmask_b32_dpp v224, v{DA+2}, v{DA}, vcc quad_perm:[1,0,3,2] row_mask:0xf bank_mask:0xf
v_cndmask_b32_dpp v226, v{DB+2}, v{DB}, vcc quad_perm:[1,0,3,2] row_mask:0xf bank_mask:0xf
s_mov_b64 vcc, s[{M_ODD}:{M_ODD+1}]
v_cndmask_b32_dpp v225, v{DA}, v{DA+2}, vcc quad_perm:[1,0,3,2] row_mask:0xf bank_mask:0xf
v_cndmask_b32_dpp v227, v{DB}, v{DB+2}, vcc quad_perm:[1,0,3,2] row_mask:0xf bank_mask:0xf
v_cvt_pk_bf16_f32 v12, v224, v225
v_cvt_pk_bf16_f32 v13, v226, v227
s_branch L_s1s{T}
L_s1v{T}:
v_cvt_pk_bf16_f32 v12, v{DA}, v{DA+2}
v_cvt_pk_bf16_f32 v13, v{DB}, v{DB+2}
L_s1s{T}:
buffer_store_dword v12, v{V_A4}, {WS}, s{S_QC} offen{sc}
buffer_store_dword v13, v{V_A5}, {WS}, s{S_QC} offen{sc}""")
    if OPT['p3']: k('s_memtime s[84:85]')
    k(f"""s_cmp_eq_u32 s{SSTEP}, 63
s_cbranch_scc1 L_fin
s_cmp_ge_u32 s{S_I}, 10
s_cbranch_scc1 L_s1only{T}
s_barrier""")
    if OPT['prio']: k('s_setprio 0')
    chain_offsets(k, 'r')
    clr = f"""v_mov_b32 v14, -1
buffer_store_dword v14, v{V_A4}, {WS}, s{S_QZ} offen{sc}
buffer_store_dword v14, v{V_A5}, {WS}, s{S_QZ} offen{sc}"""
    k(clr)
    for i in range(8): k(f'v_mov_b32 v{DA+i}, 0')
    KL = k.lab('kvl')
    k(f's_add_u32 s61, s{SSTEP}, 2\ns_mov_b32 s62, 1\ns_cmp_ge_u32 s{S_AVAIL}, s61\ns_cbranch_scc1 {KL}')
    if OPT['mini']:
        K12 = k.lab('k12')
        k(f"""s_cmp_gt_u32 s61, 3
s_cbranch_scc1 {K12}
buffer_load_dword v13, v238, {WS}, 0 offen sc1
s_waitcnt vmcnt(0)
v_readlane_b32 s34, v13, 0
v_readlane_b32 s35, v13, 1
s_min_u32 s34, s34, s35
v_readlane_b32 s35, v13, 2
s_min_u32 s34, s34, s35
v_readlane_b32 s35, v13, 3
s_min_u32 s34, s34, s35
s_mov_b32 s{S_AVAIL}, s34
s_cmp_ge_u32 s{S_AVAIL}, s61
s_cselect_b32 s62, 1, 0
s_branch {KL}
{K12}:""")
    k(f"""buffer_load_dword v13, v{V_A9}, {WS}, 0 offen sc1
s_waitcnt vmcnt(0)
v_readlane_b32 s34, v13, 0
v_readlane_b32 s35, v13, 1
s_min_u32 s{S_AVAIL}, s34, s35
s_cmp_ge_u32 s{S_AVAIL}, s61
s_cselect_b32 s62, 1, 0
{KL}:""")
    delay(k, OPT['dd'])
    KS = k.lab('kvs')
    k(f's_cmp_eq_u32 s62, 0\ns_cbranch_scc1 {KS}')
    if not NOKV: kv_copies(k, S_KXN, S_VXN)
    k(f'{KS}:')
    if OPT['prio']: k('s_setprio 3')
    k('s_barrier')
    if OPT['p3']: k('s_memtime s[86:87]')
    k(f's_cmp_ge_u32 s{SW}, 6\ns_cbranch_scc1 L_bw6{T}')
    for w in range(4): k(f'ds_read_b128 {v(176+4*w,4)}, v{V_A6} offset:{w*2048}')
    k(f"""s_waitcnt lgkmcnt(2)
v_pk_add_f32 v[176:177], v[176:177], v[180:181]
v_pk_add_f32 v[178:179], v[178:179], v[182:183]
s_waitcnt lgkmcnt(0)
v_pk_add_f32 v[184:185], v[184:185], v[188:189]
v_pk_add_f32 v[186:187], v[186:187], v[190:191]
v_pk_add_f32 v[176:177], v[176:177], v[184:185]
v_pk_add_f32 v[178:179], v[178:179], v[186:187]
buffer_store_dwordx4 v[176:179], v{V_A7}, {WS}, s{S_PC} offen sc1
{'s_memtime s[88:89]' if OPT['p3'] else ''}
v_mov_b32 v180, -1
v_mov_b32 v181, -1
v_mov_b32 v182, -1
v_mov_b32 v183, -1
buffer_store_dwordx4 v[180:183], v{V_A7}, {WS}, s{S_PZ} offen sc1
""")
    k(f's_branch L_b3{T}\nL_bw6{T}:')
    k(f's_cmp_lg_u32 s{SW}, 6\ns_cbranch_scc1 L_b3{T}')
    delay(k, OPT['dp'])
    if OPT['p3']: k('s_memtime s[88:89]')
    spins = []
    for g in range(8): k(f'buffer_load_dwordx4 {v(176+4*g,4)}, v{240+g}, {WS}, s{S_PC} offen sc1')
    PR, PC, PB = k.lab('pps'), k.lab('ppc'), k.lab('ppb')
    k(f's_mov_b32 s39, 0\n{PC}:')
    for g in range(8):
        k(f's_waitcnt vmcnt({7-g})')
        if g == 0: k('v_mov_b32 v224, v176')
        else:
            k(f'v_max_u32 v224, v224, v{176+4*g}')
            k(f'v_pk_add_f32 v[176:177], v[176:177], {v(176+4*g,2)}\nv_pk_add_f32 v[178:179], v[178:179], {v(178+4*g,2)}')
    k(f'v_cmp_eq_u32 vcc, -1, v224\ns_cbranch_vccnz {PR}\n{PB}:')
    spins.append((PR, PC, PB, [f'buffer_load_dwordx4 {v(176+4*gg,4)}, v{240+gg}, {WS}, s{S_PC} offen sc1' for gg in range(8)], OPT['sx']))
    if OPT['p3']: k('s_memtime s[90:91]')
    k(f"""v_cvt_pk_bf16_f32 v176, v176, v177
v_cvt_pk_bf16_f32 v177, v178, v179
buffer_store_dword v176, v{V_A6}, {WS}, s{S_MEMN} offen{sc}
buffer_store_dword v177, v{V_A6}, {WS}, s{S_MEMN} offen offset:128{sc}
L_b3{T}:
{'s_memtime s[92:93]' if OPT['p3'] else ''}
s_barrier
{'s_memtime s[94:95]' if OPT['p3'] else ''}""")
    def mem_poll(sleep):
        A, D = k.lab('mA'), k.lab('mD')
        k(f's_cmp_ge_u32 s{SW}, 6\ns_cbranch_scc1 {A}')
        for n in (3, 2):
            srcs = [S_MEMN, S_MEMN4, S_MEMN8][:n]
            for i, sr in enumerate(srcs): k(f'buffer_load_dwordx4 {v(176+4*i,4)}, v{V_A3}, {WS}, s{sr} offen sc1')
            k('s_mov_b32 s39, 0')
            for i, sr in enumerate(srcs):
                R_, C_, B_ = k.lab('pms'), k.lab('pmc'), k.lab('pmb')
                k(f"""{C_}:
s_waitcnt vmcnt({n-1-i})
v_max3_u32 v224, v{176+4*i}, v{177+4*i}, v{178+4*i}
v_max_u32 v224, v224, v{179+4*i}
v_cmp_eq_u32 vcc, -1, v224
s_cbranch_vccnz {R_}
{B_}:
ds_write_b128 v{V_MW}, {v(176+4*i,4)} offset:{i*4096}""")
                spins.append((R_, C_, B_, [f'buffer_load_dwordx4 {v(176+4*ii,4)}, v{V_A3}, {WS}, s{srcs[ii]} offen sc1' for ii in range(i, n)], OPT['sm'] if sleep == 0 else OPT['so']))
            if n == 3: k(f's_branch {D}\n{A}:')
        k(f'{D}:')
    if prof: k('s_memrealtime s[94:95]')
    delay(k, OPT['dm'])
    mem_poll(0)
    if OPT['p3']: k('s_memtime s[96:97]')
    KZ = k.lab('kvz')
    k(f's_cmp_lg_u32 s62, 0\ns_cbranch_scc1 {KZ}')
    if OPT['mini']:
        from attout import flag_wait
        KA, KB_ = k.lab('k12a'), k.lab('k12b')
        k(f's_cmp_gt_u32 s61, 3\ns_cbranch_scc1 {KA}')
        flag_wait(k, 'k12w', 238, 4, 61, tmp=13, sleep=1)
        k(f's_mov_b32 s{S_AVAIL}, s61\ns_branch {KB_}\n{KA}:')
        kv_wait(k, 61)
        k(f'{KB_}:')
    else: kv_wait(k, 61)
    if not NOKV: kv_copies(k, S_KXN, S_VXN)
    k(f's_waitcnt vmcnt(0)\n{KZ}:')
    k(f"""s_cmp_lg_u32 s{SW}, 6
s_cbranch_scc1 L_next{T}
v_mov_b32 v14, -1
buffer_store_dword v14, v{V_A6}, {WS}, s{S_MEMZ} offen{sc}
buffer_store_dword v14, v{V_A6}, {WS}, s{S_MEMZ} offen offset:128{sc}
L_next{T}:""")
    if prof:
        k('s_memrealtime s[96:97]\ns_waitcnt lgkmcnt(0)\ns_mov_b32 m0, s40')
        pA, pD = k.lab('pfA'), k.lab('pfD')
        k(f's_cmp_lt_u32 s{SW}, 4\ns_cbranch_scc1 {pA}')
        for n, r in enumerate((80, 82, 88, 90, 92, 94, 96)): k(f'v_writelane_b32 v{248+n}, s{r}, m0')
        k('s_lshl_b32 s63, s63, 16\ns_or_b32 s63, s63, s64\nv_writelane_b32 v255, s63, m0')
        k(f's_branch {pD}\n{pA}:')
        for n, r in enumerate((80, 84, 86, 96)): k(f'v_writelane_b32 v{252+n}, s{r}, m0')
        pass
        k(f'{pD}:')
    if OPT['p3']:
        pz = k.lab('p3z')
        k(f's_cmp_lt_u32 s{SW}, 4\ns_cbranch_scc1 {pz}\ns_waitcnt lgkmcnt(0)\ns_memtime s[64:65]\ns_waitcnt lgkmcnt(0)\ns_mov_b32 m0, s40')
        for n in range(8): k(f's_sub_u32 s34, s{82+2*n}, s{80+2*n}\nv_writelane_b32 v{248+n}, s34, m0')
        k('s_sub_u32 s34, s64, s96\nv_writelane_b32 v239, s34, m0')
        k(f'{pz}:')
    if OPT['lite']:
        l1, l2 = k.lab('lt'), k.lab('lt')
        k(f"""s_cmp_eq_u32 s{SSTEP}, {OPT['la']}
s_cbranch_scc0 {l1}
s_memrealtime s[90:91]
s_memtime s[94:95]
{l1}:
s_cmp_eq_u32 s{SSTEP}, {OPT['lb']}
s_cbranch_scc0 {l2}
s_memrealtime s[92:93]
s_memtime s[96:97]
{l2}:""")
    if OPT['lite'] > 1:
        k(f's_memrealtime s[88:89]\ns_waitcnt lgkmcnt(0)\ns_mov_b32 m0, s{SSTEP}\nv_writelane_b32 v254, s88, m0')
    if DBGST:
        l4 = k.lab('d4')
        k(f's_cmp_lg_u32 s{SSTEP}, 4\ns_cbranch_scc1 {l4}')
        dstamp(k, 13, 0, 0, 6)
        k(f'{l4}:')
    k(f"""s_waitcnt lgkmcnt(0)
s_add_u32 s{SSTEP}, s{SSTEP}, 1
s_branch L_step{T}""")
    k(f'L_s1only{T}:')
    chain_offsets(k, 'r')
    k('s_mov_b32 s62, 1')
    k(f"""v_mov_b32 v14, -1
buffer_store_dword v14, v{V_A4}, {WS}, s{S_QZ} offen{sc}
buffer_store_dword v14, v{V_A5}, {WS}, s{S_QZ} offen{sc}""")
    for i in range(8): k(f'v_mov_b32 v{DA+i}, 0')
    delay(k, OPT['ds1'])
    mem_poll(1)
    k(f's_branch L_next{T}')
    k(f'L_aw{T}:')
    if OPT['prio']: k('s_setprio 2')
    chain_offsets(k, 'qr')
    k(f"""s_cmp_ge_u32 s{S_I}, 10
s_cbranch_scc1 L_aidle{T}
s_cmp_eq_u32 s{SSTEP}, 63
s_cbranch_scc1 L_fin""")
    if prof: k('s_memrealtime s[80:81]')
    delay(k, OPT['da'])
    for i in range(8): k(f'ds_read_b128 {v(KXR+4*i,4)}, v14 offset:{i*1024}')
    k('s_waitcnt lgkmcnt(0)')
    for i in range(8): k(f'ds_read_b128 {v(VXR+4*i,4)}, v14 offset:{8192 + i*1024}')
    k('s_waitcnt lgkmcnt(0)')
    k('s_barrier')
    delay(k, OPT['dq'])
    k('s_mov_b32 s39, 0')
    for ks in range(4): k(f'buffer_load_dwordx4 {v(QK+4*ks,4)}, v{V_A3}, {WS}, s{S_QC} offen offset:{ks*1024} sc1')
    delay(k, OPT['dv'])
    for u in range(2): k(f'buffer_load_dwordx4 {v(VM+4*u,4)}, v{V_A3}, {WS}, s{S_QC4} offen offset:{u*1024} sc1')
    k('s_waitcnt vmcnt(2)')
    LQM = k.lab('pqm')
    k(f'{LQM}:')
    if OPT['p2']: k('s_memtime s[80:81]')
    mf = []
    for ks in range(4): mf.append(f'v_mfma_f32_16x16x32_bf16 {v(S0,4)}, {v(KXR+4*ks,4)}, {v(QK+4*ks,4)}, {"0" if ks == 0 else v(S0,4)}')
    for ks in range(4): mf.append(f'v_mfma_f32_16x16x32_bf16 {v(S1,4)}, {v(KXR+16+4*ks,4)}, {v(QK+4*ks,4)}, {"0" if ks == 0 else v(S1,4)}')
    for ks in range(4): mf.append(f'v_mfma_f32_16x16x32_bf16 {v(SM,4)}, {v(QK+4*ks,4)}, {v(QK+4*ks,4)}, {v(NEG,4) if ks == 0 else v(SM,4)}')
    chk = [f'v_max3_u32 v244, v{QK}, v{QK+1}, v{QK+2}'] + [f'v_max3_u32 v244, v244, v{QK+3+2*n}, v{QK+4+2*n}' for n in range(6)] + [f'v_max_u32 v244, v244, v{QK+15}']
    interleave(k, mf[:4], chk)
    k(mf[4]); k('v_cmp_eq_u32 vcc, -1, v244')
    QR = k.lab('pqr')
    k(mf[5]); k(f's_cbranch_vccnz {QR}')
    qspin = (QR, LQM)
    LQX = k.lab('pqx')
    k(f'{LQX}:')
    k(mf[6]); k(f'v_mov_b32 v{PM2}, 0\nv_mov_b32 v{PM2+1}, 0')
    k(mf[7])
    k(mf[8]); k(f'v_max3_f32 v244, v{S0}, v{S0+1}, v{S0+2}')
    k(mf[9]); k(mf[10])
    k(f'v_max3_f32 v244, v244, v{S0+3}, v{S1}')
    k(mf[11])
    if OPT['p2']: k('s_memtime s[82:83]')
    k(f"""v_max3_f32 v244, v244, v{S1+1}, v{S1+2}
v_max_f32 v244, v244, v{S1+3}""")
    if prof: k('s_memrealtime s[84:85]')
    k(f"""v_max3_f32 v244, v244, v{SM}, v{SM+1}
v_max3_f32 v244, v244, v{SM+2}, v{SM+3}
v_mov_b32 v245, v244
v_permlane16_swap_b32 v244, v245
v_max_f32 v244, v244, v245
v_mov_b32 v245, v244
v_permlane32_swap_b32 v244, v245
v_max_f32 v244, v244, v245
v_mul_f32 v244, s{S_NC}, v244
v_mul_f32 v245, 1.0, v244""")
    if OPT['p2']: k('s_memtime s[84:85]')
    for i in range(0, 12, 2): k(f'v_pk_fma_f32 {v(S0+i,2)}, {v(S0+i,2)}, s[66:67], v[244:245]')
    for i in range(8): k(f'v_exp_f32 v{S0+i}, v{S0+i}')
    k(f"""v_cvt_pk_bf16_f32 v{PX}, v{S0}, v{S0+1}
v_cvt_pk_bf16_f32 v{PX+1}, v{S0+2}, v{S0+3}
v_cvt_pk_bf16_f32 v{PX+2}, v{S1}, v{S1+1}
v_cvt_pk_bf16_f32 v{PX+3}, v{S1+2}, v{S1+3}""")
    VR, VB = k.lab('pvr'), k.lab('pvb')
    k('s_waitcnt vmcnt(0)')
    k(f'v_max3_u32 v247, v{VM}, v{VM+1}, v{VM+2}\nv_max3_u32 v247, v247, v{VM+3}, v{VM+4}')
    if OPT['p2']: k('s_memtime s[86:87]')
    mf = [f'v_mfma_f32_16x16x32_bf16 {v(O+4*te,4)}, {v(VXR+4*te,4)}, {v(PX,4)}, 0' for te in range(8)]
    k(mf[0]); k(f'v_exp_f32 v{SM}, v{SM}\nv_max3_u32 v247, v247, v{VM+5}, v{VM+6}')
    k(mf[1]); k(f'v_exp_f32 v{SM+1}, v{SM+1}\nv_max_u32 v247, v247, v{VM+7}')
    k(mf[2]); k(f'v_exp_f32 v{SM+2}, v{SM+2}\nv_add_f32 v245, v{S0}, v{S0+1}')
    k(mf[3]); k(f'v_exp_f32 v{SM+3}, v{SM+3}\nv_add_f32 v246, v{S0+2}, v{S0+3}')
    k(mf[4]); k(f'v_cvt_pk_bf16_f32 v{PM}, v{SM}, v{SM+2}\nv_cvt_pk_bf16_f32 v{PM+1}, v{SM+1}, v{SM+3}\nv_cmp_eq_u32 vcc, -1, v247')
    k(mf[5]); k(f'v_mov_b32 v188, v{PM}\nv_mov_b32 v189, v{PM+1}')
    k(mf[6]); k(f'v_add_f32 v245, v245, v{S1}\nv_add_f32 v246, v246, v{S1+1}')
    k(mf[7]); k(f'v_permlane32_swap_b32 v188, v{PM2}\nv_permlane32_swap_b32 v189, v{PM2+1}')
    k(f's_cbranch_vccnz {VR}\n{VB}:')
    mf = []
    for te in range(8):
        u, t4 = te // 4, te % 4
        a = VM + 4*u + 2*(t4 // 2); b = PM if t4 % 2 == 0 else PM2
        mf.append(f'v_mfma_f32_16x16x16_bf16 {v(O+4*te,4)}, {v(a,2)}, {v(b,2)}, {v(O+4*te,4)}')
    def cv(te): return [f'v_cvt_pk_bf16_f32 v{OB+4*(te//2)+2*(te%2)}, v{O+4*te}, v{O+4*te+1}', f'v_cvt_pk_bf16_f32 v{OB+4*(te//2)+2*(te%2)+1}, v{O+4*te+2}, v{O+4*te+3}']
    if OPT['p2']: k('s_memtime s[88:89]')
    k(mf[0]); k(f'v_add_f32 v245, v245, v{SM}\nv_add_f32 v246, v246, v{SM+1}')
    k(mf[1]); k(f'v_add_f32 v245, v245, v{SM+2}\nv_add_f32 v246, v246, v{SM+3}')
    k(mf[2]); k(f'v_add_f32 v245, v245, v{S1+2}\nv_add_f32 v246, v246, v{S1+3}')
    k(mf[3]); k('v_add_f32 v245, v245, v246\nv_mov_b32 v246, v245')
    for n in range(4):
        k(mf[4+n])
        for x in cv(n): k(x)
    mo = [[f'v_mfma_f32_16x16x32_bf16 {v(OA+4*ct,4)}, {v(WO+16*ct+4*ks,4)}, {v(OB+4*ks,4)}, {"0" if ks == 0 else v(OA+4*ct,4)}' for ct in range(4)] for ks in range(4)]
    if OPT['p2']: k('s_memtime s[90:91]')
    k(mo[0][0]); k('v_permlane16_swap_b32 v245, v246')
    k(mo[0][1]); k(cv(4)[0]); k(cv(4)[1])
    k(mo[0][2]); k(cv(5)[0]); k(cv(5)[1])
    k(mo[0][3]); k('v_add_f32 v245, v245, v246\nv_mov_b32 v246, v245')
    k(mo[1][0]); k(cv(6)[0]); k(cv(6)[1])
    k(mo[1][1]); k(cv(7)[0]); k(cv(7)[1])
    k(mo[1][2]); k('v_permlane32_swap_b32 v245, v246')
    k(mo[1][3]); k('v_add_f32 v245, v245, v246')
    k(mo[2][0]); k('v_rcp_f32 v245, v245')
    k(mo[3][0]); k(mo[2][1]); k('v_mov_b32 v244, v245')
    for x in (mo[3][1], mo[2][2], mo[3][2], mo[2][3], mo[3][3]): k(x)
    if OPT['p2']: k('s_memtime s[92:93]')
    for p in range(2):
        for i in range(0, 8, 2): k(f'v_pk_mul_f32 {v(OA+8*p+i,2)}, {v(OA+8*p+i,2)}, v[244:245]')
        for i in range(4):
            k(f'v_mov_b32_dpp v{OA+8*p+i}, v{OA+8*p+4+i} row_shr:8 row_mask:0xf bank_mask:0xc')
        k(f'ds_write_b128 v{V_A5}, {v(OA+8*p,4)} offset:{p*1024}')
    if OPT['p2']: k('s_memtime s[94:95]')
    k('s_waitcnt lgkmcnt(0)')
    if prof: k('s_memrealtime s[86:87]')
    if OPT['p2']:
        k('s_memtime s[96:97]\ns_waitcnt lgkmcnt(0)\ns_mov_b32 m0, s40')
        for n in range(8): k(f's_sub_u32 s34, s{82+2*n}, s{80+2*n}\nv_writelane_b32 v{248+n}, s34, m0')
    k('s_barrier')
    k(f's_barrier\ns_branch L_next{T}')
    def emit_spin(R_, C_, B_, loads, slp):
        k(f"""{R_}:
s_add_u32 s39, s39, 1
s_cmp_ge_u32 s39, s{SLIM}
s_cbranch_scc1 {R_}_t""")
        delay(k, slp)
        for x in loads: k(x)
        k(f's_branch {C_}\n{R_}_t:\ns_mov_b32 s{SLIM}, 0\ns_waitcnt vmcnt(0)\ns_branch {B_}')
    QR, LQM = qspin
    k(f"""{QR}:
s_add_u32 s39, s39, 1
s_cmp_ge_u32 s39, s{SLIM}
s_cbranch_scc1 {QR}_t""")
    delay(k, OPT['sq'])
    for ks in range(4): k(f'buffer_load_dwordx4 {v(QK+4*ks,4)}, v{V_A3}, {WS}, s{S_QC} offen offset:{ks*1024} sc1')
    k(f's_waitcnt vmcnt(0)\ns_branch {LQM}\n{QR}_t:\ns_mov_b32 s{SLIM}, 0\ns_branch {LQX}')
    k(f"""{VR}:
s_add_u32 s39, s39, 1
s_cmp_ge_u32 s39, s{SLIM}
s_cbranch_scc1 {VR}_t""")
    for u in range(2): k(f'buffer_load_dwordx4 {v(VM+4*u,4)}, v{V_A3}, {WS}, s{S_QC4} offen offset:{u*1024} sc1')
    k('s_waitcnt vmcnt(0)')
    umax_check(k, range(VM, VM+8), 247)
    k(f's_cbranch_vccnz {VR}\ns_branch {VB}\n{VR}_t:\ns_mov_b32 s{SLIM}, 0\ns_branch {VB}')
    late.append(lambda: [emit_spin(*x) for x in spins])
    k(f"""L_aidle{T}:
s_cmp_eq_u32 s{S_I}, 10
s_cbranch_scc0 L_awarm{T}""")
    def qloads():
        for ks in range(4): k(f'buffer_load_dwordx4 {v(QK+4*ks,4)}, v{V_A3}, {WS}, s{S_QC} offen offset:{ks*1024} sc1')
        for u in range(2): k(f'buffer_load_dwordx4 {v(VM+4*u,4)}, v{V_A3}, {WS}, s{S_QC4} offen offset:{u*1024} sc1')
    delay(k, OPT['dk'])
    poll(k, 'pk' + T, qloads, lambda: umax_check(k, list(range(QK, QK+16)) + list(range(VM, VM+8)), 244), sleep=2)
    for ks in range(4): k(f'buffer_store_dwordx4 {v(QK+4*ks,4)}, v{V_A3}, {WS}, s{S_KP} offen offset:{ks*1024} sc1')
    for u in range(2): k(f'buffer_store_dwordx4 {v(VM+4*u,4)}, v{V_A3}, {WS}, s{S_KP4} offen offset:{u*1024} sc1')
    k(f"""s_waitcnt vmcnt(0)
s_lshl_b32 s34, s{S_G}, 2
s_add_u32 s34, s34, s{SW}
s_lshl_b32 s34, s34, 7
s_add_u32 s34, s34, {F_KVM}
s_add_u32 s34, s34, s{SFL0}
s_add_u32 s35, s{SSTEP}, 1
v_mov_b32 v244, s34
v_mov_b32 v245, s35
s_mov_b64 exec, 1
buffer_store_dword v245, v244, {WS}, 0 offen sc1
s_mov_b64 exec, -1
s_cmp_eq_u32 s{SSTEP}, 63
s_cbranch_scc1 L_fin
s_branch L_next{T}
L_awarm{T}:
s_cmp_eq_u32 s{SSTEP}, 63
s_cbranch_scc1 L_fin""")
    if OPT['warm']:
        W = k.lab('wsk')
        k(f's_add_u32 s36, s{SSTEP}, 3\ns_cmp_gt_u32 s36, 64\ns_cbranch_scc1 {W}')
        delay(k, OPT['dw'])
        k(f"""buffer_load_dword v13, v{V_A9}, {WS}, 0 offen sc1
s_waitcnt vmcnt(0)
v_readlane_b32 s34, v13, 0
v_readlane_b32 s35, v13, 1
s_min_u32 s34, s34, s35
s_cmp_lt_u32 s34, s36
s_cbranch_scc1 {W}
s_add_u32 s36, s{SSTEP}, 2
s_lshl_b32 s36, s36, 18
s_add_u32 s37, s36, {VX}
s_add_u32 s36, s36, {KX}""")
        kv_loads(k, 36, 37)
        k(f'{W}:')
    k(f's_branch L_next{T}')
    for f in late: f()

def chain_fin(k, prof):
    k('L_fin:')
    if OPT['p3']:
        k(f"""s_lshl_b32 s34, s{SX}, 5
s_add_u32 s34, s34, s{SR}
s_lshl_b32 s34, s34, 3
s_add_u32 s34, s34, s{SW}
s_mul_i32 s34, s34, 4096
s_add_u32 s34, s34, 0x8000000
v_lshlrev_b32 v10, 2, v1
v_add_u32 v10, s34, v10""")
        for n in range(9): k(f'buffer_store_dword v{248+n if n < 8 else 239}, v10, {WS}, 0 offen offset:{n*256}')
    if OPT['p2']:
        k(f"""s_lshl_b32 s34, s{SX}, 5
s_add_u32 s34, s34, s{SR}
s_lshl_b32 s34, s34, 3
s_add_u32 s34, s34, s{SW}
s_lshl_b32 s34, s34, 11
s_add_u32 s34, s34, 0x8000000
v_lshlrev_b32 v10, 2, v1
v_add_u32 v10, s34, v10""")
        for n in range(8): k(f'buffer_store_dword v{248+n}, v10, {WS}, 0 offen offset:{n*256}')
    dstamp(k, 5, 0, 0)
    if OPT['lite']:
        k(f"""s_sub_u32 s34, s92, s90
v_mov_b32 v12, s34
s_lshl_b32 s34, s{SX}, 5
s_add_u32 s34, s34, s{SR}
s_lshl_b32 s34, s34, 3
s_add_u32 s34, s34, s{SW}
s_lshl_b32 s34, s34, 2
s_add_u32 s34, s34, 0x8800000
v_mov_b32 v10, s34
buffer_store_dword v12, v10, {WS}, 0 offen
s_sub_u32 s34, s96, s94
v_mov_b32 v12, s34
v_add_u32 v10, 0x10000, v10
buffer_store_dword v12, v10, {WS}, 0 offen""")
    if OPT['lite'] > 1:
        k(f"""s_lshl_b32 s34, s{SX}, 5
s_add_u32 s34, s34, s{SR}
s_lshl_b32 s34, s34, 3
s_add_u32 s34, s34, s{SW}
s_lshl_b32 s34, s34, 8
s_add_u32 s34, s34, 0x8a00000
v_lshlrev_b32 v10, 2, v1
v_add_u32 v10, s34, v10
buffer_store_dword v254, v10, {WS}, 0 offen""")
    if prof:
        k(f"""s_lshl_b32 s34, s{SX}, 5
s_add_u32 s34, s34, s{SR}
s_lshl_b32 s34, s34, 3
s_add_u32 s34, s34, s{SW}
s_lshl_b32 s34, s34, 11
s_add_u32 s34, s34, 0x8000000
v_lshlrev_b32 v10, 2, v1
v_add_u32 v10, s34, v10
s_cmp_lt_u32 s{SW}, 4
s_cbranch_scc1 L_fin0""")
        for n in range(8): k(f'buffer_store_dword v{248+n}, v10, {WS}, 0 offen offset:{n*256}')
        k('s_branch L_end\nL_fin0:')
        for n in range(4): k(f'buffer_store_dword v{252+n}, v10, {WS}, 0 offen offset:{n*256}')
    k('s_branch L_end')

def build(prof=False, roles=('chain',), keepflags=False, qdelay=0):
    k = Kern()
    import brole, proj, attout
    def validate_par(k2):
        validate(k2); par_wait(k2)
    brole.validate = proj.validate = validate_par
    attout.validate = validate; attout.par_wait = par_wait
    attout.calibrate = calibrate
    attout.CALSLEEP = OPT['calsleep']
    brole.help_prefetch = attout.help_prefetch = help_prefetch if OPT['help'] else (lambda k: None)
    start_phase(k, keepflags)
    on = lambda r: r in roles
    R = lambda r, l: l if on(r) else 'L_end'
    PLACE_A = f'''; dies 4-7: every die gets 12 PROJ, 8 B, 10 OUT and 2 ATT units
s_sub_u32 s34, s{SX}, 4
s_mul_i32 s41, s34, 12
s_add_u32 s41, s41, s{SR}
s_cmp_lt_u32 s{SR}, 12
s_cbranch_scc1 {R('proj', 'L_proj')}
s_lshl_b32 s41, s34, 3
s_add_u32 s41, s41, s{SR}
s_sub_u32 s41, s41, 12
s_cmp_lt_u32 s{SR}, 20
s_cbranch_scc1 {R('b', 'L_brole')}
s_mul_i32 s41, s34, 10
s_add_u32 s41, s41, s{SR}
s_sub_u32 s41, s41, 20
s_cmp_lt_u32 s{SR}, 30
s_cbranch_scc1 {R('out', 'L_out')}
s_lshl_b32 s41, s34, 1
s_add_u32 s41, s41, s{SR}
s_sub_u32 s41, s41, 30
s_branch {R('att', 'L_att')}'''
    PLACE_B = f'''; dies 4, 5: 24 PROJ + 8 B each; dies 6, 7: 20 OUT + 8 B + 4 ATT each
s_sub_u32 s34, s{SX}, 4
s_lshl_b32 s41, s34, 3
s_add_u32 s41, s41, s{SR}
s_sub_u32 s41, s41, 24
s_cmp_ge_u32 s{SR}, 24
s_cbranch_scc1 {R('b', 'L_brole')}
s_cmp_ge_u32 s{SX}, 6
s_cbranch_scc1 L_hi2
s_mul_i32 s41, s34, 24
s_add_u32 s41, s41, s{SR}
s_branch {R('proj', 'L_proj')}
L_hi2:
s_sub_u32 s34, s{SX}, 6
s_mul_i32 s41, s34, 20
s_add_u32 s41, s41, s{SR}
s_cmp_lt_u32 s{SR}, 20
s_cbranch_scc1 {R('out', 'L_out')}
s_lshl_b32 s41, s34, 2
s_add_u32 s41, s41, s{SR}
s_sub_u32 s41, s41, 20
s_branch {R('att', 'L_att')}'''
    k(f'''s_cmp_ge_u32 s{SX}, 4
s_cbranch_scc1 L_hi
s_cmp_lt_u32 s{SR}, 24
s_cbranch_scc1 {R('chain', 'L_chain')}
s_lshl_b32 s41, s{SX}, 3
s_add_u32 s41, s41, s{SR}
s_add_u32 s41, s41, 8
s_branch {R('b', 'L_brole')}
L_hi:
{PLACE_B if OPT['place'] == 2 else PLACE_A}''')
    if on('proj'): proj_role(k)
    if on('att'): att_role(k)
    if on('out'): out_role(k)
    if on('b'): b_role(k)
    if on('chain'):
        chain_prologue(k)
        mark(k, 1)
        dstamp(k, 3, 0, 0)
        k(f's_cmp_lg_u32 s{SSLOW}, 0\ns_cbranch_scc1 L_stepS')
        chain_loop(k, '', prof, 'F', qdelay)
        chain_loop(k, ' sc1', False, 'S')
        chain_fin(k, prof)
    k('L_end:')
    dstamp(k, 9, 7, 20)
    dstamp(k, 11, 4, 12)
    dstamp(k, 7, 4, 0)
    if TL:
        k(f'''s_memrealtime s[82:83]
s_waitcnt lgkmcnt(0)
v_mov_b32 v20, s84
v_mov_b32 v21, s85
v_mov_b32 v22, s86
v_mov_b32 v23, s87
v_mov_b32 v24, s82
s_lshl_b32 s34, s{SX}, 5
s_add_u32 s34, s34, s{SR}
s_lshl_b32 s34, s34, 3
s_add_u32 s34, s34, s{SW}
s_lshl_b32 s34, s34, 5
s_add_u32 s34, s34, 0x8900000
v_mov_b32 v25, s34
s_mov_b64 exec, 1
buffer_store_dwordx4 v[20:23], v25, {WS}, 0 offen
buffer_store_dword v24, v25, {WS}, 0 offen offset:16''')
    k('L_exit:\ns_endpgm')
    body, nops = k.text()
    head = f'''; @launch grid=(256,1,1) block=(512,1,1) lds=163840
.amdgcn_target "amdgcn-amd-amdhsa--gfx950"
.text
.globl {NAME}
.p2align 8
.type {NAME},@function
{NAME}:
'''
    tail = f'''
.section .rodata,"a"
.p2align 6
.amdhsa_kernel {NAME}
  .amdhsa_next_free_vgpr 256
  .amdhsa_next_free_sgpr 102
  .amdhsa_accum_offset 256
  .amdhsa_group_segment_fixed_size 0
  .amdhsa_kernarg_size 104
  .amdhsa_user_sgpr_count 2
  .amdhsa_user_sgpr_kernarg_segment_ptr 1
  .amdhsa_system_sgpr_workgroup_id_x 1
.end_amdhsa_kernel
'''
    return head + '\n'.join(body) + tail, nops

if __name__ == '__main__':
    out = sys.argv[1]
    opts = dict(a.split('=') for a in sys.argv[2:] if '=' in a)
    if 'kvsc' in opts: KVSC = {'p': '', 's': ' sc1', 'n': ' nt', '0': ' sc0'}[opts['kvsc']]
    NOKV = 'nokv' in sys.argv[2:]
    TL = 'tl' in sys.argv[2:]
    DBGST = 'dbgst' in sys.argv[2:]
    import brole, proj, attout
    brole.mark = proj.mark = attout.mark = mark
    brole.BMODE = int(opts.get('bmode', 0))
    for o in OPT:
        if o in opts: OPT[o] = int(opts[o])
    proj.MINI = OPT['mini']
    proj.SELFP = OPT['selfp']; proj.PSLEEP = OPT['psleep']
    proj.WNT = ' nt' if OPT['wnt'] else ''; proj.WNT2 = ' nt' if OPT['wnt'] > 1 else ''
    proj.LITE = OPT['lite']; proj.PMARK = int(opts.get('pmark', -1))
    brole.OUTSC = attout.OUTSC = {0: '', 1: ' sc1', 2: ' nt', 3: ' sc0 sc1'}[OPT['outsc']]
    brole.SLEEP = OPT['bsleep']; attout.OSLEEP = OPT['osleep']; attout.XWARM = OPT['xwarm']
    txt, nops = build(prof='prof' in sys.argv[2:], keepflags='keepflags' in sys.argv[2:], qdelay=int(opts.get('qdelay', 0)), roles=opts.get('roles', 'chain').split(','))
    open(out, 'w').write(txt)
    print('wrote', out, 'lines', txt.count('\n'), 'nop states', nops)
```

```python
import sys, math, struct
from dsl import Kern, v, s
from layout import *
from proj import proj_role
from attout import att_role, out_role
from brole import b_role

def f32bits(x): return struct.unpack('<I', struct.pack('<f', x))[0]

WS, DBG = 's[8:11]', 's[12:15]'
SX, SR, SW, SSLOW, SPAR, SLIM = 28, 29, 30, 31, 32, 33
SXCC, SRANK = 98, 99
SFL0, SFL1 = 100, 101
SSTEP = 40
POLL_LIMIT = 1 << 17

def srd(k, base, ptr, nbytes):
    k(f'''s_mov_b32 s{base}, s{ptr}
s_and_b32 s{base+1}, s{ptr+1}, 0xffff
s_mov_b32 s{base+2}, {nbytes:#x}
s_mov_b32 s{base+3}, 0x20000''')

def poll(k, name, loads, check, cnt=39, sleep=0):
    L, D = k.lab(name), k.lab(name + 'd')
    k(f's_mov_b32 s{cnt}, 0\n{L}:')
    loads()
    k('s_waitcnt vmcnt(0)')
    check()
    k(f's_cbranch_vccz {D}')
    if sleep: k(f's_sleep {sleep}')
    k(f'''s_add_u32 s{cnt}, s{cnt}, 1
s_cmp_lt_u32 s{cnt}, s{SLIM}
s_cbranch_scc1 {L}
s_mov_b32 s{SLIM}, 0
{D}:''')

def umax_check(k, regs, tmp):
    r = list(regs)
    if len(r) == 1:
        k(f'v_cmp_eq_u32 vcc, -1, v{r[0]}'); return
    if len(r) == 2:
        k(f'v_max_u32 v{tmp}, v{r[0]}, v{r[1]}'); r = []
    else:
        k(f'v_max3_u32 v{tmp}, v{r[0]}, v{r[1]}, v{r[2]}'); r = r[3:]
    while len(r) >= 2:
        k(f'v_max3_u32 v{tmp}, v{tmp}, v{r[0]}, v{r[1]}'); r = r[2:]
    if r: k(f'v_max_u32 v{tmp}, v{tmp}, v{r[0]}')
    k(f'v_cmp_eq_u32 vcc, -1, v{tmp}')

TL = False
DBGST = False
def dstamp(k, word, cond_x, cond_r, wave=0):
    if not DBGST: return
    L = k.lab('ds')
    k(f'''s_cmp_lg_u32 s{SX}, {cond_x}
s_cbranch_scc1 {L}
s_cmp_lg_u32 s{SR}, {cond_r}
s_cbranch_scc1 {L}
s_cmp_lg_u32 s{SW}, {wave}
s_cbranch_scc1 {L}
s_memrealtime s[82:83]
s_waitcnt lgkmcnt(0)
v_mov_b32 v252, s82
v_mov_b32 v253, {word*4}
s_mov_b64 exec, 1
buffer_store_dword v252, v253, {DBG}, 0 offen
s_mov_b64 exec, -1
{L}:''')

def mark(k, n):
    if TL: k(f's_memrealtime s[82:83]\ns_waitcnt lgkmcnt(0)\ns_mov_b32 s{85+n}, s82')

FAKE = '''; test only: workgroups 0..40 claim die 3, which makes the counts uneven and forces the placement-independent path
s_cmp_lt_u32 s2, 41
s_cselect_b32 s98, 3, s98'''
def start_phase(k, keepflags=False):
    k(f'''
s_cmp_ge_u32 s2, 256
s_cbranch_scc1 L_exit
{'s_memrealtime s[84:85]' if TL else ''}
s_load_dwordx4 s[4:7], s[0:1], 88
s_getreg_b32 s{SXCC}, hwreg(HW_REG_XCC_ID)
s_and_b32 s{SXCC}, s{SXCC}, 15
{FAKE if OPT['fakex'] else ''}
v_and_b32 v1, 63, v0
v_lshrrev_b32 v2, 6, v0
v_readfirstlane_b32 s{SW}, v2
s_waitcnt lgkmcnt(0)''')
    srd(k, 8, 6, WS_BYTES)
    srd(k, 12, 4, 256)
    k(f'''
s_mov_b32 s{SLIM}, {POLL_LIMIT}
s_mov_b32 s{SSLOW}, 0
v_mov_b32 v9, 0
s_cmp_lg_u32 s{SW}, 0
s_cbranch_scc1 L_st_clr
s_lshl_b32 s35, s{SXCC}, 4
v_mov_b32 v8, s35
v_mov_b32 v9, 1
s_mov_b64 exec, 1
buffer_atomic_add v9, v8, {DBG}, 0 offen sc0
s_mov_b64 exec, -1
L_st_clr:
s_lshl_b32 s35, s2, 14
s_sub_u32 s36, s35, {FLG0}
s_cmp_lt_u32 s36, 0x8000
s_cselect_b32 s36, 0, -1
v_mov_b32 v4, s36
v_mov_b32 v5, s36
v_mov_b32 v6, s36
v_mov_b32 v7, s36
v_lshlrev_b32 v2, 4, v0
s_add_u32 s36, s35, 8192
{'s_cmp_lt_u32 s35, 0x10000' if keepflags else ''}
{'s_cbranch_scc1 L_st_noclr' if keepflags else ''}
buffer_store_dwordx4 v[4:7], v2, {WS}, s35 offen sc1
buffer_store_dwordx4 v[4:7], v2, {WS}, s36 offen sc1
L_st_noclr:
s_cmp_lg_u32 s{SW}, 0
s_cbranch_scc1 L_st_w1
s_waitcnt vmcnt(2)
v_readfirstlane_b32 s35, v9
v_mov_b32 v4, s35
v_mov_b32 v8, 0
ds_write_b32 v8, v4
s_waitcnt lgkmcnt(0)
L_st_w1:
s_barrier
v_mov_b32 v8, 0
ds_read_b32 v4, v8
s_waitcnt lgkmcnt(0)
v_readfirstlane_b32 s{SRANK}, v4
; speculative placement: id = 32 * die + rank (checked against the final counts before any hand-off)
s_min_u32 s{SR}, s{SRANK}, 31
s_and_b32 s{SX}, s{SXCC}, 7
s_waitcnt vmcnt(0)
s_barrier
s_cmp_lg_u32 s{SW}, 0
s_cbranch_scc1 L_dispatch
s_lshl_b32 s35, s{SXCC}, 4
s_add_u32 s35, s35, 8
v_mov_b32 v8, s35
v_mov_b32 v9, 1
s_mov_b64 exec, 1
buffer_atomic_add v9, v8, {DBG}, 0 offen
s_mov_b64 exec, -1
L_dispatch:''')
    dstamp(k, 15, 0, 0)
    if TL: k('s_memrealtime s[82:83]\ns_mov_b32 s86, 0\ns_mov_b32 s87, 0\ns_waitcnt lgkmcnt(0)\ns_mov_b32 s85, s82')

def help_prefetch(k):
    H, D = k.lab('hp'), k.lab('hpd')
    k(f'''s_cmp_ge_u32 s{SX}, 4
s_cbranch_scc1 {H}
; chain die: wave wg = (R-24)*8 + w; tasks wg + 64 j < 480: unit = t / 20, block of 16 rows = t % 20
s_sub_u32 s34, s{SR}, 24
s_lshl_b32 s34, s34, 3
s_add_u32 s34, s34, s{SW}
v_lshrrev_b32 v10, 2, v1
v_and_b32 v11, 3, v1
v_lshlrev_b32 v10, 13, v10
v_lshl_add_u32 v10, v11, 6, v10''')
    for j in range(8):
        sk = k.lab('hs')
        k(f'''s_add_u32 s35, s34, {64*j}
s_cmp_ge_u32 s35, 480
s_cbranch_scc1 {sk}
s_mul_i32 s36, s35, 3277
s_lshr_b32 s36, s36, 16               ; unit (0..23)
s_mul_i32 s37, s36, 20
s_sub_u32 s37, s35, s37               ; block
s_cmp_ge_u32 s36, 12
s_cselect_b32 s38, 1, 0
s_mul_i32 s39, s38, 12
s_sub_u32 s39, s36, s39               ; i
s_mul_i32 s44, s39, 11
s_lshr_b32 s44, s44, 5
s_mul_i32 s45, s44, 3
s_sub_u32 s45, s39, s45               ; m
s_lshl_b32 s46, s{SX}, 1
s_add_u32 s46, s46, s38
s_lshl_b32 s46, s46, 2
s_add_u32 s46, s46, s44               ; head
s_lshl_b32 s46, s46, 8
s_lshl_b32 s37, s37, 4
s_sub_u32 s37, 624, s37
s_lshl_b32 s37, s37, 13
s_add_u32 s46, s46, s37
s_lshl_b32 s45, s45, 3
s_add_u32 s45, s45, 16
s_load_dwordx2 s[4:5], s[0:1], s45
s_waitcnt lgkmcnt(0)''')
        srd(k, 16, 4, 640*8192)
        k(f'buffer_load_dword v{230+j}, v10, s[16:19], s46 offen\n{sk}:')
    k(f'''s_branch {D}
{H}:
; PROJ die: wave wg = (R-12)*8 + w; tasks wg + 160 j < 480: unit = t / 40, block of 8 rows = t % 40
s_sub_u32 s34, s{SR}, 12
s_lshl_b32 s34, s34, 3
s_add_u32 s34, s34, s{SW}
v_lshrrev_b32 v10, 3, v1
v_and_b32 v11, 7, v1
v_lshlrev_b32 v10, 13, v10
v_lshl_add_u32 v10, v11, 6, v10''')
    for j in range(3):
        k(f'''s_add_u32 s35, s34, {160*j}
s_mul_i32 s36, s35, 1639
s_lshr_b32 s36, s36, 16               ; unit (0..11)
s_mul_i32 s37, s36, 40
s_sub_u32 s37, s35, s37               ; block
s_sub_u32 s38, s{SX}, 4
s_mul_i32 s38, s38, 12
s_add_u32 s38, s38, s36               ; p
s_lshr_b32 s45, s38, 4                ; m
s_and_b32 s46, s38, 15
s_lshl_b32 s46, s46, 9
s_lshl_b32 s37, s37, 3
s_sub_u32 s37, 632, s37
s_lshl_b32 s37, s37, 13
s_add_u32 s46, s46, s37
s_lshl_b32 s45, s45, 3
s_add_u32 s45, s45, 16
s_min_u32 s45, s45, 32
s_load_dwordx2 s[4:5], s[0:1], s45
s_waitcnt lgkmcnt(0)''')
        srd(k, 16, 4, 640*8192)
        k(f'buffer_load_dword v{230+j}, v10, s[16:19], s46 offen')
    k(f'{D}:')

def validate(k, need_par=False):
    L, G, OK = k.lab('val'), k.lab('valg'), k.lab('valok')
    k(f'''s_cmp_lg_u32 s{SSLOW}, 0
s_cbranch_scc1 {OK}
v_lshlrev_b32 v10, 2, v1
s_mov_b32 s39, 0
{L}:
buffer_load_dword v11, v10, {DBG}, 0 offen sc1
s_waitcnt vmcnt(0)
v_cmp_eq_u32 vcc, 32, v11
s_and_b32 s34, vcc_lo, 0x55555555
s_cmp_eq_u32 s34, 0x55555555
s_cbranch_scc0 {G}_s
v_readlane_b32 s{SPAR}, v11, 1
s_mov_b32 s34, 0
{'s_cmp_lg_u32 s' + str(SPAR) + ', 0' if need_par else 's_cmp_eq_u32 s34, 0'}
s_cbranch_scc1 {G}
{G}_s:
s_mov_b32 s36, 0
s_mov_b32 s37, 0
s_mov_b32 s38, 0
s_mov_b32 s34, 0''')
    for i in range(16):
        k(f'''v_readlane_b32 s35, v11, {4*i+2}
s_add_u32 s38, s38, s35
v_readlane_b32 s35, v11, {4*i}
s_add_u32 s36, s36, s35
s_cmp_eq_u32 s35, {32 if i < 8 else 0}
s_cselect_b32 s97, 0, 1
s_or_b32 s34, s34, s97
s_cmp_gt_u32 s{SXCC}, {i}
s_cselect_b32 s35, s35, 0
s_add_u32 s37, s37, s35''')
    k(f'''v_readlane_b32 s{SPAR}, v11, 1
s_cmp_eq_u32 s36, 256
s_cselect_b32 s35, s38, 0
s_cmp_eq_u32 s35, 256''')
    if need_par:
        k(f'''s_cselect_b32 s35, s{SPAR}, 0
s_or_b32 s97, s35, s34
s_cmp_eq_u32 s36, 256
s_cselect_b32 s97, s97, 0
s_cmp_eq_u32 s38, 256
s_cselect_b32 s97, s97, 0
s_cmp_lg_u32 s97, 0''')
    k(f'''s_cbranch_scc1 {G}
s_sleep 2
s_add_u32 s39, s39, 1
s_cmp_lt_u32 s39, s{SLIM}
s_cbranch_scc1 {L}
s_mov_b32 s{SLIM}, 0
{G}:
s_and_b32 s{SPAR}, s{SPAR}, 2
s_lshl_b32 s{SPAR}, s{SPAR}, 12
s_cmp_eq_u32 s34, 0
s_cbranch_scc1 {OK}
s_mov_b32 s{SSLOW}, 1
s_mov_b32 s{SPAR}, 0
s_add_u32 s37, s37, s{SRANK}
s_and_b32 s37, s37, 255
s_lshr_b32 s{SX}, s37, 5
s_and_b32 s{SR}, s37, 31
s_barrier
s_branch L_dispatch
{OK}:''')

def calibrate(k):
    NS = OPT['ncal']
    k(f'''s_mov_b64 exec, 1
s_mov_b32 s36, -1
s_mov_b32 s37, -1
v_mov_b32 v9, -1
s_mul_i32 s48, s{SW}, {NS}
s_add_u32 s49, s48, {NS}
L_cal:''')
    for par in range(2):
        k(f'''s_lshl_b32 s38, s48, 8
s_add_u32 s38, s38, {PART + 0x190000 + par*8192:#x}
v_mov_b32 v8, s38
buffer_store_dword v9, v8, {WS}, 0 offen sc1
s_waitcnt vmcnt(0)
s_memtime s[44:45]
s_waitcnt lgkmcnt(0)
buffer_load_dword v9, v8, {WS}, 0 offen sc1
s_waitcnt vmcnt(0)
s_memtime s[46:47]
s_waitcnt lgkmcnt(0)
s_sub_u32 s38, s46, s44
s_min_u32 s{36+par}, s{36+par}, s38''')
    k(f'''s_add_u32 s48, s48, 1
s_cmp_lt_u32 s48, s49
s_cbranch_scc1 L_cal
v_mov_b32 v10, s36
v_mov_b32 v11, s37
s_lshl_b32 s38, s{SW}, 3
v_mov_b32 v8, s38
ds_write_b64 v8, v[10:11]
s_waitcnt lgkmcnt(0)
s_mov_b64 exec, -1
s_barrier
s_cmp_lg_u32 s{SW}, 0
s_cbranch_scc1 L_cal_d
v_lshlrev_b32 v8, 2, v1
ds_read_b32 v9, v8
s_waitcnt lgkmcnt(0)
s_mov_b32 s36, -1
s_mov_b32 s37, -1''')
    for w in range(8):
        k(f'v_readlane_b32 s38, v9, {2*w}\ns_min_u32 s36, s36, s38\nv_readlane_b32 s38, v9, {2*w+1}\ns_min_u32 s37, s37, s38')
    k(f'''s_cmp_lt_u32 s36, s37
s_cselect_b32 s38, 0, 1
s_cmp_ge_u32 s{SXCC}, 4
s_cselect_b32 s39, 1, 0
s_xor_b32 s38, s38, s39
s_add_u32 s38, s38, 1
{('s_mov_b32 s38, ' + str(OPT['forcepar'])) if OPT['forcepar'] else ''}
v_mov_b32 v9, s38
v_mov_b32 v8, 4
s_mov_b64 exec, 1
buffer_store_dword v9, v8, {DBG}, 0 offen sc1''')
    if OPT['caldbg'] == 1:
        k(f'''v_mov_b32 v9, s36
v_mov_b32 v8, 12
buffer_store_dword v9, v8, {DBG}, 0 offen
v_mov_b32 v9, s37
v_mov_b32 v8, 20
buffer_store_dword v9, v8, {DBG}, 0 offen''')
    k('s_waitcnt vmcnt(0)\ns_mov_b64 exec, -1\nL_cal_d:')

def par_wait(k):
    L, D = k.lab('pw'), k.lab('pwd')
    k(f'''s_cmp_lg_u32 s{SSLOW}, 0
s_cbranch_scc1 {D}
s_mov_b32 s39, 0
v_mov_b32 v13, 4
{L}:
buffer_load_dword v12, v13, {DBG}, 0 offen sc1
s_waitcnt vmcnt(0)
v_readfirstlane_b32 s{SPAR}, v12
s_cmp_lg_u32 s{SPAR}, 0
s_cbranch_scc1 {L}_g
s_sleep 2
s_add_u32 s39, s39, 1
s_cmp_lt_u32 s39, s{SLIM}
s_cbranch_scc1 {L}
s_mov_b32 s{SLIM}, 0
{L}_g:
s_and_b32 s{SPAR}, s{SPAR}, 2
s_lshl_b32 s{SPAR}, s{SPAR}, 12
{D}:
s_xor_b32 s{SFL0}, s{SPAR}, 8192
s_add_u32 s{SFL1}, s{SFL0}, {FLG1}
s_add_u32 s{SFL0}, s{SFL0}, {FLG0}''')

L_KV, L_MEMF, L_RED = 0, 65536, 65536 + 10240
V_MF = 10
V_MW = 11
VLANE16 = 2
V_A3 = 3
V_A4 = 4
V_A5 = 5
V_A6 = 6
V_A7 = 7
V_A9 = 9
V_IDX = 15
WO, KXR, VXR, QK, VM, S0, S1, SM = 16, 80, 112, 144, 160, 168, 172, 176
PX, PM, PM2, O, OB, OA, NEG = 180, 184, 186, 192, 224, 144, 240
W1, MF, DA, DB = 16, 176, 216, 220
S_HEAD, S_M, S_I, S_G, S_GI = 41, 42, 43, 44, 45
S_MEMN, S_MEMN4, S_MEMN8, S_MEMZ = 46, 47, 48, 49
S_QC, S_QC4, S_QZ = 50, 51, 52
S_PC, S_PZ = 53, 54
S_KP = 55
S_KXN, S_VXN = 56, 57
S_AVAIL = 58
S_KP4 = 59
M_LO8, M_EVEN, M_ODD = 72, 74, 76
S_C, S_NC = 78, 79

def chain_offsets(k, part):
    if 'q' in part:
        k(f"""s_and_b32 s34, s{SSTEP}, 3
s_mul_i32 s{S_QC}, s34, 196608
s_add_u32 s{S_QC}, s{S_QC}, {QKVR}""")
    if 'r' in part:
        k(f"""s_and_b32 s34, s{SSTEP}, 3
s_add_u32 s{S_QC4}, s{S_QC}, 4096
s_mul_i32 s{S_PC}, s34, {8*3*16384}
s_add_u32 s{S_PC}, s{S_PC}, {PART}
s_add_u32 s{S_PC}, s{S_PC}, s{SPAR}
s_add_u32 s35, s{SSTEP}, 2
s_and_b32 s35, s35, 3
s_mul_i32 s{S_QZ}, s35, 196608
s_add_u32 s{S_QZ}, s{S_QZ}, {QKVR}
s_mul_i32 s{S_PZ}, s35, {8*3*16384}
s_add_u32 s{S_PZ}, s{S_PZ}, {PART}
s_add_u32 s{S_PZ}, s{S_PZ}, s{SPAR}
s_mul_i32 s36, s{SX}, 10240
s_add_u32 s36, s36, {MEMR}
s_add_u32 s35, s{SSTEP}, 1
s_and_b32 s35, s35, 3
s_mul_i32 s{S_MEMN}, s35, 40960
s_add_u32 s{S_MEMN}, s{S_MEMN}, s36
s_add_u32 s{S_MEMN4}, s{S_MEMN}, 4096
s_add_u32 s{S_MEMN8}, s{S_MEMN}, 8192
s_add_u32 s35, s{SSTEP}, 3
s_and_b32 s35, s35, 3
s_mul_i32 s{S_MEMZ}, s35, 40960
s_add_u32 s{S_MEMZ}, s{S_MEMZ}, s36
s_mul_i32 s{S_KP}, s{SSTEP}, 196608
s_add_u32 s{S_KP}, s{S_KP}, {KVMP}
s_add_u32 s{S_KP4}, s{S_KP}, 4096
s_add_u32 s35, s{SSTEP}, 1
s_lshl_b32 s35, s35, 18
s_add_u32 s{S_KXN}, s35, {KX}
s_add_u32 s{S_VXN}, s35, {VX}""")

def kv_wait(k, need_sreg):
    D = k.lab('kvok')
    k(f's_cmp_ge_u32 s{S_AVAIL}, s{need_sreg}\ns_cbranch_scc1 {D}')
    L = k.lab('kvp')
    k(f"""s_mov_b32 s39, 0
{L}:
buffer_load_dword v13, v{V_A9}, {WS}, 0 offen sc1
s_waitcnt vmcnt(0)
v_readlane_b32 s34, v13, 0
v_readlane_b32 s35, v13, 1
s_min_u32 s{S_AVAIL}, s34, s35
s_cmp_ge_u32 s{S_AVAIL}, s{need_sreg}
s_cbranch_scc1 {D}
s_sleep 2
s_add_u32 s39, s39, 1
s_cmp_lt_u32 s39, s{SLIM}
s_cbranch_scc1 {L}
s_mov_b32 s{SLIM}, 0
{D}:""")

KVSC = ' sc1'
NOKV = False
def kv_loads(k, skx, svx):
    k(f's_add_u32 s34, s{skx}, 4096\ns_add_u32 s35, s{svx}, 4096')
    for i in range(8):
        k(f'buffer_load_dwordx4 {v(KXR+4*i,4)}, v{V_A4}, {WS}, s{skx if i < 4 else 34} offen offset:{(i%4)*1024}{KVSC}')
    for i in range(8):
        k(f'buffer_load_dwordx4 {v(VXR+4*i,4)}, v{V_A4}, {WS}, s{svx if i < 4 else 35} offen offset:{(i%4)*1024}{KVSC}')

def kv_dma(k, skx, svx, second=False):
    for part, sb in ((0, skx), (1, svx)):
        for hlf in range(2):
            k(f's_add_u32 m0, s60, {part*8192 + hlf*4096 - (16384 if second else 0)}' if not second else f's_sub_u32 m0, s60, {16384 - part*8192 - hlf*4096}')
            if second: k(f's_sub_u32 s34, s{sb}, {8192 - hlf*4096}')
            else: k(f's_add_u32 s34, s{sb}, {hlf*4096}')
            for i in range(4):
                k(f'buffer_load_dwordx4 v8, {WS}, s34 offen offset:{i*1024}{KVSC} lds')

def kv_copies(k, skx, svx):
    A, D = k.lab('kc'), k.lab('kd')
    k(f's_cmp_eq_u32 s{SW}, 6\ns_cbranch_scc1 {D}')
    kv_dma(k, skx, svx)
    k(f's_cmp_eq_u32 s{SW}, 7\ns_cbranch_scc0 {D}')
    kv_dma(k, skx, svx, second=True)
    k(f'{D}:')

def chain_selfproj(k):
    D, A, V_, E = k.lab('sp'), k.lab('spa'), k.lab('spv'), k.lab('spe')
    AC, XF = 176, 192
    k(f"""s_cmp_eq_u32 s{S_M}, 0
s_cbranch_scc1 {D}
s_cmp_lt_u32 s{SW}, 4
s_cbranch_scc1 {A}
v_and_b32 v10, 15, v1
v_mul_u32_u24 v10, 1296, v10
v_lshrrev_b32 v11, 4, v1
v_lshl_add_u32 v10, v11, 4, v10
v_add_u32 v10, 98304, v10
v_lshlrev_b32 v11, 4, v1
s_lshl_b32 s34, s{S_HEAD}, 13
v_add_u32 v11, s34, v11
s_sub_u32 s38, s{SW}, 4
s_cmp_eq_u32 s{S_M}, 2
s_cbranch_scc1 {V_}""")
    for typ in ('K', 'V'):
        if typ == 'V': k(f'{V_}:')
        for ks in range(20):
            b = XF + 8*(ks % 2)
            if ks == 0:
                for tt in range(2): k(f'ds_read_b128 {v(b+4*tt,4)}, v10 offset:{tt*16*1296}')
            if ks + 1 < 20:
                nb = XF + 8*((ks+1) % 2)
                for tt in range(2): k(f'ds_read_b128 {v(nb+4*tt,4)}, v10 offset:{tt*16*1296 + (ks+1)*64}')
            k(f's_waitcnt lgkmcnt({2 if ks + 1 < 20 else 0})')
            for t in range(2):
                for tt in range(2):
                    a = v(AC + 8*t + 4*tt, 4); w = v(W1 + 80*t + 4*ks, 4); x = v(b+4*tt, 4)
                    k(f'v_mfma_f32_16x16x32_bf16 {a}, {w if typ == "K" else x}, {x if typ == "K" else w}, {"0" if ks == 0 else a}')
        P = 208
        if typ == 'K':
            k(f's_lshl_b32 s34, s38, 10\ns_add_u32 s34, s34, {KX}')
            for tt in range(2):
                for t in range(2):
                    a = AC + 8*t + 4*tt
                    k(f'v_cvt_pk_bf16_f32 v{P+4*tt+2*t}, v{a}, v{a+1}\nv_cvt_pk_bf16_f32 v{P+4*tt+2*t+1}, v{a+2}, v{a+3}')
                k(f'v_permlane32_swap_b32 v{P+4*tt}, v{P+4*tt+2}\nv_permlane32_swap_b32 v{P+4*tt+1}, v{P+4*tt+3}')
                k(f'buffer_store_dwordx4 {v(P+4*tt,4)}, v11, {WS}, s34 offen sc1')
                if tt == 0: k('s_add_u32 s34, s34, 4096')
            k(f's_branch {E}')
        else:
            k(f's_lshl_b32 s34, s38, 11\ns_add_u32 s34, s34, {VX}')
            for t in range(2):
                for tt in range(2):
                    a = AC + 8*t + 4*tt
                    k(f'v_cvt_pk_bf16_f32 v{P+4*t+2*tt}, v{a}, v{a+1}\nv_cvt_pk_bf16_f32 v{P+4*t+2*tt+1}, v{a+2}, v{a+3}')
                k(f'buffer_store_dwordx4 {v(P+4*t,4)}, v11, {WS}, s34 offen offset:{t*1024} sc1')
    k(f"""{E}:
s_waitcnt vmcnt(0)
v_mov_b32 v10, 90112
v_mov_b32 v11, 1
s_mov_b64 exec, 1
ds_add_rtn_u32 v11, v10, v11
s_waitcnt lgkmcnt(0)
v_readfirstlane_b32 s35, v11
s_mov_b64 exec, -1
s_cmp_lg_u32 s35, 3
s_cbranch_scc1 {D}
s_lshl_b32 s34, s{S_HEAD}, 1
s_add_u32 s34, s34, s{S_M}
s_sub_u32 s34, s34, 1
s_lshl_b32 s34, s34, 2
s_add_u32 s34, s34, {F_KV0}
s_add_u32 s34, s34, s{SFL0}
v_mov_b32 v10, s34
v_mov_b32 v11, 1
s_mov_b64 exec, 1
buffer_store_dword v11, v10, {WS}, 0 offen sc1
s_mov_b64 exec, -1
s_branch {D}
{A}:
s_waitcnt vmcnt(0)
v_mov_b32 v10, 90112
{A}_w:
ds_read_b32 v11, v10
s_waitcnt lgkmcnt(0)
v_readfirstlane_b32 s35, v11
s_cmp_ge_u32 s35, 4
s_cbranch_scc1 {D}
s_sleep 1
s_branch {A}_w
{D}:""")

def chain_prologue(k):
    k(f"""
L_chain:
; i = R % 12, gi = R / 12, hl = i / 3, m = i % 3
s_cmp_ge_u32 s{SR}, 12
s_cselect_b32 s{S_GI}, 1, 0
s_mul_i32 s34, s{S_GI}, 12
s_sub_u32 s{S_I}, s{SR}, s34
s_mul_i32 s34, s{S_I}, 11
s_lshr_b32 s34, s34, 5
s_mul_i32 s35, s34, 3
s_sub_u32 s{S_M}, s{S_I}, s35
s_lshl_b32 s{S_G}, s{SX}, 1
s_add_u32 s{S_G}, s{S_G}, s{S_GI}
s_lshl_b32 s35, s{S_G}, 2
s_add_u32 s{S_HEAD}, s35, s34
s_lshl_b32 s34, s{S_M}, 3
s_add_u32 s34, s34, 16
s_load_dwordx2 s[4:5], s[0:1], s34
s_load_dwordx2 s[6:7], s[0:1], 40
s_load_dwordx2 s[36:37], s[0:1], 8
s_waitcnt lgkmcnt(0)""")
    srd(k, 16, 4, 640*8192)
    srd(k, 20, 6, 4096*1280)
    srd(k, 24, 36, 8*1280)
    STG = 176
    k(f"""
v_lshlrev_b32 v{VLANE16}, 4, v1
s_mov_b32 s{M_LO8}, 0x00ff00ff
s_mov_b32 s{M_LO8+1}, 0x00ff00ff
s_mov_b32 s{M_EVEN}, 0x55555555
s_mov_b32 s{M_EVEN+1}, 0x55555555
s_mov_b32 s{M_ODD}, 0xaaaaaaaa
s_mov_b32 s{M_ODD+1}, 0xaaaaaaaa
s_mov_b32 s{S_C}, {f32bits(128**-0.5 * math.log2(math.e)):#x}
s_mov_b32 s{S_NC}, {f32bits(-(128**-0.5) * math.log2(math.e)):#x}
s_mov_b32 s66, s{S_C}
s_mov_b32 s67, s{S_C}
v_and_b32 v10, 8, v1
v_cmp_eq_u32 vcc, 0, v10
v_mov_b32 v10, 0xeeee
v_mov_b32 v11, 0x4444
v_cndmask_b32 v{V_IDX}, v10, v11, vcc
v_mov_b32 v10, 90112
v_mov_b32 v11, 0
ds_write_b32 v10, v11
s_cmp_ge_u32 s{SW}, 4
s_cbranch_scc1 L_ch_ldw""")
    for rnd in range(3):
        k(f"""v_add_u32 v10, {256*rnd}, v0
v_lshrrev_b32 v11, 6, v10
v_bfe_u32 v12, v10, 4, 2
v_and_b32 v13, 7, v10
v_bfe_u32 v14, v10, 3, 1
v_mul_u32_u24 v13, 1280, v13
v_lshl_add_u32 v13, v11, 7, v13
v_lshl_add_u32 v13, v12, 5, v13
v_lshl_add_u32 v13, v14, 2, v13
buffer_load_dword v{144+4*rnd}, v13, s[24:27], 0 offen
buffer_load_dword v{145+4*rnd}, v13, s[24:27], 0 offen offset:8
buffer_load_dword v{146+4*rnd}, v13, s[24:27], 0 offen offset:16
buffer_load_dword v{147+4*rnd}, v13, s[24:27], 0 offen offset:24""")
    if OPT['selfp']:
        k(f"""s_cmp_eq_u32 s{S_M}, 0
s_cbranch_scc1 L_ch_nox
s_load_dwordx2 s[4:5], s[0:1], 0
s_waitcnt lgkmcnt(0)""")
        srd(k, 24, 4, 2048*1280)
        k('v_lshlrev_b32 v10, 4, v0')
        for i in range(10): k(f's_mov_b32 s34, {i*4096}\nbuffer_load_dwordx4 {v(16+4*i,4)}, v10, s[24:27], s34 offen')
        k('L_ch_nox:')
    k(f"""L_ch_ldw:
v_lshrrev_b32 v10, 4, v0
v_and_b32 v11, 15, v0
v_lshlrev_b32 v12, 13, v10
v_lshl_add_u32 v12, v11, 4, v12
s_lshl_b32 s34, s{S_HEAD}, 8
v_add_u32 v12, s34, v12""")
    for c in range(5):
        for kk in range(4):
            k(f's_mov_b32 s34, {(128*c + 32*kk)*8192}\nbuffer_load_dwordx4 {v(STG+16*c+4*kk,4)}, v12, s[16:19], s34 offen')
    k(f's_mov_b32 s63, 0\ns_cmp_ge_u32 s{SW}, 4\ns_cbranch_scc1 L_ch_nowo_ld')
    k(f"""s_cmp_ge_u32 s{S_I}, 10
s_cbranch_scc1 L_ch_nowo_ld
v_lshrrev_b32 v4, 3, v1
v_and_b32 v5, 7, v1
v_mul_u32_u24 v6, 1280, v4
v_lshl_add_u32 v6, v5, 4, v6
s_lshl_b32 s34, s{S_G}, 2
s_add_u32 s34, s34, s{SW}
s_mul_i32 s34, s34, {128*1280}
s_lshl_b32 s35, s{S_I}, 7
s_add_u32 s34, s34, s35
v_add_u32 v6, s34, v6
s_mov_b32 s63, 1""")
    for i in range(16):
        k(f's_mov_b32 s34, {8*i*1280}\nbuffer_load_dwordx4 {v(80+4*i,4)}, v6, s[20:23], s34 offen')
    k('L_ch_nowo_ld:')
    k(f"""
; LDS write address: r*256 + ((c16/2 + f) % 8)*32 + (c16%2)*16, f = 2*(r%4) + ((r>>3)&1)
v_and_b32 v13, 3, v10
v_lshlrev_b32 v13, 1, v13
v_bfe_u32 v14, v10, 3, 1
v_add_u32 v13, v13, v14
v_lshrrev_b32 v14, 1, v11
v_add_u32 v13, v13, v14
v_and_b32 v13, 7, v13
v_lshlrev_b32 v13, 5, v13
v_and_b32 v14, 1, v11
v_lshl_add_u32 v13, v14, 4, v13
v_lshl_add_u32 v13, v10, 8, v13
; transposing read addresses (tiles 2sw, 2sw+1): (8g+rr)*256 + ((te + 2rr + (g&1)) % 8)*32 + 8*(i%4)
v_lshrrev_b32 v10, 4, v1
v_bfe_u32 v11, v1, 2, 2
v_lshl_add_u32 v14, v10, 3, v11
v_lshlrev_b32 v14, 8, v14
v_and_b32 v8, 3, v1
v_lshl_add_u32 v14, v8, 3, v14
v_and_b32 v10, 1, v10
v_lshl_add_u32 v10, v11, 1, v10
s_and_b32 s34, s{SW}, 3
s_lshl_b32 s34, s34, 1
v_add_u32 v10, s34, v10
v_add_u32 v11, 1, v10
v_and_b32 v10, 7, v10
v_and_b32 v11, 7, v11
v_lshl_add_u32 v8, v11, 5, v14
v_lshl_add_u32 v14, v10, 5, v14
v_lshrrev_b32 v10, 3, v1
v_and_b32 v11, 7, v1
v_lshrrev_b32 v4, 1, v11
v_lshrrev_b32 v5, 1, v10
v_add_u32 v4, v4, v5
v_and_b32 v4, 3, v4
v_lshlrev_b32 v4, 5, v4
v_and_b32 v5, 1, v11
v_lshl_add_u32 v4, v5, 4, v4
v_lshl_add_u32 v4, v10, 7, v4
s_lshl_b32 s34, s{SW}, 14
s_add_u32 s34, s34, 98304
v_add_u32 v4, s34, v4
v_lshrrev_b32 v10, 4, v1
v_bfe_u32 v11, v1, 2, 2
v_lshl_add_u32 v6, v10, 2, v11
v_lshlrev_b32 v5, 7, v6
v_add_u32 v5, s34, v5
v_and_b32 v10, 3, v1
v_lshl_add_u32 v5, v10, 3, v5
v_lshrrev_b32 v6, 1, v6""")
    for c in range(5):
        buf = (c % 2)*32768
        wa, wb_ = k.lab('wv'), k.lab('wv')
        k(f's_cmp_eq_u32 s63, 0\ns_cbranch_scc1 {wa}\ns_waitcnt vmcnt({32 - 4*c})\ns_branch {wb_}\n{wa}:\ns_waitcnt vmcnt({16 - 4*c})\n{wb_}:')
        for kk in range(4):
            k(f'ds_write_b128 v13, {v(STG+16*c+4*kk,4)} offset:{buf + kk*8192}')
        k('s_waitcnt lgkmcnt(0)\ns_barrier')
        sa, sk = k.lab('w1a'), k.lab('w1s')
        k(f's_cmp_lt_u32 s{SW}, 4\ns_cbranch_scc1 {sa}')
        for t, ad in ((0, 14), (1, 8)):
            for ksl in range(4):
                for hh in range(2):
                    k(f'ds_read_b64_tr_b16 {v(W1 + 80*t + 4*(4*c+ksl) + 2*hh, 2)}, v{ad} offset:{buf + ksl*8192 + hh*1024}')
            k('s_waitcnt lgkmcnt(0)')
        k(f's_branch {sk}\n{sa}:')
        if c == 0:
            for rnd in range(3):
                k(f'v_add_u32 v10, {256*rnd}, v0\nv_lshlrev_b32 v10, 4, v10\nv_add_u32 v10, {L_MEMF}, v10\nds_write_b128 v10, {v(144+4*rnd,4)}')
            k('s_waitcnt lgkmcnt(0)')
        if c == 0 and OPT['selfp']:
            k(f's_cmp_eq_u32 s{S_M}, 0\ns_cbranch_scc1 {sk}')
            for i in range(10):
                k(f"""v_add_u32 v10, {256*i}, v0
v_mul_u32_u24 v11, 52429, v10
v_lshrrev_b32 v11, 22, v11
v_add_u32 v11, v11, v10
v_lshlrev_b32 v11, 4, v11
v_add_u32 v11, 98304, v11
ds_write_b128 v11, {v(16+4*i,4)}""")
            k('s_waitcnt lgkmcnt(0)')
        k(f'{sk}:')
    k('s_barrier')
    validate(k)
    par_wait(k)
    if OPT['selfp']: chain_selfproj(k)
    if True:
        sk = k.lab('wo')
        k(f's_cmp_ge_u32 s{SW}, 4\ns_cbranch_scc1 {sk}\ns_cmp_ge_u32 s{S_I}, 10\ns_cbranch_scc1 {sk}\ns_waitcnt vmcnt(0)')
        for i in range(16): k(f'ds_write_b128 v4, {v(80+4*i,4)} offset:{i*1024}')
        k('s_waitcnt lgkmcnt(0)')
        for ct in range(4):
            k(f'v_add_u32 v10, {ct}, v6\nv_and_b32 v10, 3, v10\nv_lshl_add_u32 v10, v10, 5, v5')
            for ks in range(4):
                for hh in range(2):
                    k(f'ds_read_b64_tr_b16 {v(WO + 16*ct + 4*ks + 2*hh, 2)}, v10 offset:{(32*ks + 16*hh)*128}')
            k('s_waitcnt lgkmcnt(0)')
        k(f'{sk}:')
    k(f"""s_mov_b32 s{SSTEP}, 0
s_mov_b32 s{S_AVAIL}, 0
s_cmp_ge_u32 s{SW}, 4
s_cbranch_scc1 L_ch_pS
s_lshl_b32 s34, s{S_G}, 2
s_add_u32 s34, s34, s{SW}
s_mul_i32 s35, s34, 6144
v_add_u32 v{V_A3}, s35, v{VLANE16}
s_lshl_b32 s35, s34, 13
v_add_u32 v{V_A4}, s35, v{VLANE16}
s_lshl_b32 s35, s{SW}, 11
s_add_u32 s35, s35, {L_RED}
v_add_u32 v{V_A5}, s35, v{VLANE16}
s_lshl_b32 s35, s{SW}, 14
s_add_u32 s35, s35, {L_KV}
s_lshr_b32 s34, s34, 1
v_and_b32 v10, 1, v1
v_lshlrev_b32 v10, 4, v10
v_add_u32 v10, s34, v10
v_add_u32 v10, 16, v10
v_lshlrev_b32 v{V_A9}, 2, v10
v_add_u32 v{V_A9}, s{SFL0}, v{V_A9}
v_cmp_gt_u32 vcc, 32, v1
v_mov_b32 v10, 0
v_mov_b32 v11, 0xf149f2ca
v_cndmask_b32 v{NEG}, v10, v11, vcc
v_mov_b32 v{NEG+1}, v{NEG}
v_mov_b32 v{NEG+2}, v{NEG}
v_mov_b32 v{NEG+3}, v{NEG}
v_add_u32 v14, s35, v{VLANE16}
s_branch L_ch_pD
L_ch_pS:
s_sub_u32 s38, s{SW}, 4               ; sw
s_lshl_b32 s34, s38, 10
v_add_u32 v{V_A3}, s34, v{VLANE16}
v_and_b32 v10, 15, v1                 ; e16
v_bfe_u32 v11, v1, 4, 1               ; gg
v_lshrrev_b32 v12, 5, v1              ; hi
s_mul_i32 s36, s{S_HEAD}, 6144
s_cmp_eq_u32 s{S_M}, 2
s_cbranch_scc1 L_ch_qst_v
; q/k unit: row = 4gg + hi + 2*(e16&1) (+8 for k); g = 2*(te%2) + (e16/4)%2; j0 = 4*(e16/8) + (e16 & 2)
v_lshl_add_u32 v13, v11, 2, v12
v_and_b32 v14, 1, v10
v_lshl_add_u32 v13, v14, 1, v13
s_lshl_b32 s34, s{S_M}, 3
v_add_u32 v13, s34, v13
v_bfe_u32 v14, v10, 2, 1
v_lshl_add_u32 v13, v14, 4, v13
v_lshlrev_b32 v13, 4, v13
v_lshrrev_b32 v14, 3, v10
v_lshl_add_u32 v13, v14, 3, v13
v_and_b32 v14, 2, v10
v_lshl_add_u32 v13, v14, 1, v13
s_lshl_b32 s34, s38, 10
s_add_u32 s34, s34, s36
v_add_u32 v{V_A4}, s34, v13
v_add_u32 v{V_A5}, 512, v{V_A4}
s_branch L_ch_qst_done
L_ch_qst_v:
; v unit: 4096 + u*1024 + clane*16 + (sw%2)*8 + hi*4; clane = 32 + gg*16 + e16 (even tile), gg*16 + e16 (odd tile)
v_lshl_add_u32 v13, v11, 4, v10
v_lshlrev_b32 v13, 4, v13
v_lshl_add_u32 v13, v12, 2, v13
s_and_b32 s34, s38, 1
s_lshl_b32 s34, s34, 3
s_lshr_b32 s35, s38, 1
s_lshl_b32 s35, s35, 10
s_add_u32 s34, s34, s35
s_add_u32 s34, s34, 4096
s_add_u32 s34, s34, s36
v_add_u32 v{V_A5}, s34, v13
v_add_u32 v{V_A4}, 512, v{V_A5}
L_ch_qst_done:
s_mov_b32 s34, 524288
buffer_load_dword v224, v{V_A4}, {WS}, s34 offen sc1
buffer_load_dword v225, v{V_A5}, {WS}, s34 offen sc1
s_mov_b32 s34, 720896
buffer_load_dword v224, v{V_A4}, {WS}, s34 offen sc1
buffer_load_dword v225, v{V_A5}, {WS}, s34 offen sc1
s_mov_b32 s34, 917504
buffer_load_dword v224, v{V_A4}, {WS}, s34 offen sc1
buffer_load_dword v225, v{V_A5}, {WS}, s34 offen sc1
s_mov_b32 s34, 1114112
buffer_load_dword v224, v{V_A4}, {WS}, s34 offen sc1
buffer_load_dword v225, v{V_A5}, {WS}, s34 offen sc1
v_mov_b32 v216, 0
v_mov_b32 v217, 0
v_mov_b32 v218, 0
v_mov_b32 v219, 0
v_mov_b32 v220, 0
v_mov_b32 v221, 0
v_mov_b32 v222, 0
v_mov_b32 v223, 0
v_bfe_u32 v10, v1, 2, 3               ; r
v_lshrrev_b32 v13, 5, v1              ; c / 4
v_and_b32 v12, 3, v1                  ; c % 4
v_lshl_add_u32 v11, v13, 2, v12       ; c
v_lshlrev_b32 v12, 4, v12
v_lshl_add_u32 v12, v13, 3, v12
v_add_u32 v12, v12, v10
v_lshlrev_b32 v12, 4, v12
s_and_b32 s35, s38, 1
s_lshl_b32 s36, s35, 10
s_add_u32 s36, s36, {L_RED}
v_add_u32 v{V_A6}, s36, v12
s_lshl_b32 s36, s{S_I}, 1
s_add_u32 s36, s36, s35               ; j = 2i + (wave&1)
s_lshr_b32 s37, s36, 3
s_lshl_b32 s37, s37, 14
s_add_u32 s36, s36, s{S_G}
s_and_b32 s36, s36, 7
s_lshl_b32 s36, s36, 10
s_add_u32 s36, s36, s37
s_mul_i32 s37, s{S_G}, 49152
s_add_u32 s36, s36, s37
v_add_u32 v{V_A7}, s36, v{VLANE16}
s_lshl_b32 s34, s{S_G}, 2
s_add_u32 s34, s34, s38
s_lshl_b32 s35, s34, 13
v_add_u32 v8, s35, v{VLANE16}
s_lshl_b32 s60, s38, 14
s_add_u32 s60, s60, {L_KV}
s_lshr_b32 s34, s34, 1
v_and_b32 v9, 1, v1
v_lshlrev_b32 v9, 4, v9
v_add_u32 v9, s34, v9
v_add_u32 v9, 16, v9
v_lshlrev_b32 v{V_A9}, 2, v9
v_add_u32 v{V_A9}, s{SFL0}, v{V_A9}
s_cmp_ge_u32 s{S_I}, 10
s_cbranch_scc1 L_ch_nok0
s_mov_b32 s36, 1""")
    if OPT['selfp'] or OPT['mini']:
        from attout import flag_wait
        from layout import F_KV12
        k(f"""s_lshl_b32 s34, s{S_G}, 2
s_add_u32 s34, s34, s38
{'s_cmp_eq_u32 s' + str(SW) + ', 7'}
s_cselect_b32 s35, 1, 0
s_sub_u32 s34, s34, s35
s_lshl_b32 s34, s34, 3
s_add_u32 s34, s34, {F_KV12 if OPT['mini'] else F_KV0}
s_add_u32 s34, s34, s{SFL0}
v_lshlrev_b32 v12, 2, v1
v_add_u32 v12, s34, v12""")
        flag_wait(k, 'kv0', 12, 4, 36, tmp=13, sleep=1)
    else: kv_wait(k, 36)
    k(f's_mov_b32 s36, {KX}\ns_mov_b32 s37, {VX}')
    kv_copies(k, 36, 37)
    if OPT['mini']:
        from layout import F_KV12
        k('v_mov_b32 v238, v12')
    k(f"""s_waitcnt vmcnt(0)
L_ch_nok0:
s_cmp_lg_u32 s{SW}, 6
s_cbranch_scc1 L_ch_pD
s_mul_i32 s36, s{S_GI}, 10
s_add_u32 s36, s36, s{S_I}            ; j
s_lshr_b32 s37, s36, 3
s_lshl_b32 s37, s37, 14""")
    for g in range(8):
        k(f"""s_add_u32 s35, s36, {g}
s_and_b32 s35, s35, 7
s_lshl_b32 s35, s35, 10
s_add_u32 s35, s35, s37
s_add_u32 s35, s35, {g*49152}
v_add_u32 v{240+g}, s35, v{VLANE16}""")
    k(f"""
s_lshl_b32 s36, s36, 5                ; 32j
v_lshl_add_u32 v12, v11, 2, s36       ; d0
v_lshrrev_b32 v13, 6, v12
v_lshlrev_b32 v13, 10, v13
v_bfe_u32 v14, v12, 4, 2
v_lshl_add_u32 v14, v14, 4, v10
v_lshl_add_u32 v13, v14, 4, v13
v_bfe_u32 v14, v12, 2, 2
v_lshl_add_u32 v{V_A6}, v14, 2, v13
L_ch_pD:
v_add_u32 v{V_MF}, {L_MEMF}, v{VLANE16}
v_add_u32 v{V_MW}, {L_MEMF}, v{V_A3}""")
    k('s_waitcnt vmcnt(0) lgkmcnt(0)')

def delay(k, clks):
    if OPT['slp']:
        n = clks // 64
        while n > 0:
            m_ = min(n, 127); k(f's_sleep {m_}'); n -= m_
        clks = clks % 64
    n = clks // 4
    while n > 0:
        m_ = min(n, 16); k(f's_nop {m_-1}'); n -= m_

OPT = dict(dq=256, dp=512, dm=128, warm=1, dd=320, dw=1024, da=192, clrlate=0, lite=0, bsleep=0, osleep=0, xwarm=0, ds1=2048, place=0, sx=0, sm=0, sq=0, so=64, la=8, lb=56, help=0, dk=1024, outsc=0, ncal=2, caldbg=0, calsleep=0, forcepar=0, dv=64, slp=0, p2=0, selfp=1, fakex=0, prio=1, p3=0, wnt=0, psleep=0, mini=1, two=0)
def interleave(k, mf, va, per=2):
    va = list(va)
    for m in mf:
        k(m)
        for _ in range(per):
            if va: k(va.pop(0))
    for x in va: k(x)

def chain_loop(k, sc, prof, tag, qdelay=0):
    T = tag
    late = []
    k(f'L_entry{T}:')
    NA = 4 if OPT['two'] else 0
    def s1_mfma(i):
        k(f'v_smfmac_f32_16x16x64_bf16 {v(DA,4)}, {v(MF+4*i,4)}, {v(W1+8*i,8)}, v{V_IDX}')
        k(f'v_smfmac_f32_16x16x64_bf16 {v(DB,4)}, {v(MF+4*i,4)}, {v(W1+80+8*i,8)}, v{V_IDX}')
    if OPT['two']:
        k(f's_barrier\ns_cmp_lt_u32 s{SW}, 4\ns_cbranch_scc1 L_step{T}')
        for i in range(NA): k(f'ds_read_b128 {v(MF+4*i,4)}, v{V_MF} offset:{i*1024}')
        k('s_waitcnt lgkmcnt(0)')
    k(f'L_step{T}:')
    k('s_barrier')
    k(f's_cmp_lt_u32 s{SW}, 4\ns_cbranch_scc1 L_aw{T}')
    if OPT['prio']: k('s_setprio 3')
    if OPT['p3']: k('s_memtime s[80:81]')
    for i in range(NA, 10): k(f'ds_read_b128 {v(MF+4*i,4)}, v{V_MF} offset:{i*1024}')
    for i in range(NA): s1_mfma(i)
    chain_offsets(k, 'q')
    for i in range(NA, 10):
        k(f's_waitcnt lgkmcnt({9-i})'); s1_mfma(i)
    if OPT['p3']: k('s_memtime s[82:83]')
    k(f"""s_cmp_eq_u32 s{S_M}, 2
s_mov_b64 vcc, s[{M_EVEN}:{M_EVEN+1}]
v_permlane32_swap_b32 v{DA}, v{DA+1}
v_permlane32_swap_b32 v{DA+2}, v{DA+3}
v_add_f32 v{DA}, v{DA}, v{DA+1}
v_add_f32 v{DA+2}, v{DA+2}, v{DA+3}
v_permlane32_swap_b32 v{DB}, v{DB+1}
v_permlane32_swap_b32 v{DB+2}, v{DB+3}
v_add_f32 v{DB}, v{DB}, v{DB+1}
v_add_f32 v{DB+2}, v{DB+2}, v{DB+3}
s_cbranch_scc1 L_s1v{T}
v_cndmask_b32_dpp v224, v{DA+2}, v{DA}, vcc quad_perm:[1,0,3,2] row_mask:0xf bank_mask:0xf
v_cndmask_b32_dpp v226, v{DB+2}, v{DB}, vcc quad_perm:[1,0,3,2] row_mask:0xf bank_mask:0xf
s_mov_b64 vcc, s[{M_ODD}:{M_ODD+1}]
v_cndmask_b32_dpp v225, v{DA}, v{DA+2}, vcc quad_perm:[1,0,3,2] row_mask:0xf bank_mask:0xf
v_cndmask_b32_dpp v227, v{DB}, v{DB+2}, vcc quad_perm:[1,0,3,2] row_mask:0xf bank_mask:0xf
v_cvt_pk_bf16_f32 v12, v224, v225
v_cvt_pk_bf16_f32 v13, v226, v227
s_branch L_s1s{T}
L_s1v{T}:
v_cvt_pk_bf16_f32 v12, v{DA}, v{DA+2}
v_cvt_pk_bf16_f32 v13, v{DB}, v{DB+2}
L_s1s{T}:
buffer_store_dword v12, v{V_A4}, {WS}, s{S_QC} offen{sc}
buffer_store_dword v13, v{V_A5}, {WS}, s{S_QC} offen{sc}""")
    if OPT['p3']: k('s_memtime s[84:85]')
    k(f"""s_cmp_eq_u32 s{SSTEP}, 63
s_cbranch_scc1 L_fin
s_cmp_ge_u32 s{S_I}, 10
s_cbranch_scc1 L_s1only{T}
s_barrier""")
    if OPT['prio']: k('s_setprio 0')
    chain_offsets(k, 'r')
    clr = f"""v_mov_b32 v14, -1
buffer_store_dword v14, v{V_A4}, {WS}, s{S_QZ} offen{sc}
buffer_store_dword v14, v{V_A5}, {WS}, s{S_QZ} offen{sc}"""
    k(clr)
    for i in range(8): k(f'v_mov_b32 v{DA+i}, 0')
    KL = k.lab('kvl')
    k(f's_add_u32 s61, s{SSTEP}, 2\ns_mov_b32 s62, 1\ns_cmp_ge_u32 s{S_AVAIL}, s61\ns_cbranch_scc1 {KL}')
    if OPT['mini']:
        K12 = k.lab('k12')
        k(f"""s_cmp_gt_u32 s61, 3
s_cbranch_scc1 {K12}
buffer_load_dword v13, v238, {WS}, 0 offen sc1
s_waitcnt vmcnt(0)
v_readlane_b32 s34, v13, 0
v_readlane_b32 s35, v13, 1
s_min_u32 s34, s34, s35
v_readlane_b32 s35, v13, 2
s_min_u32 s34, s34, s35
v_readlane_b32 s35, v13, 3
s_min_u32 s34, s34, s35
s_mov_b32 s{S_AVAIL}, s34
s_cmp_ge_u32 s{S_AVAIL}, s61
s_cselect_b32 s62, 1, 0
s_branch {KL}
{K12}:""")
    k(f"""buffer_load_dword v13, v{V_A9}, {WS}, 0 offen sc1
s_waitcnt vmcnt(0)
v_readlane_b32 s34, v13, 0
v_readlane_b32 s35, v13, 1
s_min_u32 s{S_AVAIL}, s34, s35
s_cmp_ge_u32 s{S_AVAIL}, s61
s_cselect_b32 s62, 1, 0
{KL}:""")
    delay(k, OPT['dd'])
    KS = k.lab('kvs')
    k(f's_cmp_eq_u32 s62, 0\ns_cbranch_scc1 {KS}')
    if not NOKV: kv_copies(k, S_KXN, S_VXN)
    k(f'{KS}:')
    if OPT['prio']: k('s_setprio 3')
    k('s_barrier')
    if OPT['p3']: k('s_memtime s[86:87]')
    k(f's_cmp_ge_u32 s{SW}, 6\ns_cbranch_scc1 L_bw6{T}')
    for w in range(4): k(f'ds_read_b128 {v(176+4*w,4)}, v{V_A6} offset:{w*2048}')
    k(f"""s_waitcnt lgkmcnt(2)
v_pk_add_f32 v[176:177], v[176:177], v[180:181]
v_pk_add_f32 v[178:179], v[178:179], v[182:183]
s_waitcnt lgkmcnt(0)
v_pk_add_f32 v[184:185], v[184:185], v[188:189]
v_pk_add_f32 v[186:187], v[186:187], v[190:191]
v_pk_add_f32 v[176:177], v[176:177], v[184:185]
v_pk_add_f32 v[178:179], v[178:179], v[186:187]
buffer_store_dwordx4 v[176:179], v{V_A7}, {WS}, s{S_PC} offen sc1
{'s_memtime s[88:89]' if OPT['p3'] else ''}
v_mov_b32 v180, -1
v_mov_b32 v181, -1
v_mov_b32 v182, -1
v_mov_b32 v183, -1
buffer_store_dwordx4 v[180:183], v{V_A7}, {WS}, s{S_PZ} offen sc1
""")
    k(f's_branch L_b3{T}\nL_bw6{T}:')
    k(f's_cmp_lg_u32 s{SW}, 6\ns_cbranch_scc1 L_b3{T}')
    delay(k, OPT['dp'])
    if OPT['p3']: k('s_memtime s[88:89]')
    spins = []
    for g in range(8): k(f'buffer_load_dwordx4 {v(176+4*g,4)}, v{240+g}, {WS}, s{S_PC} offen sc1')
    PR, PC, PB = k.lab('pps'), k.lab('ppc'), k.lab('ppb')
    k(f's_mov_b32 s39, 0\n{PC}:')
    for g in range(8):
        k(f's_waitcnt vmcnt({7-g})')
        if g == 0: k('v_mov_b32 v224, v176')
        else:
            k(f'v_max_u32 v224, v224, v{176+4*g}')
            k(f'v_pk_add_f32 v[176:177], v[176:177], {v(176+4*g,2)}\nv_pk_add_f32 v[178:179], v[178:179], {v(178+4*g,2)}')
    k(f'v_cmp_eq_u32 vcc, -1, v224\ns_cbranch_vccnz {PR}\n{PB}:')
    spins.append((PR, PC, PB, [f'buffer_load_dwordx4 {v(176+4*gg,4)}, v{240+gg}, {WS}, s{S_PC} offen sc1' for gg in range(8)], OPT['sx']))
    if OPT['p3']: k('s_memtime s[90:91]')
    k(f"""v_cvt_pk_bf16_f32 v176, v176, v177
v_cvt_pk_bf16_f32 v177, v178, v179
buffer_store_dword v176, v{V_A6}, {WS}, s{S_MEMN} offen{sc}
buffer_store_dword v177, v{V_A6}, {WS}, s{S_MEMN} offen offset:128{sc}
L_b3{T}:
{'s_memtime s[92:93]' if OPT['p3'] else ''}
s_barrier
{'s_memtime s[94:95]' if OPT['p3'] else ''}""")
    SG = 224
    def mem_poll(sleep):
        A, D = k.lab('mA'), k.lab('mD')
        k(f's_cmp_ge_u32 s{SW}, 6\ns_cbranch_scc1 {A}')
        for n in (3, 2):
            srcs = [S_MEMN, S_MEMN4, S_MEMN8][:n]
            for i, sr in enumerate(srcs): k(f'buffer_load_dwordx4 {v(SG+4*i,4)}, v{V_A3}, {WS}, s{sr} offen sc1')
            k('s_mov_b32 s39, 0')
            for i, sr in enumerate(srcs):
                R_, C_, B_ = k.lab('pms'), k.lab('pmc'), k.lab('pmb')
                k(f"""{C_}:
s_waitcnt vmcnt({n-1-i})
v_max3_u32 v236, v{SG+4*i}, v{SG+1+4*i}, v{SG+2+4*i}
v_max_u32 v236, v236, v{SG+3+4*i}
v_cmp_eq_u32 vcc, -1, v236
s_cbranch_vccnz {R_}
{B_}:
ds_write_b128 v{V_MW}, {v(SG+4*i,4)} offset:{i*4096}""")
                spins.append((R_, C_, B_, [f'buffer_load_dwordx4 {v(SG+4*ii,4)}, v{V_A3}, {WS}, s{srcs[ii]} offen sc1' for ii in range(i, n)], OPT['sm'] if sleep == 0 else OPT['so']))
                if i == 0 and OPT['two']:
                    k('s_waitcnt lgkmcnt(0)\ns_barrier')
                    for f in range(NA): k(f'ds_read_b128 {v(MF+4*f,4)}, v{V_MF} offset:{f*1024}')
            if n == 3: k(f's_branch {D}\n{A}:')
        k(f'{D}:')
    if prof: k('s_memrealtime s[94:95]')
    delay(k, OPT['dm'])
    mem_poll(0)
    if OPT['p3']: k('s_memtime s[96:97]')
    KZ = k.lab('kvz')
    k(f's_cmp_lg_u32 s62, 0\ns_cbranch_scc1 {KZ}')
    if OPT['mini']:
        from attout import flag_wait
        KA, KB_ = k.lab('k12a'), k.lab('k12b')
        k(f's_cmp_gt_u32 s61, 3\ns_cbranch_scc1 {KA}')
        flag_wait(k, 'k12w', 238, 4, 61, tmp=13, sleep=1)
        k(f's_mov_b32 s{S_AVAIL}, s61\ns_branch {KB_}\n{KA}:')
        kv_wait(k, 61)
        k(f'{KB_}:')
    else: kv_wait(k, 61)
    if not NOKV: kv_copies(k, S_KXN, S_VXN)
    k(f's_waitcnt vmcnt(0)\n{KZ}:')
    k(f"""s_cmp_lg_u32 s{SW}, 6
s_cbranch_scc1 L_next{T}
v_mov_b32 v14, -1
buffer_store_dword v14, v{V_A6}, {WS}, s{S_MEMZ} offen{sc}
buffer_store_dword v14, v{V_A6}, {WS}, s{S_MEMZ} offen offset:128{sc}
L_next{T}:""")
    if prof:
        k('s_memrealtime s[96:97]\ns_waitcnt lgkmcnt(0)\ns_mov_b32 m0, s40')
        pA, pD = k.lab('pfA'), k.lab('pfD')
        k(f's_cmp_lt_u32 s{SW}, 4\ns_cbranch_scc1 {pA}')
        for n, r in enumerate((80, 82, 88, 90, 92, 94, 96)): k(f'v_writelane_b32 v{248+n}, s{r}, m0')
        k('s_lshl_b32 s63, s63, 16\ns_or_b32 s63, s63, s64\nv_writelane_b32 v255, s63, m0')
        k(f's_branch {pD}\n{pA}:')
        for n, r in enumerate((80, 84, 86, 96)): k(f'v_writelane_b32 v{252+n}, s{r}, m0')
        pass
        k(f'{pD}:')
    if OPT['p3']:
        pz = k.lab('p3z')
        k(f's_cmp_lt_u32 s{SW}, 4\ns_cbranch_scc1 {pz}\ns_waitcnt lgkmcnt(0)\ns_memtime s[64:65]\ns_waitcnt lgkmcnt(0)\ns_mov_b32 m0, s40')
        for n in range(8): k(f's_sub_u32 s34, s{82+2*n}, s{80+2*n}\nv_writelane_b32 v{248+n}, s34, m0')
        k('s_sub_u32 s34, s64, s96\nv_writelane_b32 v239, s34, m0')
        k(f'{pz}:')
    if OPT['lite']:
        l1, l2 = k.lab('lt'), k.lab('lt')
        k(f"""s_cmp_eq_u32 s{SSTEP}, {OPT['la']}
s_cbranch_scc0 {l1}
s_memrealtime s[90:91]
s_memtime s[94:95]
{l1}:
s_cmp_eq_u32 s{SSTEP}, {OPT['lb']}
s_cbranch_scc0 {l2}
s_memrealtime s[92:93]
s_memtime s[96:97]
{l2}:""")
    if OPT['lite'] > 1:
        k(f's_memrealtime s[88:89]\ns_waitcnt lgkmcnt(0)\ns_mov_b32 m0, s{SSTEP}\nv_writelane_b32 v254, s88, m0')
    if DBGST:
        l4 = k.lab('d4')
        k(f's_cmp_lg_u32 s{SSTEP}, 4\ns_cbranch_scc1 {l4}')
        dstamp(k, 13, 0, 0, 6)
        k(f'{l4}:')
    k(f"""s_waitcnt lgkmcnt(0)
s_add_u32 s{SSTEP}, s{SSTEP}, 1
s_branch L_step{T}""")
    k(f'L_s1only{T}:')
    chain_offsets(k, 'r')
    k('s_mov_b32 s62, 1')
    k(f"""v_mov_b32 v14, -1
buffer_store_dword v14, v{V_A4}, {WS}, s{S_QZ} offen{sc}
buffer_store_dword v14, v{V_A5}, {WS}, s{S_QZ} offen{sc}""")
    for i in range(8): k(f'v_mov_b32 v{DA+i}, 0')
    delay(k, OPT['ds1'])
    mem_poll(1)
    k(f's_branch L_next{T}')
    k(f'L_aw{T}:')
    if OPT['prio']: k('s_setprio 2')
    chain_offsets(k, 'qr')
    k(f"""s_cmp_ge_u32 s{S_I}, 10
s_cbranch_scc1 L_aidle{T}
s_cmp_eq_u32 s{SSTEP}, 63
s_cbranch_scc1 L_fin""")
    if prof: k('s_memrealtime s[80:81]')
    delay(k, OPT['da'])
    for i in range(8): k(f'ds_read_b128 {v(KXR+4*i,4)}, v14 offset:{i*1024}')
    k('s_waitcnt lgkmcnt(0)')
    for i in range(8): k(f'ds_read_b128 {v(VXR+4*i,4)}, v14 offset:{8192 + i*1024}')
    k('s_waitcnt lgkmcnt(0)')
    k('s_barrier')
    delay(k, OPT['dq'])
    k('s_mov_b32 s39, 0')
    for ks in range(4): k(f'buffer_load_dwordx4 {v(QK+4*ks,4)}, v{V_A3}, {WS}, s{S_QC} offen offset:{ks*1024} sc1')
    delay(k, OPT['dv'])
    for u in range(2): k(f'buffer_load_dwordx4 {v(VM+4*u,4)}, v{V_A3}, {WS}, s{S_QC4} offen offset:{u*1024} sc1')
    k('s_waitcnt vmcnt(2)')
    LQM = k.lab('pqm')
    k(f'{LQM}:')
    if OPT['p2']: k('s_memtime s[80:81]')
    mf = []
    for ks in range(4): mf.append(f'v_mfma_f32_16x16x32_bf16 {v(S0,4)}, {v(KXR+4*ks,4)}, {v(QK+4*ks,4)}, {"0" if ks == 0 else v(S0,4)}')
    for ks in range(4): mf.append(f'v_mfma_f32_16x16x32_bf16 {v(S1,4)}, {v(KXR+16+4*ks,4)}, {v(QK+4*ks,4)}, {"0" if ks == 0 else v(S1,4)}')
    for ks in range(4): mf.append(f'v_mfma_f32_16x16x32_bf16 {v(SM,4)}, {v(QK+4*ks,4)}, {v(QK+4*ks,4)}, {v(NEG,4) if ks == 0 else v(SM,4)}')
    chk = [f'v_max3_u32 v244, v{QK}, v{QK+1}, v{QK+2}'] + [f'v_max3_u32 v244, v244, v{QK+3+2*n}, v{QK+4+2*n}' for n in range(6)] + [f'v_max_u32 v244, v244, v{QK+15}']
    interleave(k, mf[:4], chk)
    k(mf[4]); k('v_cmp_eq_u32 vcc, -1, v244')
    QR = k.lab('pqr')
    k(mf[5]); k(f's_cbranch_vccnz {QR}')
    qspin = (QR, LQM)
    LQX = k.lab('pqx')
    k(f'{LQX}:')
    k(mf[6]); k(f'v_mov_b32 v{PM2}, 0\nv_mov_b32 v{PM2+1}, 0')
    k(mf[7])
    k(mf[8]); k(f'v_max3_f32 v244, v{S0}, v{S0+1}, v{S0+2}')
    k(mf[9]); k(mf[10])
    k(f'v_max3_f32 v244, v244, v{S0+3}, v{S1}')
    k(mf[11])
    if OPT['p2']: k('s_memtime s[82:83]')
    k(f"""v_max3_f32 v244, v244, v{S1+1}, v{S1+2}
v_max_f32 v244, v244, v{S1+3}""")
    if prof: k('s_memrealtime s[84:85]')
    k(f"""v_max3_f32 v244, v244, v{SM}, v{SM+1}
v_max3_f32 v244, v244, v{SM+2}, v{SM+3}
v_mov_b32 v245, v244
v_permlane16_swap_b32 v244, v245
v_max_f32 v244, v244, v245
v_mov_b32 v245, v244
v_permlane32_swap_b32 v244, v245
v_max_f32 v244, v244, v245
v_mul_f32 v244, s{S_NC}, v244
v_mul_f32 v245, 1.0, v244""")
    if OPT['p2']: k('s_memtime s[84:85]')
    for i in range(0, 12, 2): k(f'v_pk_fma_f32 {v(S0+i,2)}, {v(S0+i,2)}, s[66:67], v[244:245]')
    for i in range(8): k(f'v_exp_f32 v{S0+i}, v{S0+i}')
    k(f"""v_cvt_pk_bf16_f32 v{PX}, v{S0}, v{S0+1}
v_cvt_pk_bf16_f32 v{PX+1}, v{S0+2}, v{S0+3}
v_cvt_pk_bf16_f32 v{PX+2}, v{S1}, v{S1+1}
v_cvt_pk_bf16_f32 v{PX+3}, v{S1+2}, v{S1+3}""")
    VR, VB = k.lab('pvr'), k.lab('pvb')
    k('s_waitcnt vmcnt(0)')
    k(f'v_max3_u32 v247, v{VM}, v{VM+1}, v{VM+2}\nv_max3_u32 v247, v247, v{VM+3}, v{VM+4}')
    if OPT['p2']: k('s_memtime s[86:87]')
    mf = [f'v_mfma_f32_16x16x32_bf16 {v(O+4*te,4)}, {v(VXR+4*te,4)}, {v(PX,4)}, 0' for te in range(8)]
    k(mf[0]); k(f'v_exp_f32 v{SM}, v{SM}\nv_max3_u32 v247, v247, v{VM+5}, v{VM+6}')
    k(mf[1]); k(f'v_exp_f32 v{SM+1}, v{SM+1}\nv_max_u32 v247, v247, v{VM+7}')
    k(mf[2]); k(f'v_exp_f32 v{SM+2}, v{SM+2}\nv_add_f32 v245, v{S0}, v{S0+1}')
    k(mf[3]); k(f'v_exp_f32 v{SM+3}, v{SM+3}\nv_add_f32 v246, v{S0+2}, v{S0+3}')
    k(mf[4]); k(f'v_cvt_pk_bf16_f32 v{PM}, v{SM}, v{SM+2}\nv_cvt_pk_bf16_f32 v{PM+1}, v{SM+1}, v{SM+3}\nv_cmp_eq_u32 vcc, -1, v247')
    k(mf[5]); k(f'v_mov_b32 v188, v{PM}\nv_mov_b32 v189, v{PM+1}')
    k(mf[6]); k(f'v_add_f32 v245, v245, v{S1}\nv_add_f32 v246, v246, v{S1+1}')
    k(mf[7]); k(f'v_permlane32_swap_b32 v188, v{PM2}\nv_permlane32_swap_b32 v189, v{PM2+1}')
    k(f's_cbranch_vccnz {VR}\n{VB}:')
    mf = []
    for te in range(8):
        u, t4 = te // 4, te % 4
        a = VM + 4*u + 2*(t4 // 2); b = PM if t4 % 2 == 0 else PM2
        mf.append(f'v_mfma_f32_16x16x16_bf16 {v(O+4*te,4)}, {v(a,2)}, {v(b,2)}, {v(O+4*te,4)}')
    def cv(te): return [f'v_cvt_pk_bf16_f32 v{OB+4*(te//2)+2*(te%2)}, v{O+4*te}, v{O+4*te+1}', f'v_cvt_pk_bf16_f32 v{OB+4*(te//2)+2*(te%2)+1}, v{O+4*te+2}, v{O+4*te+3}']
    if OPT['p2']: k('s_memtime s[88:89]')
    k(mf[0]); k(f'v_add_f32 v245, v245, v{SM}\nv_add_f32 v246, v246, v{SM+1}')
    k(mf[1]); k(f'v_add_f32 v245, v245, v{SM+2}\nv_add_f32 v246, v246, v{SM+3}')
    k(mf[2]); k(f'v_add_f32 v245, v245, v{S1+2}\nv_add_f32 v246, v246, v{S1+3}')
    k(mf[3]); k('v_add_f32 v245, v245, v246\nv_mov_b32 v246, v245')
    for n in range(4):
        k(mf[4+n])
        for x in cv(n): k(x)
    mo = [[f'v_mfma_f32_16x16x32_bf16 {v(OA+4*ct,4)}, {v(WO+16*ct+4*ks,4)}, {v(OB+4*ks,4)}, {"0" if ks == 0 else v(OA+4*ct,4)}' for ct in range(4)] for ks in range(4)]
    if OPT['p2']: k('s_memtime s[90:91]')
    k(mo[0][0]); k('v_permlane16_swap_b32 v245, v246')
    k(mo[0][1]); k(cv(4)[0]); k(cv(4)[1])
    k(mo[0][2]); k(cv(5)[0]); k(cv(5)[1])
    k(mo[0][3]); k('v_add_f32 v245, v245, v246\nv_mov_b32 v246, v245')
    k(mo[1][0]); k(cv(6)[0]); k(cv(6)[1])
    k(mo[1][1]); k(cv(7)[0]); k(cv(7)[1])
    k(mo[1][2]); k('v_permlane32_swap_b32 v245, v246')
    k(mo[1][3]); k('v_add_f32 v245, v245, v246')
    k(mo[2][0]); k('v_rcp_f32 v245, v245')
    k(mo[3][0]); k(mo[2][1]); k('v_mov_b32 v244, v245')
    for x in (mo[3][1], mo[2][2], mo[3][2], mo[2][3], mo[3][3]): k(x)
    if OPT['p2']: k('s_memtime s[92:93]')
    for p in range(2):
        for i in range(0, 8, 2): k(f'v_pk_mul_f32 {v(OA+8*p+i,2)}, {v(OA+8*p+i,2)}, v[244:245]')
        for i in range(4):
            k(f'v_mov_b32_dpp v{OA+8*p+i}, v{OA+8*p+4+i} row_shr:8 row_mask:0xf bank_mask:0xc')
        k(f'ds_write_b128 v{V_A5}, {v(OA+8*p,4)} offset:{p*1024}')
    if OPT['p2']: k('s_memtime s[94:95]')
    k('s_waitcnt lgkmcnt(0)')
    if prof: k('s_memrealtime s[86:87]')
    if OPT['p2']:
        k('s_memtime s[96:97]\ns_waitcnt lgkmcnt(0)\ns_mov_b32 m0, s40')
        for n in range(8): k(f's_sub_u32 s34, s{82+2*n}, s{80+2*n}\nv_writelane_b32 v{248+n}, s34, m0')
    k('s_barrier')
    k('s_barrier')
    if OPT['two']: k('s_barrier')
    k(f's_branch L_next{T}')
    def emit_spin(R_, C_, B_, loads, slp):
        k(f"""{R_}:
s_add_u32 s39, s39, 1
s_cmp_ge_u32 s39, s{SLIM}
s_cbranch_scc1 {R_}_t""")
        delay(k, slp)
        for x in loads: k(x)
        k(f's_branch {C_}\n{R_}_t:\ns_mov_b32 s{SLIM}, 0\ns_waitcnt vmcnt(0)\ns_branch {B_}')
    QR, LQM = qspin
    k(f"""{QR}:
s_add_u32 s39, s39, 1
s_cmp_ge_u32 s39, s{SLIM}
s_cbranch_scc1 {QR}_t""")
    delay(k, OPT['sq'])
    for ks in range(4): k(f'buffer_load_dwordx4 {v(QK+4*ks,4)}, v{V_A3}, {WS}, s{S_QC} offen offset:{ks*1024} sc1')
    k(f's_waitcnt vmcnt(0)\ns_branch {LQM}\n{QR}_t:\ns_mov_b32 s{SLIM}, 0\ns_branch {LQX}')
    k(f"""{VR}:
s_add_u32 s39, s39, 1
s_cmp_ge_u32 s39, s{SLIM}
s_cbranch_scc1 {VR}_t""")
    for u in range(2): k(f'buffer_load_dwordx4 {v(VM+4*u,4)}, v{V_A3}, {WS}, s{S_QC4} offen offset:{u*1024} sc1')
    k('s_waitcnt vmcnt(0)')
    umax_check(k, range(VM, VM+8), 247)
    k(f's_cbranch_vccnz {VR}\ns_branch {VB}\n{VR}_t:\ns_mov_b32 s{SLIM}, 0\ns_branch {VB}')
    late.append(lambda: [emit_spin(*x) for x in spins])
    k(f"""L_aidle{T}:
s_cmp_eq_u32 s{S_I}, 10
s_cbranch_scc0 L_awarm{T}""")
    def qloads():
        for ks in range(4): k(f'buffer_load_dwordx4 {v(QK+4*ks,4)}, v{V_A3}, {WS}, s{S_QC} offen offset:{ks*1024} sc1')
        for u in range(2): k(f'buffer_load_dwordx4 {v(VM+4*u,4)}, v{V_A3}, {WS}, s{S_QC4} offen offset:{u*1024} sc1')
    delay(k, OPT['dk'])
    poll(k, 'pk' + T, qloads, lambda: umax_check(k, list(range(QK, QK+16)) + list(range(VM, VM+8)), 244), sleep=2)
    for ks in range(4): k(f'buffer_store_dwordx4 {v(QK+4*ks,4)}, v{V_A3}, {WS}, s{S_KP} offen offset:{ks*1024} sc1')
    for u in range(2): k(f'buffer_store_dwordx4 {v(VM+4*u,4)}, v{V_A3}, {WS}, s{S_KP4} offen offset:{u*1024} sc1')
    k(f"""s_waitcnt vmcnt(0)
s_lshl_b32 s34, s{S_G}, 2
s_add_u32 s34, s34, s{SW}
s_lshl_b32 s34, s34, 7
s_add_u32 s34, s34, {F_KVM}
s_add_u32 s34, s34, s{SFL0}
s_add_u32 s35, s{SSTEP}, 1
v_mov_b32 v244, s34
v_mov_b32 v245, s35
s_mov_b64 exec, 1
buffer_store_dword v245, v244, {WS}, 0 offen sc1
s_mov_b64 exec, -1
s_cmp_eq_u32 s{SSTEP}, 63
s_cbranch_scc1 L_fin
{'s_barrier' if OPT['two'] else ''}
s_branch L_next{T}
L_awarm{T}:
s_cmp_eq_u32 s{SSTEP}, 63
s_cbranch_scc1 L_fin""")
    if OPT['warm']:
        W = k.lab('wsk')
        k(f's_add_u32 s36, s{SSTEP}, 3\ns_cmp_gt_u32 s36, 64\ns_cbranch_scc1 {W}')
        delay(k, OPT['dw'])
        k(f"""buffer_load_dword v13, v{V_A9}, {WS}, 0 offen sc1
s_waitcnt vmcnt(0)
v_readlane_b32 s34, v13, 0
v_readlane_b32 s35, v13, 1
s_min_u32 s34, s34, s35
s_cmp_lt_u32 s34, s36
s_cbranch_scc1 {W}
s_add_u32 s36, s{SSTEP}, 2
s_lshl_b32 s36, s36, 18
s_add_u32 s37, s36, {VX}
s_add_u32 s36, s36, {KX}""")
        kv_loads(k, 36, 37)
        k(f'{W}:')
    if OPT['two']: k('s_barrier')
    k(f's_branch L_next{T}')
    for f in late: f()

def chain_fin(k, prof):
    k('L_fin:')
    if OPT['p3']:
        k(f"""s_lshl_b32 s34, s{SX}, 5
s_add_u32 s34, s34, s{SR}
s_lshl_b32 s34, s34, 3
s_add_u32 s34, s34, s{SW}
s_mul_i32 s34, s34, 4096
s_add_u32 s34, s34, 0x8000000
v_lshlrev_b32 v10, 2, v1
v_add_u32 v10, s34, v10""")
        for n in range(9): k(f'buffer_store_dword v{248+n if n < 8 else 239}, v10, {WS}, 0 offen offset:{n*256}')
    if OPT['p2']:
        k(f"""s_lshl_b32 s34, s{SX}, 5
s_add_u32 s34, s34, s{SR}
s_lshl_b32 s34, s34, 3
s_add_u32 s34, s34, s{SW}
s_lshl_b32 s34, s34, 11
s_add_u32 s34, s34, 0x8000000
v_lshlrev_b32 v10, 2, v1
v_add_u32 v10, s34, v10""")
        for n in range(8): k(f'buffer_store_dword v{248+n}, v10, {WS}, 0 offen offset:{n*256}')
    dstamp(k, 5, 0, 0)
    if OPT['lite']:
        k(f"""s_sub_u32 s34, s92, s90
v_mov_b32 v12, s34
s_lshl_b32 s34, s{SX}, 5
s_add_u32 s34, s34, s{SR}
s_lshl_b32 s34, s34, 3
s_add_u32 s34, s34, s{SW}
s_lshl_b32 s34, s34, 2
s_add_u32 s34, s34, 0x8800000
v_mov_b32 v10, s34
buffer_store_dword v12, v10, {WS}, 0 offen
s_sub_u32 s34, s96, s94
v_mov_b32 v12, s34
v_add_u32 v10, 0x10000, v10
buffer_store_dword v12, v10, {WS}, 0 offen""")
    if OPT['lite'] > 1:
        k(f"""s_lshl_b32 s34, s{SX}, 5
s_add_u32 s34, s34, s{SR}
s_lshl_b32 s34, s34, 3
s_add_u32 s34, s34, s{SW}
s_lshl_b32 s34, s34, 8
s_add_u32 s34, s34, 0x8a00000
v_lshlrev_b32 v10, 2, v1
v_add_u32 v10, s34, v10
buffer_store_dword v254, v10, {WS}, 0 offen""")
    if prof:
        k(f"""s_lshl_b32 s34, s{SX}, 5
s_add_u32 s34, s34, s{SR}
s_lshl_b32 s34, s34, 3
s_add_u32 s34, s34, s{SW}
s_lshl_b32 s34, s34, 11
s_add_u32 s34, s34, 0x8000000
v_lshlrev_b32 v10, 2, v1
v_add_u32 v10, s34, v10
s_cmp_lt_u32 s{SW}, 4
s_cbranch_scc1 L_fin0""")
        for n in range(8): k(f'buffer_store_dword v{248+n}, v10, {WS}, 0 offen offset:{n*256}')
        k('s_branch L_end\nL_fin0:')
        for n in range(4): k(f'buffer_store_dword v{252+n}, v10, {WS}, 0 offen offset:{n*256}')
    k('s_branch L_end')

def build(prof=False, roles=('chain',), keepflags=False, qdelay=0):
    k = Kern()
    import brole, proj, attout
    def validate_par(k2):
        validate(k2); par_wait(k2)
    brole.validate = proj.validate = validate_par
    attout.validate = validate; attout.par_wait = par_wait
    attout.calibrate = calibrate
    attout.CALSLEEP = OPT['calsleep']
    brole.help_prefetch = attout.help_prefetch = help_prefetch if OPT['help'] else (lambda k: None)
    start_phase(k, keepflags)
    on = lambda r: r in roles
    R = lambda r, l: l if on(r) else 'L_end'
    PLACE_A = f'''; dies 4-7: every die gets 12 PROJ, 8 B, 10 OUT and 2 ATT units
s_sub_u32 s34, s{SX}, 4
s_mul_i32 s41, s34, 12
s_add_u32 s41, s41, s{SR}
s_cmp_lt_u32 s{SR}, 12
s_cbranch_scc1 {R('proj', 'L_proj')}
s_lshl_b32 s41, s34, 3
s_add_u32 s41, s41, s{SR}
s_sub_u32 s41, s41, 12
s_cmp_lt_u32 s{SR}, 20
s_cbranch_scc1 {R('b', 'L_brole')}
s_mul_i32 s41, s34, 10
s_add_u32 s41, s41, s{SR}
s_sub_u32 s41, s41, 20
s_cmp_lt_u32 s{SR}, 30
s_cbranch_scc1 {R('out', 'L_out')}
s_lshl_b32 s41, s34, 1
s_add_u32 s41, s41, s{SR}
s_sub_u32 s41, s41, 30
s_branch {R('att', 'L_att')}'''
    PLACE_B = f'''; dies 4, 5: 24 PROJ + 8 B each; dies 6, 7: 20 OUT + 8 B + 4 ATT each
s_sub_u32 s34, s{SX}, 4
s_lshl_b32 s41, s34, 3
s_add_u32 s41, s41, s{SR}
s_sub_u32 s41, s41, 24
s_cmp_ge_u32 s{SR}, 24
s_cbranch_scc1 {R('b', 'L_brole')}
s_cmp_ge_u32 s{SX}, 6
s_cbranch_scc1 L_hi2
s_mul_i32 s41, s34, 24
s_add_u32 s41, s41, s{SR}
s_branch {R('proj', 'L_proj')}
L_hi2:
s_sub_u32 s34, s{SX}, 6
s_mul_i32 s41, s34, 20
s_add_u32 s41, s41, s{SR}
s_cmp_lt_u32 s{SR}, 20
s_cbranch_scc1 {R('out', 'L_out')}
s_lshl_b32 s41, s34, 2
s_add_u32 s41, s41, s{SR}
s_sub_u32 s41, s41, 20
s_branch {R('att', 'L_att')}'''
    k(f'''s_cmp_ge_u32 s{SX}, 4
s_cbranch_scc1 L_hi
s_cmp_lt_u32 s{SR}, 24
s_cbranch_scc1 {R('chain', 'L_chain')}
s_lshl_b32 s41, s{SX}, 3
s_add_u32 s41, s41, s{SR}
s_add_u32 s41, s41, 8
s_branch {R('b', 'L_brole')}
L_hi:
{PLACE_B if OPT['place'] == 2 else PLACE_A}''')
    if on('proj'): proj_role(k)
    if on('att'): att_role(k)
    if on('out'): out_role(k)
    if on('b'): b_role(k)
    if on('chain'):
        chain_prologue(k)
        mark(k, 1)
        dstamp(k, 3, 0, 0)
        k(f's_cmp_lg_u32 s{SSLOW}, 0\ns_cbranch_scc1 L_entryS')
        chain_loop(k, '', prof, 'F', qdelay)
        chain_loop(k, ' sc1', False, 'S')
        chain_fin(k, prof)
    k('L_end:')
    dstamp(k, 9, 7, 20)
    dstamp(k, 11, 4, 12)
    dstamp(k, 7, 4, 0)
    if TL:
        k(f'''s_memrealtime s[82:83]
s_waitcnt lgkmcnt(0)
v_mov_b32 v20, s84
v_mov_b32 v21, s85
v_mov_b32 v22, s86
v_mov_b32 v23, s87
v_mov_b32 v24, s82
s_lshl_b32 s34, s{SX}, 5
s_add_u32 s34, s34, s{SR}
s_lshl_b32 s34, s34, 3
s_add_u32 s34, s34, s{SW}
s_lshl_b32 s34, s34, 5
s_add_u32 s34, s34, 0x8900000
v_mov_b32 v25, s34
s_mov_b64 exec, 1
buffer_store_dwordx4 v[20:23], v25, {WS}, 0 offen
buffer_store_dword v24, v25, {WS}, 0 offen offset:16''')
    k('L_exit:\ns_endpgm')
    body, nops = k.text()
    head = f'''; Kernarg layout (104 bytes, pointers only, base s[0:1]):
; @launch grid=(256,1,1) block=(512,1,1) lds=163840
;
.amdgcn_target "amdgcn-amd-amdhsa--gfx950"
.text
.globl {NAME}
.p2align 8
.type {NAME},@function
{NAME}:
'''
    tail = f'''
.section .rodata,"a"
.p2align 6
.amdhsa_kernel {NAME}
  .amdhsa_next_free_vgpr 256
  .amdhsa_next_free_sgpr 102
  .amdhsa_accum_offset 256
  .amdhsa_group_segment_fixed_size 0
  .amdhsa_kernarg_size 104
  .amdhsa_user_sgpr_count 2
  .amdhsa_user_sgpr_kernarg_segment_ptr 1
  .amdhsa_system_sgpr_workgroup_id_x 1
.end_amdhsa_kernel
'''
    return head + '\n'.join(body) + tail, nops

if __name__ == '__main__':
    out = sys.argv[1]
    opts = dict(a.split('=') for a in sys.argv[2:] if '=' in a)
    if 'kvsc' in opts: KVSC = {'p': '', 's': ' sc1', 'n': ' nt', '0': ' sc0'}[opts['kvsc']]
    NOKV = 'nokv' in sys.argv[2:]
    TL = 'tl' in sys.argv[2:]
    DBGST = 'dbgst' in sys.argv[2:]
    import brole, proj, attout
    brole.mark = proj.mark = attout.mark = mark
    brole.BMODE = int(opts.get('bmode', 0))
    for o in OPT:
        if o in opts: OPT[o] = int(opts[o])
    proj.MINI = OPT['mini']
    proj.SELFP = OPT['selfp']; proj.PSLEEP = OPT['psleep']
    proj.WNT = ' nt' if OPT['wnt'] else ''; proj.WNT2 = ' nt' if OPT['wnt'] > 1 else ''
    proj.LITE = OPT['lite']; proj.PMARK = int(opts.get('pmark', -1))
    brole.OUTSC = attout.OUTSC = {0: '', 1: ' sc1', 2: ' nt', 3: ' sc0 sc1'}[OPT['outsc']]
    brole.SLEEP = OPT['bsleep']; attout.OSLEEP = OPT['osleep']; attout.XWARM = OPT['xwarm']
    txt, nops = build(prof='prof' in sys.argv[2:], keepflags='keepflags' in sys.argv[2:], qdelay=int(opts.get('qdelay', 0)), roles=opts.get('roles', 'chain').split(','))
    open(out, 'w').write(txt)
    print('wrote', out, 'lines', txt.count('\n'), 'nop states', nops)
```

```python
import math, struct
from dsl import v, s
from layout import *
import proj
from proj import srd
WS = 's[8:11]'
SX, SR, SW, SLIM = 28, 29, 30, 33
def f32bits(x): return struct.unpack('<I', struct.pack('<f', x))[0]

def flag_wait(k, name, vaddr, nl, sneed, soff='0', tmp=13, sleep=8):
    L, D = k.lab(name), k.lab(name + 'd')
    k(f'''s_mov_b32 s39, 0
s_mov_b64 s[70:71], exec
s_mov_b32 exec_lo, {((1 << nl) - 1) & 0xffffffff:#x}
s_mov_b32 exec_hi, {((1 << nl) - 1) >> 32:#x}
{L}:
buffer_load_dword v{tmp}, v{vaddr}, {WS}, {soff} offen sc1
s_waitcnt vmcnt(0)
v_cmp_gt_u32 vcc, s{sneed}, v{tmp}
s_cbranch_vccz {D}
s_sleep {sleep}
s_add_u32 s39, s39, 1
s_cmp_lt_u32 s39, s{SLIM}
s_cbranch_scc1 {L}
s_mov_b32 s{SLIM}, 0
{D}:
s_mov_b64 exec, s[70:71]''')

mark = lambda k, n: None
OSLEEP = 0
OSL = 3
CALSLEEP = 0
OUTSC = ''
XWARM = 0
def att_role(k):
    QX_, KX_, VX_, QM, VM, NEG, DIAG = 16, 48, 80, 112, 128, 136, 140
    S0, S1, SM, PX, PM, PM2, O, T = 144, 148, 152, 156, 160, 162, 168, 200
    SH, SS, SC, SNC = 42, 40, 78, 79
    k('L_att:')
    help_prefetch(k)
    k(f'''
s_lshl_b32 s34, s41, 3
s_add_u32 s34, s34, s{SW}
s_and_b32 s{SH}, s34, 31
s_lshr_b32 s{SS}, s34, 5
s_mov_b32 s{SC}, {f32bits(128**-0.5 * math.log2(math.e)):#x}
s_mov_b32 s{SNC}, {f32bits(-(128**-0.5) * math.log2(math.e)):#x}
v_lshlrev_b32 v2, 4, v1
s_lshl_b32 s34, s{SH}, 13
v_add_u32 v3, s34, v2
s_mul_i32 s34, s{SH}, 6144
v_add_u32 v4, s34, v2
; masks
v_cmp_gt_u32 vcc, 32, v1
v_mov_b32 v10, 0
v_mov_b32 v11, 0xf149f2ca
v_cndmask_b32 v{NEG}, v10, v11, vcc
v_mov_b32 v{NEG+1}, v{NEG}
v_mov_b32 v{NEG+2}, v{NEG}
v_mov_b32 v{NEG+3}, v{NEG}
v_lshrrev_b32 v12, 4, v1
v_lshlrev_b32 v12, 2, v12             ; 4g
v_and_b32 v13, 15, v1''')
    for i in range(4):
        k(f'v_add_u32 v14, {i}, v12\nv_cmp_gt_u32 vcc, v14, v13\nv_cndmask_b32 v{DIAG+i}, v10, v11, vcc')
    k('v_lshlrev_b32 v10, 2, v1\nv_mov_b32 v11, 0\nds_write_b32 v10, v11 offset:1024\ns_waitcnt lgkmcnt(0)\ns_barrier')
    validate(k)
    k(f's_cmp_lg_u32 s41, 0\ns_cbranch_scc1 L_att_par')
    for _ in range(CALSLEEP): k('s_sleep 127')
    calibrate(k)
    k('L_att_par:')
    par_wait(k)
    k(f'''; flag addresses: lanes 0..2 -> q/k/v projection flags; v6 -> persisted k_m/v_m count
s_lshr_b32 s34, s{SH}, 1
v_lshlrev_b32 v5, 4, v1
v_add_u32 v5, s34, v5
v_lshlrev_b32 v5, 7, v5
v_add_u32 v5, {F_PROJ}, v5
v_add_u32 v5, s100, v5
s_lshl_b32 s34, s{SH}, 7
s_add_u32 s34, s34, {F_KVM}
s_add_u32 s34, s34, s100
v_mov_b32 v6, s34''')
    k('L_att_warm:')
    if XWARM == 1:
        k('s_load_dwordx2 s[4:5], s[0:1], 0\ns_waitcnt lgkmcnt(0)')
        srd(k, 16, 4, 2048*1280)
        k('s_lshl_b32 s34, s41, 9\nv_add_u32 v10, s34, v0\nv_lshlrev_b32 v10, 6, v10')
        for i in range(10): k(f's_mov_b32 s34, {i*4096*64}\nbuffer_load_dword v{210+i}, v10, s[16:19], s34 offen')
        k('s_waitcnt vmcnt(0)')
    k(f'''L_att_task:
s_add_u32 s45, s{SS}, 1''')
    flag_wait(k, 'atw', 5, 3, 45)
    k(f'''s_lshl_b32 s34, s{SS}, 18
s_add_u32 s35, s34, {QX}
s_add_u32 s36, s34, {KX}
s_add_u32 s37, s34, {VX}''')
    for base, sreg in ((QX_, 35), (KX_, 36), (VX_, 37)):
        for i in range(8):
            if i == 4: k(f's_add_u32 s{sreg}, s{sreg}, 4096')
            k(f'buffer_load_dwordx4 {v(base+4*i,4)}, v3, {WS}, s{sreg} offen offset:{(i%4)*1024} sc1')
    flag_wait(k, 'atm', 6, 1, 45, sleep=2)
    k(f's_mul_i32 s38, s{SS}, 196608\ns_add_u32 s38, s38, {KVMP}')
    for i in range(4): k(f'buffer_load_dwordx4 {v(QM+4*i,4)}, v4, {WS}, s38 offen offset:{i*1024} sc1')
    k('s_add_u32 s38, s38, 4096')
    for i in range(2): k(f'buffer_load_dwordx4 {v(VM+4*i,4)}, v4, {WS}, s38 offen offset:{i*1024} sc1')
    k(f's_lshl_b32 s44, s{SS}, 18\ns_add_u32 s44, s44, {OX}')
    for qt in range(2):
        k('s_waitcnt vmcnt(2)' if qt == 0 else '')
        q = lambda ks: v(QX_ + 16*qt + 4*ks, 4)
        for ks in range(4):
            k(f'v_mfma_f32_16x16x32_bf16 {v(S0,4)}, {v(KX_+4*ks,4)}, {q(ks)}, {(v(DIAG,4) if qt == 0 else "0") if ks == 0 else v(S0,4)}')
            if qt == 1: k(f'v_mfma_f32_16x16x32_bf16 {v(S1,4)}, {v(KX_+16+4*ks,4)}, {q(ks)}, {v(DIAG,4) if ks == 0 else v(S1,4)}')
            k(f'v_mfma_f32_16x16x32_bf16 {v(SM,4)}, {v(QM+4*ks,4)}, {q(ks)}, {v(NEG,4) if ks == 0 else v(SM,4)}')
        vals = list(range(S0, S0+4)) + (list(range(S1, S1+4)) if qt == 1 else []) + list(range(SM, SM+4))
        k(f'v_max3_f32 v{T}, v{vals[0]}, v{vals[1]}, v{vals[2]}')
        r = vals[3:]
        while len(r) >= 2: k(f'v_max3_f32 v{T}, v{T}, v{r[0]}, v{r[1]}'); r = r[2:]
        if r: k(f'v_max_f32 v{T}, v{T}, v{r[0]}')
        for sw in ('16', '32'):
            k(f'v_mov_b32 v{T+1}, v{T}\nv_permlane{sw}_swap_b32 v{T}, v{T+1}\nv_max_f32 v{T}, v{T}, v{T+1}')
        k(f'v_mul_f32 v{T}, s{SNC}, v{T}')
        for x in vals: k(f'v_fma_f32 v{x}, v{x}, s{SC}, v{T}')
        for x in vals: k(f'v_exp_f32 v{x}, v{x}')
        k(f'v_add_f32 v{T}, v{vals[0]}, v{vals[1]}')
        for x in vals[2:]: k(f'v_add_f32 v{T}, v{T}, v{x}')
        for sw in ('16', '32'):
            k(f'v_mov_b32 v{T+1}, v{T}\nv_permlane{sw}_swap_b32 v{T}, v{T+1}\nv_add_f32 v{T}, v{T}, v{T+1}')
        k(f'v_rcp_f32 v{T}, v{T}')
        for x in vals: k(f'v_mul_f32 v{x}, v{x}, v{T}')
        k(f'v_cvt_pk_bf16_f32 v{PX}, v{S0}, v{S0+1}\nv_cvt_pk_bf16_f32 v{PX+1}, v{S0+2}, v{S0+3}')
        if qt == 1: k(f'v_cvt_pk_bf16_f32 v{PX+2}, v{S1}, v{S1+1}\nv_cvt_pk_bf16_f32 v{PX+3}, v{S1+2}, v{S1+3}')
        else: k(f'v_mov_b32 v{PX+2}, 0\nv_mov_b32 v{PX+3}, 0')
        k(f'''v_cvt_pk_bf16_f32 v{PM}, v{SM}, v{SM+2}
v_cvt_pk_bf16_f32 v{PM+1}, v{SM+1}, v{SM+3}
v_mov_b32 v{T+2}, v{PM}
v_mov_b32 v{T+3}, v{PM+1}
v_mov_b32 v{PM2}, 0
v_mov_b32 v{PM2+1}, 0
v_permlane32_swap_b32 v{T+2}, v{PM2}
v_permlane32_swap_b32 v{T+3}, v{PM2+1}''')
        if qt == 0: k('s_waitcnt vmcnt(0)')
        for te in range(8): k(f'v_mfma_f32_16x16x32_bf16 {v(O+4*te,4)}, {v(VX_+4*te,4)}, {v(PX,4)}, 0')
        for te in range(8):
            u, t4 = te // 4, te % 4
            k(f'v_mfma_f32_16x16x16_bf16 {v(O+4*te,4)}, {v(VM+4*u+2*(t4//2),2)}, {v(PM if t4 % 2 == 0 else PM2,2)}, {v(O+4*te,4)}')
        for ks in range(4):
            d = 204 + 4*ks
            for h in range(2):
                te = 2*ks + h
                k(f'v_cvt_pk_bf16_f32 v{d+2*h}, v{O+4*te}, v{O+4*te+1}\nv_cvt_pk_bf16_f32 v{d+2*h+1}, v{O+4*te+2}, v{O+4*te+3}')
            k(f'buffer_store_dwordx4 {v(d,4)}, v3, {WS}, s44 offen offset:{ks*1024} sc1')
        k('s_add_u32 s44, s44, 4096')
    k(f'''s_waitcnt vmcnt(0)
s_lshl_b32 s34, s{SS}, 2
s_add_u32 s34, s34, 1024
v_mov_b32 v10, s34
v_mov_b32 v11, 1
s_mov_b64 exec, 1
ds_add_rtn_u32 v11, v10, v11
s_waitcnt lgkmcnt(0)
v_readfirstlane_b32 s35, v11
s_cmp_lg_u32 s35, 7
s_cbranch_scc1 L_att_nf
s_lshl_b32 s34, s{SS}, 7
s_lshr_b32 s35, s{SH}, 3
s_lshl_b32 s35, s35, 2
s_add_u32 s34, s34, s35
s_add_u32 s34, s34, s101
v_mov_b32 v10, s34
v_mov_b32 v11, 1
buffer_store_dword v11, v10, {WS}, 0 offen sc1
L_att_nf:
s_mov_b64 exec, -1
s_add_u32 s{SS}, s{SS}, 2
s_cmp_lt_u32 s{SS}, 64
s_cbranch_scc1 L_att_task
s_branch L_end''')

def out_role(k):
    W, XB, ACC = 16, 144, 240
    SS, SNJ, SQT = 40, 42, 43
    k('L_out:')
    if proj.MINI:
        k('s_cmp_ge_u32 s41, 32\ns_cbranch_scc1 L_o_nomini\ns_add_u32 s44, s41, 32')
        proj.mini_proj(k, 'o', 44)
        k('L_o_nomini:')
    help_prefetch(k)
    if XWARM == 2:
        k('s_load_dwordx2 s[4:5], s[0:1], 0\ns_waitcnt lgkmcnt(0)')
        srd(k, 16, 4, 2048*1280)
        k('s_lshl_b32 s34, s41, 9\nv_add_u32 v10, s34, v0\nv_lshlrev_b32 v10, 6, v10')
        for i in range(2): k(f's_mov_b32 s34, {i*20480*64}\nbuffer_load_dword v{210+i}, v10, s[16:19], s34 offen')
    k(f'''
{''.join(['s_sleep 127' + chr(10)] * OSLEEP)}s_cmp_ge_u32 s41, 20
s_cselect_b32 s{SQT}, 1, 0
s_mul_i32 s34, s{SQT}, 20
s_sub_u32 s{SNJ}, s41, s34
s_load_dwordx2 s[4:5], s[0:1], 40
s_load_dwordx2 s[6:7], s[0:1], 80
s_waitcnt lgkmcnt(0)''')
    srd(k, 16, 4, 4096*1280)
    srd(k, 20, 6, 2048*2560)
    k(f'''v_lshrrev_b32 v10, 2, v1
v_and_b32 v11, 3, v1
v_mul_u32_u24 v12, 1280, v10
v_lshl_add_u32 v12, v11, 4, v12
s_lshl_b32 s34, s{SW}, 9
s_mul_i32 s34, s34, 1280
s_lshl_b32 s35, s{SNJ}, 6
s_add_u32 s34, s34, s35
v_add_u32 v12, s34, v12
s_lshl_b32 s34, s{SW}, 13
v_lshl_add_u32 v13, v1, 4, s34
v_lshrrev_b32 v10, 4, v1              ; g
v_bfe_u32 v11, v1, 2, 2               ; rr
v_lshl_add_u32 v10, v10, 2, v11
v_lshlrev_b32 v10, 6, v10
v_and_b32 v11, 3, v1
v_lshl_add_u32 v10, v11, 3, v10
v_add_u32 v14, s34, v10''')
    def wld(hh4):
        for i in range(8):
            k(f's_mov_b32 s34, {(128*hh4 + 16*i)*1280}\nbuffer_load_dwordx4 {v(XB+32*(hh4%2)+4*i,4)}, v12, s[16:19], s34 offen')
    wld(0); wld(1)
    for hh4 in range(4):
        k(f's_waitcnt vmcnt({8 if hh4 < 3 else 0})')
        for i in range(8): k(f'ds_write_b128 v13, {v(XB+32*(hh4%2)+4*i,4)} offset:{i*1024}')
        k('s_waitcnt lgkmcnt(0)')
        if hh4 + 2 < 4: wld(hh4 + 2)
        for ct in range(2):
            for ks in range(4):
                for hh in range(2):
                    k(f'ds_read_b64_tr_b16 {v(W + 64*ct + 4*(4*hh4+ks) + 2*hh, 2)}, v14 offset:{(32*ks + 16*hh)*64 + ct*32}')
            k('s_waitcnt lgkmcnt(0)')
    k(f'''s_barrier
v_lshlrev_b32 v2, 4, v1
s_lshl_b32 s34, s{SW}, 15             ; 4 heads * 8192
s_lshl_b32 s35, s{SQT}, 12
s_add_u32 s34, s34, s35
v_add_u32 v3, s34, v2
s_lshl_b32 s34, s{SW}, 11
v_add_u32 v6, s34, v2
; reducer (wave 0): token = lane/4, quarter = lane%4
v_lshrrev_b32 v10, 2, v1
v_and_b32 v11, 3, v1
v_lshrrev_b32 v12, 1, v11             ; ct
v_and_b32 v13, 1, v11
v_lshlrev_b32 v13, 5, v13             ; (2*(qd%2))*16
v_add_u32 v13, v13, v10
v_lshlrev_b32 v13, 4, v13
v_lshl_add_u32 v7, v12, 10, v13       ; ct*1024
s_lshl_b32 s34, s{SQT}, 4
v_add_u32 v10, s34, v10
v_mul_u32_u24 v10, 2560, v10
v_lshl_add_u32 v10, v11, 4, v10
s_lshl_b32 s34, s{SNJ}, 6
v_add_u32 v8, s34, v10
s_mov_b32 s45, 1
s_mov_b32 s46, 0
s_mov_b32 s{SS}, 0''')
    validate(k)
    par_wait(k)
    k('v_lshlrev_b32 v5, 2, v1\nv_add_u32 v5, s101, v5')
    mark(k, 1)
    k(f'''L_out_seg:
s_lshl_b32 s37, s{SS}, 7
s_cmp_lg_u32 s{SW}, 7
s_cbranch_scc1 L_out_go''')
    flag_wait(k, 'otw', 5, 4, 45, soff='s37', sleep=OSL)
    k('L_out_go:\ns_barrier')
    k(f's_lshl_b32 s34, s{SS}, 18\ns_add_u32 s34, s34, {OX}')
    for h in range(4):
        k(f's_add_u32 s35, s34, {h*8192}')
        for ks in range(4): k(f'buffer_load_dwordx4 {v(XB+16*h+4*ks,4)}, v3, {WS}, s35 offen offset:{ks*1024} sc1')
    for h in range(4):
        k(f's_waitcnt vmcnt({12 - 4*h})')
        for ks in range(4):
            for ct in range(2):
                a_ = v(ACC + 4*ct, 4)
                k(f'v_mfma_f32_16x16x32_bf16 {a_}, {v(W+64*ct+4*(4*h+ks),4)}, {v(XB+16*h+4*ks,4)}, {"0" if h == 0 and ks == 0 else a_}')
    k('v_add_u32 v10, s46, v6')
    for ct in range(2): k(f'ds_write_b128 v10, {v(ACC+4*ct,4)} offset:{ct*1024}')
    k(f'''s_waitcnt lgkmcnt(0)
s_barrier
s_cmp_ge_u32 s{SW}, 1
s_cbranch_scc1 L_out_nx
v_add_u32 v10, s46, v7''')
    for c in range(2):
        for w in range(8): k(f'ds_read_b128 {v(XB+32*c+4*w,4)}, v10 offset:{w*2048 + c*256}')
        k('s_waitcnt lgkmcnt(0)')
        b = XB + 32*c
        for x, y in ((0, 4), (8, 12), (16, 20), (24, 28), (0, 8), (16, 24), (0, 16)):
            k(f'v_pk_add_f32 {v(b+x,2)}, {v(b+x,2)}, {v(b+y,2)}\nv_pk_add_f32 {v(b+x+2,2)}, {v(b+x+2,2)}, {v(b+y+2,2)}')
        k(f'v_cvt_pk_bf16_f32 v{224+2*c}, v{b}, v{b+1}\nv_cvt_pk_bf16_f32 v{225+2*c}, v{b+2}, v{b+3}')
    k(f'''s_mul_i32 s34, s{SS}, {32*2560}
buffer_store_dwordx4 v[224:227], v8, s[20:23], s34 offen{OUTSC}
L_out_nx:
s_xor_b32 s46, s46, 0x4000
s_add_u32 s{SS}, s{SS}, 1
s_cmp_lt_u32 s{SS}, 64
s_cbranch_scc1 L_out_seg
s_branch L_end''')
```

```python
import math, struct
from dsl import v, s
from layout import *
import proj
from proj import srd
from attout import flag_wait
WS = 's[8:11]'
SX, SR, SW, SLIM = 28, 29, 30, 33
def f32bits(x): return struct.unpack('<I', struct.pack('<f', x))[0]
PW, ACC, XF, STG, WST = 16, 176, 192, 204, 232
XBUF = 41472

def stat_gemm(k, tag, colstride, wrow, xsrd, xsc, ntiles, typ, epilogue, nwaves):
    k('v_lshlrev_b32 v2, 4, v0')
    for i in range(5):
        k(f'''v_add_u32 v10, {512*i}, v0
v_mul_u32_u24 v11, 52429, v10
v_lshrrev_b32 v11, 22, v11
v_add_u32 v11, v11, v10
v_lshlrev_b32 v{3+i}, 4, v11''')
    k('s_mul_i32 s34, s47, 40960')
    for i in range(5):
        k(f'buffer_load_dwordx4 {v(STG+4*i,4)}, v2, {xsrd}, s34 offen{xsc}\ns_add_u32 s34, s34, 8192')
    k(f'''v_lshrrev_b32 v10, 4, v1
v_lshrrev_b32 v11, 1, v10             ; g2
v_and_b32 v10, 1, v10                 ; nh
v_bfe_u32 v14, v1, 2, 2               ; rr
v_lshl_add_u32 v11, v11, 3, v14
v_mul_u32_u24 v11, 320, v11
v_lshl_add_u32 v11, v10, 5, v11
v_and_b32 v10, 3, v1
v_lshl_add_u32 v11, v10, 3, v11
s_mul_i32 s34, s{SW}, {colstride}
v_add_u32 v14, s34, v11''')
    for i in range(3):
        k(f'''v_add_u32 v9, {512*i}, v0
v_mul_u32_u24 v13, 52429, v9
v_lshrrev_b32 v13, 20, v13
v_mul_u32_u24 v8, 20, v13
v_sub_u32 v8, v9, v8
v_mul_u32_u24 v13, {wrow}, v13
v_lshl_add_u32 v13, v8, 4, v13
v_add_u32 v{10+i}, s46, v13''')
    def ld(c):
        k(f's_mov_b32 s34, {64*c*wrow}')
        for i in range(3): k(f'buffer_load_dwordx4 {v(WST+12*(c%2)+4*i,4)}, v{10+i}, s[16:19], s34 offen')
    ld(0); ld(1)
    for c in range(10):
        buf = (c % 2)*24576
        k(f's_waitcnt vmcnt({3 if c < 9 else 0})')
        for i in range(3): k(f'ds_write_b128 v2, {v(WST+12*(c%2)+4*i,4)} offset:{buf + i*8192}')
        k('s_waitcnt lgkmcnt(0)')
        if c + 2 < 10: ld(c + 2)
        k('s_barrier')
        for ksl in range(4):
            for hh in range(2):
                k(f'ds_read_b64_tr_b16 {v(PW + 4*(4*c+ksl) + 2*hh, 2)}, v14 offset:{buf + ksl*16*320 + hh*4*320}')
        k('s_waitcnt lgkmcnt(0)')
    k(f'''s_barrier
v_and_b32 v10, 31, v1
v_mul_u32_u24 v10, 1296, v10
v_lshrrev_b32 v11, 5, v1
v_lshl_add_u32 v9, v11, 4, v10''')
    for i in range(5): k(f'ds_write_b128 v{3+i}, {v(STG+4*i,4)}')
    k('s_waitcnt lgkmcnt(0)\ns_add_u32 s34, s47, 1\ns_mul_i32 s34, s34, 40960')
    for i in range(5):
        k(f'buffer_load_dwordx4 {v(STG+4*i,4)}, v2, {xsrd}, s34 offen{xsc}\ns_add_u32 s34, s34, 8192')
    if tag == 'b1': validate(k)
    epilogue('setup')
    k(f'''s_mov_b32 s40, 0
s_waitcnt vmcnt(0)
s_barrier
L_{tag}_loop:
s_and_b32 s34, s40, 1
s_mul_i32 s35, s34, {XBUF}
v_add_u32 v10, s35, v9
s_xor_b32 s34, s34, 1
s_mul_i32 s35, s34, {XBUF}
s_cmp_ge_u32 s40, {ntiles-1}
s_cbranch_scc1 L_{tag}_nost''')
    for i in range(5): k(f'v_add_u32 v11, s35, v{3+i}\nds_write_b128 v11, {v(STG+4*i,4)}')
    k(f'''s_waitcnt lgkmcnt(0)
s_cmp_ge_u32 s40, {ntiles-2}
s_cbranch_scc1 L_{tag}_nost
s_add_u32 s34, s40, 2
s_add_u32 s34, s34, s47
s_mul_i32 s34, s34, 40960''')
    for i in range(5):
        k(f'buffer_load_dwordx4 {v(STG+4*i,4)}, v2, {xsrd}, s34 offen{xsc}')
        if i < 4: k('s_add_u32 s34, s34, 8192')
    k(f'L_{tag}_nost:')
    if nwaves < 8: k(f's_cmp_ge_u32 s{SW}, {nwaves}\ns_cbranch_scc1 L_{tag}_idle')
    variants = typ if isinstance(typ, (list, tuple)) else [typ]
    for vi, t in enumerate(variants):
        if len(variants) > 1 and vi == 0: k(f's_cmp_eq_u32 s42, 2\ns_cbranch_scc1 L_{tag}_v1')
        if vi == 1: k(f'L_{tag}_v1:')
        for i in range(2): k(f'ds_read_b128 {v(XF+4*i,4)}, v10 offset:{i*32}')
        for ks in range(40):
            if ks + 2 < 40: k(f'ds_read_b128 {v(XF+4*((ks+2)%3),4)}, v10 offset:{(ks+2)*32}')
            k(f's_waitcnt lgkmcnt({2 if ks + 2 < 40 else (1 if ks + 1 < 40 else 0)})')
            c = '0' if ks == 0 else v(ACC, 16)
            w, x = v(PW+4*ks, 4), v(XF+4*(ks % 3), 4)
            k(f'v_mfma_f32_32x32x16_bf16 {v(ACC,16)}, {w if t != "V" else x}, {x if t != "V" else w}, {c}')
        epilogue(t)
        if len(variants) > 1 and vi == 0: k(f's_branch L_{tag}_skip')
    k(f'''L_{tag}_skip:
s_waitcnt vmcnt({epilogue("nst")})
s_branch L_{tag}_bar
L_{tag}_idle:
s_waitcnt vmcnt(0)
L_{tag}_bar:
s_barrier
s_add_u32 s40, s40, 1
s_cmp_lt_u32 s40, {ntiles}
s_cbranch_scc1 L_{tag}_loop
s_waitcnt vmcnt(0)''')

BMODE = 0
WIDE = 1
OUTSC = ''
SLEEP = 0
mark = lambda k, n: None
def b_role(k):
    SC_, SM_ = 41, 42
    cB = f32bits(20**-0.5 * math.log2(math.e))
    k('L_brole:')
    if proj.MINI:
        k('s_cmp_ge_u32 s41, 32\ns_cbranch_scc1 L_b_nomini')
        proj.mini_proj(k, 'b', 41)
        k('L_b_nomini:')
    help_prefetch(k)
    k(f'''
{''.join(['s_sleep 127' + chr(10)] * SLEEP)}s_load_dwordx2 s[4:5], s[0:1], 64
s_load_dwordx2 s[6:7], s[0:1], 56
s_waitcnt lgkmcnt(0)''')
    srd(k, 16, 4, 640*3840)
    srd(k, 20, 6, 2048*1280)
    k(f'''s_cmp_ge_u32 s{SC_}, {48 if BMODE != 2 else 0}
s_cbranch_scc1 L_b2v
; B1: gs = c % 12 (m = gs / 4, head octet = gs % 4), token quarter = c / 12
s_mul_i32 s34, s{SC_}, 43
s_lshr_b32 s34, s34, 9
s_mul_i32 s35, s34, 12
s_sub_u32 s35, s{SC_}, s35
s_lshl_b32 s47, s34, 4
s_lshr_b32 s{SM_}, s35, 2
s_and_b32 s43, s35, 3
s_mul_i32 s46, s{SM_}, 1280
s_mul_i32 s34, s43, 320
s_add_u32 s46, s46, s34''')
    def ep1(t):
        if t == 'nst': return 2
        if t == 'setup':
            k(f'''s_lshl_b32 s34, s43, 3
s_add_u32 s34, s34, s{SW}             ; head
s_lshl_b32 s34, s34, 17
s_mov_b32 s35, {QB >> 20}
s_cmp_eq_u32 s{SM_}, 0
s_cselect_b32 s35, s35, {KB >> 20}
s_cmp_eq_u32 s{SM_}, 2
s_cselect_b32 s35, {VB >> 20}, s35
s_lshl_b32 s35, s35, 20
s_add_u32 s44, s34, s35
v_lshlrev_b32 v8, 4, v1
s_mov_b32 s48, {cB:#x}
s_cmp_eq_u32 s{SM_}, 0
s_cselect_b32 s48, s48, 1.0
s_cselect_b32 s49, 0, 0x3f80
s_mov_b32 s50, 0
s_mov_b32 s51, -1
v_and_b32 v12, 31, v1
v_cmp_gt_u32 vcc, 20, v12
s_mov_b64 s[52:53], vcc
v_cmp_eq_u32 vcc, 20, v12
v_mov_b32 v13, 0x3f803f80
v_cndmask_b32 v13, 0, v13, vcc''')
            return
        if t == 'K':
            for i in range(12): k(f'v_mul_f32 v{ACC+i}, s48, v{ACC+i}')
            for n in range(6): k(f'v_cvt_pk_bf16_f32 v{224+n}, v{ACC+2*n}, v{ACC+2*n+1}')
            k(f'''v_mov_b32 v12, s49
v_cndmask_b32 v228, v228, v12, s[50:51]
v_cndmask_b32 v229, v229, 0, s[50:51]
v_mov_b32 v230, 0
v_mov_b32 v231, 0''')
        else:
            for n in range(8): k(f'v_cvt_pk_bf16_f32 v{224+n}, v{ACC+2*n}, v{ACC+2*n+1}')
            for n in range(8): k(f'v_cndmask_b32 v{224+n}, v13, v{224+n}, s[52:53]')
        k(f'''s_add_u32 s34, s40, s47
s_lshl_b32 s34, s34, 11
s_add_u32 s34, s34, s44
buffer_store_dwordx4 v[224:227], v8, {WS}, s34 offen sc1
buffer_store_dwordx4 v[228:231], v8, {WS}, s34 offen offset:1024 sc1''')
    stat_gemm(k, 'b1', 40, 3840, 's[20:23]', '', 16, ['K', 'V'], ep1, 8)
    k(f'''s_barrier
s_cmp_lg_u32 s{SW}, 0
s_cbranch_scc1 L_b2
s_lshl_b32 s34, s{SC_}, 2
s_add_u32 s34, s34, {F_B1}
s_add_u32 s34, s34, s100
v_mov_b32 v10, s34
v_mov_b32 v11, 1
s_mov_b64 exec, 1
buffer_store_dword v11, v10, {WS}, 0 offen sc1
s_mov_b64 exec, -1''')
    Q, O, KV, SA, SB, P, M, T = 16, 48, 112, 144, 160, 176, 184, 188
    k('s_branch L_b2\nL_b2v:')
    validate(k)
    if BMODE == 1: k('L_b2:\ns_branch L_end\nL_b2x:')
    k(f'''{'L_b2:' if BMODE != 1 else ''}
v_lshlrev_b32 v10, 2, v1
v_add_u32 v10, {F_B1}, v10
v_add_u32 v10, s100, v10
s_mov_b32 s36, 1''')
    if BMODE != 2:
        k(f's_cmp_lg_u32 s{SW}, 0\ns_cbranch_scc1 L_b1w_go')
        flag_wait(k, 'b1w', 10, 48, 36, sleep=16)
        k('L_b1w_go:\ns_barrier')
    mark(k, 1)
    k(f'''s_lshr_b32 s43, s{SC_}, 1             ; head
s_and_b32 s44, s{SC_}, 1
s_lshl_b32 s34, s43, 17
v_lshlrev_b32 v2, 4, v1
v_add_u32 v3, s34, v2
s_lshl_b32 s35, s44, 5
s_lshl_b32 s36, s{SW}, 2
s_add_u32 s35, s35, s36
s_lshl_b32 s36, s35, 11
s_add_u32 s36, s36, {QB}''')
    for qb in range(4):
        for ks in range(2): k(f'buffer_load_dwordx4 {v(Q+8*qb+4*ks,4)}, v3, {WS}, s36 offen offset:{ks*1024} sc1')
        if qb < 3: k('s_add_u32 s36, s36, 2048')
    k(f'''s_mov_b32 s45, s35
s_lshl_b32 s46, s{SW}, 11             ; w*2048
v_add_u32 v4, s46, v3''')
    def dma(chunk_sreg):
        k(f'''s_and_b32 s34, s{chunk_sreg}, 1
s_lshl_b32 s34, s34, 15
s_add_u32 s34, s34, s46
s_mov_b32 m0, s34
s_lshl_b32 s35, s{chunk_sreg}, 14
s_add_u32 s36, s35, {KB}
buffer_load_dwordx4 v4, {WS}, s36 offen sc1 lds
buffer_load_dwordx4 v4, {WS}, s36 offen offset:1024 sc1 lds
s_add_u32 m0, s34, 16384
s_add_u32 s36, s35, {VB}
buffer_load_dwordx4 v4, {WS}, s36 offen sc1 lds
buffer_load_dwordx4 v4, {WS}, s36 offen offset:1024 sc1 lds''')
    k('s_mov_b32 s40, 0')
    dma(40)
    for i in range(64): k(f'v_mov_b32 v{O+i}, 0')
    for i in range(4): k(f'v_mov_b32 v{M+i}, 0')
    k(f'''s_mov_b32 s50, 0
s_mov_b32 s51, -1                     ; lanes 32..63
s_mov_b32 s52, 0xff800000
s_mov_b32 s53, 0xff800000
L_b2_chunk:
s_waitcnt vmcnt(0)
s_barrier
s_cmp_ge_u32 s40, 7
s_cbranch_scc1 L_b2_nodma
s_add_u32 s37, s40, 1''')
    dma(37)
    k(f'''L_b2_nodma:
s_and_b32 s34, s40, 1
s_lshl_b32 s34, s34, 15
v_add_u32 v5, s34, v2
s_mov_b32 s47, 0''')
    def kvread(setn, kbl):
        for ks in range(2): k(f'ds_read_b128 {v(KV+16*setn+4*ks,4)}, v5 offset:{kbl*2048 + ks*1024}')
        for kk in range(2): k(f'ds_read_b128 {v(KV+16*setn+8+4*kk,4)}, v5 offset:{16384 + kbl*2048 + kk*1024}')
    def smfma(dst, setn, qb):
        k(f'v_mfma_f32_32x32x16_bf16 {v(dst,16)}, {v(KV+16*setn,4)}, {v(Q+8*qb,4)}, 0')
        k(f'v_mfma_f32_32x32x16_bf16 {v(dst,16)}, {v(KV+16*setn+4,4)}, {v(Q+8*qb+4,4)}, {v(dst,16)}')
    rare = []
    kvread(0, 0)
    k('s_waitcnt lgkmcnt(0)')
    smfma(SA, 0, 0)
    k('L_b2_pair:')
    for par in range(2):
        for qb in range(4):
            cur, nxt = (SA, SB) if qb % 2 == 0 else (SB, SA)
            if qb == 0:
                if par == 0: kvread(1, 1)
                else:
                    k('v_add_u32 v5, 4096, v5')
                    lab = k.lab('b2nr')
                    k(f's_cmp_eq_u32 s47, 3\ns_cbranch_scc1 {lab}')
                    kvread(0, 0)
                    k(f'{lab}:')
            if qb < 3: smfma(nxt, par, qb + 1)
            else:
                if par == 0:
                    k('s_waitcnt lgkmcnt(0)'); smfma(nxt, 1, 0)
                else:
                    lab = k.lab('b2ns')
                    k(f's_waitcnt lgkmcnt(0)\ns_cmp_eq_u32 s47, 3\ns_cbranch_scc1 {lab}')
                    smfma(nxt, 0, 0)
                    k(f'{lab}:')
            k(f'v_max3_f32 v{T}, v{cur}, v{cur+1}, v{cur+2}')
            for n in range(6): k(f'v_max3_f32 v{T}, v{T}, v{cur+3+2*n}, v{cur+4+2*n}')
            k(f'v_max_f32 v{T}, v{T}, v{cur+15}')
            R, B = k.lab('b2r'), k.lab('b2b')
            k(f'v_cmp_lt_f32 vcc, s52, v{T}\ns_cbranch_vccnz {R}\n{B}:')
            rare.append((R, B, cur, qb))
            for i in range(16): k(f'v_exp_f32 v{cur+i}, v{cur+i}')
            for n in range(8): k(f'v_cvt_pk_bf16_f32 v{P+n}, v{cur+2*n}, v{cur+2*n+1}')
            for kk in range(2):
                k(f'v_mfma_f32_32x32x16_bf16 {v(O+16*qb,16)}, {v(KV+16*par+8+4*kk,4)}, {v(P+4*kk,4)}, {v(O+16*qb,16)}')
        if par == 0: k('s_mov_b32 s52, 0x41200000\ns_mov_b32 s53, 0')
    k(f'''s_add_u32 s47, s47, 1
s_cmp_lt_u32 s47, 4
s_cbranch_scc1 L_b2_pair
s_add_u32 s40, s40, 1
s_cmp_lt_u32 s40, 8
s_cbranch_scc1 L_b2_chunk
s_branch L_b2_done''')
    for R, B, cur, qb in rare:
        k(f'''{R}:
v_mov_b32 v{T+1}, v{T}
v_permlane32_swap_b32 v{T}, v{T+1}
v_max_f32 v{T}, v{T}, v{T+1}
v_max_f32 v{T}, s53, v{T}
v_add_f32 v{T}, v{M+qb}, v{T}
v_cvt_pk_bf16_f32 v{T+1}, v{T}, v{T}
v_lshlrev_b32 v{T}, 16, v{T+1}
v_sub_f32 v{T+2}, v{T}, v{M+qb}
v_mov_b32 v{M+qb}, v{T}
v_and_b32 v{T+1}, 0xffff, v{T+1}
v_xor_b32 v{T+1}, 0x8000, v{T+1}
v_cndmask_b32 v{Q+8*qb+4}, v{Q+8*qb+4}, v{T+1}, s[50:51]''')
        for i in range(16): k(f'v_sub_f32 v{cur+i}, v{cur+i}, v{T+2}')
        k(f'v_sub_f32 v{T+2}, 0, v{T+2}\nv_exp_f32 v{T+2}, v{T+2}')
        for i in range(16): k(f'v_mul_f32 v{O+16*qb+i}, v{O+16*qb+i}, v{T+2}')
        k(f's_branch {B}')
    k('L_b2_done:')
    mark(k, 2)
    k(f'''v_and_b32 v10, 31, v1
v_lshrrev_b32 v11, 5, v1
v_mul_u32_u24 v10, 1280, v10
v_lshl_add_u32 v10, v11, 3, v10
s_mul_i32 s34, s43, 40
s_mul_i32 s35, s45, {32*1280}
s_add_u32 s34, s34, s35
s_add_u32 s34, s34, {OB}''')
    for qb in range(4):
        o = O + 16*qb
        k(f'''v_mov_b32 v{T}, v{o+8}
v_mov_b32 v{T+1}, v{o+8}
v_permlane32_swap_b32 v{T}, v{T+1}
v_rcp_f32 v{T+1}, v{T+1}''')
        for a in range(3):
            for b in range(4): k(f'v_mul_f32 v{o+4*a+b}, v{o+4*a+b}, v{T+1}')
            k(f'v_cvt_pk_bf16_f32 v{P+2*a}, v{o+4*a}, v{o+4*a+1}\nv_cvt_pk_bf16_f32 v{P+2*a+1}, v{o+4*a+2}, v{o+4*a+3}')
        k(f'''buffer_store_dwordx2 {v(P,2)}, v10, {WS}, s34 offen
buffer_store_dwordx2 {v(P+2,2)}, v10, {WS}, s34 offen offset:16
s_mov_b32 exec_hi, 0
buffer_store_dwordx2 {v(P+4,2)}, v10, {WS}, s34 offen offset:32
s_mov_b32 exec_hi, -1
s_add_u32 s34, s34, {32*1280}''')
    k(f'''s_waitcnt vmcnt(0)
s_barrier
s_cmp_lg_u32 s{SW}, 0
s_cbranch_scc1 L_b3
buffer_wbl2 sc1
s_waitcnt vmcnt(0)
s_lshl_b32 s34, s{SC_}, 2
s_add_u32 s34, s34, {F_B2}
s_add_u32 s34, s34, s100
v_mov_b32 v10, s34
v_mov_b32 v11, 1
s_mov_b64 exec, 1
buffer_store_dword v11, v10, {WS}, 0 offen sc1
s_mov_b64 exec, -1
L_b3:
s_load_dwordx2 s[4:5], s[0:1], 72
s_load_dwordx2 s[6:7], s[0:1], 80
s_waitcnt lgkmcnt(0)''')
    srd(k, 16, 4, 640*1280)
    srd(k, 24, 6, 2048*2560)
    k(f'''s_mov_b32 s20, s8
s_mov_b32 s21, s9
s_add_u32 s20, s20, {OB}
s_addc_u32 s21, s21, 0
s_mov_b32 s22, {2048*1280}
s_mov_b32 s23, 0x20000
v_lshlrev_b32 v10, 2, v1
v_add_u32 v10, {F_B2}, v10
v_add_u32 v10, s100, v10
s_mov_b32 s36, 1''')
    k(f's_cmp_lg_u32 s{SW}, 0\ns_cbranch_scc1 L_b2w_go')
    flag_wait(k, 'b2w', 10, 64, 36, sleep=16)
    k('L_b2w_go:\ns_barrier')
    k(f'''s_and_b32 s43, s{SC_}, 3
s_lshr_b32 s34, s{SC_}, 2
s_lshl_b32 s47, s34, 2
s_mul_i32 s46, s43, 320''')
    def ep3(t):
        if t == 'nst': return 2 if WIDE else 4
        if t == 'setup':
            k(f'''v_and_b32 v12, 31, v1
v_lshrrev_b32 v13, 5, v1
v_mul_u32_u24 v12, 2560, v12
v_lshl_add_u32 v12, v13, {4 if WIDE else 3}, v12
s_mul_i32 s34, s43, 320
s_lshl_b32 s35, s{SW}, 6
s_add_u32 s34, s34, s35
s_add_u32 s34, s34, 1280
v_add_u32 v8, s34, v12''')
            return
        for n in range(8): k(f'v_cvt_pk_bf16_f32 v{224+n}, v{ACC+2*n}, v{ACC+2*n+1}')
        k(f's_add_u32 s34, s40, s47\ns_mul_i32 s34, s34, {32*2560}')
        if WIDE:
            for p_ in range(2):
                k(f'v_permlane32_swap_b32 v{224+4*p_}, v{226+4*p_}\nv_permlane32_swap_b32 v{225+4*p_}, v{227+4*p_}')
                k(f'buffer_store_dwordx4 {v(224+4*p_,4)}, v8, s[24:27], s34 offen offset:{32*p_}{OUTSC}')
        else:
            for a in range(4): k(f'buffer_store_dwordx2 {v(224+2*a,2)}, v8, s[24:27], s34 offen offset:{16*a}')
    stat_gemm(k, 'b3', 64, 1280, 's[20:23]', ' sc1', 4, 'O', ep3, 5)
    k('s_branch L_end')
```

```python
import sys, math, struct
from dsl import Kern, v, s
from layout import *
from proj import proj_role
from attout import att_role, out_role
from brole import b_role

def f32bits(x): return struct.unpack('<I', struct.pack('<f', x))[0]

WS, DBG = 's[8:11]', 's[12:15]'
SX, SR, SW, SSLOW, SPAR, SLIM = 28, 29, 30, 31, 32, 33
SXCC, SRANK = 98, 99
SFL0, SFL1 = 100, 101
SSTEP = 40
POLL_LIMIT = 1 << 17

def srd(k, base, ptr, nbytes):
    k(f'''s_mov_b32 s{base}, s{ptr}
s_and_b32 s{base+1}, s{ptr+1}, 0xffff
s_mov_b32 s{base+2}, {nbytes:#x}
s_mov_b32 s{base+3}, 0x20000''')

def poll(k, name, loads, check, cnt=39, sleep=0):
    L, D = k.lab(name), k.lab(name + 'd')
    k(f's_mov_b32 s{cnt}, 0\n{L}:')
    loads()
    k('s_waitcnt vmcnt(0)')
    check()
    k(f's_cbranch_vccz {D}')
    if sleep: k(f's_sleep {sleep}')
    k(f'''s_add_u32 s{cnt}, s{cnt}, 1
s_cmp_lt_u32 s{cnt}, s{SLIM}
s_cbranch_scc1 {L}
s_mov_b32 s{SLIM}, 0
{D}:''')

def umax_check(k, regs, tmp):
    r = list(regs)
    if len(r) == 1:
        k(f'v_cmp_eq_u32 vcc, -1, v{r[0]}'); return
    if len(r) == 2:
        k(f'v_max_u32 v{tmp}, v{r[0]}, v{r[1]}'); r = []
    else:
        k(f'v_max3_u32 v{tmp}, v{r[0]}, v{r[1]}, v{r[2]}'); r = r[3:]
    while len(r) >= 2:
        k(f'v_max3_u32 v{tmp}, v{tmp}, v{r[0]}, v{r[1]}'); r = r[2:]
    if r: k(f'v_max_u32 v{tmp}, v{tmp}, v{r[0]}')
    k(f'v_cmp_eq_u32 vcc, -1, v{tmp}')

TL = False
DBGST = False
def dstamp(k, word, cond_x, cond_r, wave=0):
    if not DBGST: return
    L = k.lab('ds')
    k(f'''s_cmp_lg_u32 s{SX}, {cond_x}
s_cbranch_scc1 {L}
s_cmp_lg_u32 s{SR}, {cond_r}
s_cbranch_scc1 {L}
s_cmp_lg_u32 s{SW}, {wave}
s_cbranch_scc1 {L}
s_memrealtime s[82:83]
s_waitcnt lgkmcnt(0)
v_mov_b32 v252, s82
v_mov_b32 v253, {word*4}
s_mov_b64 exec, 1
buffer_store_dword v252, v253, {DBG}, 0 offen
s_mov_b64 exec, -1
{L}:''')

def mark(k, n):
    if TL: k(f's_memrealtime s[82:83]\ns_waitcnt lgkmcnt(0)\ns_mov_b32 s{85+n}, s82')

FAKE = '''; test only: workgroups 0..40 claim die 3, which makes the counts uneven and forces the placement-independent path
s_cmp_lt_u32 s2, 41
s_cselect_b32 s98, 3, s98'''
def start_phase(k, keepflags=False):
    k(f'''
s_cmp_ge_u32 s2, 256
s_cbranch_scc1 L_exit
{'s_memrealtime s[84:85]' if TL else ''}
s_load_dwordx4 s[4:7], s[0:1], 88
s_getreg_b32 s{SXCC}, hwreg(HW_REG_XCC_ID)
s_and_b32 s{SXCC}, s{SXCC}, 15
{FAKE if OPT['fakex'] else ''}
v_and_b32 v1, 63, v0
v_lshrrev_b32 v2, 6, v0
v_readfirstlane_b32 s{SW}, v2
s_waitcnt lgkmcnt(0)''')
    srd(k, 8, 6, WS_BYTES)
    srd(k, 12, 4, 256)
    k(f'''
s_mov_b32 s{SLIM}, {POLL_LIMIT}
s_mov_b32 s{SSLOW}, 0
v_mov_b32 v9, 0
s_cmp_lg_u32 s{SW}, 0
s_cbranch_scc1 L_st_clr
s_lshl_b32 s35, s{SXCC}, 4
v_mov_b32 v8, s35
v_mov_b32 v9, 1
s_mov_b64 exec, 1
buffer_atomic_add v9, v8, {DBG}, 0 offen sc0
s_mov_b64 exec, -1
L_st_clr:
s_lshl_b32 s35, s2, 14
s_sub_u32 s36, s35, {FLG0}
s_cmp_lt_u32 s36, 0xc000
s_cselect_b32 s36, 0, -1
v_mov_b32 v4, s36
v_mov_b32 v5, s36
v_mov_b32 v6, s36
v_mov_b32 v7, s36
v_lshlrev_b32 v2, 4, v0
s_add_u32 s36, s35, 8192
{'s_cmp_lt_u32 s35, 0x10000' if keepflags else ''}
{'s_cbranch_scc1 L_st_noclr' if keepflags else ''}
buffer_store_dwordx4 v[4:7], v2, {WS}, s35 offen sc1
buffer_store_dwordx4 v[4:7], v2, {WS}, s36 offen sc1
L_st_noclr:
s_cmp_lg_u32 s{SW}, 0
s_cbranch_scc1 L_st_w1
s_waitcnt vmcnt(2)
v_readfirstlane_b32 s35, v9
v_mov_b32 v4, s35
v_mov_b32 v8, 0
ds_write_b32 v8, v4
s_waitcnt lgkmcnt(0)
L_st_w1:
s_barrier
v_mov_b32 v8, 0
ds_read_b32 v4, v8
s_waitcnt lgkmcnt(0)
v_readfirstlane_b32 s{SRANK}, v4
; speculative placement: id = 32 * die + rank (checked against the final counts before any hand-off)
s_min_u32 s{SR}, s{SRANK}, 31
s_and_b32 s{SX}, s{SXCC}, 7
s_waitcnt vmcnt(0)
s_barrier
s_cmp_lg_u32 s{SW}, 0
s_cbranch_scc1 L_dispatch
s_lshl_b32 s35, s{SXCC}, 4
s_add_u32 s35, s35, 8
v_mov_b32 v8, s35
v_mov_b32 v9, 1
s_mov_b64 exec, 1
buffer_atomic_add v9, v8, {DBG}, 0 offen
s_mov_b64 exec, -1
L_dispatch:''')
    dstamp(k, 15, 0, 0)
    if TL: k('s_memrealtime s[82:83]\ns_mov_b32 s86, 0\ns_mov_b32 s87, 0\ns_waitcnt lgkmcnt(0)\ns_mov_b32 s85, s82')

def help_prefetch(k):
    H, D = k.lab('hp'), k.lab('hpd')
    k(f'''s_cmp_ge_u32 s{SX}, 4
s_cbranch_scc1 {H}
; chain die: wave wg = (R-24)*8 + w; tasks wg + 64 j < 480: unit = t / 20, block of 16 rows = t % 20
s_sub_u32 s34, s{SR}, 24
s_lshl_b32 s34, s34, 3
s_add_u32 s34, s34, s{SW}
v_lshrrev_b32 v10, 2, v1
v_and_b32 v11, 3, v1
v_lshlrev_b32 v10, 13, v10
v_lshl_add_u32 v10, v11, 6, v10''')
    for j in range(8):
        sk = k.lab('hs')
        k(f'''s_add_u32 s35, s34, {64*j}
s_cmp_ge_u32 s35, 480
s_cbranch_scc1 {sk}
s_mul_i32 s36, s35, 3277
s_lshr_b32 s36, s36, 16               ; unit (0..23)
s_mul_i32 s37, s36, 20
s_sub_u32 s37, s35, s37               ; block
s_cmp_ge_u32 s36, 12
s_cselect_b32 s38, 1, 0
s_mul_i32 s39, s38, 12
s_sub_u32 s39, s36, s39               ; i
s_mul_i32 s44, s39, 11
s_lshr_b32 s44, s44, 5
s_mul_i32 s45, s44, 3
s_sub_u32 s45, s39, s45               ; m
s_lshl_b32 s46, s{SX}, 1
s_add_u32 s46, s46, s38
s_lshl_b32 s46, s46, 2
s_add_u32 s46, s46, s44               ; head
s_lshl_b32 s46, s46, 8
s_lshl_b32 s37, s37, 4
s_sub_u32 s37, 624, s37
s_lshl_b32 s37, s37, 13
s_add_u32 s46, s46, s37
s_lshl_b32 s45, s45, 3
s_add_u32 s45, s45, 16
s_load_dwordx2 s[4:5], s[0:1], s45
s_waitcnt lgkmcnt(0)''')
        srd(k, 16, 4, 640*8192)
        k(f'buffer_load_dword v{230+j}, v10, s[16:19], s46 offen\n{sk}:')
    k(f'''s_branch {D}
{H}:
; PROJ die: wave wg = (R-12)*8 + w; tasks wg + 160 j < 480: unit = t / 40, block of 8 rows = t % 40
s_sub_u32 s34, s{SR}, 12
s_lshl_b32 s34, s34, 3
s_add_u32 s34, s34, s{SW}
v_lshrrev_b32 v10, 3, v1
v_and_b32 v11, 7, v1
v_lshlrev_b32 v10, 13, v10
v_lshl_add_u32 v10, v11, 6, v10''')
    for j in range(3):
        k(f'''s_add_u32 s35, s34, {160*j}
s_mul_i32 s36, s35, 1639
s_lshr_b32 s36, s36, 16               ; unit (0..11)
s_mul_i32 s37, s36, 40
s_sub_u32 s37, s35, s37               ; block
s_sub_u32 s38, s{SX}, 4
s_mul_i32 s38, s38, 12
s_add_u32 s38, s38, s36               ; p
s_lshr_b32 s45, s38, 4                ; m
s_and_b32 s46, s38, 15
s_lshl_b32 s46, s46, 9
s_lshl_b32 s37, s37, 3
s_sub_u32 s37, 632, s37
s_lshl_b32 s37, s37, 13
s_add_u32 s46, s46, s37
s_lshl_b32 s45, s45, 3
s_add_u32 s45, s45, 16
s_min_u32 s45, s45, 32
s_load_dwordx2 s[4:5], s[0:1], s45
s_waitcnt lgkmcnt(0)''')
        srd(k, 16, 4, 640*8192)
        k(f'buffer_load_dword v{230+j}, v10, s[16:19], s46 offen')
    k(f'{D}:')

def validate(k, need_par=False):
    L, G, OK = k.lab('val'), k.lab('valg'), k.lab('valok')
    k(f'''s_cmp_lg_u32 s{SSLOW}, 0
s_cbranch_scc1 {OK}
v_lshlrev_b32 v10, 2, v1
s_mov_b32 s39, 0
{L}:
buffer_load_dword v11, v10, {DBG}, 0 offen sc1
s_waitcnt vmcnt(0)
v_cmp_eq_u32 vcc, 32, v11
s_and_b32 s34, vcc_lo, 0x55555555
s_cmp_eq_u32 s34, 0x55555555
s_cbranch_scc0 {G}_s
v_readlane_b32 s{SPAR}, v11, 1
s_mov_b32 s34, 0
{'s_cmp_lg_u32 s' + str(SPAR) + ', 0' if need_par else 's_cmp_eq_u32 s34, 0'}
s_cbranch_scc1 {G}
{G}_s:
s_mov_b32 s36, 0
s_mov_b32 s37, 0
s_mov_b32 s38, 0
s_mov_b32 s34, 0''')
    for i in range(16):
        k(f'''v_readlane_b32 s35, v11, {4*i+2}
s_add_u32 s38, s38, s35
v_readlane_b32 s35, v11, {4*i}
s_add_u32 s36, s36, s35
s_cmp_eq_u32 s35, {32 if i < 8 else 0}
s_cselect_b32 s97, 0, 1
s_or_b32 s34, s34, s97
s_cmp_gt_u32 s{SXCC}, {i}
s_cselect_b32 s35, s35, 0
s_add_u32 s37, s37, s35''')
    k(f'''v_readlane_b32 s{SPAR}, v11, 1
s_cmp_eq_u32 s36, 256
s_cselect_b32 s35, s38, 0
s_cmp_eq_u32 s35, 256''')
    if need_par:
        k(f'''s_cselect_b32 s35, s{SPAR}, 0
s_or_b32 s97, s35, s34
s_cmp_eq_u32 s36, 256
s_cselect_b32 s97, s97, 0
s_cmp_eq_u32 s38, 256
s_cselect_b32 s97, s97, 0
s_cmp_lg_u32 s97, 0''')
    k(f'''s_cbranch_scc1 {G}
s_sleep 2
s_add_u32 s39, s39, 1
s_cmp_lt_u32 s39, s{SLIM}
s_cbranch_scc1 {L}
s_mov_b32 s{SLIM}, 0
{G}:
s_and_b32 s{SPAR}, s{SPAR}, 2
s_lshl_b32 s{SPAR}, s{SPAR}, 12
s_cmp_eq_u32 s34, 0
s_cbranch_scc1 {OK}
s_mov_b32 s{SSLOW}, 1
s_mov_b32 s{SPAR}, 0
s_add_u32 s37, s37, s{SRANK}
s_and_b32 s37, s37, 255
s_lshr_b32 s{SX}, s37, 5
s_and_b32 s{SR}, s37, 31
s_barrier
s_branch L_dispatch
{OK}:''')

def calibrate(k):
    NS = OPT['ncal']
    k(f'''s_mov_b64 exec, 1
s_mov_b32 s36, -1
s_mov_b32 s37, -1
v_mov_b32 v9, -1
s_mov_b32 s49, 0
L_cal:
s_and_b32 s48, s49, 3
s_lshl_b32 s38, s{SW}, 2
s_add_u32 s48, s48, s38''')
    for par in range(2):
        k(f'''s_lshl_b32 s38, s48, 8
s_add_u32 s38, s38, {PART + 0x190000 + par*8192:#x}
v_mov_b32 v8, s38
buffer_store_dword v9, v8, {WS}, 0 offen sc1
s_waitcnt vmcnt(0)
s_memtime s[44:45]
s_waitcnt lgkmcnt(0)
buffer_load_dword v9, v8, {WS}, 0 offen sc1
s_waitcnt vmcnt(0)
s_memtime s[46:47]
s_waitcnt lgkmcnt(0)
s_sub_u32 s38, s46, s44
s_min_u32 s{36+par}, s{36+par}, s38''')
    k(f'''s_add_u32 s49, s49, 1
s_cmp_lt_u32 s49, {NS}
s_cbranch_scc1 L_cal
s_sub_u32 s38, s36, s37
s_sub_u32 s39, s37, s36
s_max_i32 s38, s38, s39
s_cmp_ge_u32 s38, 128
s_cbranch_scc1 L_cal_e
s_cmp_lt_u32 s49, {2*NS}
s_cbranch_scc1 L_cal
L_cal_e:
v_mov_b32 v10, s36
v_mov_b32 v11, s37
s_lshl_b32 s38, s{SW}, 3
v_mov_b32 v8, s38
ds_write_b64 v8, v[10:11]
s_waitcnt lgkmcnt(0)
s_mov_b64 exec, -1
s_barrier
s_cmp_lg_u32 s{SW}, 0
s_cbranch_scc1 L_cal_d
v_lshlrev_b32 v8, 2, v1
ds_read_b32 v9, v8
s_waitcnt lgkmcnt(0)
s_mov_b32 s36, -1
s_mov_b32 s37, -1''')
    for w in range(8):
        k(f'v_readlane_b32 s38, v9, {2*w}\ns_min_u32 s36, s36, s38\nv_readlane_b32 s38, v9, {2*w+1}\ns_min_u32 s37, s37, s38')
    k(f'''s_cmp_lt_u32 s36, s37
s_cselect_b32 s38, 0, 1
s_cmp_ge_u32 s{SXCC}, 4
s_cselect_b32 s39, 1, 0
s_xor_b32 s38, s38, s39
s_add_u32 s38, s38, 1
{('s_mov_b32 s38, ' + str(OPT['forcepar'])) if OPT['forcepar'] else ''}
v_mov_b32 v9, s38
v_mov_b32 v8, 4
s_mov_b64 exec, 1
buffer_store_dword v9, v8, {DBG}, 0 offen sc1''')
    if OPT['caldbg'] == 1:
        k(f'''v_mov_b32 v9, s36
v_mov_b32 v8, 12
buffer_store_dword v9, v8, {DBG}, 0 offen
v_mov_b32 v9, s37
v_mov_b32 v8, 20
buffer_store_dword v9, v8, {DBG}, 0 offen''')
    k('s_waitcnt vmcnt(0)\ns_mov_b64 exec, -1\nL_cal_d:')

def par_wait(k):
    L, D = k.lab('pw'), k.lab('pwd')
    k(f'''s_cmp_lg_u32 s{SSLOW}, 0
s_cbranch_scc1 {D}
s_mov_b32 s39, 0
v_mov_b32 v13, 4
{L}:
buffer_load_dword v12, v13, {DBG}, 0 offen sc1
s_waitcnt vmcnt(0)
v_readfirstlane_b32 s{SPAR}, v12
s_cmp_lg_u32 s{SPAR}, 0
s_cbranch_scc1 {L}_g
s_sleep 2
s_add_u32 s39, s39, 1
s_cmp_lt_u32 s39, s{SLIM}
s_cbranch_scc1 {L}
s_mov_b32 s{SLIM}, 0
{L}_g:
s_and_b32 s{SPAR}, s{SPAR}, 2
s_lshl_b32 s{SPAR}, s{SPAR}, 12
{D}:
s_xor_b32 s{SFL0}, s{SPAR}, 8192
s_add_u32 s{SFL1}, s{SFL0}, {FLG1}
s_add_u32 s{SFL0}, s{SFL0}, {FLG0}''')

L_KV, L_MEMF, L_RED = 0, 65536, 65536 + 10240
V_MF = 10
V_MW = 11
VLANE16 = 2
V_A3 = 3
V_A4 = 4
V_A5 = 5
V_A6 = 6
V_A7 = 7
V_A9 = 9
V_IDX = 15
WO, KXR, VXR, QK, VM, S0, S1, SM = 16, 80, 112, 144, 160, 168, 172, 176
PX, PM, PM2, O, OB, OA, NEG = 180, 184, 186, 192, 224, 144, 240
W1, MF, DA, DB = 16, 176, 216, 220
S_HEAD, S_M, S_I, S_G, S_GI = 41, 42, 43, 44, 45
S_MEMN, S_MEMN4, S_MEMN8, S_MEMZ = 46, 47, 48, 49
S_QC, S_QC4, S_QZ = 50, 51, 52
S_PC, S_PZ = 53, 54
S_KP = 55
S_KXN, S_VXN = 56, 57
S_AVAIL = 58
S_KP4 = 59
M_LO8, M_EVEN, M_ODD = 72, 74, 76
S_C, S_NC = 78, 79

def chain_offsets(k, part):
    if 'q' in part:
        k(f"""s_and_b32 s34, s{SSTEP}, 3
s_mul_i32 s{S_QC}, s34, 196608
s_add_u32 s{S_QC}, s{S_QC}, {QKVR}""")
    if 'r' in part:
        k(f"""s_and_b32 s34, s{SSTEP}, 3
s_add_u32 s{S_QC4}, s{S_QC}, 4096
s_mul_i32 s{S_PC}, s34, {8*3*16384}
s_add_u32 s{S_PC}, s{S_PC}, {PART}
s_add_u32 s{S_PC}, s{S_PC}, s{SPAR}
s_add_u32 s35, s{SSTEP}, 2
s_and_b32 s35, s35, 3
s_mul_i32 s{S_QZ}, s35, 196608
s_add_u32 s{S_QZ}, s{S_QZ}, {QKVR}
s_mul_i32 s{S_PZ}, s35, {8*3*16384}
s_add_u32 s{S_PZ}, s{S_PZ}, {PART}
s_add_u32 s{S_PZ}, s{S_PZ}, s{SPAR}
s_mul_i32 s36, s{SX}, 10240
s_add_u32 s36, s36, {MEMR}
s_add_u32 s35, s{SSTEP}, 1
s_and_b32 s35, s35, 3
s_mul_i32 s{S_MEMN}, s35, 40960
s_add_u32 s{S_MEMN}, s{S_MEMN}, s36
s_add_u32 s{S_MEMN4}, s{S_MEMN}, 4096
s_add_u32 s{S_MEMN8}, s{S_MEMN}, 8192
s_add_u32 s35, s{SSTEP}, 3
s_and_b32 s35, s35, 3
s_mul_i32 s{S_MEMZ}, s35, 40960
s_add_u32 s{S_MEMZ}, s{S_MEMZ}, s36
s_mul_i32 s{S_KP}, s{SSTEP}, 196608
s_add_u32 s{S_KP}, s{S_KP}, {KVMP}
s_add_u32 s{S_KP4}, s{S_KP}, 4096
s_add_u32 s35, s{SSTEP}, 1
s_lshl_b32 s35, s35, 18
s_add_u32 s{S_KXN}, s35, {KX}
s_add_u32 s{S_VXN}, s35, {VX}""")

def kv_wait(k, need_sreg):
    D = k.lab('kvok')
    k(f's_cmp_ge_u32 s{S_AVAIL}, s{need_sreg}\ns_cbranch_scc1 {D}')
    L = k.lab('kvp')
    k(f"""s_mov_b32 s39, 0
{L}:
buffer_load_dword v13, v{V_A9}, {WS}, 0 offen sc1
s_waitcnt vmcnt(0)
v_readlane_b32 s34, v13, 0
v_readlane_b32 s35, v13, 1
s_min_u32 s{S_AVAIL}, s34, s35
s_cmp_ge_u32 s{S_AVAIL}, s{need_sreg}
s_cbranch_scc1 {D}
s_sleep 2
s_add_u32 s39, s39, 1
s_cmp_lt_u32 s39, s{SLIM}
s_cbranch_scc1 {L}
s_mov_b32 s{SLIM}, 0
{D}:""")

KVSC = ' sc1'
NOKV = False
def kv_loads(k, skx, svx):
    k(f's_add_u32 s34, s{skx}, 4096\ns_add_u32 s35, s{svx}, 4096')
    for i in range(8):
        k(f'buffer_load_dwordx4 {v(KXR+4*i,4)}, v{V_A4}, {WS}, s{skx if i < 4 else 34} offen offset:{(i%4)*1024}{KVSC}')
    for i in range(8):
        k(f'buffer_load_dwordx4 {v(VXR+4*i,4)}, v{V_A4}, {WS}, s{svx if i < 4 else 35} offen offset:{(i%4)*1024}{KVSC}')

def kv_dma(k, skx, svx, second=False):
    for part, sb in ((0, skx), (1, svx)):
        for hlf in range(2):
            k(f's_add_u32 m0, s60, {part*8192 + hlf*4096 - (16384 if second else 0)}' if not second else f's_sub_u32 m0, s60, {16384 - part*8192 - hlf*4096}')
            if second: k(f's_sub_u32 s34, s{sb}, {8192 - hlf*4096}')
            else: k(f's_add_u32 s34, s{sb}, {hlf*4096}')
            for i in range(4):
                k(f'buffer_load_dwordx4 v8, {WS}, s34 offen offset:{i*1024}{KVSC} lds')

def kv_copies(k, skx, svx):
    A, D = k.lab('kc'), k.lab('kd')
    k(f's_cmp_eq_u32 s{SW}, 6\ns_cbranch_scc1 {D}')
    kv_dma(k, skx, svx)
    k(f's_cmp_eq_u32 s{SW}, 7\ns_cbranch_scc0 {D}')
    kv_dma(k, skx, svx, second=True)
    k(f'{D}:')

def chain_selfproj(k):
    D, A, V_, E = k.lab('sp'), k.lab('spa'), k.lab('spv'), k.lab('spe')
    AC, XF = 176, 192
    k(f"""s_cmp_eq_u32 s{S_M}, 0
s_cbranch_scc1 {D}
s_cmp_lt_u32 s{SW}, 4
s_cbranch_scc1 {A}
v_and_b32 v10, 15, v1
v_mul_u32_u24 v10, 1296, v10
v_lshrrev_b32 v11, 4, v1
v_lshl_add_u32 v10, v11, 4, v10
v_add_u32 v10, 98304, v10
v_lshlrev_b32 v11, 4, v1
s_lshl_b32 s34, s{S_HEAD}, 13
v_add_u32 v11, s34, v11
s_sub_u32 s38, s{SW}, 4
s_cmp_eq_u32 s{S_M}, 2
s_cbranch_scc1 {V_}""")
    for typ in ('K', 'V'):
        if typ == 'V': k(f'{V_}:')
        for ks in range(20):
            b = XF + 8*(ks % 2)
            if ks == 0:
                for tt in range(2): k(f'ds_read_b128 {v(b+4*tt,4)}, v10 offset:{tt*16*1296}')
            if ks + 1 < 20:
                nb = XF + 8*((ks+1) % 2)
                for tt in range(2): k(f'ds_read_b128 {v(nb+4*tt,4)}, v10 offset:{tt*16*1296 + (ks+1)*64}')
            k(f's_waitcnt lgkmcnt({2 if ks + 1 < 20 else 0})')
            for t in range(2):
                for tt in range(2):
                    a = v(AC + 8*t + 4*tt, 4); w = v(W1 + 80*t + 4*ks, 4); x = v(b+4*tt, 4)
                    k(f'v_mfma_f32_16x16x32_bf16 {a}, {w if typ == "K" else x}, {x if typ == "K" else w}, {"0" if ks == 0 else a}')
        P = 208
        if typ == 'K':
            k(f's_lshl_b32 s34, s38, 10\ns_add_u32 s34, s34, {KX}')
            for tt in range(2):
                for t in range(2):
                    a = AC + 8*t + 4*tt
                    k(f'v_cvt_pk_bf16_f32 v{P+4*tt+2*t}, v{a}, v{a+1}\nv_cvt_pk_bf16_f32 v{P+4*tt+2*t+1}, v{a+2}, v{a+3}')
                k(f'v_permlane32_swap_b32 v{P+4*tt}, v{P+4*tt+2}\nv_permlane32_swap_b32 v{P+4*tt+1}, v{P+4*tt+3}')
                k(f'buffer_store_dwordx4 {v(P+4*tt,4)}, v11, {WS}, s34 offen sc1')
                if tt == 0: k('s_add_u32 s34, s34, 4096')
            k(f's_branch {E}')
        else:
            k(f's_lshl_b32 s34, s38, 11\ns_add_u32 s34, s34, {VX}')
            for t in range(2):
                for tt in range(2):
                    a = AC + 8*t + 4*tt
                    k(f'v_cvt_pk_bf16_f32 v{P+4*t+2*tt}, v{a}, v{a+1}\nv_cvt_pk_bf16_f32 v{P+4*t+2*tt+1}, v{a+2}, v{a+3}')
                k(f'buffer_store_dwordx4 {v(P+4*t,4)}, v11, {WS}, s34 offen offset:{t*1024} sc1')
    k(f"""{E}:
s_waitcnt vmcnt(0)
v_mov_b32 v10, 90112
v_mov_b32 v11, 1
s_mov_b64 exec, 1
ds_add_rtn_u32 v11, v10, v11
s_waitcnt lgkmcnt(0)
v_readfirstlane_b32 s35, v11
s_mov_b64 exec, -1
s_cmp_lg_u32 s35, 3
s_cbranch_scc1 {D}
s_lshl_b32 s34, s{S_HEAD}, 1
s_add_u32 s34, s34, s{S_M}
s_sub_u32 s34, s34, 1
s_lshl_b32 s34, s34, 2
s_add_u32 s34, s34, {F_KV0}
s_add_u32 s34, s34, s{SFL0}
v_mov_b32 v10, s34
v_mov_b32 v11, 1
s_mov_b64 exec, 1
buffer_store_dword v11, v10, {WS}, 0 offen sc1
s_mov_b64 exec, -1
s_branch {D}
{A}:
s_waitcnt vmcnt(0)
v_mov_b32 v10, 90112
{A}_w:
ds_read_b32 v11, v10
s_waitcnt lgkmcnt(0)
v_readfirstlane_b32 s35, v11
s_cmp_ge_u32 s35, 4
s_cbranch_scc1 {D}
s_sleep 1
s_branch {A}_w
{D}:""")

TLBW = f'''; first touch of the pages used by the first steps (lines that are written much later, so nothing stale can be read)
s_mov_b32 s34, {KX + 7*262144}
buffer_load_dword v224, v8, {WS}, s34 offen sc1
s_mov_b32 s34, {VX + 7*262144}
buffer_load_dword v225, v8, {WS}, s34 offen sc1
s_mov_b32 s34, {PART + 0x18C000}
buffer_load_dword v226, v2, {WS}, s34 offen sc1
s_mov_b32 s34, {KVMP + 9*196608}
buffer_load_dword v227, v2, {WS}, s34 offen sc1'''
def chain_prologue(k):
    k(f"""
L_chain:
; i = R % 12, gi = R / 12, hl = i / 3, m = i % 3
s_cmp_ge_u32 s{SR}, 12
s_cselect_b32 s{S_GI}, 1, 0
s_mul_i32 s34, s{S_GI}, 12
s_sub_u32 s{S_I}, s{SR}, s34
s_mul_i32 s34, s{S_I}, 11
s_lshr_b32 s34, s34, 5
s_mul_i32 s35, s34, 3
s_sub_u32 s{S_M}, s{S_I}, s35
s_lshl_b32 s{S_G}, s{SX}, 1
s_add_u32 s{S_G}, s{S_G}, s{S_GI}
s_lshl_b32 s35, s{S_G}, 2
s_add_u32 s{S_HEAD}, s35, s34
s_lshl_b32 s34, s{S_M}, 3
s_add_u32 s34, s34, 16
s_load_dwordx2 s[4:5], s[0:1], s34
s_load_dwordx2 s[6:7], s[0:1], 40
s_load_dwordx2 s[36:37], s[0:1], 8
s_waitcnt lgkmcnt(0)""")
    srd(k, 16, 4, 640*8192)
    srd(k, 20, 6, 4096*1280)
    srd(k, 24, 36, 8*1280)
    STG = 176
    k(f"""
v_lshlrev_b32 v{VLANE16}, 4, v1
s_mov_b32 s{M_LO8}, 0x00ff00ff
s_mov_b32 s{M_LO8+1}, 0x00ff00ff
s_mov_b32 s{M_EVEN}, 0x55555555
s_mov_b32 s{M_EVEN+1}, 0x55555555
s_mov_b32 s{M_ODD}, 0xaaaaaaaa
s_mov_b32 s{M_ODD+1}, 0xaaaaaaaa
s_mov_b32 s{S_C}, {f32bits(128**-0.5 * math.log2(math.e)):#x}
s_mov_b32 s{S_NC}, {f32bits(-(128**-0.5) * math.log2(math.e)):#x}
s_mov_b32 s66, s{S_C}
s_mov_b32 s67, s{S_C}
v_and_b32 v10, 8, v1
v_cmp_eq_u32 vcc, 0, v10
v_mov_b32 v10, 0xeeee
v_mov_b32 v11, 0x4444
v_cndmask_b32 v{V_IDX}, v10, v11, vcc
v_mov_b32 v10, 90112
v_mov_b32 v11, 0
ds_write_b32 v10, v11
s_cmp_ge_u32 s{SW}, 4
s_cbranch_scc1 L_ch_ldw""")
    for rnd in range(3):
        k(f"""v_add_u32 v10, {256*rnd}, v0
v_lshrrev_b32 v11, 6, v10
v_bfe_u32 v12, v10, 4, 2
v_and_b32 v13, 7, v10
v_bfe_u32 v14, v10, 3, 1
v_mul_u32_u24 v13, 1280, v13
v_lshl_add_u32 v13, v11, 7, v13
v_lshl_add_u32 v13, v12, 5, v13
v_lshl_add_u32 v13, v14, 2, v13
buffer_load_dword v{144+4*rnd}, v13, s[24:27], 0 offen
buffer_load_dword v{145+4*rnd}, v13, s[24:27], 0 offen offset:8
buffer_load_dword v{146+4*rnd}, v13, s[24:27], 0 offen offset:16
buffer_load_dword v{147+4*rnd}, v13, s[24:27], 0 offen offset:24""")
    if OPT['selfp']:
        k(f"""s_cmp_eq_u32 s{S_M}, 0
s_cbranch_scc1 L_ch_nox
s_load_dwordx2 s[4:5], s[0:1], 0
s_waitcnt lgkmcnt(0)""")
        srd(k, 24, 4, 2048*1280)
        k('v_lshlrev_b32 v10, 4, v0')
        for i in range(10): k(f's_mov_b32 s34, {i*4096}\nbuffer_load_dwordx4 {v(16+4*i,4)}, v10, s[24:27], s34 offen')
        k('L_ch_nox:')
    k(f"""L_ch_ldw:
v_lshrrev_b32 v10, 4, v0
v_and_b32 v11, 15, v0
v_lshlrev_b32 v12, 13, v10
v_lshl_add_u32 v12, v11, 4, v12
s_lshl_b32 s34, s{S_HEAD}, 8
v_add_u32 v12, s34, v12""")
    for c in range(5):
        for kk in range(4):
            k(f's_mov_b32 s34, {(128*c + 32*kk)*8192}\nbuffer_load_dwordx4 {v(STG+16*c+4*kk,4)}, v12, s[16:19], s34 offen')
    k(f's_mov_b32 s63, 0\ns_cmp_ge_u32 s{SW}, 4\ns_cbranch_scc1 L_ch_nowo_ld')
    k(f"""s_cmp_ge_u32 s{S_I}, 10
s_cbranch_scc1 L_ch_nowo_ld
v_lshrrev_b32 v4, 3, v1
v_and_b32 v5, 7, v1
v_mul_u32_u24 v6, 1280, v4
v_lshl_add_u32 v6, v5, 4, v6
s_lshl_b32 s34, s{S_G}, 2
s_add_u32 s34, s34, s{SW}
s_mul_i32 s34, s34, {128*1280}
s_lshl_b32 s35, s{S_I}, 7
s_add_u32 s34, s34, s35
v_add_u32 v6, s34, v6
s_mov_b32 s63, 1""")
    for i in range(16):
        k(f's_mov_b32 s34, {8*i*1280}\nbuffer_load_dwordx4 {v(80+4*i,4)}, v6, s[20:23], s34 offen')
    k('L_ch_nowo_ld:')
    k(f"""
; LDS write address: r*256 + ((c16/2 + f) % 8)*32 + (c16%2)*16, f = 2*(r%4) + ((r>>3)&1)
v_and_b32 v13, 3, v10
v_lshlrev_b32 v13, 1, v13
v_bfe_u32 v14, v10, 3, 1
v_add_u32 v13, v13, v14
v_lshrrev_b32 v14, 1, v11
v_add_u32 v13, v13, v14
v_and_b32 v13, 7, v13
v_lshlrev_b32 v13, 5, v13
v_and_b32 v14, 1, v11
v_lshl_add_u32 v13, v14, 4, v13
v_lshl_add_u32 v13, v10, 8, v13
; transposing read addresses (tiles 2sw, 2sw+1): (8g+rr)*256 + ((te + 2rr + (g&1)) % 8)*32 + 8*(i%4)
v_lshrrev_b32 v10, 4, v1
v_bfe_u32 v11, v1, 2, 2
v_lshl_add_u32 v14, v10, 3, v11
v_lshlrev_b32 v14, 8, v14
v_and_b32 v8, 3, v1
v_lshl_add_u32 v14, v8, 3, v14
v_and_b32 v10, 1, v10
v_lshl_add_u32 v10, v11, 1, v10
s_and_b32 s34, s{SW}, 3
s_lshl_b32 s34, s34, 1
v_add_u32 v10, s34, v10
v_add_u32 v11, 1, v10
v_and_b32 v10, 7, v10
v_and_b32 v11, 7, v11
v_lshl_add_u32 v8, v11, 5, v14
v_lshl_add_u32 v14, v10, 5, v14
v_lshrrev_b32 v10, 3, v1
v_and_b32 v11, 7, v1
v_lshrrev_b32 v4, 1, v11
v_lshrrev_b32 v5, 1, v10
v_add_u32 v4, v4, v5
v_and_b32 v4, 3, v4
v_lshlrev_b32 v4, 5, v4
v_and_b32 v5, 1, v11
v_lshl_add_u32 v4, v5, 4, v4
v_lshl_add_u32 v4, v10, 7, v4
s_lshl_b32 s34, s{SW}, 14
s_add_u32 s34, s34, 98304
v_add_u32 v4, s34, v4
v_lshrrev_b32 v10, 4, v1
v_bfe_u32 v11, v1, 2, 2
v_lshl_add_u32 v6, v10, 2, v11
v_lshlrev_b32 v5, 7, v6
v_add_u32 v5, s34, v5
v_and_b32 v10, 3, v1
v_lshl_add_u32 v5, v10, 3, v5
v_lshrrev_b32 v6, 1, v6""")
    for c in range(5):
        buf = (c % 2)*32768
        wa, wb_ = k.lab('wv'), k.lab('wv')
        k(f's_cmp_eq_u32 s63, 0\ns_cbranch_scc1 {wa}\ns_waitcnt vmcnt({32 - 4*c})\ns_branch {wb_}\n{wa}:\ns_waitcnt vmcnt({16 - 4*c})\n{wb_}:')
        for kk in range(4):
            k(f'ds_write_b128 v13, {v(STG+16*c+4*kk,4)} offset:{buf + kk*8192}')
        k('s_waitcnt lgkmcnt(0)\ns_barrier')
        sa, sk = k.lab('w1a'), k.lab('w1s')
        k(f's_cmp_lt_u32 s{SW}, 4\ns_cbranch_scc1 {sa}')
        for t, ad in ((0, 14), (1, 8)):
            for ksl in range(4):
                for hh in range(2):
                    k(f'ds_read_b64_tr_b16 {v(W1 + 80*t + 4*(4*c+ksl) + 2*hh, 2)}, v{ad} offset:{buf + ksl*8192 + hh*1024}')
            k('s_waitcnt lgkmcnt(0)')
        k(f's_branch {sk}\n{sa}:')
        if c == 0:
            for rnd in range(3):
                k(f'v_add_u32 v10, {256*rnd}, v0\nv_lshlrev_b32 v10, 4, v10\nv_add_u32 v10, {L_MEMF}, v10\nds_write_b128 v10, {v(144+4*rnd,4)}')
            k('s_waitcnt lgkmcnt(0)')
        if c == 0 and OPT['selfp']:
            k(f's_cmp_eq_u32 s{S_M}, 0\ns_cbranch_scc1 {sk}')
            for i in range(10):
                k(f"""v_add_u32 v10, {256*i}, v0
v_mul_u32_u24 v11, 52429, v10
v_lshrrev_b32 v11, 22, v11
v_add_u32 v11, v11, v10
v_lshlrev_b32 v11, 4, v11
v_add_u32 v11, 98304, v11
ds_write_b128 v11, {v(16+4*i,4)}""")
            k('s_waitcnt lgkmcnt(0)')
        k(f'{sk}:')
    k('s_barrier')
    validate(k)
    par_wait(k)
    if OPT['selfp']: chain_selfproj(k)
    if True:
        sk = k.lab('wo')
        k(f's_cmp_ge_u32 s{SW}, 4\ns_cbranch_scc1 {sk}\ns_cmp_ge_u32 s{S_I}, 10\ns_cbranch_scc1 {sk}\ns_waitcnt vmcnt(0)')
        for i in range(16): k(f'ds_write_b128 v4, {v(80+4*i,4)} offset:{i*1024}')
        k('s_waitcnt lgkmcnt(0)')
        for ct in range(4):
            k(f'v_add_u32 v10, {ct}, v6\nv_and_b32 v10, 3, v10\nv_lshl_add_u32 v10, v10, 5, v5')
            for ks in range(4):
                for hh in range(2):
                    k(f'ds_read_b64_tr_b16 {v(WO + 16*ct + 4*ks + 2*hh, 2)}, v10 offset:{(32*ks + 16*hh)*128}')
            k('s_waitcnt lgkmcnt(0)')
        k(f'{sk}:')
    k(f"""s_mov_b32 s68, {OPT['adp']}
s_mov_b32 s69, 0
s_mov_b32 s65, 0
s_mov_b32 s63, 0
s_mov_b32 s{SSTEP}, 0
s_mov_b32 s{S_AVAIL}, 0
s_cmp_ge_u32 s{SW}, 4
s_cbranch_scc1 L_ch_pS
s_lshl_b32 s34, s{S_G}, 2
s_add_u32 s34, s34, s{SW}
s_mul_i32 s35, s34, 6144
v_add_u32 v{V_A3}, s35, v{VLANE16}
s_lshl_b32 s35, s34, 13
v_add_u32 v{V_A4}, s35, v{VLANE16}
s_lshl_b32 s35, s{SW}, 11
s_add_u32 s35, s35, {L_RED}
v_add_u32 v{V_A5}, s35, v{VLANE16}
s_lshl_b32 s35, s{SW}, 14
s_add_u32 s35, s35, {L_KV}
s_lshr_b32 s34, s34, 1
v_and_b32 v10, 1, v1
v_lshlrev_b32 v10, 4, v10
v_add_u32 v10, s34, v10
v_add_u32 v10, 16, v10
v_lshlrev_b32 v{V_A9}, 7, v10
v_add_u32 v{V_A9}, {F_PROJ}, v{V_A9}
v_add_u32 v{V_A9}, s{SFL0}, v{V_A9}
v_cmp_gt_u32 vcc, 32, v1
v_mov_b32 v10, 0
v_mov_b32 v11, 0xf149f2ca
v_cndmask_b32 v{NEG}, v10, v11, vcc
v_mov_b32 v{NEG+1}, v{NEG}
v_mov_b32 v{NEG+2}, v{NEG}
v_mov_b32 v{NEG+3}, v{NEG}
v_add_u32 v14, s35, v{VLANE16}
s_branch L_ch_pD
L_ch_pS:
s_sub_u32 s38, s{SW}, 4               ; sw
s_lshl_b32 s34, s38, 10
v_add_u32 v{V_A3}, s34, v{VLANE16}
v_and_b32 v10, 15, v1                 ; e16
v_bfe_u32 v11, v1, 4, 1               ; gg
v_lshrrev_b32 v12, 5, v1              ; hi
s_mul_i32 s36, s{S_HEAD}, 6144
s_cmp_eq_u32 s{S_M}, 2
s_cbranch_scc1 L_ch_qst_v
; q/k unit: row = 4gg + hi + 2*(e16&1) (+8 for k); g = 2*(te%2) + (e16/4)%2; j0 = 4*(e16/8) + (e16 & 2)
v_lshl_add_u32 v13, v11, 2, v12
v_and_b32 v14, 1, v10
v_lshl_add_u32 v13, v14, 1, v13
s_lshl_b32 s34, s{S_M}, 3
v_add_u32 v13, s34, v13
v_bfe_u32 v14, v10, 2, 1
v_lshl_add_u32 v13, v14, 4, v13
v_lshlrev_b32 v13, 4, v13
v_lshrrev_b32 v14, 3, v10
v_lshl_add_u32 v13, v14, 3, v13
v_and_b32 v14, 2, v10
v_lshl_add_u32 v13, v14, 1, v13
s_lshl_b32 s34, s38, 10
s_add_u32 s34, s34, s36
v_add_u32 v{V_A4}, s34, v13
v_add_u32 v{V_A5}, 512, v{V_A4}
s_branch L_ch_qst_done
L_ch_qst_v:
; v unit: 4096 + u*1024 + clane*16 + (sw%2)*8 + hi*4; clane = 32 + gg*16 + e16 (even tile), gg*16 + e16 (odd tile)
v_lshl_add_u32 v13, v11, 4, v10
v_lshlrev_b32 v13, 4, v13
v_lshl_add_u32 v13, v12, 2, v13
s_and_b32 s34, s38, 1
s_lshl_b32 s34, s34, 3
s_lshr_b32 s35, s38, 1
s_lshl_b32 s35, s35, 10
s_add_u32 s34, s34, s35
s_add_u32 s34, s34, 4096
s_add_u32 s34, s34, s36
v_add_u32 v{V_A5}, s34, v13
v_add_u32 v{V_A4}, 512, v{V_A5}
L_ch_qst_done:
s_mov_b32 s34, 524288
buffer_load_dword v224, v{V_A4}, {WS}, s34 offen sc1
buffer_load_dword v225, v{V_A5}, {WS}, s34 offen sc1
s_mov_b32 s34, 720896
buffer_load_dword v224, v{V_A4}, {WS}, s34 offen sc1
buffer_load_dword v225, v{V_A5}, {WS}, s34 offen sc1
s_mov_b32 s34, 917504
buffer_load_dword v224, v{V_A4}, {WS}, s34 offen sc1
buffer_load_dword v225, v{V_A5}, {WS}, s34 offen sc1
s_mov_b32 s34, 1114112
buffer_load_dword v224, v{V_A4}, {WS}, s34 offen sc1
buffer_load_dword v225, v{V_A5}, {WS}, s34 offen sc1
v_mov_b32 v216, 0
v_mov_b32 v217, 0
v_mov_b32 v218, 0
v_mov_b32 v219, 0
v_mov_b32 v220, 0
v_mov_b32 v221, 0
v_mov_b32 v222, 0
v_mov_b32 v223, 0
v_bfe_u32 v10, v1, 2, 3               ; r
v_lshrrev_b32 v13, 5, v1              ; c / 4
v_and_b32 v12, 3, v1                  ; c % 4
v_lshl_add_u32 v11, v13, 2, v12       ; c
v_lshlrev_b32 v12, 4, v12
v_lshl_add_u32 v12, v13, 3, v12
v_add_u32 v12, v12, v10
v_lshlrev_b32 v12, 4, v12
s_and_b32 s35, s38, 1
s_lshl_b32 s36, s35, 10
s_add_u32 s36, s36, {L_RED}
v_add_u32 v{V_A6}, s36, v12
s_lshl_b32 s36, s{S_I}, 1
s_add_u32 s36, s36, s35               ; j = 2i + (wave&1)
s_lshr_b32 s37, s36, 3
s_lshl_b32 s37, s37, 14
s_add_u32 s36, s36, s{S_G}
s_and_b32 s36, s36, 7
s_lshl_b32 s36, s36, 10
s_add_u32 s36, s36, s37
s_mul_i32 s37, s{S_G}, 49152
s_add_u32 s36, s36, s37
v_add_u32 v{V_A7}, s36, v{VLANE16}
s_lshl_b32 s34, s{S_G}, 2
s_add_u32 s34, s34, s38
s_lshl_b32 s35, s34, 13
v_add_u32 v8, s35, v{VLANE16}
s_lshl_b32 s60, s38, 14
s_add_u32 s60, s60, {L_KV}
s_lshr_b32 s34, s34, 1
v_and_b32 v9, 1, v1
v_lshlrev_b32 v9, 4, v9
v_add_u32 v9, s34, v9
v_add_u32 v9, 16, v9
v_lshlrev_b32 v{V_A9}, 7, v9
v_add_u32 v{V_A9}, {F_PROJ}, v{V_A9}
v_add_u32 v{V_A9}, s{SFL0}, v{V_A9}
s_cmp_ge_u32 s{S_I}, 10
s_cbranch_scc1 L_ch_nok0
{TLBW if OPT['tlbw'] else ''}
s_mov_b32 s36, 1""")
    if OPT['selfp'] or OPT['mini']:
        from attout import flag_wait
        from layout import F_KV12
        k(f"""s_lshl_b32 s34, s{S_G}, 2
s_add_u32 s34, s34, s38
{'s_cmp_eq_u32 s' + str(SW) + ', 7'}
s_cselect_b32 s35, 1, 0
s_sub_u32 s34, s34, s35
s_lshl_b32 s34, s34, 3
s_add_u32 s34, s34, {F_KV12 if OPT['mini'] else F_KV0}
s_add_u32 s34, s34, s{SFL0}
v_lshlrev_b32 v12, 2, v1
v_add_u32 v12, s34, v12""")
        flag_wait(k, 'kv0', 12, 4, 36, tmp=13, sleep=1)
    else: kv_wait(k, 36)
    k(f's_mov_b32 s36, {KX}\ns_mov_b32 s37, {VX}')
    kv_copies(k, 36, 37)
    if OPT['mini']:
        from layout import F_KV12
        k('v_mov_b32 v238, v12')
    k(f"""s_waitcnt vmcnt(0)
L_ch_nok0:
s_cmp_lg_u32 s{SW}, 6
s_cbranch_scc1 L_ch_pD
s_mul_i32 s36, s{S_GI}, 10
s_add_u32 s36, s36, s{S_I}            ; j
s_lshr_b32 s37, s36, 3
s_lshl_b32 s37, s37, 14""")
    for g in range(8):
        k(f"""s_add_u32 s35, s36, {g}
s_and_b32 s35, s35, 7
s_lshl_b32 s35, s35, 10
s_add_u32 s35, s35, s37
s_add_u32 s35, s35, {g*49152}
v_add_u32 v{240+g}, s35, v{VLANE16}""")
    k(f"""
s_lshl_b32 s36, s36, 5                ; 32j
v_lshl_add_u32 v12, v11, 2, s36       ; d0
v_lshrrev_b32 v13, 6, v12
v_lshlrev_b32 v13, 10, v13
v_bfe_u32 v14, v12, 4, 2
v_lshl_add_u32 v14, v14, 4, v10
v_lshl_add_u32 v13, v14, 4, v13
v_bfe_u32 v14, v12, 2, 2
v_lshl_add_u32 v{V_A6}, v14, 2, v13
L_ch_pD:
v_add_u32 v{V_MF}, {L_MEMF}, v{VLANE16}
v_add_u32 v{V_MW}, {L_MEMF}, v{V_A3}""")
    k('s_waitcnt vmcnt(0) lgkmcnt(0)')

def delay(k, clks):
    if OPT['slp']:
        n = clks // 64
        while n > 0:
            m_ = min(n, 127); k(f's_sleep {m_}'); n -= m_
        clks = clks % 64
    n = clks // 4
    while n > 0:
        m_ = min(n, 16); k(f's_nop {m_-1}'); n -= m_

def vdelay(k, sreg):
    L = k.lab('vd')
    k(f's_mov_b32 s34, s{sreg}\n{L}:\ns_sleep 1\ns_sub_u32 s34, s34, 1\ns_cmp_lg_u32 s34, 0\ns_cbranch_scc1 {L}')

def adapt(k, sreg, scnt, sretry, lo, hi, up, every):
    A, D = k.lab('ad'), k.lab('add')
    k(f"""s_cmp_eq_u32 s{sretry}, 0
s_cbranch_scc1 {A}
s_add_u32 s{sreg}, s{sreg}, {up}
s_min_u32 s{sreg}, s{sreg}, {hi}
s_mov_b32 s{scnt}, 0
s_branch {D}
{A}:
s_add_u32 s{scnt}, s{scnt}, 1
s_cmp_lt_u32 s{scnt}, {every}
s_cbranch_scc1 {D}
s_mov_b32 s{scnt}, 0
s_sub_u32 s{sreg}, s{sreg}, 1
s_max_u32 s{sreg}, s{sreg}, {lo}
{D}:""")

OPT = dict(dq=256, dp=512, dm=128, warm=1, dd=320, dw=1024, da=192, clrlate=0, lite=0, bsleep=0, osleep=0, xwarm=0, ds1=2048, place=0, sx=0, sm=0, sq=0, so=64, la=8, lb=56, help=0, dk=1024, outsc=0, ncal=4, caldbg=0, calsleep=0, forcepar=0, dv=64, slp=0, p2=0, selfp=1, fakex=0, prio=1, p3=0, wnt=0, psleep=0, mini=1, two=0, ack=0, tlbw=0, adp=0, adlo=8, adhi=18, adup=2, adev=6, dpe=0, dpn=20, dqe=0, asy=0, osl=3, obsc=1)
def interleave(k, mf, va, per=2):
    va = list(va)
    for m in mf:
        k(m)
        for _ in range(per):
            if va: k(va.pop(0))
    for x in va: k(x)

def chain_loop(k, sc, prof, tag, qdelay=0):
    T = tag
    late = []
    k(f'L_entry{T}:')
    NA = 4 if OPT['two'] else 0
    def s1_mfma(i):
        k(f'v_smfmac_f32_16x16x64_bf16 {v(DA,4)}, {v(MF+4*i,4)}, {v(W1+8*i,8)}, v{V_IDX}')
        k(f'v_smfmac_f32_16x16x64_bf16 {v(DB,4)}, {v(MF+4*i,4)}, {v(W1+80+8*i,8)}, v{V_IDX}')
    if OPT['two']:
        k(f's_barrier\ns_cmp_lt_u32 s{SW}, 4\ns_cbranch_scc1 L_step{T}')
        for i in range(NA): k(f'ds_read_b128 {v(MF+4*i,4)}, v{V_MF} offset:{i*1024}')
        k('s_waitcnt lgkmcnt(0)')
    k(f'L_step{T}:')
    k('s_barrier')
    k(f's_cmp_lt_u32 s{SW}, 4\ns_cbranch_scc1 L_aw{T}')
    if OPT['prio']: k('s_setprio 3')
    if OPT['p3']: k('s_memtime s[80:81]')
    for i in range(NA, 10): k(f'ds_read_b128 {v(MF+4*i,4)}, v{V_MF} offset:{i*1024}')
    for i in range(NA): s1_mfma(i)
    chain_offsets(k, 'q')
    for i in range(NA, 10):
        k(f's_waitcnt lgkmcnt({9-i})'); s1_mfma(i)
    if OPT['p3']: k('s_memtime s[82:83]')
    k(f"""s_cmp_eq_u32 s{S_M}, 2
s_mov_b64 vcc, s[{M_EVEN}:{M_EVEN+1}]
v_permlane32_swap_b32 v{DA}, v{DA+1}
v_permlane32_swap_b32 v{DA+2}, v{DA+3}
v_add_f32 v{DA}, v{DA}, v{DA+1}
v_add_f32 v{DA+2}, v{DA+2}, v{DA+3}
v_permlane32_swap_b32 v{DB}, v{DB+1}
v_permlane32_swap_b32 v{DB+2}, v{DB+3}
v_add_f32 v{DB}, v{DB}, v{DB+1}
v_add_f32 v{DB+2}, v{DB+2}, v{DB+3}
s_cbranch_scc1 L_s1v{T}
v_cndmask_b32_dpp v224, v{DA+2}, v{DA}, vcc quad_perm:[1,0,3,2] row_mask:0xf bank_mask:0xf
v_cndmask_b32_dpp v226, v{DB+2}, v{DB}, vcc quad_perm:[1,0,3,2] row_mask:0xf bank_mask:0xf
s_mov_b64 vcc, s[{M_ODD}:{M_ODD+1}]
v_cndmask_b32_dpp v225, v{DA}, v{DA+2}, vcc quad_perm:[1,0,3,2] row_mask:0xf bank_mask:0xf
v_cndmask_b32_dpp v227, v{DB}, v{DB+2}, vcc quad_perm:[1,0,3,2] row_mask:0xf bank_mask:0xf
v_cvt_pk_bf16_f32 v12, v224, v225
v_cvt_pk_bf16_f32 v13, v226, v227
s_branch L_s1s{T}
L_s1v{T}:
v_cvt_pk_bf16_f32 v12, v{DA}, v{DA+2}
v_cvt_pk_bf16_f32 v13, v{DB}, v{DB+2}
L_s1s{T}:
buffer_store_dword v12, v{V_A4}, {WS}, s{S_QC} offen{sc}
buffer_store_dword v13, v{V_A5}, {WS}, s{S_QC} offen{sc}""")
    if OPT['p3']: k('s_memtime s[84:85]')
    k(f"""s_cmp_eq_u32 s{SSTEP}, 63
s_cbranch_scc1 L_fin
s_cmp_ge_u32 s{S_I}, 10
s_cbranch_scc1 L_s1only{T}
{'s_waitcnt vmcnt(0)' if OPT['ack'] & 1 else ''}
s_barrier""")
    if OPT['prio']: k('s_setprio 0')
    chain_offsets(k, 'r')
    clr = f"""v_mov_b32 v14, -1
buffer_store_dword v14, v{V_A4}, {WS}, s{S_QZ} offen{sc}
buffer_store_dword v14, v{V_A5}, {WS}, s{S_QZ} offen{sc}"""
    k(clr)
    for i in range(8): k(f'v_mov_b32 v{DA+i}, 0')
    KL, KP = k.lab('kvl'), k.lab('kvq')
    if OPT['asy']:
        n1, n2 = k.lab('as'), k.lab('as')
        k(f"""s_cmp_eq_u32 s63, 0
s_cbranch_scc1 {n1}
v_readlane_b32 s34, v237, 0
v_readlane_b32 s35, v237, 1
s_min_u32 s34, s34, s35
s_max_u32 s{S_AVAIL}, s{S_AVAIL}, s34
s_mov_b32 s63, 0
{n1}:
s_add_u32 s34, s{SSTEP}, {OPT['asy']}
s_cmp_ge_u32 s{S_AVAIL}, s34
s_cbranch_scc1 {n2}
s_cmp_eq_u32 s{SW}, 6
s_cbranch_scc1 {n2}
buffer_load_dword v237, v{V_A9}, {WS}, 0 offen sc1
s_mov_b32 s63, 1
{n2}:""")
    k(f's_add_u32 s61, s{SSTEP}, 2\ns_mov_b32 s62, 1\ns_cmp_ge_u32 s{S_AVAIL}, s61\ns_cbranch_scc1 {KL}')
    if OPT['mini']:
        K12 = k.lab('k12')
        k(f"""s_cmp_gt_u32 s61, 3
s_cbranch_scc1 {K12}
buffer_load_dword v13, v238, {WS}, 0 offen sc1
s_waitcnt vmcnt(0)
v_readlane_b32 s34, v13, 0
v_readlane_b32 s35, v13, 1
s_min_u32 s34, s34, s35
v_readlane_b32 s35, v13, 2
s_min_u32 s34, s34, s35
v_readlane_b32 s35, v13, 3
s_min_u32 s34, s34, s35
s_mov_b32 s{S_AVAIL}, s34
s_cmp_ge_u32 s{S_AVAIL}, s61
s_cselect_b32 s62, 1, 0
s_branch {KP}
{K12}:""")
    k(f"""buffer_load_dword v13, v{V_A9}, {WS}, 0 offen sc1
s_waitcnt vmcnt(0)
v_readlane_b32 s34, v13, 0
v_readlane_b32 s35, v13, 1
s_min_u32 s{S_AVAIL}, s34, s35
s_cmp_ge_u32 s{S_AVAIL}, s61
s_cselect_b32 s62, 1, 0
s_branch {KP}
{KL}:""")
    delay(k, OPT['dd'])
    k(f'{KP}:')
    KS = k.lab('kvs')
    k(f's_cmp_eq_u32 s62, 0\ns_cbranch_scc1 {KS}')
    if not NOKV: kv_copies(k, S_KXN, S_VXN)
    k(f'{KS}:')
    if OPT['prio']: k('s_setprio 3')
    k('s_barrier')
    if OPT['p3']: k('s_memtime s[86:87]')
    k(f's_cmp_ge_u32 s{SW}, 6\ns_cbranch_scc1 L_bw6{T}')
    for w in range(4): k(f'ds_read_b128 {v(176+4*w,4)}, v{V_A6} offset:{w*2048}')
    k(f"""s_waitcnt lgkmcnt(2)
v_pk_add_f32 v[176:177], v[176:177], v[180:181]
v_pk_add_f32 v[178:179], v[178:179], v[182:183]
s_waitcnt lgkmcnt(0)
v_pk_add_f32 v[184:185], v[184:185], v[188:189]
v_pk_add_f32 v[186:187], v[186:187], v[190:191]
v_pk_add_f32 v[176:177], v[176:177], v[184:185]
v_pk_add_f32 v[178:179], v[178:179], v[186:187]
buffer_store_dwordx4 v[176:179], v{V_A7}, {WS}, s{S_PC} offen sc1
{'s_memtime s[88:89]' if OPT['p3'] else ''}
v_mov_b32 v180, -1
v_mov_b32 v181, -1
v_mov_b32 v182, -1
v_mov_b32 v183, -1
""")
    clrp = f'buffer_store_dwordx4 v[180:183], v{V_A7}, {WS}, s{S_PZ} offen sc1'
    if OPT['ack'] & 4:
        k(f's_waitcnt vmcnt(0)\ns_barrier\n{clrp}')
        k(f's_branch L_b3{T}\nL_bw6{T}:\ns_barrier')
    else:
        k(clrp)
        k(f's_branch L_b3{T}\nL_bw6{T}:')
    k(f's_cmp_lg_u32 s{SW}, 6\ns_cbranch_scc1 L_b3{T}')
    if OPT['adp']: vdelay(k, 68)
    elif OPT['dpe']:
        e1, e2 = k.lab('dpe'), k.lab('dpf')
        k(f's_cmp_ge_u32 s{SSTEP}, {OPT["dpn"]}\ns_cbranch_scc1 {e1}')
        delay(k, OPT['dpe'])
        k(f's_branch {e2}\n{e1}:')
        delay(k, OPT['dp'])
        k(f'{e2}:')
    else: delay(k, OPT['dp'])
    if OPT['p3']: k('s_memtime s[88:89]')
    spins = []
    for g in range(8): k(f'buffer_load_dwordx4 {v(176+4*g,4)}, v{240+g}, {WS}, s{S_PC} offen sc1')
    PR, PC, PB = k.lab('pps'), k.lab('ppc'), k.lab('ppb')
    k(f's_mov_b32 s39, 0\n{PC}:')
    for g in range(8):
        k(f's_waitcnt vmcnt({7-g})')
        if g == 0: k('v_mov_b32 v224, v176')
        else:
            k(f'v_max_u32 v224, v224, v{176+4*g}')
            k(f'v_pk_add_f32 v[176:177], v[176:177], {v(176+4*g,2)}\nv_pk_add_f32 v[178:179], v[178:179], {v(178+4*g,2)}')
    k(f'v_cmp_eq_u32 vcc, -1, v224\ns_cbranch_vccnz {PR}\n{PB}:')
    spins.append((PR, PC, PB, [f'buffer_load_dwordx4 {v(176+4*gg,4)}, v{240+gg}, {WS}, s{S_PC} offen sc1' for gg in range(8)], OPT['sx']))
    if OPT['p3']: k('s_memtime s[90:91]')
    if OPT['adp']: k('s_mov_b32 s65, s39')
    k(f"""v_cvt_pk_bf16_f32 v176, v176, v177
v_cvt_pk_bf16_f32 v177, v178, v179
buffer_store_dword v176, v{V_A6}, {WS}, s{S_MEMN} offen{sc}
buffer_store_dword v177, v{V_A6}, {WS}, s{S_MEMN} offen offset:128{sc}
{'s_waitcnt vmcnt(0)' if OPT['ack'] & 2 else ''}
L_b3{T}:
{'s_memtime s[92:93]' if OPT['p3'] else ''}
s_barrier
{'s_memtime s[94:95]' if OPT['p3'] else ''}""")
    SG = 224
    def mem_poll(sleep):
        A, D = k.lab('mA'), k.lab('mD')
        k(f's_cmp_ge_u32 s{SW}, 6\ns_cbranch_scc1 {A}')
        for n in (3, 2):
            srcs = [S_MEMN, S_MEMN4, S_MEMN8][:n]
            for i, sr in enumerate(srcs): k(f'buffer_load_dwordx4 {v(SG+4*i,4)}, v{V_A3}, {WS}, s{sr} offen sc1')
            k('s_mov_b32 s39, 0')
            for i, sr in enumerate(srcs):
                R_, C_, B_ = k.lab('pms'), k.lab('pmc'), k.lab('pmb')
                k(f"""{C_}:
s_waitcnt vmcnt({n-1-i})
v_max3_u32 v236, v{SG+4*i}, v{SG+1+4*i}, v{SG+2+4*i}
v_max_u32 v236, v236, v{SG+3+4*i}
v_cmp_eq_u32 vcc, -1, v236
s_cbranch_vccnz {R_}
{B_}:
ds_write_b128 v{V_MW}, {v(SG+4*i,4)} offset:{i*4096}""")
                spins.append((R_, C_, B_, [f'buffer_load_dwordx4 {v(SG+4*ii,4)}, v{V_A3}, {WS}, s{srcs[ii]} offen sc1' for ii in range(i, n)], OPT['sm'] if sleep == 0 else OPT['so']))
                if i == 0 and OPT['two']:
                    k('s_waitcnt lgkmcnt(0)\ns_barrier')
                    for f in range(NA): k(f'ds_read_b128 {v(MF+4*f,4)}, v{V_MF} offset:{f*1024}')
            if n == 3: k(f's_branch {D}\n{A}:')
        k(f'{D}:')
    if prof: k('s_memrealtime s[94:95]')
    if OPT['adp']:
        nz = k.lab('adz')
        k(f's_cmp_lg_u32 s{SW}, 6\ns_cbranch_scc1 {nz}')
        adapt(k, 68, 69, 65, OPT['adlo'], OPT['adhi'], OPT['adup'], OPT['adev'])
        k(f'{nz}:')
    delay(k, OPT['dm'])
    mem_poll(0)
    if OPT['p3']: k('s_memtime s[96:97]')
    KZ = k.lab('kvz')
    k(f's_cmp_lg_u32 s62, 0\ns_cbranch_scc1 {KZ}')
    if OPT['mini']:
        from attout import flag_wait
        KA, KB_ = k.lab('k12a'), k.lab('k12b')
        k(f's_cmp_gt_u32 s61, 3\ns_cbranch_scc1 {KA}')
        flag_wait(k, 'k12w', 238, 4, 61, tmp=13, sleep=1)
        k(f's_mov_b32 s{S_AVAIL}, s61\ns_branch {KB_}\n{KA}:')
        kv_wait(k, 61)
        k(f'{KB_}:')
    else: kv_wait(k, 61)
    if not NOKV: kv_copies(k, S_KXN, S_VXN)
    k(f's_waitcnt vmcnt(0)\n{KZ}:')
    k(f"""s_cmp_lg_u32 s{SW}, 6
s_cbranch_scc1 L_next{T}
v_mov_b32 v14, -1
buffer_store_dword v14, v{V_A6}, {WS}, s{S_MEMZ} offen{sc}
buffer_store_dword v14, v{V_A6}, {WS}, s{S_MEMZ} offen offset:128{sc}
L_next{T}:""")
    if prof:
        k('s_memrealtime s[96:97]\ns_waitcnt lgkmcnt(0)\ns_mov_b32 m0, s40')
        pA, pD = k.lab('pfA'), k.lab('pfD')
        k(f's_cmp_lt_u32 s{SW}, 4\ns_cbranch_scc1 {pA}')
        for n, r in enumerate((80, 82, 88, 90, 92, 94, 96)): k(f'v_writelane_b32 v{248+n}, s{r}, m0')
        k('s_lshl_b32 s63, s63, 16\ns_or_b32 s63, s63, s64\nv_writelane_b32 v255, s63, m0')
        k(f's_branch {pD}\n{pA}:')
        for n, r in enumerate((80, 84, 86, 96)): k(f'v_writelane_b32 v{252+n}, s{r}, m0')
        pass
        k(f'{pD}:')
    if OPT['p3']:
        pz = k.lab('p3z')
        k(f's_cmp_lt_u32 s{SW}, 4\ns_cbranch_scc1 {pz}\ns_waitcnt lgkmcnt(0)\ns_memtime s[64:65]\ns_waitcnt lgkmcnt(0)\ns_mov_b32 m0, s40')
        for n in range(8): k(f's_sub_u32 s34, s{82+2*n}, s{80+2*n}\nv_writelane_b32 v{248+n}, s34, m0')
        k('s_sub_u32 s34, s64, s96\nv_writelane_b32 v239, s34, m0')
        k(f'{pz}:')
    if OPT['lite']:
        l1, l2 = k.lab('lt'), k.lab('lt')
        k(f"""s_cmp_eq_u32 s{SSTEP}, {OPT['la']}
s_cbranch_scc0 {l1}
s_memrealtime s[90:91]
s_memtime s[94:95]
{l1}:
s_cmp_eq_u32 s{SSTEP}, {OPT['lb']}
s_cbranch_scc0 {l2}
s_memrealtime s[92:93]
s_memtime s[96:97]
{l2}:""")
    if OPT['lite'] > 1:
        k(f's_memrealtime s[88:89]\ns_waitcnt lgkmcnt(0)\ns_mov_b32 m0, s{SSTEP}\nv_writelane_b32 v254, s88, m0')
    if DBGST:
        l4 = k.lab('d4')
        k(f's_cmp_lg_u32 s{SSTEP}, 4\ns_cbranch_scc1 {l4}')
        dstamp(k, 13, 0, 0, 6)
        k(f'{l4}:')
    k(f"""s_waitcnt lgkmcnt(0)
s_add_u32 s{SSTEP}, s{SSTEP}, 1
s_branch L_step{T}""")
    k(f'L_s1only{T}:')
    chain_offsets(k, 'r')
    k('s_mov_b32 s62, 1')
    k(f"""v_mov_b32 v14, -1
buffer_store_dword v14, v{V_A4}, {WS}, s{S_QZ} offen{sc}
buffer_store_dword v14, v{V_A5}, {WS}, s{S_QZ} offen{sc}""")
    for i in range(8): k(f'v_mov_b32 v{DA+i}, 0')
    delay(k, OPT['ds1'])
    mem_poll(1)
    k(f's_branch L_next{T}')
    k(f'L_aw{T}:')
    if OPT['prio']: k('s_setprio 2')
    chain_offsets(k, 'qr')
    k(f"""s_cmp_ge_u32 s{S_I}, 10
s_cbranch_scc1 L_aidle{T}
s_cmp_eq_u32 s{SSTEP}, 63
s_cbranch_scc1 L_fin""")
    if prof: k('s_memrealtime s[80:81]')
    delay(k, OPT['da'])
    for i in range(8): k(f'ds_read_b128 {v(KXR+4*i,4)}, v14 offset:{i*1024}')
    k('s_waitcnt lgkmcnt(0)')
    for i in range(8): k(f'ds_read_b128 {v(VXR+4*i,4)}, v14 offset:{8192 + i*1024}')
    k('s_waitcnt lgkmcnt(0)')
    k('s_barrier')
    if OPT['dqe']:
        e1, e2 = k.lab('dqe'), k.lab('dqf')
        k(f's_cmp_ge_u32 s{SSTEP}, {OPT["dpn"]}\ns_cbranch_scc1 {e1}')
        delay(k, OPT['dqe'])
        k(f's_branch {e2}\n{e1}:')
        delay(k, OPT['dq'])
        k(f'{e2}:')
    else: delay(k, OPT['dq'])
    k('s_mov_b32 s39, 0')
    for ks in range(4): k(f'buffer_load_dwordx4 {v(QK+4*ks,4)}, v{V_A3}, {WS}, s{S_QC} offen offset:{ks*1024} sc1')
    delay(k, OPT['dv'])
    for u in range(2): k(f'buffer_load_dwordx4 {v(VM+4*u,4)}, v{V_A3}, {WS}, s{S_QC4} offen offset:{u*1024} sc1')
    k('s_waitcnt vmcnt(2)')
    LQM = k.lab('pqm')
    k(f'{LQM}:')
    if OPT['p2']: k('s_memtime s[80:81]')
    mf = []
    for ks in range(4): mf.append(f'v_mfma_f32_16x16x32_bf16 {v(S0,4)}, {v(KXR+4*ks,4)}, {v(QK+4*ks,4)}, {"0" if ks == 0 else v(S0,4)}')
    for ks in range(4): mf.append(f'v_mfma_f32_16x16x32_bf16 {v(S1,4)}, {v(KXR+16+4*ks,4)}, {v(QK+4*ks,4)}, {"0" if ks == 0 else v(S1,4)}')
    for ks in range(4): mf.append(f'v_mfma_f32_16x16x32_bf16 {v(SM,4)}, {v(QK+4*ks,4)}, {v(QK+4*ks,4)}, {v(NEG,4) if ks == 0 else v(SM,4)}')
    chk = [f'v_max3_u32 v244, v{QK}, v{QK+1}, v{QK+2}'] + [f'v_max3_u32 v244, v244, v{QK+3+2*n}, v{QK+4+2*n}' for n in range(6)] + [f'v_max_u32 v244, v244, v{QK+15}']
    interleave(k, mf[:4], chk)
    k(mf[4]); k('v_cmp_eq_u32 vcc, -1, v244')
    QR = k.lab('pqr')
    k(mf[5]); k(f's_cbranch_vccnz {QR}')
    qspin = (QR, LQM)
    LQX = k.lab('pqx')
    k(f'{LQX}:')
    k(mf[6]); k(f'v_mov_b32 v{PM2}, 0\nv_mov_b32 v{PM2+1}, 0')
    k(mf[7])
    k(mf[8]); k(f'v_max3_f32 v244, v{S0}, v{S0+1}, v{S0+2}')
    k(mf[9]); k(mf[10])
    k(f'v_max3_f32 v244, v244, v{S0+3}, v{S1}')
    k(mf[11])
    if OPT['p2']: k('s_memtime s[82:83]')
    k(f"""v_max3_f32 v244, v244, v{S1+1}, v{S1+2}
v_max_f32 v244, v244, v{S1+3}""")
    if prof: k('s_memrealtime s[84:85]')
    k(f"""v_max3_f32 v244, v244, v{SM}, v{SM+1}
v_max3_f32 v244, v244, v{SM+2}, v{SM+3}
v_mov_b32 v245, v244
v_permlane16_swap_b32 v244, v245
v_max_f32 v244, v244, v245
v_mov_b32 v245, v244
v_permlane32_swap_b32 v244, v245
v_max_f32 v244, v244, v245
v_mul_f32 v244, s{S_NC}, v244
v_mul_f32 v245, 1.0, v244""")
    if OPT['p2']: k('s_memtime s[84:85]')
    for i in range(0, 12, 2): k(f'v_pk_fma_f32 {v(S0+i,2)}, {v(S0+i,2)}, s[66:67], v[244:245]')
    for i in range(8): k(f'v_exp_f32 v{S0+i}, v{S0+i}')
    k(f"""v_cvt_pk_bf16_f32 v{PX}, v{S0}, v{S0+1}
v_cvt_pk_bf16_f32 v{PX+1}, v{S0+2}, v{S0+3}
v_cvt_pk_bf16_f32 v{PX+2}, v{S1}, v{S1+1}
v_cvt_pk_bf16_f32 v{PX+3}, v{S1+2}, v{S1+3}""")
    VR, VB = k.lab('pvr'), k.lab('pvb')
    k('s_waitcnt vmcnt(0)')
    k(f'v_max3_u32 v247, v{VM}, v{VM+1}, v{VM+2}\nv_max3_u32 v247, v247, v{VM+3}, v{VM+4}')
    if OPT['p2']: k('s_memtime s[86:87]')
    mf = [f'v_mfma_f32_16x16x32_bf16 {v(O+4*te,4)}, {v(VXR+4*te,4)}, {v(PX,4)}, 0' for te in range(8)]
    k(mf[0]); k(f'v_exp_f32 v{SM}, v{SM}\nv_max3_u32 v247, v247, v{VM+5}, v{VM+6}')
    k(mf[1]); k(f'v_exp_f32 v{SM+1}, v{SM+1}\nv_max_u32 v247, v247, v{VM+7}')
    k(mf[2]); k(f'v_exp_f32 v{SM+2}, v{SM+2}\nv_add_f32 v245, v{S0}, v{S0+1}')
    k(mf[3]); k(f'v_exp_f32 v{SM+3}, v{SM+3}\nv_add_f32 v246, v{S0+2}, v{S0+3}')
    k(mf[4]); k(f'v_cvt_pk_bf16_f32 v{PM}, v{SM}, v{SM+2}\nv_cvt_pk_bf16_f32 v{PM+1}, v{SM+1}, v{SM+3}\nv_cmp_eq_u32 vcc, -1, v247')
    k(mf[5]); k(f'v_mov_b32 v188, v{PM}\nv_mov_b32 v189, v{PM+1}')
    k(mf[6]); k(f'v_add_f32 v245, v245, v{S1}\nv_add_f32 v246, v246, v{S1+1}')
    k(mf[7]); k(f'v_permlane32_swap_b32 v188, v{PM2}\nv_permlane32_swap_b32 v189, v{PM2+1}')
    k(f's_cbranch_vccnz {VR}\n{VB}:')
    mf = []
    for te in range(8):
        u, t4 = te // 4, te % 4
        a = VM + 4*u + 2*(t4 // 2); b = PM if t4 % 2 == 0 else PM2
        mf.append(f'v_mfma_f32_16x16x16_bf16 {v(O+4*te,4)}, {v(a,2)}, {v(b,2)}, {v(O+4*te,4)}')
    def cv(te): return [f'v_cvt_pk_bf16_f32 v{OB+4*(te//2)+2*(te%2)}, v{O+4*te}, v{O+4*te+1}', f'v_cvt_pk_bf16_f32 v{OB+4*(te//2)+2*(te%2)+1}, v{O+4*te+2}, v{O+4*te+3}']
    if OPT['p2']: k('s_memtime s[88:89]')
    k(mf[0]); k(f'v_add_f32 v245, v245, v{SM}\nv_add_f32 v246, v246, v{SM+1}')
    k(mf[1]); k(f'v_add_f32 v245, v245, v{SM+2}\nv_add_f32 v246, v246, v{SM+3}')
    k(mf[2]); k(f'v_add_f32 v245, v245, v{S1+2}\nv_add_f32 v246, v246, v{S1+3}')
    k(mf[3]); k('v_add_f32 v245, v245, v246\nv_mov_b32 v246, v245')
    for n in range(4):
        k(mf[4+n])
        for x in cv(n): k(x)
    mo = [[f'v_mfma_f32_16x16x32_bf16 {v(OA+4*ct,4)}, {v(WO+16*ct+4*ks,4)}, {v(OB+4*ks,4)}, {"0" if ks == 0 else v(OA+4*ct,4)}' for ct in range(4)] for ks in range(4)]
    if OPT['p2']: k('s_memtime s[90:91]')
    k(mo[0][0]); k('v_permlane16_swap_b32 v245, v246')
    k(mo[0][1]); k(cv(4)[0]); k(cv(4)[1])
    k(mo[0][2]); k(cv(5)[0]); k(cv(5)[1])
    k(mo[0][3]); k('v_add_f32 v245, v245, v246\nv_mov_b32 v246, v245')
    k(mo[1][0]); k(cv(6)[0]); k(cv(6)[1])
    k(mo[1][1]); k(cv(7)[0]); k(cv(7)[1])
    k(mo[1][2]); k('v_permlane32_swap_b32 v245, v246')
    k(mo[1][3]); k('v_add_f32 v245, v245, v246')
    k(mo[2][0]); k('v_rcp_f32 v245, v245')
    k(mo[3][0]); k(mo[2][1]); k('v_mov_b32 v244, v245')
    for x in (mo[3][1], mo[2][2], mo[3][2], mo[2][3], mo[3][3]): k(x)
    if OPT['p2']: k('s_memtime s[92:93]')
    for p in range(2):
        for i in range(0, 8, 2): k(f'v_pk_mul_f32 {v(OA+8*p+i,2)}, {v(OA+8*p+i,2)}, v[244:245]')
        for i in range(4):
            k(f'v_mov_b32_dpp v{OA+8*p+i}, v{OA+8*p+4+i} row_shr:8 row_mask:0xf bank_mask:0xc')
        k(f'ds_write_b128 v{V_A5}, {v(OA+8*p,4)} offset:{p*1024}')
    if OPT['p2']: k('s_memtime s[94:95]')
    k('s_waitcnt lgkmcnt(0)')
    if prof: k('s_memrealtime s[86:87]')
    if OPT['p2']:
        k('s_memtime s[96:97]\ns_waitcnt lgkmcnt(0)\ns_mov_b32 m0, s40')
        for n in range(8): k(f's_sub_u32 s34, s{82+2*n}, s{80+2*n}\nv_writelane_b32 v{248+n}, s34, m0')
    k('s_barrier')
    if OPT['ack'] & 4: k('s_barrier')
    k('s_barrier')
    if OPT['two']: k('s_barrier')
    k(f's_branch L_next{T}')
    def emit_spin(R_, C_, B_, loads, slp):
        k(f"""{R_}:
s_add_u32 s39, s39, 1
s_cmp_ge_u32 s39, s{SLIM}
s_cbranch_scc1 {R_}_t""")
        delay(k, slp)
        for x in loads: k(x)
        k(f's_branch {C_}\n{R_}_t:\ns_mov_b32 s{SLIM}, 0\ns_waitcnt vmcnt(0)\ns_branch {B_}')
    QR, LQM = qspin
    k(f"""{QR}:
s_add_u32 s39, s39, 1
s_cmp_ge_u32 s39, s{SLIM}
s_cbranch_scc1 {QR}_t""")
    delay(k, OPT['sq'])
    for ks in range(4): k(f'buffer_load_dwordx4 {v(QK+4*ks,4)}, v{V_A3}, {WS}, s{S_QC} offen offset:{ks*1024} sc1')
    k(f's_waitcnt vmcnt(0)\ns_branch {LQM}\n{QR}_t:\ns_mov_b32 s{SLIM}, 0\ns_branch {LQX}')
    k(f"""{VR}:
s_add_u32 s39, s39, 1
s_cmp_ge_u32 s39, s{SLIM}
s_cbranch_scc1 {VR}_t""")
    for u in range(2): k(f'buffer_load_dwordx4 {v(VM+4*u,4)}, v{V_A3}, {WS}, s{S_QC4} offen offset:{u*1024} sc1')
    k('s_waitcnt vmcnt(0)')
    umax_check(k, range(VM, VM+8), 247)
    k(f's_cbranch_vccnz {VR}\ns_branch {VB}\n{VR}_t:\ns_mov_b32 s{SLIM}, 0\ns_branch {VB}')
    late.append(lambda: [emit_spin(*x) for x in spins])
    k(f"""L_aidle{T}:
s_cmp_eq_u32 s{S_I}, 10
s_cbranch_scc0 L_awarm{T}""")
    def qloads():
        for ks in range(4): k(f'buffer_load_dwordx4 {v(QK+4*ks,4)}, v{V_A3}, {WS}, s{S_QC} offen offset:{ks*1024} sc1')
        for u in range(2): k(f'buffer_load_dwordx4 {v(VM+4*u,4)}, v{V_A3}, {WS}, s{S_QC4} offen offset:{u*1024} sc1')
    delay(k, OPT['dk'])
    poll(k, 'pk' + T, qloads, lambda: umax_check(k, list(range(QK, QK+16)) + list(range(VM, VM+8)), 244), sleep=2)
    for ks in range(4): k(f'buffer_store_dwordx4 {v(QK+4*ks,4)}, v{V_A3}, {WS}, s{S_KP} offen offset:{ks*1024} sc1')
    for u in range(2): k(f'buffer_store_dwordx4 {v(VM+4*u,4)}, v{V_A3}, {WS}, s{S_KP4} offen offset:{u*1024} sc1')
    k(f"""s_waitcnt vmcnt(0)
s_lshl_b32 s34, s{S_G}, 2
s_add_u32 s34, s34, s{SW}
s_lshl_b32 s34, s34, 7
s_add_u32 s34, s34, {F_KVM}
s_add_u32 s34, s34, s{SFL0}
s_add_u32 s35, s{SSTEP}, 1
v_mov_b32 v244, s34
v_mov_b32 v245, s35
s_mov_b64 exec, 1
buffer_store_dword v245, v244, {WS}, 0 offen sc1
s_mov_b64 exec, -1
s_cmp_eq_u32 s{SSTEP}, 63
s_cbranch_scc1 L_fin
{'s_barrier' if OPT['two'] else ''}
s_branch L_next{T}
L_awarm{T}:
s_cmp_eq_u32 s{SSTEP}, 63
s_cbranch_scc1 L_fin""")
    if OPT['warm']:
        W = k.lab('wsk')
        k(f's_add_u32 s36, s{SSTEP}, 3\ns_cmp_gt_u32 s36, 64\ns_cbranch_scc1 {W}')
        delay(k, OPT['dw'])
        k(f"""buffer_load_dword v13, v{V_A9}, {WS}, 0 offen sc1
s_waitcnt vmcnt(0)
v_readlane_b32 s34, v13, 0
v_readlane_b32 s35, v13, 1
s_min_u32 s34, s34, s35
s_cmp_lt_u32 s34, s36
s_cbranch_scc1 {W}
s_add_u32 s36, s{SSTEP}, 2
s_lshl_b32 s36, s36, 18
s_add_u32 s37, s36, {VX}
s_add_u32 s36, s36, {KX}""")
        kv_loads(k, 36, 37)
        k(f'{W}:')
    if OPT['two']: k('s_barrier')
    k(f's_branch L_next{T}')
    for f in late: f()

def chain_fin(k, prof):
    k('L_fin:')
    if OPT['p3']:
        k(f"""s_lshl_b32 s34, s{SX}, 5
s_add_u32 s34, s34, s{SR}
s_lshl_b32 s34, s34, 3
s_add_u32 s34, s34, s{SW}
s_mul_i32 s34, s34, 4096
s_add_u32 s34, s34, 0x8000000
v_lshlrev_b32 v10, 2, v1
v_add_u32 v10, s34, v10""")
        for n in range(9): k(f'buffer_store_dword v{248+n if n < 8 else 239}, v10, {WS}, 0 offen offset:{n*256}')
    if OPT['p2']:
        k(f"""s_lshl_b32 s34, s{SX}, 5
s_add_u32 s34, s34, s{SR}
s_lshl_b32 s34, s34, 3
s_add_u32 s34, s34, s{SW}
s_lshl_b32 s34, s34, 11
s_add_u32 s34, s34, 0x8000000
v_lshlrev_b32 v10, 2, v1
v_add_u32 v10, s34, v10""")
        for n in range(8): k(f'buffer_store_dword v{248+n}, v10, {WS}, 0 offen offset:{n*256}')
    dstamp(k, 5, 0, 0)
    if OPT['lite']:
        k(f"""s_sub_u32 s34, s92, s90
v_mov_b32 v12, s34
s_lshl_b32 s34, s{SX}, 5
s_add_u32 s34, s34, s{SR}
s_lshl_b32 s34, s34, 3
s_add_u32 s34, s34, s{SW}
s_lshl_b32 s34, s34, 2
s_add_u32 s34, s34, 0x8800000
v_mov_b32 v10, s34
buffer_store_dword v12, v10, {WS}, 0 offen
s_sub_u32 s34, s96, s94
v_mov_b32 v12, s34
v_add_u32 v10, 0x10000, v10
buffer_store_dword v12, v10, {WS}, 0 offen""")
    if OPT['lite'] > 1:
        k(f"""s_lshl_b32 s34, s{SX}, 5
s_add_u32 s34, s34, s{SR}
s_lshl_b32 s34, s34, 3
s_add_u32 s34, s34, s{SW}
s_lshl_b32 s34, s34, 8
s_add_u32 s34, s34, 0x8a00000
v_lshlrev_b32 v10, 2, v1
v_add_u32 v10, s34, v10
buffer_store_dword v254, v10, {WS}, 0 offen""")
    if prof:
        k(f"""s_lshl_b32 s34, s{SX}, 5
s_add_u32 s34, s34, s{SR}
s_lshl_b32 s34, s34, 3
s_add_u32 s34, s34, s{SW}
s_lshl_b32 s34, s34, 11
s_add_u32 s34, s34, 0x8000000
v_lshlrev_b32 v10, 2, v1
v_add_u32 v10, s34, v10
s_cmp_lt_u32 s{SW}, 4
s_cbranch_scc1 L_fin0""")
        for n in range(8): k(f'buffer_store_dword v{248+n}, v10, {WS}, 0 offen offset:{n*256}')
        k('s_branch L_end\nL_fin0:')
        for n in range(4): k(f'buffer_store_dword v{252+n}, v10, {WS}, 0 offen offset:{n*256}')
    k('s_branch L_end')

def build(prof=False, roles=('chain',), keepflags=False, qdelay=0):
    k = Kern()
    import brole, proj, attout
    def validate_par(k2):
        validate(k2); par_wait(k2)
    brole.validate = proj.validate = validate_par
    attout.validate = validate; attout.par_wait = par_wait
    attout.calibrate = calibrate
    attout.CALSLEEP = OPT['calsleep']
    brole.help_prefetch = attout.help_prefetch = help_prefetch if OPT['help'] else (lambda k: None)
    start_phase(k, keepflags)
    on = lambda r: r in roles
    R = lambda r, l: l if on(r) else 'L_end'
    PLACE_A = f'''; dies 4-7: every die gets 12 PROJ, 8 B, 10 OUT and 2 ATT units
s_sub_u32 s34, s{SX}, 4
s_mul_i32 s41, s34, 12
s_add_u32 s41, s41, s{SR}
s_cmp_lt_u32 s{SR}, 12
s_cbranch_scc1 {R('proj', 'L_proj')}
s_lshl_b32 s41, s34, 3
s_add_u32 s41, s41, s{SR}
s_sub_u32 s41, s41, 12
s_cmp_lt_u32 s{SR}, 20
s_cbranch_scc1 {R('b', 'L_brole')}
s_mul_i32 s41, s34, 10
s_add_u32 s41, s41, s{SR}
s_sub_u32 s41, s41, 20
s_cmp_lt_u32 s{SR}, 30
s_cbranch_scc1 {R('out', 'L_out')}
s_lshl_b32 s41, s34, 1
s_add_u32 s41, s41, s{SR}
s_sub_u32 s41, s41, 30
s_branch {R('att', 'L_att')}'''
    PLACE_B = f'''; dies 4, 5: 24 PROJ + 8 B each; dies 6, 7: 20 OUT + 8 B + 4 ATT each
s_sub_u32 s34, s{SX}, 4
s_lshl_b32 s41, s34, 3
s_add_u32 s41, s41, s{SR}
s_sub_u32 s41, s41, 24
s_cmp_ge_u32 s{SR}, 24
s_cbranch_scc1 {R('b', 'L_brole')}
s_cmp_ge_u32 s{SX}, 6
s_cbranch_scc1 L_hi2
s_mul_i32 s41, s34, 24
s_add_u32 s41, s41, s{SR}
s_branch {R('proj', 'L_proj')}
L_hi2:
s_sub_u32 s34, s{SX}, 6
s_mul_i32 s41, s34, 20
s_add_u32 s41, s41, s{SR}
s_cmp_lt_u32 s{SR}, 20
s_cbranch_scc1 {R('out', 'L_out')}
s_lshl_b32 s41, s34, 2
s_add_u32 s41, s41, s{SR}
s_sub_u32 s41, s41, 20
s_branch {R('att', 'L_att')}'''
    k(f'''s_cmp_ge_u32 s{SX}, 4
s_cbranch_scc1 L_hi
s_cmp_lt_u32 s{SR}, 24
s_cbranch_scc1 {R('chain', 'L_chain')}
s_lshl_b32 s41, s{SX}, 3
s_add_u32 s41, s41, s{SR}
s_add_u32 s41, s41, 8
s_branch {R('b', 'L_brole')}
L_hi:
{PLACE_B if OPT['place'] == 2 else PLACE_A}''')
    if on('proj'): proj_role(k)
    if on('att'): att_role(k)
    if on('out'): out_role(k)
    if on('b'): b_role(k)
    if on('chain'):
        chain_prologue(k)
        mark(k, 1)
        dstamp(k, 3, 0, 0)
        k(f's_cmp_lg_u32 s{SSLOW}, 0\ns_cbranch_scc1 L_entryS')
        chain_loop(k, '', prof, 'F', qdelay)
        chain_loop(k, ' sc1', False, 'S')
        chain_fin(k, prof)
    k('L_end:')
    dstamp(k, 9, 7, 20)
    dstamp(k, 11, 4, 12)
    dstamp(k, 7, 4, 0)
    if TL:
        k(f'''s_memrealtime s[82:83]
s_waitcnt lgkmcnt(0)
v_mov_b32 v20, s84
v_mov_b32 v21, s85
v_mov_b32 v22, s86
v_mov_b32 v23, s87
v_mov_b32 v24, s82
s_lshl_b32 s34, s{SX}, 5
s_add_u32 s34, s34, s{SR}
s_lshl_b32 s34, s34, 3
s_add_u32 s34, s34, s{SW}
s_lshl_b32 s34, s34, 5
s_add_u32 s34, s34, 0x8900000
v_mov_b32 v25, s34
s_mov_b64 exec, 1
buffer_store_dwordx4 v[20:23], v25, {WS}, 0 offen
buffer_store_dword v24, v25, {WS}, 0 offen offset:16''')
    k('L_exit:\ns_endpgm')
    body, nops = k.text()
    head = f'''; Kernarg layout (104 bytes, pointers only, base s[0:1]):
; @launch grid=(256,1,1) block=(512,1,1) lds=163840
;
.amdgcn_target "amdgcn-amd-amdhsa--gfx950"
.text
.globl {NAME}
.p2align 8
.type {NAME},@function
{NAME}:
'''
    tail = f'''
.section .rodata,"a"
.p2align 6
.amdhsa_kernel {NAME}
  .amdhsa_next_free_vgpr 256
  .amdhsa_next_free_sgpr 102
  .amdhsa_accum_offset 256
  .amdhsa_group_segment_fixed_size 0
  .amdhsa_kernarg_size 104
  .amdhsa_user_sgpr_count 2
  .amdhsa_user_sgpr_kernarg_segment_ptr 1
  .amdhsa_system_sgpr_workgroup_id_x 1
.end_amdhsa_kernel
'''
    return head + '\n'.join(body) + tail, nops

if __name__ == '__main__':
    out = sys.argv[1]
    opts = dict(a.split('=') for a in sys.argv[2:] if '=' in a)
    if 'kvsc' in opts: KVSC = {'p': '', 's': ' sc1', 'n': ' nt', '0': ' sc0'}[opts['kvsc']]
    NOKV = 'nokv' in sys.argv[2:]
    TL = 'tl' in sys.argv[2:]
    DBGST = 'dbgst' in sys.argv[2:]
    import brole, proj, attout
    brole.mark = proj.mark = attout.mark = mark
    brole.BMODE = int(opts.get('bmode', 0))
    for o in OPT:
        if o in opts: OPT[o] = int(opts[o])
    proj.MINI = OPT['mini']
    proj.SELFP = OPT['selfp']; proj.PSLEEP = OPT['psleep']
    proj.WNT = ' nt' if OPT['wnt'] else ''; proj.WNT2 = ' nt' if OPT['wnt'] > 1 else ''
    proj.LITE = OPT['lite']; proj.PMARK = int(opts.get('pmark', -1))
    brole.OUTSC = attout.OUTSC = {0: '', 1: ' sc1', 2: ' nt', 3: ' sc0 sc1'}[OPT['outsc']]
    brole.OBSC = ' sc1' if OPT['obsc'] else ''
    brole.SLEEP = OPT['bsleep']; attout.OSLEEP = OPT['osleep']; attout.XWARM = OPT['xwarm']; attout.OSL = OPT['osl']
    txt, nops = build(prof='prof' in sys.argv[2:], keepflags='keepflags' in sys.argv[2:], qdelay=int(opts.get('qdelay', 0)), roles=opts.get('roles', 'chain').split(','))
    open(out, 'w').write(txt)
    print('wrote', out, 'lines', txt.count('\n'), 'nop states', nops)
```

```python
import math, struct
from dsl import v, s
from layout import *
import proj
from proj import srd
from attout import flag_wait
WS = 's[8:11]'
SX, SR, SW, SLIM = 28, 29, 30, 33
def f32bits(x): return struct.unpack('<I', struct.pack('<f', x))[0]
PW, ACC, XF, STG, WST = 16, 176, 192, 204, 232
XBUF = 41472

def stat_gemm(k, tag, colstride, wrow, xsrd, xsc, ntiles, typ, epilogue, nwaves):
    k('v_lshlrev_b32 v2, 4, v0')
    for i in range(5):
        k(f'''v_add_u32 v10, {512*i}, v0
v_mul_u32_u24 v11, 52429, v10
v_lshrrev_b32 v11, 22, v11
v_add_u32 v11, v11, v10
v_lshlrev_b32 v{3+i}, 4, v11''')
    k('s_mul_i32 s34, s47, 40960')
    for i in range(5):
        k(f'buffer_load_dwordx4 {v(STG+4*i,4)}, v2, {xsrd}, s34 offen{xsc}\ns_add_u32 s34, s34, 8192')
    k(f'''v_lshrrev_b32 v10, 4, v1
v_lshrrev_b32 v11, 1, v10             ; g2
v_and_b32 v10, 1, v10                 ; nh
v_bfe_u32 v14, v1, 2, 2               ; rr
v_lshl_add_u32 v11, v11, 3, v14
v_mul_u32_u24 v11, 320, v11
v_lshl_add_u32 v11, v10, 5, v11
v_and_b32 v10, 3, v1
v_lshl_add_u32 v11, v10, 3, v11
s_mul_i32 s34, s{SW}, {colstride}
v_add_u32 v14, s34, v11''')
    for i in range(3):
        k(f'''v_add_u32 v9, {512*i}, v0
v_mul_u32_u24 v13, 52429, v9
v_lshrrev_b32 v13, 20, v13
v_mul_u32_u24 v8, 20, v13
v_sub_u32 v8, v9, v8
v_mul_u32_u24 v13, {wrow}, v13
v_lshl_add_u32 v13, v8, 4, v13
v_add_u32 v{10+i}, s46, v13''')
    def ld(c):
        k(f's_mov_b32 s34, {64*c*wrow}')
        for i in range(3): k(f'buffer_load_dwordx4 {v(WST+12*(c%2)+4*i,4)}, v{10+i}, s[16:19], s34 offen')
    ld(0); ld(1)
    for c in range(10):
        buf = (c % 2)*24576
        k(f's_waitcnt vmcnt({3 if c < 9 else 0})')
        for i in range(3): k(f'ds_write_b128 v2, {v(WST+12*(c%2)+4*i,4)} offset:{buf + i*8192}')
        k('s_waitcnt lgkmcnt(0)')
        if c + 2 < 10: ld(c + 2)
        k('s_barrier')
        for ksl in range(4):
            for hh in range(2):
                k(f'ds_read_b64_tr_b16 {v(PW + 4*(4*c+ksl) + 2*hh, 2)}, v14 offset:{buf + ksl*16*320 + hh*4*320}')
        k('s_waitcnt lgkmcnt(0)')
    k(f'''s_barrier
v_and_b32 v10, 31, v1
v_mul_u32_u24 v10, 1296, v10
v_lshrrev_b32 v11, 5, v1
v_lshl_add_u32 v9, v11, 4, v10''')
    for i in range(5): k(f'ds_write_b128 v{3+i}, {v(STG+4*i,4)}')
    k('s_waitcnt lgkmcnt(0)\ns_add_u32 s34, s47, 1\ns_mul_i32 s34, s34, 40960')
    for i in range(5):
        k(f'buffer_load_dwordx4 {v(STG+4*i,4)}, v2, {xsrd}, s34 offen{xsc}\ns_add_u32 s34, s34, 8192')
    if tag == 'b1': validate(k)
    epilogue('setup')
    k(f'''s_mov_b32 s40, 0
s_waitcnt vmcnt(0)
s_barrier
L_{tag}_loop:
s_and_b32 s34, s40, 1
s_mul_i32 s35, s34, {XBUF}
v_add_u32 v10, s35, v9
s_xor_b32 s34, s34, 1
s_mul_i32 s35, s34, {XBUF}
s_cmp_ge_u32 s40, {ntiles-1}
s_cbranch_scc1 L_{tag}_nost''')
    for i in range(5): k(f'v_add_u32 v11, s35, v{3+i}\nds_write_b128 v11, {v(STG+4*i,4)}')
    k(f'''s_waitcnt lgkmcnt(0)
s_cmp_ge_u32 s40, {ntiles-2}
s_cbranch_scc1 L_{tag}_nost
s_add_u32 s34, s40, 2
s_add_u32 s34, s34, s47
s_mul_i32 s34, s34, 40960''')
    for i in range(5):
        k(f'buffer_load_dwordx4 {v(STG+4*i,4)}, v2, {xsrd}, s34 offen{xsc}')
        if i < 4: k('s_add_u32 s34, s34, 8192')
    k(f'L_{tag}_nost:')
    if nwaves < 8: k(f's_cmp_ge_u32 s{SW}, {nwaves}\ns_cbranch_scc1 L_{tag}_idle')
    variants = typ if isinstance(typ, (list, tuple)) else [typ]
    for vi, t in enumerate(variants):
        if len(variants) > 1 and vi == 0: k(f's_cmp_eq_u32 s42, 2\ns_cbranch_scc1 L_{tag}_v1')
        if vi == 1: k(f'L_{tag}_v1:')
        for i in range(2): k(f'ds_read_b128 {v(XF+4*i,4)}, v10 offset:{i*32}')
        for ks in range(40):
            if ks + 2 < 40: k(f'ds_read_b128 {v(XF+4*((ks+2)%3),4)}, v10 offset:{(ks+2)*32}')
            k(f's_waitcnt lgkmcnt({2 if ks + 2 < 40 else (1 if ks + 1 < 40 else 0)})')
            c = '0' if ks == 0 else v(ACC, 16)
            w, x = v(PW+4*ks, 4), v(XF+4*(ks % 3), 4)
            k(f'v_mfma_f32_32x32x16_bf16 {v(ACC,16)}, {w if t != "V" else x}, {x if t != "V" else w}, {c}')
        epilogue(t)
        if len(variants) > 1 and vi == 0: k(f's_branch L_{tag}_skip')
    k(f'''L_{tag}_skip:
s_waitcnt vmcnt({epilogue("nst")})
s_branch L_{tag}_bar
L_{tag}_idle:
s_waitcnt vmcnt(0)
L_{tag}_bar:
s_barrier
s_add_u32 s40, s40, 1
s_cmp_lt_u32 s40, {ntiles}
s_cbranch_scc1 L_{tag}_loop
s_waitcnt vmcnt(0)''')

BMODE = 0
OBSC = ' sc1'
WIDE = 1
OUTSC = ''
SLEEP = 0
mark = lambda k, n: None
def b_role(k):
    SC_, SM_ = 41, 42
    cB = f32bits(20**-0.5 * math.log2(math.e))
    k('L_brole:')
    if proj.MINI:
        k('s_cmp_ge_u32 s41, 32\ns_cbranch_scc1 L_b_nomini')
        proj.mini_proj(k, 'b', 41)
        k('L_b_nomini:')
    help_prefetch(k)
    k(f'''
{''.join(['s_sleep 127' + chr(10)] * SLEEP)}s_load_dwordx2 s[4:5], s[0:1], 64
s_load_dwordx2 s[6:7], s[0:1], 56
s_waitcnt lgkmcnt(0)''')
    srd(k, 16, 4, 640*3840)
    srd(k, 20, 6, 2048*1280)
    k(f'''s_cmp_ge_u32 s{SC_}, {48 if BMODE != 2 else 0}
s_cbranch_scc1 L_b2v
; B1: gs = c % 12 (m = gs / 4, head octet = gs % 4), token quarter = c / 12
s_mul_i32 s34, s{SC_}, 43
s_lshr_b32 s34, s34, 9
s_mul_i32 s35, s34, 12
s_sub_u32 s35, s{SC_}, s35
s_lshl_b32 s47, s34, 4
s_lshr_b32 s{SM_}, s35, 2
s_and_b32 s43, s35, 3
s_mul_i32 s46, s{SM_}, 1280
s_mul_i32 s34, s43, 320
s_add_u32 s46, s46, s34''')
    def ep1(t):
        if t == 'nst': return 2
        if t == 'setup':
            k(f'''s_lshl_b32 s34, s43, 3
s_add_u32 s34, s34, s{SW}             ; head
s_lshl_b32 s34, s34, 17
s_mov_b32 s35, {QB >> 20}
s_cmp_eq_u32 s{SM_}, 0
s_cselect_b32 s35, s35, {KB >> 20}
s_cmp_eq_u32 s{SM_}, 2
s_cselect_b32 s35, {VB >> 20}, s35
s_lshl_b32 s35, s35, 20
s_add_u32 s44, s34, s35
v_lshlrev_b32 v8, 4, v1
s_mov_b32 s48, {cB:#x}
s_cmp_eq_u32 s{SM_}, 0
s_cselect_b32 s48, s48, 1.0
s_cselect_b32 s49, 0, 0x3f80
s_mov_b32 s50, 0
s_mov_b32 s51, -1
v_and_b32 v12, 31, v1
v_cmp_gt_u32 vcc, 20, v12
s_mov_b64 s[52:53], vcc
v_cmp_eq_u32 vcc, 20, v12
v_mov_b32 v13, 0x3f803f80
v_cndmask_b32 v13, 0, v13, vcc''')
            return
        if t == 'K':
            for i in range(12): k(f'v_mul_f32 v{ACC+i}, s48, v{ACC+i}')
            for n in range(6): k(f'v_cvt_pk_bf16_f32 v{224+n}, v{ACC+2*n}, v{ACC+2*n+1}')
            k(f'''v_mov_b32 v12, s49
v_cndmask_b32 v228, v228, v12, s[50:51]
v_cndmask_b32 v229, v229, 0, s[50:51]
v_mov_b32 v230, 0
v_mov_b32 v231, 0''')
        else:
            for n in range(8): k(f'v_cvt_pk_bf16_f32 v{224+n}, v{ACC+2*n}, v{ACC+2*n+1}')
            for n in range(8): k(f'v_cndmask_b32 v{224+n}, v13, v{224+n}, s[52:53]')
        k(f'''s_add_u32 s34, s40, s47
s_lshl_b32 s34, s34, 11
s_add_u32 s34, s34, s44
buffer_store_dwordx4 v[224:227], v8, {WS}, s34 offen sc1
buffer_store_dwordx4 v[228:231], v8, {WS}, s34 offen offset:1024 sc1''')
    stat_gemm(k, 'b1', 40, 3840, 's[20:23]', '', 16, ['K', 'V'], ep1, 8)
    k(f'''s_barrier
s_cmp_lg_u32 s{SW}, 0
s_cbranch_scc1 L_b2
s_lshl_b32 s34, s{SC_}, 2
s_add_u32 s34, s34, {F_B1}
s_add_u32 s34, s34, s100
v_mov_b32 v10, s34
v_mov_b32 v11, 1
s_mov_b64 exec, 1
buffer_store_dword v11, v10, {WS}, 0 offen sc1
s_mov_b64 exec, -1''')
    Q, O, KV, SA, SB, P, M, T = 16, 48, 112, 144, 160, 176, 184, 188
    k('s_branch L_b2\nL_b2v:')
    validate(k)
    if BMODE == 1: k('L_b2:\ns_branch L_end\nL_b2x:')
    k(f'''{'L_b2:' if BMODE != 1 else ''}
v_lshlrev_b32 v10, 2, v1
v_add_u32 v10, {F_B1}, v10
v_add_u32 v10, s100, v10
s_mov_b32 s36, 1''')
    if BMODE != 2:
        k(f's_cmp_lg_u32 s{SW}, 0\ns_cbranch_scc1 L_b1w_go')
        flag_wait(k, 'b1w', 10, 48, 36, sleep=16)
        k('L_b1w_go:\ns_barrier')
    mark(k, 1)
    k(f'''s_lshr_b32 s43, s{SC_}, 1             ; head
s_and_b32 s44, s{SC_}, 1
s_lshl_b32 s34, s43, 17
v_lshlrev_b32 v2, 4, v1
v_add_u32 v3, s34, v2
s_lshl_b32 s35, s44, 5
s_lshl_b32 s36, s{SW}, 2
s_add_u32 s35, s35, s36
s_lshl_b32 s36, s35, 11
s_add_u32 s36, s36, {QB}''')
    for qb in range(4):
        for ks in range(2): k(f'buffer_load_dwordx4 {v(Q+8*qb+4*ks,4)}, v3, {WS}, s36 offen offset:{ks*1024} sc1')
        if qb < 3: k('s_add_u32 s36, s36, 2048')
    k(f'''s_mov_b32 s45, s35
s_lshl_b32 s46, s{SW}, 11             ; w*2048
v_add_u32 v4, s46, v3''')
    def dma(chunk_sreg):
        k(f'''s_and_b32 s34, s{chunk_sreg}, 1
s_lshl_b32 s34, s34, 15
s_add_u32 s34, s34, s46
s_mov_b32 m0, s34
s_lshl_b32 s35, s{chunk_sreg}, 14
s_add_u32 s36, s35, {KB}
buffer_load_dwordx4 v4, {WS}, s36 offen sc1 lds
buffer_load_dwordx4 v4, {WS}, s36 offen offset:1024 sc1 lds
s_add_u32 m0, s34, 16384
s_add_u32 s36, s35, {VB}
buffer_load_dwordx4 v4, {WS}, s36 offen sc1 lds
buffer_load_dwordx4 v4, {WS}, s36 offen offset:1024 sc1 lds''')
    k('s_mov_b32 s40, 0')
    dma(40)
    for i in range(64): k(f'v_mov_b32 v{O+i}, 0')
    for i in range(4): k(f'v_mov_b32 v{M+i}, 0')
    k(f'''s_mov_b32 s50, 0
s_mov_b32 s51, -1                     ; lanes 32..63
s_mov_b32 s52, 0xff800000
s_mov_b32 s53, 0xff800000
L_b2_chunk:
s_waitcnt vmcnt(0)
s_barrier
s_cmp_ge_u32 s40, 7
s_cbranch_scc1 L_b2_nodma
s_add_u32 s37, s40, 1''')
    dma(37)
    k(f'''L_b2_nodma:
s_and_b32 s34, s40, 1
s_lshl_b32 s34, s34, 15
v_add_u32 v5, s34, v2
s_mov_b32 s47, 0''')
    def kvread(setn, kbl):
        for ks in range(2): k(f'ds_read_b128 {v(KV+16*setn+4*ks,4)}, v5 offset:{kbl*2048 + ks*1024}')
        for kk in range(2): k(f'ds_read_b128 {v(KV+16*setn+8+4*kk,4)}, v5 offset:{16384 + kbl*2048 + kk*1024}')
    def smfma(dst, setn, qb):
        k(f'v_mfma_f32_32x32x16_bf16 {v(dst,16)}, {v(KV+16*setn,4)}, {v(Q+8*qb,4)}, 0')
        k(f'v_mfma_f32_32x32x16_bf16 {v(dst,16)}, {v(KV+16*setn+4,4)}, {v(Q+8*qb+4,4)}, {v(dst,16)}')
    rare = []
    kvread(0, 0)
    k('s_waitcnt lgkmcnt(0)')
    smfma(SA, 0, 0)
    k('L_b2_pair:')
    for par in range(2):
        for qb in range(4):
            cur, nxt = (SA, SB) if qb % 2 == 0 else (SB, SA)
            if qb == 0:
                if par == 0: kvread(1, 1)
                else:
                    k('v_add_u32 v5, 4096, v5')
                    lab = k.lab('b2nr')
                    k(f's_cmp_eq_u32 s47, 3\ns_cbranch_scc1 {lab}')
                    kvread(0, 0)
                    k(f'{lab}:')
            if qb < 3: smfma(nxt, par, qb + 1)
            else:
                if par == 0:
                    k('s_waitcnt lgkmcnt(0)'); smfma(nxt, 1, 0)
                else:
                    lab = k.lab('b2ns')
                    k(f's_waitcnt lgkmcnt(0)\ns_cmp_eq_u32 s47, 3\ns_cbranch_scc1 {lab}')
                    smfma(nxt, 0, 0)
                    k(f'{lab}:')
            k(f'v_max3_f32 v{T}, v{cur}, v{cur+1}, v{cur+2}')
            for n in range(6): k(f'v_max3_f32 v{T}, v{T}, v{cur+3+2*n}, v{cur+4+2*n}')
            k(f'v_max_f32 v{T}, v{T}, v{cur+15}')
            R, B = k.lab('b2r'), k.lab('b2b')
            k(f'v_cmp_lt_f32 vcc, s52, v{T}\ns_cbranch_vccnz {R}\n{B}:')
            rare.append((R, B, cur, qb))
            for i in range(16): k(f'v_exp_f32 v{cur+i}, v{cur+i}')
            for n in range(8): k(f'v_cvt_pk_bf16_f32 v{P+n}, v{cur+2*n}, v{cur+2*n+1}')
            for kk in range(2):
                k(f'v_mfma_f32_32x32x16_bf16 {v(O+16*qb,16)}, {v(KV+16*par+8+4*kk,4)}, {v(P+4*kk,4)}, {v(O+16*qb,16)}')
        if par == 0: k('s_mov_b32 s52, 0x41200000\ns_mov_b32 s53, 0')
    k(f'''s_add_u32 s47, s47, 1
s_cmp_lt_u32 s47, 4
s_cbranch_scc1 L_b2_pair
s_add_u32 s40, s40, 1
s_cmp_lt_u32 s40, 8
s_cbranch_scc1 L_b2_chunk
s_branch L_b2_done''')
    for R, B, cur, qb in rare:
        k(f'''{R}:
v_mov_b32 v{T+1}, v{T}
v_permlane32_swap_b32 v{T}, v{T+1}
v_max_f32 v{T}, v{T}, v{T+1}
v_max_f32 v{T}, s53, v{T}
v_add_f32 v{T}, v{M+qb}, v{T}
v_cvt_pk_bf16_f32 v{T+1}, v{T}, v{T}
v_lshlrev_b32 v{T}, 16, v{T+1}
v_sub_f32 v{T+2}, v{T}, v{M+qb}
v_mov_b32 v{M+qb}, v{T}
v_and_b32 v{T+1}, 0xffff, v{T+1}
v_xor_b32 v{T+1}, 0x8000, v{T+1}
v_cndmask_b32 v{Q+8*qb+4}, v{Q+8*qb+4}, v{T+1}, s[50:51]''')
        for i in range(16): k(f'v_sub_f32 v{cur+i}, v{cur+i}, v{T+2}')
        k(f'v_sub_f32 v{T+2}, 0, v{T+2}\nv_exp_f32 v{T+2}, v{T+2}')
        for i in range(16): k(f'v_mul_f32 v{O+16*qb+i}, v{O+16*qb+i}, v{T+2}')
        k(f's_branch {B}')
    k('L_b2_done:')
    mark(k, 2)
    k(f'''v_and_b32 v10, 31, v1
v_lshrrev_b32 v11, 5, v1
v_mul_u32_u24 v10, 1280, v10
v_lshl_add_u32 v10, v11, 3, v10
s_mul_i32 s34, s43, 40
s_mul_i32 s35, s45, {32*1280}
s_add_u32 s34, s34, s35
s_add_u32 s34, s34, {OB}''')
    for qb in range(4):
        o = O + 16*qb
        k(f'''v_mov_b32 v{T}, v{o+8}
v_mov_b32 v{T+1}, v{o+8}
v_permlane32_swap_b32 v{T}, v{T+1}
v_rcp_f32 v{T+1}, v{T+1}''')
        for a in range(3):
            for b in range(4): k(f'v_mul_f32 v{o+4*a+b}, v{o+4*a+b}, v{T+1}')
            k(f'v_cvt_pk_bf16_f32 v{P+2*a}, v{o+4*a}, v{o+4*a+1}\nv_cvt_pk_bf16_f32 v{P+2*a+1}, v{o+4*a+2}, v{o+4*a+3}')
        k(f'''buffer_store_dwordx2 {v(P,2)}, v10, {WS}, s34 offen{OBSC}
buffer_store_dwordx2 {v(P+2,2)}, v10, {WS}, s34 offen offset:16{OBSC}
s_mov_b32 exec_hi, 0
buffer_store_dwordx2 {v(P+4,2)}, v10, {WS}, s34 offen offset:32{OBSC}
s_mov_b32 exec_hi, -1
s_add_u32 s34, s34, {32*1280}''')
    k(f'''s_waitcnt vmcnt(0)
s_barrier
s_cmp_lg_u32 s{SW}, 0
s_cbranch_scc1 L_b3
{'buffer_wbl2 sc1' if not OBSC else ''}
s_waitcnt vmcnt(0)
s_lshl_b32 s34, s{SC_}, 2
s_add_u32 s34, s34, {F_B2}
s_add_u32 s34, s34, s100
v_mov_b32 v10, s34
v_mov_b32 v11, 1
s_mov_b64 exec, 1
buffer_store_dword v11, v10, {WS}, 0 offen sc1
s_mov_b64 exec, -1
L_b3:
s_load_dwordx2 s[4:5], s[0:1], 72
s_load_dwordx2 s[6:7], s[0:1], 80
s_waitcnt lgkmcnt(0)''')
    srd(k, 16, 4, 640*1280)
    srd(k, 24, 6, 2048*2560)
    k(f'''s_mov_b32 s20, s8
s_mov_b32 s21, s9
s_add_u32 s20, s20, {OB}
s_addc_u32 s21, s21, 0
s_mov_b32 s22, {2048*1280}
s_mov_b32 s23, 0x20000
v_lshlrev_b32 v10, 2, v1
v_add_u32 v10, {F_B2}, v10
v_add_u32 v10, s100, v10
s_mov_b32 s36, 1''')
    k(f's_cmp_lg_u32 s{SW}, 0\ns_cbranch_scc1 L_b2w_go')
    flag_wait(k, 'b2w', 10, 64, 36, sleep=16)
    k('L_b2w_go:\ns_barrier')
    k(f'''s_and_b32 s43, s{SC_}, 3
s_lshr_b32 s34, s{SC_}, 2
s_lshl_b32 s47, s34, 2
s_mul_i32 s46, s43, 320''')
    def ep3(t):
        if t == 'nst': return 2 if WIDE else 4
        if t == 'setup':
            k(f'''v_and_b32 v12, 31, v1
v_lshrrev_b32 v13, 5, v1
v_mul_u32_u24 v12, 2560, v12
v_lshl_add_u32 v12, v13, {4 if WIDE else 3}, v12
s_mul_i32 s34, s43, 320
s_lshl_b32 s35, s{SW}, 6
s_add_u32 s34, s34, s35
s_add_u32 s34, s34, 1280
v_add_u32 v8, s34, v12''')
            return
        for n in range(8): k(f'v_cvt_pk_bf16_f32 v{224+n}, v{ACC+2*n}, v{ACC+2*n+1}')
        k(f's_add_u32 s34, s40, s47\ns_mul_i32 s34, s34, {32*2560}')
        if WIDE:
            for p_ in range(2):
                k(f'v_permlane32_swap_b32 v{224+4*p_}, v{226+4*p_}\nv_permlane32_swap_b32 v{225+4*p_}, v{227+4*p_}')
                k(f'buffer_store_dwordx4 {v(224+4*p_,4)}, v8, s[24:27], s34 offen offset:{32*p_}{OUTSC}')
        else:
            for a in range(4): k(f'buffer_store_dwordx2 {v(224+2*a,2)}, v8, s[24:27], s34 offen offset:{16*a}')
    stat_gemm(k, 'b3', 64, 1280, 's[20:23]', ' sc1', 4, 'O', ep3, 5)
    k('s_branch L_end')
```

```python
import sys, math, struct
from dsl import Kern, v, s
from layout import *
from proj import proj_role
from attout import att_role, out_role
from brole import b_role

def f32bits(x): return struct.unpack('<I', struct.pack('<f', x))[0]

WS, DBG = 's[8:11]', 's[12:15]'
SX, SR, SW, SSLOW, SPAR, SLIM = 28, 29, 30, 31, 32, 33
SXCC, SRANK = 98, 99
SFL0, SFL1 = 100, 101
SSTEP = 40
POLL_LIMIT = 1 << 17

def srd(k, base, ptr, nbytes):
    k(f'''s_mov_b32 s{base}, s{ptr}
s_and_b32 s{base+1}, s{ptr+1}, 0xffff
s_mov_b32 s{base+2}, {nbytes:#x}
s_mov_b32 s{base+3}, 0x20000''')

def poll(k, name, loads, check, cnt=39, sleep=0):
    L, D = k.lab(name), k.lab(name + 'd')
    k(f's_mov_b32 s{cnt}, 0\n{L}:')
    loads()
    k('s_waitcnt vmcnt(0)')
    check()
    k(f's_cbranch_vccz {D}')
    if sleep: k(f's_sleep {sleep}')
    k(f'''s_add_u32 s{cnt}, s{cnt}, 1
s_cmp_lt_u32 s{cnt}, s{SLIM}
s_cbranch_scc1 {L}
s_mov_b32 s{SLIM}, 0
{D}:''')

def umax_check(k, regs, tmp):
    r = list(regs)
    if len(r) == 1:
        k(f'v_cmp_eq_u32 vcc, -1, v{r[0]}'); return
    if len(r) == 2:
        k(f'v_max_u32 v{tmp}, v{r[0]}, v{r[1]}'); r = []
    else:
        k(f'v_max3_u32 v{tmp}, v{r[0]}, v{r[1]}, v{r[2]}'); r = r[3:]
    while len(r) >= 2:
        k(f'v_max3_u32 v{tmp}, v{tmp}, v{r[0]}, v{r[1]}'); r = r[2:]
    if r: k(f'v_max_u32 v{tmp}, v{tmp}, v{r[0]}')
    k(f'v_cmp_eq_u32 vcc, -1, v{tmp}')

TL = False
DBGST = False
def dstamp(k, word, cond_x, cond_r, wave=0):
    if not DBGST: return
    L = k.lab('ds')
    k(f'''s_cmp_lg_u32 s{SX}, {cond_x}
s_cbranch_scc1 {L}
s_cmp_lg_u32 s{SR}, {cond_r}
s_cbranch_scc1 {L}
s_cmp_lg_u32 s{SW}, {wave}
s_cbranch_scc1 {L}
s_memrealtime s[82:83]
s_waitcnt lgkmcnt(0)
v_mov_b32 v252, s82
v_mov_b32 v253, {word*4}
s_mov_b64 exec, 1
buffer_store_dword v252, v253, {DBG}, 0 offen
s_mov_b64 exec, -1
{L}:''')

def mark(k, n):
    if TL: k(f's_memrealtime s[82:83]\ns_waitcnt lgkmcnt(0)\ns_mov_b32 s{85+n}, s82')

FAKE = '''; test only: workgroups 0..40 claim die 3, which makes the counts uneven and forces the placement-independent path
s_cmp_lt_u32 s2, 41
s_cselect_b32 s98, 3, s98'''
def start_phase(k, keepflags=False):
    k(f'''
s_cmp_ge_u32 s2, 256
s_cbranch_scc1 L_exit
{'s_memrealtime s[84:85]' if TL else ''}
s_load_dwordx4 s[4:7], s[0:1], 88
s_getreg_b32 s{SXCC}, hwreg(HW_REG_XCC_ID)
s_and_b32 s{SXCC}, s{SXCC}, 15
{FAKE if OPT['fakex'] else ''}
v_and_b32 v1, 63, v0
v_lshrrev_b32 v2, 6, v0
v_readfirstlane_b32 s{SW}, v2
s_waitcnt lgkmcnt(0)''')
    srd(k, 8, 6, WS_BYTES)
    srd(k, 12, 4, 256)
    k(f'''
s_mov_b32 s{SLIM}, {POLL_LIMIT}
s_mov_b32 s{SSLOW}, 0
v_mov_b32 v9, 0
s_cmp_lg_u32 s{SW}, 0
s_cbranch_scc1 L_st_clr
s_and_b32 s35, s{SXCC}, 3
s_lshl_b32 s35, s35, 4
s_bfe_u32 s36, s{SXCC}, 0x10002
s_lshl_b32 s36, s36, 7
s_add_u32 s35, s35, s36
s_lshr_b32 s36, s{SXCC}, 3
s_lshl_b32 s36, s36, 6
s_add_u32 s35, s35, s36
v_mov_b32 v8, s35
v_mov_b32 v9, 1
s_mov_b64 exec, 1
buffer_atomic_add v9, v8, {DBG}, 0 offen sc0
s_mov_b64 exec, -1
L_st_clr:
s_lshl_b32 s35, s2, 14
s_sub_u32 s36, s35, {FLG0}
s_cmp_lt_u32 s36, 0xc000
s_cselect_b32 s36, 0, -1
v_mov_b32 v4, s36
v_mov_b32 v5, s36
v_mov_b32 v6, s36
v_mov_b32 v7, s36
v_lshlrev_b32 v2, 4, v0
s_add_u32 s36, s35, 8192
{'s_cmp_lt_u32 s35, 0x10000' if keepflags else ''}
{'s_cbranch_scc1 L_st_noclr' if keepflags else ''}
buffer_store_dwordx4 v[4:7], v2, {WS}, s35 offen sc1
buffer_store_dwordx4 v[4:7], v2, {WS}, s36 offen sc1
L_st_noclr:
s_cmp_lg_u32 s{SW}, 0
s_cbranch_scc1 L_st_w1
s_waitcnt vmcnt(2)
v_readfirstlane_b32 s35, v9
v_mov_b32 v4, s35
v_mov_b32 v8, 0
ds_write_b32 v8, v4
s_waitcnt lgkmcnt(0)
L_st_w1:
s_barrier
v_mov_b32 v8, 0
ds_read_b32 v4, v8
s_waitcnt lgkmcnt(0)
v_readfirstlane_b32 s{SRANK}, v4
; speculative placement: id = 32 * die + rank (checked against the final counts before any hand-off)
s_min_u32 s{SR}, s{SRANK}, 31
s_and_b32 s{SX}, s{SXCC}, 7
s_waitcnt vmcnt(0)
s_barrier
s_cmp_lg_u32 s{SW}, 0
s_cbranch_scc1 L_dispatch
s_and_b32 s35, s{SXCC}, 3
s_lshl_b32 s35, s35, 4
s_bfe_u32 s36, s{SXCC}, 0x10002
s_lshl_b32 s36, s36, 7
s_add_u32 s35, s35, s36
s_lshr_b32 s36, s{SXCC}, 3
s_lshl_b32 s36, s36, 6
s_add_u32 s35, s35, s36
s_add_u32 s35, s35, 8
v_mov_b32 v8, s35
v_mov_b32 v9, 1
s_mov_b64 exec, 1
buffer_atomic_add v9, v8, {DBG}, 0 offen
s_mov_b64 exec, -1
L_dispatch:''')
    dstamp(k, 15, 0, 0)
    if TL: k('s_memrealtime s[82:83]\ns_mov_b32 s86, 0\ns_mov_b32 s87, 0\ns_waitcnt lgkmcnt(0)\ns_mov_b32 s85, s82')

def help_prefetch(k):
    H, D = k.lab('hp'), k.lab('hpd')
    k(f'''s_cmp_ge_u32 s{SX}, 4
s_cbranch_scc1 {H}
; chain die: wave wg = (R-24)*8 + w; tasks wg + 64 j < 480: unit = t / 20, block of 16 rows = t % 20
s_sub_u32 s34, s{SR}, 24
s_lshl_b32 s34, s34, 3
s_add_u32 s34, s34, s{SW}
v_lshrrev_b32 v10, 2, v1
v_and_b32 v11, 3, v1
v_lshlrev_b32 v10, 13, v10
v_lshl_add_u32 v10, v11, 6, v10''')
    for j in range(8):
        sk = k.lab('hs')
        k(f'''s_add_u32 s35, s34, {64*j}
s_cmp_ge_u32 s35, 480
s_cbranch_scc1 {sk}
s_mul_i32 s36, s35, 3277
s_lshr_b32 s36, s36, 16               ; unit (0..23)
s_mul_i32 s37, s36, 20
s_sub_u32 s37, s35, s37               ; block
s_cmp_ge_u32 s36, 12
s_cselect_b32 s38, 1, 0
s_mul_i32 s39, s38, 12
s_sub_u32 s39, s36, s39               ; i
s_mul_i32 s44, s39, 11
s_lshr_b32 s44, s44, 5
s_mul_i32 s45, s44, 3
s_sub_u32 s45, s39, s45               ; m
s_lshl_b32 s46, s{SX}, 1
s_add_u32 s46, s46, s38
s_lshl_b32 s46, s46, 2
s_add_u32 s46, s46, s44               ; head
s_lshl_b32 s46, s46, 8
s_lshl_b32 s37, s37, 4
s_sub_u32 s37, 624, s37
s_lshl_b32 s37, s37, 13
s_add_u32 s46, s46, s37
s_lshl_b32 s45, s45, 3
s_add_u32 s45, s45, 16
s_load_dwordx2 s[4:5], s[0:1], s45
s_waitcnt lgkmcnt(0)''')
        srd(k, 16, 4, 640*8192)
        k(f'buffer_load_dword v{230+j}, v10, s[16:19], s46 offen\n{sk}:')
    k(f'''s_branch {D}
{H}:
; PROJ die: wave wg = (R-12)*8 + w; tasks wg + 160 j < 480: unit = t / 40, block of 8 rows = t % 40
s_sub_u32 s34, s{SR}, 12
s_lshl_b32 s34, s34, 3
s_add_u32 s34, s34, s{SW}
v_lshrrev_b32 v10, 3, v1
v_and_b32 v11, 7, v1
v_lshlrev_b32 v10, 13, v10
v_lshl_add_u32 v10, v11, 6, v10''')
    for j in range(3):
        k(f'''s_add_u32 s35, s34, {160*j}
s_mul_i32 s36, s35, 1639
s_lshr_b32 s36, s36, 16               ; unit (0..11)
s_mul_i32 s37, s36, 40
s_sub_u32 s37, s35, s37               ; block
s_sub_u32 s38, s{SX}, 4
s_mul_i32 s38, s38, 12
s_add_u32 s38, s38, s36               ; p
s_lshr_b32 s45, s38, 4                ; m
s_and_b32 s46, s38, 15
s_lshl_b32 s46, s46, 9
s_lshl_b32 s37, s37, 3
s_sub_u32 s37, 632, s37
s_lshl_b32 s37, s37, 13
s_add_u32 s46, s46, s37
s_lshl_b32 s45, s45, 3
s_add_u32 s45, s45, 16
s_min_u32 s45, s45, 32
s_load_dwordx2 s[4:5], s[0:1], s45
s_waitcnt lgkmcnt(0)''')
        srd(k, 16, 4, 640*8192)
        k(f'buffer_load_dword v{230+j}, v10, s[16:19], s46 offen')
    k(f'{D}:')

def validate(k, need_par=False):
    L, G, OK = k.lab('val'), k.lab('valg'), k.lab('valok')
    k(f'''s_cmp_lg_u32 s{SSLOW}, 0
s_cbranch_scc1 {OK}
v_lshlrev_b32 v10, 2, v1
s_mov_b32 s39, 0
{L}:
buffer_load_dword v11, v10, {DBG}, 0 offen sc1
s_waitcnt vmcnt(0)
v_cmp_eq_u32 vcc, 32, v11
s_and_b32 s34, vcc_lo, vcc_hi
s_and_b32 s34, s34, 0x5555
s_cmp_eq_u32 s34, 0x5555
s_cbranch_scc0 {G}_s
v_readlane_b32 s{SPAR}, v11, 1
s_mov_b32 s34, 0
{'s_cmp_lg_u32 s' + str(SPAR) + ', 0' if need_par else 's_cmp_eq_u32 s34, 0'}
s_cbranch_scc1 {G}
{G}_s:
s_mov_b32 s36, 0
s_mov_b32 s37, 0
s_mov_b32 s38, 0
s_mov_b32 s34, 0''')
    for i in range(16):
        ln = 4*(i & 3) + 32*((i >> 2) & 1) + 16*(i >> 3)
        k(f'''v_readlane_b32 s35, v11, {ln+2}
s_add_u32 s38, s38, s35
v_readlane_b32 s35, v11, {ln}
s_add_u32 s36, s36, s35
s_cmp_eq_u32 s35, {32 if i < 8 else 0}
s_cselect_b32 s97, 0, 1
s_or_b32 s34, s34, s97
s_cmp_gt_u32 s{SXCC}, {i}
s_cselect_b32 s35, s35, 0
s_add_u32 s37, s37, s35''')
    k(f'''v_readlane_b32 s{SPAR}, v11, 1
s_cmp_eq_u32 s36, 256
s_cselect_b32 s35, s38, 0
s_cmp_eq_u32 s35, 256''')
    if need_par:
        k(f'''s_cselect_b32 s35, s{SPAR}, 0
s_or_b32 s97, s35, s34
s_cmp_eq_u32 s36, 256
s_cselect_b32 s97, s97, 0
s_cmp_eq_u32 s38, 256
s_cselect_b32 s97, s97, 0
s_cmp_lg_u32 s97, 0''')
    k(f'''s_cbranch_scc1 {G}
s_sleep 2
s_add_u32 s39, s39, 1
s_cmp_lt_u32 s39, s{SLIM}
s_cbranch_scc1 {L}
s_mov_b32 s{SLIM}, 0
{G}:
s_and_b32 s{SPAR}, s{SPAR}, 2
s_lshl_b32 s{SPAR}, s{SPAR}, 12
s_cmp_eq_u32 s34, 0
s_cbranch_scc1 {OK}
s_mov_b32 s{SSLOW}, 1
s_mov_b32 s{SPAR}, 0
s_add_u32 s37, s37, s{SRANK}
s_and_b32 s37, s37, 255
s_lshr_b32 s{SX}, s37, 5
s_and_b32 s{SR}, s37, 31
s_barrier
s_branch L_dispatch
{OK}:''')

def calibrate(k):
    NS = OPT['ncal']
    k(f'''s_mov_b64 exec, 1
s_mov_b32 s36, -1
s_mov_b32 s37, -1
v_mov_b32 v9, -1
s_mov_b32 s49, 0
L_cal:
s_and_b32 s48, s49, 3
s_lshl_b32 s38, s{SW}, 2
s_add_u32 s48, s48, s38''')
    for par in range(2):
        k(f'''s_lshl_b32 s38, s48, 8
s_add_u32 s38, s38, {PART + 0x190000 + par*8192:#x}
v_mov_b32 v8, s38
buffer_store_dword v9, v8, {WS}, 0 offen sc1
s_waitcnt vmcnt(0)
s_memtime s[44:45]
s_waitcnt lgkmcnt(0)
buffer_load_dword v9, v8, {WS}, 0 offen sc1
s_waitcnt vmcnt(0)
s_memtime s[46:47]
s_waitcnt lgkmcnt(0)
s_sub_u32 s38, s46, s44
s_min_u32 s{36+par}, s{36+par}, s38''')
    k(f'''s_add_u32 s49, s49, 1
s_cmp_lt_u32 s49, {NS}
s_cbranch_scc1 L_cal
s_sub_u32 s38, s36, s37
s_sub_u32 s39, s37, s36
s_max_i32 s38, s38, s39
s_cmp_ge_u32 s38, 128
s_cbranch_scc1 L_cal_e
s_cmp_lt_u32 s49, {2*NS}
s_cbranch_scc1 L_cal
L_cal_e:
v_mov_b32 v10, s36
v_mov_b32 v11, s37
s_lshl_b32 s38, s{SW}, 3
v_mov_b32 v8, s38
ds_write_b64 v8, v[10:11]
s_waitcnt lgkmcnt(0)
s_mov_b64 exec, -1
s_barrier
s_cmp_lg_u32 s{SW}, 0
s_cbranch_scc1 L_cal_d
v_lshlrev_b32 v8, 2, v1
ds_read_b32 v9, v8
s_waitcnt lgkmcnt(0)
s_mov_b32 s36, -1
s_mov_b32 s37, -1''')
    for w in range(8):
        k(f'v_readlane_b32 s38, v9, {2*w}\ns_min_u32 s36, s36, s38\nv_readlane_b32 s38, v9, {2*w+1}\ns_min_u32 s37, s37, s38')
    k(f'''s_cmp_lt_u32 s36, s37
s_cselect_b32 s38, 0, 1
s_cmp_ge_u32 s{SXCC}, 4
s_cselect_b32 s39, 1, 0
s_xor_b32 s38, s38, s39
s_add_u32 s38, s38, 1
{('s_mov_b32 s38, ' + str(OPT['forcepar'])) if OPT['forcepar'] else ''}
v_mov_b32 v9, s38
v_mov_b32 v8, 4
s_mov_b64 exec, 1
buffer_store_dword v9, v8, {DBG}, 0 offen sc1''')
    if OPT['caldbg'] == 1:
        k(f'''v_mov_b32 v9, s36
v_mov_b32 v8, 12
buffer_store_dword v9, v8, {DBG}, 0 offen
v_mov_b32 v9, s37
v_mov_b32 v8, 20
buffer_store_dword v9, v8, {DBG}, 0 offen''')
    k('s_waitcnt vmcnt(0)\ns_mov_b64 exec, -1\nL_cal_d:')

def par_wait(k):
    L, D = k.lab('pw'), k.lab('pwd')
    k(f'''s_cmp_lg_u32 s{SSLOW}, 0
s_cbranch_scc1 {D}
s_mov_b32 s39, 0
v_mov_b32 v13, 4
{L}:
buffer_load_dword v12, v13, {DBG}, 0 offen sc1
s_waitcnt vmcnt(0)
v_readfirstlane_b32 s{SPAR}, v12
s_cmp_lg_u32 s{SPAR}, 0
s_cbranch_scc1 {L}_g
s_sleep 2
s_add_u32 s39, s39, 1
s_cmp_lt_u32 s39, s{SLIM}
s_cbranch_scc1 {L}
s_mov_b32 s{SLIM}, 0
{L}_g:
s_and_b32 s{SPAR}, s{SPAR}, 2
s_lshl_b32 s{SPAR}, s{SPAR}, 12
{D}:
s_xor_b32 s{SFL0}, s{SPAR}, 8192
s_add_u32 s{SFL1}, s{SFL0}, {FLG1}
s_add_u32 s{SFL0}, s{SFL0}, {FLG0}''')

L_KV, L_MEMF, L_RED = 0, 65536, 65536 + 10240
V_MF = 10
V_MW = 11
VLANE16 = 2
V_A3 = 3
V_A4 = 4
V_A5 = 5
V_A6 = 6
V_A7 = 7
V_A9 = 9
V_IDX = 15
WO, KXR, VXR, QK, VM, S0, S1, SM = 16, 80, 112, 144, 160, 168, 172, 176
PX, PM, PM2, O, OB, OA, NEG = 180, 184, 186, 192, 224, 144, 240
W1, MF, DA, DB = 16, 176, 216, 220
S_HEAD, S_M, S_I, S_G, S_GI = 41, 42, 43, 44, 45
S_MEMN, S_MEMN4, S_MEMN8, S_MEMZ = 46, 47, 48, 49
S_QC, S_QC4, S_QZ = 50, 51, 52
S_PC, S_PZ = 53, 54
S_KP = 55
S_KXN, S_VXN = 56, 57
S_AVAIL = 58
S_KP4 = 59
M_LO8, M_EVEN, M_ODD = 72, 74, 76
S_C, S_NC = 78, 79

def chain_offsets(k, part):
    if 'q' in part:
        k(f"""s_and_b32 s34, s{SSTEP}, 3
s_mul_i32 s{S_QC}, s34, 196608
s_add_u32 s{S_QC}, s{S_QC}, {QKVR}""")
    if 'r' in part:
        k(f"""s_and_b32 s34, s{SSTEP}, 3
s_add_u32 s{S_QC4}, s{S_QC}, 4096
s_mul_i32 s{S_PC}, s34, {8*3*16384}
s_add_u32 s{S_PC}, s{S_PC}, {PART}
s_add_u32 s{S_PC}, s{S_PC}, s{SPAR}
s_add_u32 s35, s{SSTEP}, 2
s_and_b32 s35, s35, 3
s_mul_i32 s{S_QZ}, s35, 196608
s_add_u32 s{S_QZ}, s{S_QZ}, {QKVR}
{'s_add_u32 s35, s' + str(SSTEP) + ', 1' if OPT['pce'] else ''}
{'s_and_b32 s35, s35, 3' if OPT['pce'] else ''}
s_mul_i32 s{S_PZ}, s35, {8*3*16384}
s_add_u32 s{S_PZ}, s{S_PZ}, {PART}
s_add_u32 s{S_PZ}, s{S_PZ}, s{SPAR}
s_mul_i32 s36, s{SX}, 10240
s_add_u32 s36, s36, {MEMR}
s_add_u32 s35, s{SSTEP}, 1
s_and_b32 s35, s35, 3
s_mul_i32 s{S_MEMN}, s35, 40960
s_add_u32 s{S_MEMN}, s{S_MEMN}, s36
s_add_u32 s{S_MEMN4}, s{S_MEMN}, 4096
s_add_u32 s{S_MEMN8}, s{S_MEMN}, 8192
s_add_u32 s35, s{SSTEP}, 3
s_and_b32 s35, s35, 3
s_mul_i32 s{S_MEMZ}, s35, 40960
s_add_u32 s{S_MEMZ}, s{S_MEMZ}, s36
s_mul_i32 s{S_KP}, s{SSTEP}, 196608
s_add_u32 s{S_KP}, s{S_KP}, {KVMP}
s_add_u32 s{S_KP4}, s{S_KP}, 4096
s_add_u32 s35, s{SSTEP}, 1
s_lshl_b32 s35, s35, 18
s_add_u32 s{S_KXN}, s35, {KX}
s_add_u32 s{S_VXN}, s35, {VX}""")

def kv_wait(k, need_sreg):
    D = k.lab('kvok')
    k(f's_cmp_ge_u32 s{S_AVAIL}, s{need_sreg}\ns_cbranch_scc1 {D}')
    L = k.lab('kvp')
    k(f"""s_mov_b32 s39, 0
{L}:
buffer_load_dword v13, v{V_A9}, {WS}, 0 offen sc1
s_waitcnt vmcnt(0)
v_readlane_b32 s34, v13, 0
v_readlane_b32 s35, v13, 1
s_min_u32 s{S_AVAIL}, s34, s35
s_cmp_ge_u32 s{S_AVAIL}, s{need_sreg}
s_cbranch_scc1 {D}
s_sleep 2
s_add_u32 s39, s39, 1
s_cmp_lt_u32 s39, s{SLIM}
s_cbranch_scc1 {L}
s_mov_b32 s{SLIM}, 0
{D}:""")

KVSC = ' sc1'
NOKV = False
def kv_loads(k, skx, svx):
    k(f's_add_u32 s34, s{skx}, 4096\ns_add_u32 s35, s{svx}, 4096')
    for i in range(8):
        k(f'buffer_load_dwordx4 {v(KXR+4*i,4)}, v{V_A4}, {WS}, s{skx if i < 4 else 34} offen offset:{(i%4)*1024}{KVSC}')
    for i in range(8):
        k(f'buffer_load_dwordx4 {v(VXR+4*i,4)}, v{V_A4}, {WS}, s{svx if i < 4 else 35} offen offset:{(i%4)*1024}{KVSC}')

def kv_dma(k, skx, svx, second=False):
    for part, sb in ((0, skx), (1, svx)):
        for hlf in range(2):
            k(f's_add_u32 m0, s60, {part*8192 + hlf*4096 - (16384 if second else 0)}' if not second else f's_sub_u32 m0, s60, {16384 - part*8192 - hlf*4096}')
            if second: k(f's_sub_u32 s34, s{sb}, {8192 - hlf*4096}')
            else: k(f's_add_u32 s34, s{sb}, {hlf*4096}')
            for i in range(4):
                k(f'buffer_load_dwordx4 v8, {WS}, s34 offen offset:{i*1024}{KVSC} lds')

def kv_copies(k, skx, svx):
    A, D = k.lab('kc'), k.lab('kd')
    k(f's_cmp_eq_u32 s{SW}, 6\ns_cbranch_scc1 {D}')
    kv_dma(k, skx, svx)
    k(f's_cmp_eq_u32 s{SW}, 7\ns_cbranch_scc0 {D}')
    kv_dma(k, skx, svx, second=True)
    k(f'{D}:')

def chain_selfproj(k):
    D, A, V_, E = k.lab('sp'), k.lab('spa'), k.lab('spv'), k.lab('spe')
    AC, XF = 176, 192
    k(f"""s_cmp_eq_u32 s{S_M}, 0
s_cbranch_scc1 {D}
s_cmp_lt_u32 s{SW}, 4
s_cbranch_scc1 {A}
v_and_b32 v10, 15, v1
v_mul_u32_u24 v10, 1296, v10
v_lshrrev_b32 v11, 4, v1
v_lshl_add_u32 v10, v11, 4, v10
v_add_u32 v10, 98304, v10
v_lshlrev_b32 v11, 4, v1
s_lshl_b32 s34, s{S_HEAD}, 13
v_add_u32 v11, s34, v11
s_sub_u32 s38, s{SW}, 4
s_cmp_eq_u32 s{S_M}, 2
s_cbranch_scc1 {V_}""")
    for typ in ('K', 'V'):
        if typ == 'V': k(f'{V_}:')
        for ks in range(20):
            b = XF + 8*(ks % 2)
            if ks == 0:
                for tt in range(2): k(f'ds_read_b128 {v(b+4*tt,4)}, v10 offset:{tt*16*1296}')
            if ks + 1 < 20:
                nb = XF + 8*((ks+1) % 2)
                for tt in range(2): k(f'ds_read_b128 {v(nb+4*tt,4)}, v10 offset:{tt*16*1296 + (ks+1)*64}')
            k(f's_waitcnt lgkmcnt({2 if ks + 1 < 20 else 0})')
            for t in range(2):
                for tt in range(2):
                    a = v(AC + 8*t + 4*tt, 4); w = v(W1 + 80*t + 4*ks, 4); x = v(b+4*tt, 4)
                    k(f'v_mfma_f32_16x16x32_bf16 {a}, {w if typ == "K" else x}, {x if typ == "K" else w}, {"0" if ks == 0 else a}')
        P = 208
        if typ == 'K':
            k(f's_lshl_b32 s34, s38, 10\ns_add_u32 s34, s34, {KX}')
            for tt in range(2):
                for t in range(2):
                    a = AC + 8*t + 4*tt
                    k(f'v_cvt_pk_bf16_f32 v{P+4*tt+2*t}, v{a}, v{a+1}\nv_cvt_pk_bf16_f32 v{P+4*tt+2*t+1}, v{a+2}, v{a+3}')
                k(f'v_permlane32_swap_b32 v{P+4*tt}, v{P+4*tt+2}\nv_permlane32_swap_b32 v{P+4*tt+1}, v{P+4*tt+3}')
                k(f'buffer_store_dwordx4 {v(P+4*tt,4)}, v11, {WS}, s34 offen sc1')
                if tt == 0: k('s_add_u32 s34, s34, 4096')
            k(f's_branch {E}')
        else:
            k(f's_lshl_b32 s34, s38, 11\ns_add_u32 s34, s34, {VX}')
            for t in range(2):
                for tt in range(2):
                    a = AC + 8*t + 4*tt
                    k(f'v_cvt_pk_bf16_f32 v{P+4*t+2*tt}, v{a}, v{a+1}\nv_cvt_pk_bf16_f32 v{P+4*t+2*tt+1}, v{a+2}, v{a+3}')
                k(f'buffer_store_dwordx4 {v(P+4*t,4)}, v11, {WS}, s34 offen offset:{t*1024} sc1')
    k(f"""{E}:
s_waitcnt vmcnt(0)
v_mov_b32 v10, 90112
v_mov_b32 v11, 1
s_mov_b64 exec, 1
ds_add_rtn_u32 v11, v10, v11
s_waitcnt lgkmcnt(0)
v_readfirstlane_b32 s35, v11
s_mov_b64 exec, -1
s_cmp_lg_u32 s35, 3
s_cbranch_scc1 {D}
s_lshl_b32 s34, s{S_HEAD}, 1
s_add_u32 s34, s34, s{S_M}
s_sub_u32 s34, s34, 1
s_lshl_b32 s34, s34, 2
s_add_u32 s34, s34, {F_KV0}
s_add_u32 s34, s34, s{SFL0}
v_mov_b32 v10, s34
v_mov_b32 v11, 1
s_mov_b64 exec, 1
buffer_store_dword v11, v10, {WS}, 0 offen sc1
s_mov_b64 exec, -1
s_branch {D}
{A}:
s_waitcnt vmcnt(0)
v_mov_b32 v10, 90112
{A}_w:
ds_read_b32 v11, v10
s_waitcnt lgkmcnt(0)
v_readfirstlane_b32 s35, v11
s_cmp_ge_u32 s35, 4
s_cbranch_scc1 {D}
s_sleep 1
s_branch {A}_w
{D}:""")

TLBW = f'''; first touch of the pages used by the first steps (lines that are written much later, so nothing stale can be read)
s_mov_b32 s34, {KX + 7*262144}
buffer_load_dword v224, v8, {WS}, s34 offen sc1
s_mov_b32 s34, {VX + 7*262144}
buffer_load_dword v225, v8, {WS}, s34 offen sc1
s_mov_b32 s34, {PART + 0x18C000}
buffer_load_dword v226, v2, {WS}, s34 offen sc1
s_mov_b32 s34, {KVMP + 9*196608}
buffer_load_dword v227, v2, {WS}, s34 offen sc1'''
def chain_prologue(k):
    k(f"""
L_chain:
; i = R % 12, gi = R / 12, hl = i / 3, m = i % 3
s_cmp_ge_u32 s{SR}, 12
s_cselect_b32 s{S_GI}, 1, 0
s_mul_i32 s34, s{S_GI}, 12
s_sub_u32 s{S_I}, s{SR}, s34
s_mul_i32 s34, s{S_I}, 11
s_lshr_b32 s34, s34, 5
s_mul_i32 s35, s34, 3
s_sub_u32 s{S_M}, s{S_I}, s35
s_lshl_b32 s{S_G}, s{SX}, 1
s_add_u32 s{S_G}, s{S_G}, s{S_GI}
s_lshl_b32 s35, s{S_G}, 2
s_add_u32 s{S_HEAD}, s35, s34
s_lshl_b32 s34, s{S_M}, 3
s_add_u32 s34, s34, 16
s_load_dwordx2 s[4:5], s[0:1], s34
s_load_dwordx2 s[6:7], s[0:1], 40
s_load_dwordx2 s[36:37], s[0:1], 8
s_waitcnt lgkmcnt(0)""")
    srd(k, 16, 4, 640*8192)
    srd(k, 20, 6, 4096*1280)
    srd(k, 24, 36, 8*1280)
    STG = 176
    k(f"""
v_lshlrev_b32 v{VLANE16}, 4, v1
s_mov_b32 s{M_LO8}, 0x00ff00ff
s_mov_b32 s{M_LO8+1}, 0x00ff00ff
s_mov_b32 s{M_EVEN}, 0x55555555
s_mov_b32 s{M_EVEN+1}, 0x55555555
s_mov_b32 s{M_ODD}, 0xaaaaaaaa
s_mov_b32 s{M_ODD+1}, 0xaaaaaaaa
s_mov_b32 s{S_C}, {f32bits(128**-0.5 * math.log2(math.e)):#x}
s_mov_b32 s{S_NC}, {f32bits(-(128**-0.5) * math.log2(math.e)):#x}
s_mov_b32 s66, s{S_C}
s_mov_b32 s67, s{S_C}
v_and_b32 v10, 8, v1
v_cmp_eq_u32 vcc, 0, v10
v_mov_b32 v10, 0xeeee
v_mov_b32 v11, 0x4444
v_cndmask_b32 v{V_IDX}, v10, v11, vcc
v_mov_b32 v10, 90112
v_mov_b32 v11, 0
ds_write_b32 v10, v11
s_cmp_ge_u32 s{SW}, 4
s_cbranch_scc1 L_ch_ldw""")
    for rnd in range(3):
        k(f"""v_add_u32 v10, {256*rnd}, v0
v_lshrrev_b32 v11, 6, v10
v_bfe_u32 v12, v10, 4, 2
v_and_b32 v13, 7, v10
v_bfe_u32 v14, v10, 3, 1
v_mul_u32_u24 v13, 1280, v13
v_lshl_add_u32 v13, v11, 7, v13
v_lshl_add_u32 v13, v12, 5, v13
v_lshl_add_u32 v13, v14, 2, v13
buffer_load_dword v{144+4*rnd}, v13, s[24:27], 0 offen
buffer_load_dword v{145+4*rnd}, v13, s[24:27], 0 offen offset:8
buffer_load_dword v{146+4*rnd}, v13, s[24:27], 0 offen offset:16
buffer_load_dword v{147+4*rnd}, v13, s[24:27], 0 offen offset:24""")
    if OPT['selfp']:
        k(f"""s_cmp_eq_u32 s{S_M}, 0
s_cbranch_scc1 L_ch_nox
s_load_dwordx2 s[4:5], s[0:1], 0
s_waitcnt lgkmcnt(0)""")
        srd(k, 24, 4, 2048*1280)
        k('v_lshlrev_b32 v10, 4, v0')
        for i in range(10): k(f's_mov_b32 s34, {i*4096}\nbuffer_load_dwordx4 {v(16+4*i,4)}, v10, s[24:27], s34 offen')
        k('L_ch_nox:')
    k(f"""L_ch_ldw:
v_lshrrev_b32 v10, 4, v0
v_and_b32 v11, 15, v0
v_lshlrev_b32 v12, 13, v10
v_lshl_add_u32 v12, v11, 4, v12
s_lshl_b32 s34, s{S_HEAD}, 8
v_add_u32 v12, s34, v12""")
    for c in range(5):
        for kk in range(4):
            k(f's_mov_b32 s34, {(128*c + 32*kk)*8192}\nbuffer_load_dwordx4 {v(STG+16*c+4*kk,4)}, v12, s[16:19], s34 offen')
    k(f's_mov_b32 s63, 0\ns_cmp_ge_u32 s{SW}, 4\ns_cbranch_scc1 L_ch_nowo_ld')
    k(f"""s_cmp_ge_u32 s{S_I}, 10
s_cbranch_scc1 L_ch_nowo_ld
v_lshrrev_b32 v4, 3, v1
v_and_b32 v5, 7, v1
v_mul_u32_u24 v6, 1280, v4
v_lshl_add_u32 v6, v5, 4, v6
s_lshl_b32 s34, s{S_G}, 2
s_add_u32 s34, s34, s{SW}
s_mul_i32 s34, s34, {128*1280}
s_lshl_b32 s35, s{S_I}, 7
s_add_u32 s34, s34, s35
v_add_u32 v6, s34, v6
s_mov_b32 s63, 1""")
    for i in range(16):
        k(f's_mov_b32 s34, {8*i*1280}\nbuffer_load_dwordx4 {v(80+4*i,4)}, v6, s[20:23], s34 offen')
    k('L_ch_nowo_ld:')
    k(f"""
; LDS write address: r*256 + ((c16/2 + f) % 8)*32 + (c16%2)*16, f = 2*(r%4) + ((r>>3)&1)
v_and_b32 v13, 3, v10
v_lshlrev_b32 v13, 1, v13
v_bfe_u32 v14, v10, 3, 1
v_add_u32 v13, v13, v14
v_lshrrev_b32 v14, 1, v11
v_add_u32 v13, v13, v14
v_and_b32 v13, 7, v13
v_lshlrev_b32 v13, 5, v13
v_and_b32 v14, 1, v11
v_lshl_add_u32 v13, v14, 4, v13
v_lshl_add_u32 v13, v10, 8, v13
; transposing read addresses (tiles 2sw, 2sw+1): (8g+rr)*256 + ((te + 2rr + (g&1)) % 8)*32 + 8*(i%4)
v_lshrrev_b32 v10, 4, v1
v_bfe_u32 v11, v1, 2, 2
v_lshl_add_u32 v14, v10, 3, v11
v_lshlrev_b32 v14, 8, v14
v_and_b32 v8, 3, v1
v_lshl_add_u32 v14, v8, 3, v14
v_and_b32 v10, 1, v10
v_lshl_add_u32 v10, v11, 1, v10
s_and_b32 s34, s{SW}, 3
s_lshl_b32 s34, s34, 1
v_add_u32 v10, s34, v10
v_add_u32 v11, 1, v10
v_and_b32 v10, 7, v10
v_and_b32 v11, 7, v11
v_lshl_add_u32 v8, v11, 5, v14
v_lshl_add_u32 v14, v10, 5, v14
v_lshrrev_b32 v10, 3, v1
v_and_b32 v11, 7, v1
v_lshrrev_b32 v4, 1, v11
v_lshrrev_b32 v5, 1, v10
v_add_u32 v4, v4, v5
v_and_b32 v4, 3, v4
v_lshlrev_b32 v4, 5, v4
v_and_b32 v5, 1, v11
v_lshl_add_u32 v4, v5, 4, v4
v_lshl_add_u32 v4, v10, 7, v4
s_lshl_b32 s34, s{SW}, 14
s_add_u32 s34, s34, 98304
v_add_u32 v4, s34, v4
v_lshrrev_b32 v10, 4, v1
v_bfe_u32 v11, v1, 2, 2
v_lshl_add_u32 v6, v10, 2, v11
v_lshlrev_b32 v5, 7, v6
v_add_u32 v5, s34, v5
v_and_b32 v10, 3, v1
v_lshl_add_u32 v5, v10, 3, v5
v_lshrrev_b32 v6, 1, v6""")
    for c in range(5):
        buf = (c % 2)*32768
        wa, wb_ = k.lab('wv'), k.lab('wv')
        k(f's_cmp_eq_u32 s63, 0\ns_cbranch_scc1 {wa}\ns_waitcnt vmcnt({32 - 4*c})\ns_branch {wb_}\n{wa}:\ns_waitcnt vmcnt({16 - 4*c})\n{wb_}:')
        for kk in range(4):
            k(f'ds_write_b128 v13, {v(STG+16*c+4*kk,4)} offset:{buf + kk*8192}')
        k('s_waitcnt lgkmcnt(0)\ns_barrier')
        sa, sk = k.lab('w1a'), k.lab('w1s')
        k(f's_cmp_lt_u32 s{SW}, 4\ns_cbranch_scc1 {sa}')
        for t, ad in ((0, 14), (1, 8)):
            for ksl in range(4):
                for hh in range(2):
                    k(f'ds_read_b64_tr_b16 {v(W1 + 80*t + 4*(4*c+ksl) + 2*hh, 2)}, v{ad} offset:{buf + ksl*8192 + hh*1024}')
            k('s_waitcnt lgkmcnt(0)')
        k(f's_branch {sk}\n{sa}:')
        if c == 0:
            for rnd in range(3):
                k(f'v_add_u32 v10, {256*rnd}, v0\nv_lshlrev_b32 v10, 4, v10\nv_add_u32 v10, {L_MEMF}, v10\nds_write_b128 v10, {v(144+4*rnd,4)}')
            k('s_waitcnt lgkmcnt(0)')
        if c == 0 and OPT['selfp']:
            k(f's_cmp_eq_u32 s{S_M}, 0\ns_cbranch_scc1 {sk}')
            for i in range(10):
                k(f"""v_add_u32 v10, {256*i}, v0
v_mul_u32_u24 v11, 52429, v10
v_lshrrev_b32 v11, 22, v11
v_add_u32 v11, v11, v10
v_lshlrev_b32 v11, 4, v11
v_add_u32 v11, 98304, v11
ds_write_b128 v11, {v(16+4*i,4)}""")
            k('s_waitcnt lgkmcnt(0)')
        k(f'{sk}:')
    k('s_barrier')
    validate(k)
    par_wait(k)
    if OPT['selfp']: chain_selfproj(k)
    if True:
        sk = k.lab('wo')
        k(f's_cmp_ge_u32 s{SW}, 4\ns_cbranch_scc1 {sk}\ns_cmp_ge_u32 s{S_I}, 10\ns_cbranch_scc1 {sk}\ns_waitcnt vmcnt(0)')
        for i in range(16): k(f'ds_write_b128 v4, {v(80+4*i,4)} offset:{i*1024}')
        k('s_waitcnt lgkmcnt(0)')
        for ct in range(4):
            k(f'v_add_u32 v10, {ct}, v6\nv_and_b32 v10, 3, v10\nv_lshl_add_u32 v10, v10, 5, v5')
            for ks in range(4):
                for hh in range(2):
                    k(f'ds_read_b64_tr_b16 {v(WO + 16*ct + 4*ks + 2*hh, 2)}, v10 offset:{(32*ks + 16*hh)*128}')
            k('s_waitcnt lgkmcnt(0)')
        k(f'{sk}:')
    k(f"""s_mov_b32 s68, {OPT['adp']}
s_mov_b32 s69, 0
s_mov_b32 s65, 0
s_mov_b32 s63, 0
s_mov_b32 s{SSTEP}, 0
s_mov_b32 s{S_AVAIL}, 0
s_cmp_ge_u32 s{SW}, 4
s_cbranch_scc1 L_ch_pS
s_lshl_b32 s34, s{S_G}, 2
s_add_u32 s34, s34, s{SW}
s_mul_i32 s35, s34, 6144
v_add_u32 v{V_A3}, s35, v{VLANE16}
s_lshl_b32 s35, s34, 13
v_add_u32 v{V_A4}, s35, v{VLANE16}
s_lshl_b32 s35, s{SW}, 11
s_add_u32 s35, s35, {L_RED}
v_add_u32 v{V_A5}, s35, v{VLANE16}
s_lshl_b32 s35, s{SW}, 14
s_add_u32 s35, s35, {L_KV}
s_lshr_b32 s34, s34, 1
v_and_b32 v10, 1, v1
v_lshlrev_b32 v10, 4, v10
v_add_u32 v10, s34, v10
v_add_u32 v10, 16, v10
v_lshlrev_b32 v{V_A9}, 7, v10
v_add_u32 v{V_A9}, {F_PROJ}, v{V_A9}
v_add_u32 v{V_A9}, s{SFL0}, v{V_A9}
v_cmp_gt_u32 vcc, 32, v1
v_mov_b32 v10, 0
v_mov_b32 v11, 0xf149f2ca
v_cndmask_b32 v{NEG}, v10, v11, vcc
v_mov_b32 v{NEG+1}, v{NEG}
v_mov_b32 v{NEG+2}, v{NEG}
v_mov_b32 v{NEG+3}, v{NEG}
v_add_u32 v14, s35, v{VLANE16}
s_branch L_ch_pD
L_ch_pS:
s_sub_u32 s38, s{SW}, 4               ; sw
s_lshl_b32 s34, s38, 10
v_add_u32 v{V_A3}, s34, v{VLANE16}
v_and_b32 v10, 15, v1                 ; e16
v_bfe_u32 v11, v1, 4, 1               ; gg
v_lshrrev_b32 v12, 5, v1              ; hi
s_mul_i32 s36, s{S_HEAD}, 6144
s_cmp_eq_u32 s{S_M}, 2
s_cbranch_scc1 L_ch_qst_v
; q/k unit: row = 4gg + hi + 2*(e16&1) (+8 for k); g = 2*(te%2) + (e16/4)%2; j0 = 4*(e16/8) + (e16 & 2)
v_lshl_add_u32 v13, v11, 2, v12
v_and_b32 v14, 1, v10
v_lshl_add_u32 v13, v14, 1, v13
s_lshl_b32 s34, s{S_M}, 3
v_add_u32 v13, s34, v13
v_bfe_u32 v14, v10, 2, 1
v_lshl_add_u32 v13, v14, 4, v13
v_lshlrev_b32 v13, 4, v13
v_lshrrev_b32 v14, 3, v10
v_lshl_add_u32 v13, v14, 3, v13
v_and_b32 v14, 2, v10
v_lshl_add_u32 v13, v14, 1, v13
s_lshl_b32 s34, s38, 10
s_add_u32 s34, s34, s36
v_add_u32 v{V_A4}, s34, v13
v_add_u32 v{V_A5}, 512, v{V_A4}
s_branch L_ch_qst_done
L_ch_qst_v:
; v unit: 4096 + u*1024 + clane*16 + (sw%2)*8 + hi*4; clane = 32 + gg*16 + e16 (even tile), gg*16 + e16 (odd tile)
v_lshl_add_u32 v13, v11, 4, v10
v_lshlrev_b32 v13, 4, v13
v_lshl_add_u32 v13, v12, 2, v13
s_and_b32 s34, s38, 1
s_lshl_b32 s34, s34, 3
s_lshr_b32 s35, s38, 1
s_lshl_b32 s35, s35, 10
s_add_u32 s34, s34, s35
s_add_u32 s34, s34, 4096
s_add_u32 s34, s34, s36
v_add_u32 v{V_A5}, s34, v13
v_add_u32 v{V_A4}, 512, v{V_A5}
L_ch_qst_done:
s_mov_b32 s34, 524288
buffer_load_dword v224, v{V_A4}, {WS}, s34 offen sc1
buffer_load_dword v225, v{V_A5}, {WS}, s34 offen sc1
s_mov_b32 s34, 720896
buffer_load_dword v224, v{V_A4}, {WS}, s34 offen sc1
buffer_load_dword v225, v{V_A5}, {WS}, s34 offen sc1
s_mov_b32 s34, 917504
buffer_load_dword v224, v{V_A4}, {WS}, s34 offen sc1
buffer_load_dword v225, v{V_A5}, {WS}, s34 offen sc1
s_mov_b32 s34, 1114112
buffer_load_dword v224, v{V_A4}, {WS}, s34 offen sc1
buffer_load_dword v225, v{V_A5}, {WS}, s34 offen sc1
v_mov_b32 v216, 0
v_mov_b32 v217, 0
v_mov_b32 v218, 0
v_mov_b32 v219, 0
v_mov_b32 v220, 0
v_mov_b32 v221, 0
v_mov_b32 v222, 0
v_mov_b32 v223, 0
v_bfe_u32 v10, v1, 2, 3               ; r
v_lshrrev_b32 v13, 5, v1              ; c / 4
v_and_b32 v12, 3, v1                  ; c % 4
v_lshl_add_u32 v11, v13, 2, v12       ; c
v_lshlrev_b32 v12, 4, v12
v_lshl_add_u32 v12, v13, 3, v12
v_add_u32 v12, v12, v10
v_lshlrev_b32 v12, 4, v12
s_and_b32 s35, s38, 1
s_lshl_b32 s36, s35, 10
s_add_u32 s36, s36, {L_RED}
v_add_u32 v{V_A6}, s36, v12
s_lshl_b32 s36, s{S_I}, 1
s_add_u32 s36, s36, s35               ; j = 2i + (wave&1)
s_lshr_b32 s37, s36, 3
s_lshl_b32 s37, s37, 14
s_add_u32 s36, s36, s{S_G}
s_and_b32 s36, s36, 7
s_lshl_b32 s36, s36, 10
s_add_u32 s36, s36, s37
s_mul_i32 s37, s{S_G}, 49152
s_add_u32 s36, s36, s37
v_add_u32 v{V_A7}, s36, v{VLANE16}
s_lshl_b32 s34, s{S_G}, 2
s_add_u32 s34, s34, s38
s_lshl_b32 s35, s34, 13
v_add_u32 v8, s35, v{VLANE16}
s_lshl_b32 s60, s38, 14
s_add_u32 s60, s60, {L_KV}
s_lshr_b32 s34, s34, 1
v_and_b32 v9, 1, v1
v_lshlrev_b32 v9, 4, v9
v_add_u32 v9, s34, v9
v_add_u32 v9, 16, v9
v_lshlrev_b32 v{V_A9}, 7, v9
v_add_u32 v{V_A9}, {F_PROJ}, v{V_A9}
v_add_u32 v{V_A9}, s{SFL0}, v{V_A9}
s_cmp_ge_u32 s{S_I}, 10
s_cbranch_scc1 L_ch_nok0
{TLBW if OPT['tlbw'] else ''}
s_mov_b32 s36, 1""")
    if OPT['selfp'] or OPT['mini']:
        from attout import flag_wait
        from layout import F_KV12
        k(f"""s_lshl_b32 s34, s{S_G}, 2
s_add_u32 s34, s34, s38
{'s_cmp_eq_u32 s' + str(SW) + ', 7'}
s_cselect_b32 s35, 1, 0
s_sub_u32 s34, s34, s35
s_lshl_b32 s34, s34, 3
s_add_u32 s34, s34, {F_KV12 if OPT['mini'] else F_KV0}
s_add_u32 s34, s34, s{SFL0}
v_lshlrev_b32 v12, 2, v1
v_add_u32 v12, s34, v12""")
        flag_wait(k, 'kv0', 12, 4, 36, tmp=13, sleep=1)
    else: kv_wait(k, 36)
    k(f's_mov_b32 s36, {KX}\ns_mov_b32 s37, {VX}')
    kv_copies(k, 36, 37)
    if OPT['mini']:
        from layout import F_KV12
        k('v_mov_b32 v238, v12')
    k(f"""s_waitcnt vmcnt(0)
L_ch_nok0:
s_cmp_lg_u32 s{SW}, 6
s_cbranch_scc1 L_ch_pD
s_mul_i32 s36, s{S_GI}, 10
s_add_u32 s36, s36, s{S_I}            ; j
s_lshr_b32 s37, s36, 3
s_lshl_b32 s37, s37, 14""")
    for g in range(8):
        k(f"""s_add_u32 s35, s36, {g}
s_and_b32 s35, s35, 7
s_lshl_b32 s35, s35, 10
s_add_u32 s35, s35, s37
s_add_u32 s35, s35, {g*49152}
v_add_u32 v{240+g}, s35, v{VLANE16}""")
    k(f"""
s_lshl_b32 s36, s36, 5                ; 32j
v_lshl_add_u32 v12, v11, 2, s36       ; d0
v_lshrrev_b32 v13, 6, v12
v_lshlrev_b32 v13, 10, v13
v_bfe_u32 v14, v12, 4, 2
v_lshl_add_u32 v14, v14, 4, v10
v_lshl_add_u32 v13, v14, 4, v13
v_bfe_u32 v14, v12, 2, 2
v_lshl_add_u32 v{V_A6}, v14, 2, v13
L_ch_pD:
v_add_u32 v{V_MF}, {L_MEMF}, v{VLANE16}
v_add_u32 v{V_MW}, {L_MEMF}, v{V_A3}""")
    k('s_waitcnt vmcnt(0) lgkmcnt(0)')

def delay(k, clks):
    if OPT['slp']:
        n = clks // 64
        while n > 0:
            m_ = min(n, 127); k(f's_sleep {m_}'); n -= m_
        clks = clks % 64
    n = clks // 4
    while n > 0:
        m_ = min(n, 16); k(f's_nop {m_-1}'); n -= m_

def vdelay(k, sreg):
    L = k.lab('vd')
    k(f's_mov_b32 s34, s{sreg}\n{L}:\ns_sleep 1\ns_sub_u32 s34, s34, 1\ns_cmp_lg_u32 s34, 0\ns_cbranch_scc1 {L}')

def adapt(k, sreg, scnt, sretry, lo, hi, up, every):
    A, D = k.lab('ad'), k.lab('add')
    k(f"""s_cmp_eq_u32 s{sretry}, 0
s_cbranch_scc1 {A}
s_add_u32 s{sreg}, s{sreg}, {up}
s_min_u32 s{sreg}, s{sreg}, {hi}
s_mov_b32 s{scnt}, 0
s_branch {D}
{A}:
s_add_u32 s{scnt}, s{scnt}, 1
s_cmp_lt_u32 s{scnt}, {every}
s_cbranch_scc1 {D}
s_mov_b32 s{scnt}, 0
s_sub_u32 s{sreg}, s{sreg}, 1
s_max_u32 s{sreg}, s{sreg}, {lo}
{D}:""")

OPT = dict(dq=256, dp=512, dm=128, warm=1, dd=320, dw=1024, da=192, clrlate=0, lite=0, bsleep=0, osleep=0, xwarm=0, ds1=2048, place=0, sx=0, sm=0, sq=0, so=64, la=8, lb=56, help=0, dk=1024, outsc=0, ncal=4, caldbg=0, calsleep=0, forcepar=0, dv=64, slp=0, p2=0, selfp=1, fakex=0, prio=1, p3=0, wnt=0, psleep=0, mini=1, two=0, ack=0, tlbw=0, adp=0, adlo=8, adhi=18, adup=2, adev=6, dpe=0, dpn=20, dqe=0, asy=0, osl=3, obsc=1, pce=0)
def interleave(k, mf, va, per=2):
    va = list(va)
    for m in mf:
        k(m)
        for _ in range(per):
            if va: k(va.pop(0))
    for x in va: k(x)

def chain_loop(k, sc, prof, tag, qdelay=0):
    T = tag
    late = []
    k(f'L_entry{T}:')
    NA = 4 if OPT['two'] else 0
    def s1_mfma(i):
        k(f'v_smfmac_f32_16x16x64_bf16 {v(DA,4)}, {v(MF+4*i,4)}, {v(W1+8*i,8)}, v{V_IDX}')
        k(f'v_smfmac_f32_16x16x64_bf16 {v(DB,4)}, {v(MF+4*i,4)}, {v(W1+80+8*i,8)}, v{V_IDX}')
    if OPT['two']:
        k(f's_barrier\ns_cmp_lt_u32 s{SW}, 4\ns_cbranch_scc1 L_step{T}')
        for i in range(NA): k(f'ds_read_b128 {v(MF+4*i,4)}, v{V_MF} offset:{i*1024}')
        k('s_waitcnt lgkmcnt(0)')
    k(f'L_step{T}:')
    k('s_barrier')
    k(f's_cmp_lt_u32 s{SW}, 4\ns_cbranch_scc1 L_aw{T}')
    if OPT['prio']: k('s_setprio 3')
    if OPT['p3']: k('s_memtime s[80:81]')
    for i in range(NA, 10): k(f'ds_read_b128 {v(MF+4*i,4)}, v{V_MF} offset:{i*1024}')
    for i in range(NA): s1_mfma(i)
    chain_offsets(k, 'q')
    for i in range(NA, 10):
        k(f's_waitcnt lgkmcnt({9-i})'); s1_mfma(i)
    if OPT['p3']: k('s_memtime s[82:83]')
    k(f"""s_cmp_eq_u32 s{S_M}, 2
s_mov_b64 vcc, s[{M_EVEN}:{M_EVEN+1}]
v_permlane32_swap_b32 v{DA}, v{DA+1}
v_permlane32_swap_b32 v{DA+2}, v{DA+3}
v_add_f32 v{DA}, v{DA}, v{DA+1}
v_add_f32 v{DA+2}, v{DA+2}, v{DA+3}
v_permlane32_swap_b32 v{DB}, v{DB+1}
v_permlane32_swap_b32 v{DB+2}, v{DB+3}
v_add_f32 v{DB}, v{DB}, v{DB+1}
v_add_f32 v{DB+2}, v{DB+2}, v{DB+3}
s_cbranch_scc1 L_s1v{T}
v_cndmask_b32_dpp v224, v{DA+2}, v{DA}, vcc quad_perm:[1,0,3,2] row_mask:0xf bank_mask:0xf
v_cndmask_b32_dpp v226, v{DB+2}, v{DB}, vcc quad_perm:[1,0,3,2] row_mask:0xf bank_mask:0xf
s_mov_b64 vcc, s[{M_ODD}:{M_ODD+1}]
v_cndmask_b32_dpp v225, v{DA}, v{DA+2}, vcc quad_perm:[1,0,3,2] row_mask:0xf bank_mask:0xf
v_cndmask_b32_dpp v227, v{DB}, v{DB+2}, vcc quad_perm:[1,0,3,2] row_mask:0xf bank_mask:0xf
v_cvt_pk_bf16_f32 v12, v224, v225
v_cvt_pk_bf16_f32 v13, v226, v227
s_branch L_s1s{T}
L_s1v{T}:
v_cvt_pk_bf16_f32 v12, v{DA}, v{DA+2}
v_cvt_pk_bf16_f32 v13, v{DB}, v{DB+2}
L_s1s{T}:
buffer_store_dword v12, v{V_A4}, {WS}, s{S_QC} offen{sc}
buffer_store_dword v13, v{V_A5}, {WS}, s{S_QC} offen{sc}""")
    if OPT['p3']: k('s_memtime s[84:85]')
    k(f"""s_cmp_eq_u32 s{SSTEP}, 63
s_cbranch_scc1 L_fin
s_cmp_ge_u32 s{S_I}, 10
s_cbranch_scc1 L_s1only{T}
{'s_waitcnt vmcnt(0)' if OPT['ack'] & 1 else ''}
s_barrier""")
    if OPT['prio']: k('s_setprio 0')
    chain_offsets(k, 'r')
    clr = f"""v_mov_b32 v14, -1
buffer_store_dword v14, v{V_A4}, {WS}, s{S_QZ} offen{sc}
buffer_store_dword v14, v{V_A5}, {WS}, s{S_QZ} offen{sc}"""
    k(clr)
    if OPT['pce']:
        pc = k.lab('pce')
        k(f"""s_cmp_ge_u32 s{SW}, 6
s_cbranch_scc1 {pc}
v_mov_b32 v180, -1
v_mov_b32 v181, -1
v_mov_b32 v182, -1
v_mov_b32 v183, -1
buffer_store_dwordx4 v[180:183], v{V_A7}, {WS}, s{S_PZ} offen sc1
{pc}:""")
    for i in range(8): k(f'v_mov_b32 v{DA+i}, 0')
    KL, KP = k.lab('kvl'), k.lab('kvq')
    if OPT['asy']:
        n1, n2 = k.lab('as'), k.lab('as')
        k(f"""s_cmp_eq_u32 s63, 0
s_cbranch_scc1 {n1}
v_readlane_b32 s34, v237, 0
v_readlane_b32 s35, v237, 1
s_min_u32 s34, s34, s35
s_max_u32 s{S_AVAIL}, s{S_AVAIL}, s34
s_mov_b32 s63, 0
{n1}:
s_add_u32 s34, s{SSTEP}, {OPT['asy']}
s_cmp_ge_u32 s{S_AVAIL}, s34
s_cbranch_scc1 {n2}
s_cmp_eq_u32 s{SW}, 6
s_cbranch_scc1 {n2}
buffer_load_dword v237, v{V_A9}, {WS}, 0 offen sc1
s_mov_b32 s63, 1
{n2}:""")
    k(f's_add_u32 s61, s{SSTEP}, 2\ns_mov_b32 s62, 1\ns_cmp_ge_u32 s{S_AVAIL}, s61\ns_cbranch_scc1 {KL}')
    if OPT['mini']:
        K12 = k.lab('k12')
        k(f"""s_cmp_gt_u32 s61, 3
s_cbranch_scc1 {K12}
buffer_load_dword v13, v238, {WS}, 0 offen sc1
s_waitcnt vmcnt(0)
v_readlane_b32 s34, v13, 0
v_readlane_b32 s35, v13, 1
s_min_u32 s34, s34, s35
v_readlane_b32 s35, v13, 2
s_min_u32 s34, s34, s35
v_readlane_b32 s35, v13, 3
s_min_u32 s34, s34, s35
s_mov_b32 s{S_AVAIL}, s34
s_cmp_ge_u32 s{S_AVAIL}, s61
s_cselect_b32 s62, 1, 0
s_branch {KP}
{K12}:""")
    k(f"""buffer_load_dword v13, v{V_A9}, {WS}, 0 offen sc1
s_waitcnt vmcnt(0)
v_readlane_b32 s34, v13, 0
v_readlane_b32 s35, v13, 1
s_min_u32 s{S_AVAIL}, s34, s35
s_cmp_ge_u32 s{S_AVAIL}, s61
s_cselect_b32 s62, 1, 0
s_branch {KP}
{KL}:""")
    delay(k, OPT['dd'])
    k(f'{KP}:')
    KS = k.lab('kvs')
    k(f's_cmp_eq_u32 s62, 0\ns_cbranch_scc1 {KS}')
    if not NOKV: kv_copies(k, S_KXN, S_VXN)
    k(f'{KS}:')
    if OPT['prio']: k('s_setprio 3')
    k('s_barrier')
    if OPT['p3']: k('s_memtime s[86:87]')
    k(f's_cmp_ge_u32 s{SW}, 6\ns_cbranch_scc1 L_bw6{T}')
    for w in range(4): k(f'ds_read_b128 {v(176+4*w,4)}, v{V_A6} offset:{w*2048}')
    k(f"""s_waitcnt lgkmcnt(2)
v_pk_add_f32 v[176:177], v[176:177], v[180:181]
v_pk_add_f32 v[178:179], v[178:179], v[182:183]
s_waitcnt lgkmcnt(0)
v_pk_add_f32 v[184:185], v[184:185], v[188:189]
v_pk_add_f32 v[186:187], v[186:187], v[190:191]
v_pk_add_f32 v[176:177], v[176:177], v[184:185]
v_pk_add_f32 v[178:179], v[178:179], v[186:187]
{'s_waitcnt vmcnt(16)' if OPT['pce'] else ''}
buffer_store_dwordx4 v[176:179], v{V_A7}, {WS}, s{S_PC} offen sc1
{'s_memtime s[88:89]' if OPT['p3'] else ''}
v_mov_b32 v180, -1
v_mov_b32 v181, -1
v_mov_b32 v182, -1
v_mov_b32 v183, -1
""")
    clrp = f'buffer_store_dwordx4 v[180:183], v{V_A7}, {WS}, s{S_PZ} offen sc1' if not OPT['pce'] else ''
    if OPT['ack'] & 4:
        k(f's_waitcnt vmcnt(0)\ns_barrier\n{clrp}')
        k(f's_branch L_b3{T}\nL_bw6{T}:\ns_barrier')
    else:
        k(clrp)
        k(f's_branch L_b3{T}\nL_bw6{T}:')
    k(f's_cmp_lg_u32 s{SW}, 6\ns_cbranch_scc1 L_b3{T}')
    if OPT['adp']: vdelay(k, 68)
    elif OPT['dpe']:
        e1, e2 = k.lab('dpe'), k.lab('dpf')
        k(f's_cmp_ge_u32 s{SSTEP}, {OPT["dpn"]}\ns_cbranch_scc1 {e1}')
        delay(k, OPT['dpe'])
        k(f's_branch {e2}\n{e1}:')
        delay(k, OPT['dp'])
        k(f'{e2}:')
    else: delay(k, OPT['dp'])
    if OPT['p3']: k('s_memtime s[88:89]')
    spins = []
    for g in range(8): k(f'buffer_load_dwordx4 {v(176+4*g,4)}, v{240+g}, {WS}, s{S_PC} offen sc1')
    PR, PC, PB = k.lab('pps'), k.lab('ppc'), k.lab('ppb')
    k(f's_mov_b32 s39, 0\n{PC}:')
    for g in range(8):
        k(f's_waitcnt vmcnt({7-g})')
        if g == 0: k('v_mov_b32 v224, v176')
        else:
            k(f'v_max_u32 v224, v224, v{176+4*g}')
            k(f'v_pk_add_f32 v[176:177], v[176:177], {v(176+4*g,2)}\nv_pk_add_f32 v[178:179], v[178:179], {v(178+4*g,2)}')
    k(f'v_cmp_eq_u32 vcc, -1, v224\ns_cbranch_vccnz {PR}\n{PB}:')
    spins.append((PR, PC, PB, [f'buffer_load_dwordx4 {v(176+4*gg,4)}, v{240+gg}, {WS}, s{S_PC} offen sc1' for gg in range(8)], OPT['sx']))
    if OPT['p3']: k('s_memtime s[90:91]')
    if OPT['adp']: k('s_mov_b32 s65, s39')
    k(f"""v_cvt_pk_bf16_f32 v176, v176, v177
v_cvt_pk_bf16_f32 v177, v178, v179
buffer_store_dword v176, v{V_A6}, {WS}, s{S_MEMN} offen{sc}
buffer_store_dword v177, v{V_A6}, {WS}, s{S_MEMN} offen offset:128{sc}
{'s_waitcnt vmcnt(0)' if OPT['ack'] & 2 else ''}
L_b3{T}:
{'s_memtime s[92:93]' if OPT['p3'] else ''}
s_barrier
{'s_memtime s[94:95]' if OPT['p3'] else ''}""")
    SG = 224
    def mem_poll(sleep):
        A, D = k.lab('mA'), k.lab('mD')
        k(f's_cmp_ge_u32 s{SW}, 6\ns_cbranch_scc1 {A}')
        for n in (3, 2):
            srcs = [S_MEMN, S_MEMN4, S_MEMN8][:n]
            for i, sr in enumerate(srcs): k(f'buffer_load_dwordx4 {v(SG+4*i,4)}, v{V_A3}, {WS}, s{sr} offen sc1')
            k('s_mov_b32 s39, 0')
            for i, sr in enumerate(srcs):
                R_, C_, B_ = k.lab('pms'), k.lab('pmc'), k.lab('pmb')
                k(f"""{C_}:
s_waitcnt vmcnt({n-1-i})
v_max3_u32 v236, v{SG+4*i}, v{SG+1+4*i}, v{SG+2+4*i}
v_max_u32 v236, v236, v{SG+3+4*i}
v_cmp_eq_u32 vcc, -1, v236
s_cbranch_vccnz {R_}
{B_}:
ds_write_b128 v{V_MW}, {v(SG+4*i,4)} offset:{i*4096}""")
                spins.append((R_, C_, B_, [f'buffer_load_dwordx4 {v(SG+4*ii,4)}, v{V_A3}, {WS}, s{srcs[ii]} offen sc1' for ii in range(i, n)], OPT['sm'] if sleep == 0 else OPT['so']))
                if i == 0 and OPT['two']:
                    k('s_waitcnt lgkmcnt(0)\ns_barrier')
                    for f in range(NA): k(f'ds_read_b128 {v(MF+4*f,4)}, v{V_MF} offset:{f*1024}')
            if n == 3: k(f's_branch {D}\n{A}:')
        k(f'{D}:')
    if prof: k('s_memrealtime s[94:95]')
    if OPT['adp']:
        nz = k.lab('adz')
        k(f's_cmp_lg_u32 s{SW}, 6\ns_cbranch_scc1 {nz}')
        adapt(k, 68, 69, 65, OPT['adlo'], OPT['adhi'], OPT['adup'], OPT['adev'])
        k(f'{nz}:')
    delay(k, OPT['dm'])
    mem_poll(0)
    if OPT['p3']: k('s_memtime s[96:97]')
    KZ = k.lab('kvz')
    k(f's_cmp_lg_u32 s62, 0\ns_cbranch_scc1 {KZ}')
    if OPT['mini']:
        from attout import flag_wait
        KA, KB_ = k.lab('k12a'), k.lab('k12b')
        k(f's_cmp_gt_u32 s61, 3\ns_cbranch_scc1 {KA}')
        flag_wait(k, 'k12w', 238, 4, 61, tmp=13, sleep=1)
        k(f's_mov_b32 s{S_AVAIL}, s61\ns_branch {KB_}\n{KA}:')
        kv_wait(k, 61)
        k(f'{KB_}:')
    else: kv_wait(k, 61)
    if not NOKV: kv_copies(k, S_KXN, S_VXN)
    k(f's_waitcnt vmcnt(0)\n{KZ}:')
    k(f"""s_cmp_lg_u32 s{SW}, 6
s_cbranch_scc1 L_next{T}
v_mov_b32 v14, -1
buffer_store_dword v14, v{V_A6}, {WS}, s{S_MEMZ} offen{sc}
buffer_store_dword v14, v{V_A6}, {WS}, s{S_MEMZ} offen offset:128{sc}
L_next{T}:""")
    if prof:
        k('s_memrealtime s[96:97]\ns_waitcnt lgkmcnt(0)\ns_mov_b32 m0, s40')
        pA, pD = k.lab('pfA'), k.lab('pfD')
        k(f's_cmp_lt_u32 s{SW}, 4\ns_cbranch_scc1 {pA}')
        for n, r in enumerate((80, 82, 88, 90, 92, 94, 96)): k(f'v_writelane_b32 v{248+n}, s{r}, m0')
        k('s_lshl_b32 s63, s63, 16\ns_or_b32 s63, s63, s64\nv_writelane_b32 v255, s63, m0')
        k(f's_branch {pD}\n{pA}:')
        for n, r in enumerate((80, 84, 86, 96)): k(f'v_writelane_b32 v{252+n}, s{r}, m0')
        pass
        k(f'{pD}:')
    if OPT['p3']:
        pz = k.lab('p3z')
        k(f's_cmp_lt_u32 s{SW}, 4\ns_cbranch_scc1 {pz}\ns_waitcnt lgkmcnt(0)\ns_memtime s[64:65]\ns_waitcnt lgkmcnt(0)\ns_mov_b32 m0, s40')
        for n in range(8): k(f's_sub_u32 s34, s{82+2*n}, s{80+2*n}\nv_writelane_b32 v{248+n}, s34, m0')
        k('s_sub_u32 s34, s64, s96\nv_writelane_b32 v239, s34, m0')
        k(f'{pz}:')
    if OPT['lite']:
        l1, l2 = k.lab('lt'), k.lab('lt')
        k(f"""s_cmp_eq_u32 s{SSTEP}, {OPT['la']}
s_cbranch_scc0 {l1}
s_memrealtime s[90:91]
s_memtime s[94:95]
{l1}:
s_cmp_eq_u32 s{SSTEP}, {OPT['lb']}
s_cbranch_scc0 {l2}
s_memrealtime s[92:93]
s_memtime s[96:97]
{l2}:""")
    if OPT['lite'] > 1:
        k(f's_memrealtime s[88:89]\ns_waitcnt lgkmcnt(0)\ns_mov_b32 m0, s{SSTEP}\nv_writelane_b32 v254, s88, m0')
    if DBGST:
        l4 = k.lab('d4')
        k(f's_cmp_lg_u32 s{SSTEP}, 4\ns_cbranch_scc1 {l4}')
        dstamp(k, 13, 0, 0, 6)
        k(f'{l4}:')
    k(f"""s_waitcnt lgkmcnt(0)
s_add_u32 s{SSTEP}, s{SSTEP}, 1
s_branch L_step{T}""")
    k(f'L_s1only{T}:')
    chain_offsets(k, 'r')
    k('s_mov_b32 s62, 1')
    k(f"""v_mov_b32 v14, -1
buffer_store_dword v14, v{V_A4}, {WS}, s{S_QZ} offen{sc}
buffer_store_dword v14, v{V_A5}, {WS}, s{S_QZ} offen{sc}""")
    for i in range(8): k(f'v_mov_b32 v{DA+i}, 0')
    delay(k, OPT['ds1'])
    mem_poll(1)
    k(f's_branch L_next{T}')
    k(f'L_aw{T}:')
    if OPT['prio']: k('s_setprio 2')
    chain_offsets(k, 'qr')
    k(f"""s_cmp_ge_u32 s{S_I}, 10
s_cbranch_scc1 L_aidle{T}
s_cmp_eq_u32 s{SSTEP}, 63
s_cbranch_scc1 L_fin""")
    if prof: k('s_memrealtime s[80:81]')
    delay(k, OPT['da'])
    for i in range(8): k(f'ds_read_b128 {v(KXR+4*i,4)}, v14 offset:{i*1024}')
    k('s_waitcnt lgkmcnt(0)')
    for i in range(8): k(f'ds_read_b128 {v(VXR+4*i,4)}, v14 offset:{8192 + i*1024}')
    k('s_waitcnt lgkmcnt(0)')
    k('s_barrier')
    if OPT['dqe']:
        e1, e2 = k.lab('dqe'), k.lab('dqf')
        k(f's_cmp_ge_u32 s{SSTEP}, {OPT["dpn"]}\ns_cbranch_scc1 {e1}')
        delay(k, OPT['dqe'])
        k(f's_branch {e2}\n{e1}:')
        delay(k, OPT['dq'])
        k(f'{e2}:')
    else: delay(k, OPT['dq'])
    k('s_mov_b32 s39, 0')
    for ks in range(4): k(f'buffer_load_dwordx4 {v(QK+4*ks,4)}, v{V_A3}, {WS}, s{S_QC} offen offset:{ks*1024} sc1')
    delay(k, OPT['dv'])
    for u in range(2): k(f'buffer_load_dwordx4 {v(VM+4*u,4)}, v{V_A3}, {WS}, s{S_QC4} offen offset:{u*1024} sc1')
    k('s_waitcnt vmcnt(2)')
    LQM = k.lab('pqm')
    k(f'{LQM}:')
    if OPT['p2']: k('s_memtime s[80:81]')
    mf = []
    for ks in range(4): mf.append(f'v_mfma_f32_16x16x32_bf16 {v(S0,4)}, {v(KXR+4*ks,4)}, {v(QK+4*ks,4)}, {"0" if ks == 0 else v(S0,4)}')
    for ks in range(4): mf.append(f'v_mfma_f32_16x16x32_bf16 {v(S1,4)}, {v(KXR+16+4*ks,4)}, {v(QK+4*ks,4)}, {"0" if ks == 0 else v(S1,4)}')
    for ks in range(4): mf.append(f'v_mfma_f32_16x16x32_bf16 {v(SM,4)}, {v(QK+4*ks,4)}, {v(QK+4*ks,4)}, {v(NEG,4) if ks == 0 else v(SM,4)}')
    chk = [f'v_max3_u32 v244, v{QK}, v{QK+1}, v{QK+2}'] + [f'v_max3_u32 v244, v244, v{QK+3+2*n}, v{QK+4+2*n}' for n in range(6)] + [f'v_max_u32 v244, v244, v{QK+15}']
    interleave(k, mf[:4], chk)
    k(mf[4]); k('v_cmp_eq_u32 vcc, -1, v244')
    QR = k.lab('pqr')
    k(mf[5]); k(f's_cbranch_vccnz {QR}')
    qspin = (QR, LQM)
    LQX = k.lab('pqx')
    k(f'{LQX}:')
    k(mf[6]); k(f'v_mov_b32 v{PM2}, 0\nv_mov_b32 v{PM2+1}, 0')
    k(mf[7])
    k(mf[8]); k(f'v_max3_f32 v244, v{S0}, v{S0+1}, v{S0+2}')
    k(mf[9]); k(mf[10])
    k(f'v_max3_f32 v244, v244, v{S0+3}, v{S1}')
    k(mf[11])
    if OPT['p2']: k('s_memtime s[82:83]')
    k(f"""v_max3_f32 v244, v244, v{S1+1}, v{S1+2}
v_max_f32 v244, v244, v{S1+3}""")
    if prof: k('s_memrealtime s[84:85]')
    k(f"""v_max3_f32 v244, v244, v{SM}, v{SM+1}
v_max3_f32 v244, v244, v{SM+2}, v{SM+3}
v_mov_b32 v245, v244
v_permlane16_swap_b32 v244, v245
v_max_f32 v244, v244, v245
v_mov_b32 v245, v244
v_permlane32_swap_b32 v244, v245
v_max_f32 v244, v244, v245
v_mul_f32 v244, s{S_NC}, v244
v_mul_f32 v245, 1.0, v244""")
    if OPT['p2']: k('s_memtime s[84:85]')
    for i in range(0, 12, 2): k(f'v_pk_fma_f32 {v(S0+i,2)}, {v(S0+i,2)}, s[66:67], v[244:245]')
    for i in range(8): k(f'v_exp_f32 v{S0+i}, v{S0+i}')
    k(f"""v_cvt_pk_bf16_f32 v{PX}, v{S0}, v{S0+1}
v_cvt_pk_bf16_f32 v{PX+1}, v{S0+2}, v{S0+3}
v_cvt_pk_bf16_f32 v{PX+2}, v{S1}, v{S1+1}
v_cvt_pk_bf16_f32 v{PX+3}, v{S1+2}, v{S1+3}""")
    VR, VB = k.lab('pvr'), k.lab('pvb')
    k('s_waitcnt vmcnt(0)')
    k(f'v_max3_u32 v247, v{VM}, v{VM+1}, v{VM+2}\nv_max3_u32 v247, v247, v{VM+3}, v{VM+4}')
    if OPT['p2']: k('s_memtime s[86:87]')
    mf = [f'v_mfma_f32_16x16x32_bf16 {v(O+4*te,4)}, {v(VXR+4*te,4)}, {v(PX,4)}, 0' for te in range(8)]
    k(mf[0]); k(f'v_exp_f32 v{SM}, v{SM}\nv_max3_u32 v247, v247, v{VM+5}, v{VM+6}')
    k(mf[1]); k(f'v_exp_f32 v{SM+1}, v{SM+1}\nv_max_u32 v247, v247, v{VM+7}')
    k(mf[2]); k(f'v_exp_f32 v{SM+2}, v{SM+2}\nv_add_f32 v245, v{S0}, v{S0+1}')
    k(mf[3]); k(f'v_exp_f32 v{SM+3}, v{SM+3}\nv_add_f32 v246, v{S0+2}, v{S0+3}')
    k(mf[4]); k(f'v_cvt_pk_bf16_f32 v{PM}, v{SM}, v{SM+2}\nv_cvt_pk_bf16_f32 v{PM+1}, v{SM+1}, v{SM+3}\nv_cmp_eq_u32 vcc, -1, v247')
    k(mf[5]); k(f'v_mov_b32 v188, v{PM}\nv_mov_b32 v189, v{PM+1}')
    k(mf[6]); k(f'v_add_f32 v245, v245, v{S1}\nv_add_f32 v246, v246, v{S1+1}')
    k(mf[7]); k(f'v_permlane32_swap_b32 v188, v{PM2}\nv_permlane32_swap_b32 v189, v{PM2+1}')
    k(f's_cbranch_vccnz {VR}\n{VB}:')
    mf = []
    for te in range(8):
        u, t4 = te // 4, te % 4
        a = VM + 4*u + 2*(t4 // 2); b = PM if t4 % 2 == 0 else PM2
        mf.append(f'v_mfma_f32_16x16x16_bf16 {v(O+4*te,4)}, {v(a,2)}, {v(b,2)}, {v(O+4*te,4)}')
    def cv(te): return [f'v_cvt_pk_bf16_f32 v{OB+4*(te//2)+2*(te%2)}, v{O+4*te}, v{O+4*te+1}', f'v_cvt_pk_bf16_f32 v{OB+4*(te//2)+2*(te%2)+1}, v{O+4*te+2}, v{O+4*te+3}']
    if OPT['p2']: k('s_memtime s[88:89]')
    k(mf[0]); k(f'v_add_f32 v245, v245, v{SM}\nv_add_f32 v246, v246, v{SM+1}')
    k(mf[1]); k(f'v_add_f32 v245, v245, v{SM+2}\nv_add_f32 v246, v246, v{SM+3}')
    k(mf[2]); k(f'v_add_f32 v245, v245, v{S1+2}\nv_add_f32 v246, v246, v{S1+3}')
    k(mf[3]); k('v_add_f32 v245, v245, v246\nv_mov_b32 v246, v245')
    for n in range(4):
        k(mf[4+n])
        for x in cv(n): k(x)
    mo = [[f'v_mfma_f32_16x16x32_bf16 {v(OA+4*ct,4)}, {v(WO+16*ct+4*ks,4)}, {v(OB+4*ks,4)}, {"0" if ks == 0 else v(OA+4*ct,4)}' for ct in range(4)] for ks in range(4)]
    if OPT['p2']: k('s_memtime s[90:91]')
    k(mo[0][0]); k('v_permlane16_swap_b32 v245, v246')
    k(mo[0][1]); k(cv(4)[0]); k(cv(4)[1])
    k(mo[0][2]); k(cv(5)[0]); k(cv(5)[1])
    k(mo[0][3]); k('v_add_f32 v245, v245, v246\nv_mov_b32 v246, v245')
    k(mo[1][0]); k(cv(6)[0]); k(cv(6)[1])
    k(mo[1][1]); k(cv(7)[0]); k(cv(7)[1])
    k(mo[1][2]); k('v_permlane32_swap_b32 v245, v246')
    k(mo[1][3]); k('v_add_f32 v245, v245, v246')
    k(mo[2][0]); k('v_rcp_f32 v245, v245')
    k(mo[3][0]); k(mo[2][1]); k('v_mov_b32 v244, v245')
    for x in (mo[3][1], mo[2][2], mo[3][2], mo[2][3], mo[3][3]): k(x)
    if OPT['p2']: k('s_memtime s[92:93]')
    for p in range(2):
        for i in range(0, 8, 2): k(f'v_pk_mul_f32 {v(OA+8*p+i,2)}, {v(OA+8*p+i,2)}, v[244:245]')
        for i in range(4):
            k(f'v_mov_b32_dpp v{OA+8*p+i}, v{OA+8*p+4+i} row_shr:8 row_mask:0xf bank_mask:0xc')
        k(f'ds_write_b128 v{V_A5}, {v(OA+8*p,4)} offset:{p*1024}')
    if OPT['p2']: k('s_memtime s[94:95]')
    k('s_waitcnt lgkmcnt(0)')
    if prof: k('s_memrealtime s[86:87]')
    if OPT['p2']:
        k('s_memtime s[96:97]\ns_waitcnt lgkmcnt(0)\ns_mov_b32 m0, s40')
        for n in range(8): k(f's_sub_u32 s34, s{82+2*n}, s{80+2*n}\nv_writelane_b32 v{248+n}, s34, m0')
    k('s_barrier')
    if OPT['ack'] & 4: k('s_barrier')
    k('s_barrier')
    if OPT['two']: k('s_barrier')
    k(f's_branch L_next{T}')
    def emit_spin(R_, C_, B_, loads, slp):
        k(f"""{R_}:
s_add_u32 s39, s39, 1
s_cmp_ge_u32 s39, s{SLIM}
s_cbranch_scc1 {R_}_t""")
        delay(k, slp)
        for x in loads: k(x)
        k(f's_branch {C_}\n{R_}_t:\ns_mov_b32 s{SLIM}, 0\ns_waitcnt vmcnt(0)\ns_branch {B_}')
    QR, LQM = qspin
    k(f"""{QR}:
s_add_u32 s39, s39, 1
s_cmp_ge_u32 s39, s{SLIM}
s_cbranch_scc1 {QR}_t""")
    delay(k, OPT['sq'])
    for ks in range(4): k(f'buffer_load_dwordx4 {v(QK+4*ks,4)}, v{V_A3}, {WS}, s{S_QC} offen offset:{ks*1024} sc1')
    k(f's_waitcnt vmcnt(0)\ns_branch {LQM}\n{QR}_t:\ns_mov_b32 s{SLIM}, 0\ns_branch {LQX}')
    k(f"""{VR}:
s_add_u32 s39, s39, 1
s_cmp_ge_u32 s39, s{SLIM}
s_cbranch_scc1 {VR}_t""")
    for u in range(2): k(f'buffer_load_dwordx4 {v(VM+4*u,4)}, v{V_A3}, {WS}, s{S_QC4} offen offset:{u*1024} sc1')
    k('s_waitcnt vmcnt(0)')
    umax_check(k, range(VM, VM+8), 247)
    k(f's_cbranch_vccnz {VR}\ns_branch {VB}\n{VR}_t:\ns_mov_b32 s{SLIM}, 0\ns_branch {VB}')
    late.append(lambda: [emit_spin(*x) for x in spins])
    k(f"""L_aidle{T}:
s_cmp_eq_u32 s{S_I}, 10
s_cbranch_scc0 L_awarm{T}""")
    def qloads():
        for ks in range(4): k(f'buffer_load_dwordx4 {v(QK+4*ks,4)}, v{V_A3}, {WS}, s{S_QC} offen offset:{ks*1024} sc1')
        for u in range(2): k(f'buffer_load_dwordx4 {v(VM+4*u,4)}, v{V_A3}, {WS}, s{S_QC4} offen offset:{u*1024} sc1')
    delay(k, OPT['dk'])
    poll(k, 'pk' + T, qloads, lambda: umax_check(k, list(range(QK, QK+16)) + list(range(VM, VM+8)), 244), sleep=2)
    for ks in range(4): k(f'buffer_store_dwordx4 {v(QK+4*ks,4)}, v{V_A3}, {WS}, s{S_KP} offen offset:{ks*1024} sc1')
    for u in range(2): k(f'buffer_store_dwordx4 {v(VM+4*u,4)}, v{V_A3}, {WS}, s{S_KP4} offen offset:{u*1024} sc1')
    k(f"""s_waitcnt vmcnt(0)
s_lshl_b32 s34, s{S_G}, 2
s_add_u32 s34, s34, s{SW}
s_lshl_b32 s34, s34, 7
s_add_u32 s34, s34, {F_KVM}
s_add_u32 s34, s34, s{SFL0}
s_add_u32 s35, s{SSTEP}, 1
v_mov_b32 v244, s34
v_mov_b32 v245, s35
s_mov_b64 exec, 1
buffer_store_dword v245, v244, {WS}, 0 offen sc1
s_mov_b64 exec, -1
s_cmp_eq_u32 s{SSTEP}, 63
s_cbranch_scc1 L_fin
{'s_barrier' if OPT['two'] else ''}
s_branch L_next{T}
L_awarm{T}:
s_cmp_eq_u32 s{SSTEP}, 63
s_cbranch_scc1 L_fin""")
    if OPT['warm']:
        W = k.lab('wsk')
        k(f's_add_u32 s36, s{SSTEP}, 3\ns_cmp_gt_u32 s36, 64\ns_cbranch_scc1 {W}')
        delay(k, OPT['dw'])
        k(f"""buffer_load_dword v13, v{V_A9}, {WS}, 0 offen sc1
s_waitcnt vmcnt(0)
v_readlane_b32 s34, v13, 0
v_readlane_b32 s35, v13, 1
s_min_u32 s34, s34, s35
s_cmp_lt_u32 s34, s36
s_cbranch_scc1 {W}
s_add_u32 s36, s{SSTEP}, 2
s_lshl_b32 s36, s36, 18
s_add_u32 s37, s36, {VX}
s_add_u32 s36, s36, {KX}""")
        kv_loads(k, 36, 37)
        k(f'{W}:')
    if OPT['two']: k('s_barrier')
    k(f's_branch L_next{T}')
    for f in late: f()

def chain_fin(k, prof):
    k('L_fin:')
    if OPT['p3']:
        k(f"""s_lshl_b32 s34, s{SX}, 5
s_add_u32 s34, s34, s{SR}
s_lshl_b32 s34, s34, 3
s_add_u32 s34, s34, s{SW}
s_mul_i32 s34, s34, 4096
s_add_u32 s34, s34, 0x8000000
v_lshlrev_b32 v10, 2, v1
v_add_u32 v10, s34, v10""")
        for n in range(9): k(f'buffer_store_dword v{248+n if n < 8 else 239}, v10, {WS}, 0 offen offset:{n*256}')
    if OPT['p2']:
        k(f"""s_lshl_b32 s34, s{SX}, 5
s_add_u32 s34, s34, s{SR}
s_lshl_b32 s34, s34, 3
s_add_u32 s34, s34, s{SW}
s_lshl_b32 s34, s34, 11
s_add_u32 s34, s34, 0x8000000
v_lshlrev_b32 v10, 2, v1
v_add_u32 v10, s34, v10""")
        for n in range(8): k(f'buffer_store_dword v{248+n}, v10, {WS}, 0 offen offset:{n*256}')
    dstamp(k, 5, 0, 0)
    if OPT['lite']:
        k(f"""s_sub_u32 s34, s92, s90
v_mov_b32 v12, s34
s_lshl_b32 s34, s{SX}, 5
s_add_u32 s34, s34, s{SR}
s_lshl_b32 s34, s34, 3
s_add_u32 s34, s34, s{SW}
s_lshl_b32 s34, s34, 2
s_add_u32 s34, s34, 0x8800000
v_mov_b32 v10, s34
buffer_store_dword v12, v10, {WS}, 0 offen
s_sub_u32 s34, s96, s94
v_mov_b32 v12, s34
v_add_u32 v10, 0x10000, v10
buffer_store_dword v12, v10, {WS}, 0 offen""")
    if OPT['lite'] > 1:
        k(f"""s_lshl_b32 s34, s{SX}, 5
s_add_u32 s34, s34, s{SR}
s_lshl_b32 s34, s34, 3
s_add_u32 s34, s34, s{SW}
s_lshl_b32 s34, s34, 8
s_add_u32 s34, s34, 0x8a00000
v_lshlrev_b32 v10, 2, v1
v_add_u32 v10, s34, v10
buffer_store_dword v254, v10, {WS}, 0 offen""")
    if prof:
        k(f"""s_lshl_b32 s34, s{SX}, 5
s_add_u32 s34, s34, s{SR}
s_lshl_b32 s34, s34, 3
s_add_u32 s34, s34, s{SW}
s_lshl_b32 s34, s34, 11
s_add_u32 s34, s34, 0x8000000
v_lshlrev_b32 v10, 2, v1
v_add_u32 v10, s34, v10
s_cmp_lt_u32 s{SW}, 4
s_cbranch_scc1 L_fin0""")
        for n in range(8): k(f'buffer_store_dword v{248+n}, v10, {WS}, 0 offen offset:{n*256}')
        k('s_branch L_end\nL_fin0:')
        for n in range(4): k(f'buffer_store_dword v{252+n}, v10, {WS}, 0 offen offset:{n*256}')
    k('s_branch L_end')

def build(prof=False, roles=('chain',), keepflags=False, qdelay=0):
    k = Kern()
    import brole, proj, attout
    def validate_par(k2):
        validate(k2); par_wait(k2)
    brole.validate = proj.validate = validate_par
    attout.validate = validate; attout.par_wait = par_wait
    attout.calibrate = calibrate
    attout.CALSLEEP = OPT['calsleep']
    brole.help_prefetch = attout.help_prefetch = help_prefetch if OPT['help'] else (lambda k: None)
    start_phase(k, keepflags)
    on = lambda r: r in roles
    R = lambda r, l: l if on(r) else 'L_end'
    PLACE_A = f'''; dies 4-7: every die gets 12 PROJ, 8 B, 10 OUT and 2 ATT units
s_sub_u32 s34, s{SX}, 4
s_mul_i32 s41, s34, 12
s_add_u32 s41, s41, s{SR}
s_cmp_lt_u32 s{SR}, 12
s_cbranch_scc1 {R('proj', 'L_proj')}
s_lshl_b32 s41, s34, 3
s_add_u32 s41, s41, s{SR}
s_sub_u32 s41, s41, 12
s_cmp_lt_u32 s{SR}, 20
s_cbranch_scc1 {R('b', 'L_brole')}
s_mul_i32 s41, s34, 10
s_add_u32 s41, s41, s{SR}
s_sub_u32 s41, s41, 20
s_cmp_lt_u32 s{SR}, 30
s_cbranch_scc1 {R('out', 'L_out')}
s_lshl_b32 s41, s34, 1
s_add_u32 s41, s41, s{SR}
s_sub_u32 s41, s41, 30
s_branch {R('att', 'L_att')}'''
    PLACE_B = f'''; dies 4, 5: 24 PROJ + 8 B each; dies 6, 7: 20 OUT + 8 B + 4 ATT each
s_sub_u32 s34, s{SX}, 4
s_lshl_b32 s41, s34, 3
s_add_u32 s41, s41, s{SR}
s_sub_u32 s41, s41, 24
s_cmp_ge_u32 s{SR}, 24
s_cbranch_scc1 {R('b', 'L_brole')}
s_cmp_ge_u32 s{SX}, 6
s_cbranch_scc1 L_hi2
s_mul_i32 s41, s34, 24
s_add_u32 s41, s41, s{SR}
s_branch {R('proj', 'L_proj')}
L_hi2:
s_sub_u32 s34, s{SX}, 6
s_mul_i32 s41, s34, 20
s_add_u32 s41, s41, s{SR}
s_cmp_lt_u32 s{SR}, 20
s_cbranch_scc1 {R('out', 'L_out')}
s_lshl_b32 s41, s34, 2
s_add_u32 s41, s41, s{SR}
s_sub_u32 s41, s41, 20
s_branch {R('att', 'L_att')}'''
    k(f'''s_cmp_ge_u32 s{SX}, 4
s_cbranch_scc1 L_hi
s_cmp_lt_u32 s{SR}, 24
s_cbranch_scc1 {R('chain', 'L_chain')}
s_lshl_b32 s41, s{SX}, 3
s_add_u32 s41, s41, s{SR}
s_add_u32 s41, s41, 8
s_branch {R('b', 'L_brole')}
L_hi:
{PLACE_B if OPT['place'] == 2 else PLACE_A}''')
    if on('proj'): proj_role(k)
    if on('att'): att_role(k)
    if on('out'): out_role(k)
    if on('b'): b_role(k)
    if on('chain'):
        chain_prologue(k)
        mark(k, 1)
        dstamp(k, 3, 0, 0)
        k(f's_cmp_lg_u32 s{SSLOW}, 0\ns_cbranch_scc1 L_entryS')
        chain_loop(k, '', prof, 'F', qdelay)
        chain_loop(k, ' sc1', False, 'S')
        chain_fin(k, prof)
    k('L_end:')
    dstamp(k, 9, 7, 20)
    dstamp(k, 11, 4, 12)
    dstamp(k, 7, 4, 0)
    if TL:
        k(f'''s_memrealtime s[82:83]
s_waitcnt lgkmcnt(0)
v_mov_b32 v20, s84
v_mov_b32 v21, s85
v_mov_b32 v22, s86
v_mov_b32 v23, s87
v_mov_b32 v24, s82
s_lshl_b32 s34, s{SX}, 5
s_add_u32 s34, s34, s{SR}
s_lshl_b32 s34, s34, 3
s_add_u32 s34, s34, s{SW}
s_lshl_b32 s34, s34, 5
s_add_u32 s34, s34, 0x8900000
v_mov_b32 v25, s34
s_mov_b64 exec, 1
buffer_store_dwordx4 v[20:23], v25, {WS}, 0 offen
buffer_store_dword v24, v25, {WS}, 0 offen offset:16''')
    k('L_exit:\ns_endpgm')
    body, nops = k.text()
    head = f'''; Kernarg layout (104 bytes, pointers only, base s[0:1]):
; @launch grid=(256,1,1) block=(512,1,1) lds=163840
;
.amdgcn_target "amdgcn-amd-amdhsa--gfx950"
.text
.globl {NAME}
.p2align 8
.type {NAME},@function
{NAME}:
'''
    tail = f'''
.section .rodata,"a"
.p2align 6
.amdhsa_kernel {NAME}
  .amdhsa_next_free_vgpr 256
  .amdhsa_next_free_sgpr 102
  .amdhsa_accum_offset 256
  .amdhsa_group_segment_fixed_size 0
  .amdhsa_kernarg_size 104
  .amdhsa_user_sgpr_count 2
  .amdhsa_user_sgpr_kernarg_segment_ptr 1
  .amdhsa_system_sgpr_workgroup_id_x 1
.end_amdhsa_kernel
'''
    return head + '\n'.join(body) + tail, nops

if __name__ == '__main__':
    out = sys.argv[1]
    opts = dict(a.split('=') for a in sys.argv[2:] if '=' in a)
    if 'kvsc' in opts: KVSC = {'p': '', 's': ' sc1', 'n': ' nt', '0': ' sc0'}[opts['kvsc']]
    NOKV = 'nokv' in sys.argv[2:]
    TL = 'tl' in sys.argv[2:]
    DBGST = 'dbgst' in sys.argv[2:]
    import brole, proj, attout
    brole.mark = proj.mark = attout.mark = mark
    brole.BMODE = int(opts.get('bmode', 0))
    for o in OPT:
        if o in opts: OPT[o] = int(opts[o])
    proj.MINI = OPT['mini']
    proj.SELFP = OPT['selfp']; proj.PSLEEP = OPT['psleep']
    proj.WNT = ' nt' if OPT['wnt'] else ''; proj.WNT2 = ' nt' if OPT['wnt'] > 1 else ''
    proj.LITE = OPT['lite']; proj.PMARK = int(opts.get('pmark', -1))
    brole.OUTSC = attout.OUTSC = {0: '', 1: ' sc1', 2: ' nt', 3: ' sc0 sc1'}[OPT['outsc']]
    brole.OBSC = ' sc1' if OPT['obsc'] else ''
    brole.SLEEP = OPT['bsleep']; attout.OSLEEP = OPT['osleep']; attout.XWARM = OPT['xwarm']; attout.OSL = OPT['osl']
    txt, nops = build(prof='prof' in sys.argv[2:], keepflags='keepflags' in sys.argv[2:], qdelay=int(opts.get('qdelay', 0)), roles=opts.get('roles', 'chain').split(','))
    open(out, 'w').write(txt)
    print('wrote', out, 'lines', txt.count('\n'), 'nop states', nops)
```

```python
import sys, math, struct
from dsl import Kern, v, s
from layout import *
from proj import proj_role
from attout import att_role, out_role
from brole import b_role

def f32bits(x): return struct.unpack('<I', struct.pack('<f', x))[0]

WS, DBG = 's[8:11]', 's[12:15]'
SX, SR, SW, SSLOW, SPAR, SLIM = 28, 29, 30, 31, 32, 33
SXCC, SRANK = 98, 99
SFL0, SFL1 = 100, 101
SSTEP = 40
POLL_LIMIT = 1 << 17

def srd(k, base, ptr, nbytes):
    k(f'''s_mov_b32 s{base}, s{ptr}
s_and_b32 s{base+1}, s{ptr+1}, 0xffff
s_mov_b32 s{base+2}, {nbytes:#x}
s_mov_b32 s{base+3}, 0x20000''')

def poll(k, name, loads, check, cnt=39, sleep=0):
    L, D = k.lab(name), k.lab(name + 'd')
    k(f's_mov_b32 s{cnt}, 0\n{L}:')
    loads()
    k('s_waitcnt vmcnt(0)')
    check()
    k(f's_cbranch_vccz {D}')
    if sleep: k(f's_sleep {sleep}')
    k(f'''s_add_u32 s{cnt}, s{cnt}, 1
s_cmp_lt_u32 s{cnt}, s{SLIM}
s_cbranch_scc1 {L}
s_mov_b32 s{SLIM}, 0
{D}:''')

def umax_check(k, regs, tmp):
    r = list(regs)
    if len(r) == 1:
        k(f'v_cmp_eq_u32 vcc, -1, v{r[0]}'); return
    if len(r) == 2:
        k(f'v_max_u32 v{tmp}, v{r[0]}, v{r[1]}'); r = []
    else:
        k(f'v_max3_u32 v{tmp}, v{r[0]}, v{r[1]}, v{r[2]}'); r = r[3:]
    while len(r) >= 2:
        k(f'v_max3_u32 v{tmp}, v{tmp}, v{r[0]}, v{r[1]}'); r = r[2:]
    if r: k(f'v_max_u32 v{tmp}, v{tmp}, v{r[0]}')
    k(f'v_cmp_eq_u32 vcc, -1, v{tmp}')

TL = False
DBGST = False
def dstamp(k, word, cond_x, cond_r, wave=0):
    if not DBGST: return
    L = k.lab('ds')
    k(f'''s_cmp_lg_u32 s{SX}, {cond_x}
s_cbranch_scc1 {L}
s_cmp_lg_u32 s{SR}, {cond_r}
s_cbranch_scc1 {L}
s_cmp_lg_u32 s{SW}, {wave}
s_cbranch_scc1 {L}
s_memrealtime s[82:83]
s_waitcnt lgkmcnt(0)
v_mov_b32 v252, s82
v_mov_b32 v253, {word*4}
s_mov_b64 exec, 1
buffer_store_dword v252, v253, {DBG}, 0 offen
s_mov_b64 exec, -1
{L}:''')

def mark(k, n):
    if TL: k(f's_memrealtime s[82:83]\ns_waitcnt lgkmcnt(0)\ns_mov_b32 s{85+n}, s82')

FAKE = '''; test only: workgroups 0..40 claim die 3, which makes the counts uneven and forces the placement-independent path
s_cmp_lt_u32 s2, 41
s_cselect_b32 s98, 3, s98'''
CPF = f'''; pull this kernel's instructions into the L2 of this die (read only): waves 1-7 of every workgroup read 7 KB, 3 KB apart
s_getpc_b64 s[16:17]
L_pc:
s_sub_u32 s16, s16, L_pc-{NAME}
s_subb_u32 s17, s17, 0
s_and_b32 s17, s17, 0xffff
s_mov_b32 s18, L_exit-{NAME}
s_mov_b32 s19, 0x20000
s_lshr_b32 s20, s2, 3
s_mul_i32 s20, s20, 3072
v_lshlrev_b32 v3, 4, v0
v_subrev_u32 v3, 1024, v3
buffer_load_dwordx4 v[12:15], v3, s[16:19], s20 offen'''
def start_phase(k, keepflags=False):
    k(f'''
s_cmp_ge_u32 s2, 256
s_cbranch_scc1 L_exit
{'s_memrealtime s[84:85]' if TL else ''}
s_load_dwordx4 s[4:7], s[0:1], 88
s_getreg_b32 s{SXCC}, hwreg(HW_REG_XCC_ID)
s_and_b32 s{SXCC}, s{SXCC}, 15
{FAKE if OPT['fakex'] else ''}
v_and_b32 v1, 63, v0
v_lshrrev_b32 v2, 6, v0
v_readfirstlane_b32 s{SW}, v2
s_waitcnt lgkmcnt(0)''')
    srd(k, 8, 6, WS_BYTES)
    srd(k, 12, 4, 256)
    k(f'''
s_mov_b32 s{SLIM}, {POLL_LIMIT}
s_mov_b32 s{SSLOW}, 0
v_mov_b32 v9, 0
s_cmp_lg_u32 s{SW}, 0
s_cbranch_scc1 L_st_clr
s_and_b32 s35, s{SXCC}, 3
s_lshl_b32 s35, s35, 4
s_bfe_u32 s36, s{SXCC}, 0x10002
s_lshl_b32 s36, s36, 7
s_add_u32 s35, s35, s36
s_lshr_b32 s36, s{SXCC}, 3
s_lshl_b32 s36, s36, 6
s_add_u32 s35, s35, s36
v_mov_b32 v8, s35
v_mov_b32 v9, 1
s_mov_b64 exec, 1
buffer_atomic_add v9, v8, {DBG}, 0 offen sc0
s_mov_b64 exec, -1
{'s_branch L_st_clr2' if OPT['cpf'] else ''}
L_st_clr:
{CPF if OPT['cpf'] else ''}
L_st_clr2:
s_lshl_b32 s35, s2, 14
s_sub_u32 s36, s35, {FLG0}
s_cmp_lt_u32 s36, 0xc000
s_cselect_b32 s36, 0, -1
v_mov_b32 v4, s36
v_mov_b32 v5, s36
v_mov_b32 v6, s36
v_mov_b32 v7, s36
v_lshlrev_b32 v2, 4, v0
s_add_u32 s36, s35, 8192
{'s_cmp_lt_u32 s35, 0x10000' if keepflags else ''}
{'s_cbranch_scc1 L_st_noclr' if keepflags else ''}
buffer_store_dwordx4 v[4:7], v2, {WS}, s35 offen sc1
buffer_store_dwordx4 v[4:7], v2, {WS}, s36 offen sc1
L_st_noclr:
s_cmp_lg_u32 s{SW}, 0
s_cbranch_scc1 L_st_w1
s_waitcnt vmcnt(2)
v_readfirstlane_b32 s35, v9
v_mov_b32 v4, s35
v_mov_b32 v8, 0
ds_write_b32 v8, v4
s_waitcnt lgkmcnt(0)
L_st_w1:
s_barrier
v_mov_b32 v8, 0
ds_read_b32 v4, v8
s_waitcnt lgkmcnt(0)
v_readfirstlane_b32 s{SRANK}, v4
; speculative placement: id = 32 * die + rank (checked against the final counts before any hand-off)
s_min_u32 s{SR}, s{SRANK}, 31
s_and_b32 s{SX}, s{SXCC}, 7
s_waitcnt vmcnt(0)
s_barrier
s_cmp_lg_u32 s{SW}, 0
s_cbranch_scc1 L_dispatch
s_and_b32 s35, s{SXCC}, 3
s_lshl_b32 s35, s35, 4
s_bfe_u32 s36, s{SXCC}, 0x10002
s_lshl_b32 s36, s36, 7
s_add_u32 s35, s35, s36
s_lshr_b32 s36, s{SXCC}, 3
s_lshl_b32 s36, s36, 6
s_add_u32 s35, s35, s36
s_add_u32 s35, s35, 8
v_mov_b32 v8, s35
v_mov_b32 v9, 1
s_mov_b64 exec, 1
buffer_atomic_add v9, v8, {DBG}, 0 offen
s_mov_b64 exec, -1
L_dispatch:''')
    dstamp(k, 15, 0, 0)
    if TL: k('s_memrealtime s[82:83]\ns_mov_b32 s86, 0\ns_mov_b32 s87, 0\ns_waitcnt lgkmcnt(0)\ns_mov_b32 s85, s82')

def help_prefetch(k):
    H, D = k.lab('hp'), k.lab('hpd')
    k(f'''s_cmp_ge_u32 s{SX}, 4
s_cbranch_scc1 {H}
; chain die: wave wg = (R-24)*8 + w; tasks wg + 64 j < 480: unit = t / 20, block of 16 rows = t % 20
s_sub_u32 s34, s{SR}, 24
s_lshl_b32 s34, s34, 3
s_add_u32 s34, s34, s{SW}
v_lshrrev_b32 v10, 2, v1
v_and_b32 v11, 3, v1
v_lshlrev_b32 v10, 13, v10
v_lshl_add_u32 v10, v11, 6, v10''')
    for j in range(8):
        sk = k.lab('hs')
        k(f'''s_add_u32 s35, s34, {64*j}
s_cmp_ge_u32 s35, 480
s_cbranch_scc1 {sk}
s_mul_i32 s36, s35, 3277
s_lshr_b32 s36, s36, 16               ; unit (0..23)
s_mul_i32 s37, s36, 20
s_sub_u32 s37, s35, s37               ; block
s_cmp_ge_u32 s36, 12
s_cselect_b32 s38, 1, 0
s_mul_i32 s39, s38, 12
s_sub_u32 s39, s36, s39               ; i
s_mul_i32 s44, s39, 11
s_lshr_b32 s44, s44, 5
s_mul_i32 s45, s44, 3
s_sub_u32 s45, s39, s45               ; m
s_lshl_b32 s46, s{SX}, 1
s_add_u32 s46, s46, s38
s_lshl_b32 s46, s46, 2
s_add_u32 s46, s46, s44               ; head
s_lshl_b32 s46, s46, 8
s_lshl_b32 s37, s37, 4
s_sub_u32 s37, 624, s37
s_lshl_b32 s37, s37, 13
s_add_u32 s46, s46, s37
s_lshl_b32 s45, s45, 3
s_add_u32 s45, s45, 16
s_load_dwordx2 s[4:5], s[0:1], s45
s_waitcnt lgkmcnt(0)''')
        srd(k, 16, 4, 640*8192)
        k(f'buffer_load_dword v{230+j}, v10, s[16:19], s46 offen\n{sk}:')
    k(f'''s_branch {D}
{H}:
; PROJ die: wave wg = (R-12)*8 + w; tasks wg + 160 j < 480: unit = t / 40, block of 8 rows = t % 40
s_sub_u32 s34, s{SR}, 12
s_lshl_b32 s34, s34, 3
s_add_u32 s34, s34, s{SW}
v_lshrrev_b32 v10, 3, v1
v_and_b32 v11, 7, v1
v_lshlrev_b32 v10, 13, v10
v_lshl_add_u32 v10, v11, 6, v10''')
    for j in range(3):
        k(f'''s_add_u32 s35, s34, {160*j}
s_mul_i32 s36, s35, 1639
s_lshr_b32 s36, s36, 16               ; unit (0..11)
s_mul_i32 s37, s36, 40
s_sub_u32 s37, s35, s37               ; block
s_sub_u32 s38, s{SX}, 4
s_mul_i32 s38, s38, 12
s_add_u32 s38, s38, s36               ; p
s_lshr_b32 s45, s38, 4                ; m
s_and_b32 s46, s38, 15
s_lshl_b32 s46, s46, 9
s_lshl_b32 s37, s37, 3
s_sub_u32 s37, 632, s37
s_lshl_b32 s37, s37, 13
s_add_u32 s46, s46, s37
s_lshl_b32 s45, s45, 3
s_add_u32 s45, s45, 16
s_min_u32 s45, s45, 32
s_load_dwordx2 s[4:5], s[0:1], s45
s_waitcnt lgkmcnt(0)''')
        srd(k, 16, 4, 640*8192)
        k(f'buffer_load_dword v{230+j}, v10, s[16:19], s46 offen')
    k(f'{D}:')

def validate(k, need_par=False):
    L, G, OK = k.lab('val'), k.lab('valg'), k.lab('valok')
    k(f'''s_cmp_lg_u32 s{SSLOW}, 0
s_cbranch_scc1 {OK}
v_lshlrev_b32 v10, 2, v1
s_mov_b32 s39, 0
{L}:
buffer_load_dword v11, v10, {DBG}, 0 offen sc1
s_waitcnt vmcnt(0)
v_cmp_eq_u32 vcc, 32, v11
s_and_b32 s34, vcc_lo, vcc_hi
s_and_b32 s34, s34, 0x5555
s_cmp_eq_u32 s34, 0x5555
s_cbranch_scc0 {G}_s
v_readlane_b32 s{SPAR}, v11, 1
s_mov_b32 s34, 0
{'s_cmp_lg_u32 s' + str(SPAR) + ', 0' if need_par else 's_cmp_eq_u32 s34, 0'}
s_cbranch_scc1 {G}
{G}_s:
s_mov_b32 s36, 0
s_mov_b32 s37, 0
s_mov_b32 s38, 0
s_mov_b32 s34, 0''')
    for i in range(16):
        ln = 4*(i & 3) + 32*((i >> 2) & 1) + 16*(i >> 3)
        k(f'''v_readlane_b32 s35, v11, {ln+2}
s_add_u32 s38, s38, s35
v_readlane_b32 s35, v11, {ln}
s_add_u32 s36, s36, s35
s_cmp_eq_u32 s35, {32 if i < 8 else 0}
s_cselect_b32 s97, 0, 1
s_or_b32 s34, s34, s97
s_cmp_gt_u32 s{SXCC}, {i}
s_cselect_b32 s35, s35, 0
s_add_u32 s37, s37, s35''')
    k(f'''v_readlane_b32 s{SPAR}, v11, 1
s_cmp_eq_u32 s36, 256
s_cselect_b32 s35, s38, 0
s_cmp_eq_u32 s35, 256''')
    if need_par:
        k(f'''s_cselect_b32 s35, s{SPAR}, 0
s_or_b32 s97, s35, s34
s_cmp_eq_u32 s36, 256
s_cselect_b32 s97, s97, 0
s_cmp_eq_u32 s38, 256
s_cselect_b32 s97, s97, 0
s_cmp_lg_u32 s97, 0''')
    k(f'''s_cbranch_scc1 {G}
s_sleep 2
s_add_u32 s39, s39, 1
s_cmp_lt_u32 s39, s{SLIM}
s_cbranch_scc1 {L}
s_mov_b32 s{SLIM}, 0
{G}:
s_and_b32 s{SPAR}, s{SPAR}, 2
s_lshl_b32 s{SPAR}, s{SPAR}, 12
s_cmp_eq_u32 s34, 0
s_cbranch_scc1 {OK}
s_mov_b32 s{SSLOW}, 1
s_mov_b32 s{SPAR}, 0
s_add_u32 s37, s37, s{SRANK}
s_and_b32 s37, s37, 255
s_lshr_b32 s{SX}, s37, 5
s_and_b32 s{SR}, s37, 31
s_barrier
s_branch L_dispatch
{OK}:''')

def calibrate(k):
    NS = OPT['ncal']
    k(f'''s_mov_b64 exec, 1
s_mov_b32 s36, -1
s_mov_b32 s37, -1
v_mov_b32 v9, -1
s_mov_b32 s49, 0
L_cal:
s_and_b32 s48, s49, 3
s_lshl_b32 s38, s{SW}, 2
s_add_u32 s48, s48, s38''')
    for par in range(2):
        k(f'''s_lshl_b32 s38, s48, 8
s_add_u32 s38, s38, {PART + 0x190000 + par*8192:#x}
v_mov_b32 v8, s38
buffer_store_dword v9, v8, {WS}, 0 offen sc1
s_waitcnt vmcnt(0)
s_memtime s[44:45]
s_waitcnt lgkmcnt(0)
buffer_load_dword v9, v8, {WS}, 0 offen sc1
s_waitcnt vmcnt(0)
s_memtime s[46:47]
s_waitcnt lgkmcnt(0)
s_sub_u32 s38, s46, s44
s_min_u32 s{36+par}, s{36+par}, s38''')
    k(f'''s_add_u32 s49, s49, 1
s_cmp_lt_u32 s49, {NS}
s_cbranch_scc1 L_cal
s_sub_u32 s38, s36, s37
s_sub_u32 s39, s37, s36
s_max_i32 s38, s38, s39
s_cmp_ge_u32 s38, 128
s_cbranch_scc1 L_cal_e
s_cmp_lt_u32 s49, {2*NS}
s_cbranch_scc1 L_cal
L_cal_e:
v_mov_b32 v10, s36
v_mov_b32 v11, s37
s_lshl_b32 s38, s{SW}, 3
v_mov_b32 v8, s38
ds_write_b64 v8, v[10:11]
s_waitcnt lgkmcnt(0)
s_mov_b64 exec, -1
s_barrier
s_cmp_lg_u32 s{SW}, 0
s_cbranch_scc1 L_cal_d
v_lshlrev_b32 v8, 2, v1
ds_read_b32 v9, v8
s_waitcnt lgkmcnt(0)
s_mov_b32 s36, -1
s_mov_b32 s37, -1''')
    for w in range(8):
        k(f'v_readlane_b32 s38, v9, {2*w}\ns_min_u32 s36, s36, s38\nv_readlane_b32 s38, v9, {2*w+1}\ns_min_u32 s37, s37, s38')
    k(f'''s_cmp_lt_u32 s36, s37
s_cselect_b32 s38, 0, 1
s_cmp_ge_u32 s{SXCC}, 4
s_cselect_b32 s39, 1, 0
s_xor_b32 s38, s38, s39
s_add_u32 s38, s38, 1
{('s_mov_b32 s38, ' + str(OPT['forcepar'])) if OPT['forcepar'] else ''}
v_mov_b32 v9, s38
v_mov_b32 v8, 4
s_mov_b64 exec, 1
buffer_store_dword v9, v8, {DBG}, 0 offen sc1''')
    if OPT['caldbg'] == 1:
        k(f'''v_mov_b32 v9, s36
v_mov_b32 v8, 12
buffer_store_dword v9, v8, {DBG}, 0 offen
v_mov_b32 v9, s37
v_mov_b32 v8, 20
buffer_store_dword v9, v8, {DBG}, 0 offen''')
    k('s_waitcnt vmcnt(0)\ns_mov_b64 exec, -1\nL_cal_d:')

def par_wait(k):
    L, D = k.lab('pw'), k.lab('pwd')
    k(f'''s_cmp_lg_u32 s{SSLOW}, 0
s_cbranch_scc1 {D}
s_mov_b32 s39, 0
v_mov_b32 v13, 4
{L}:
buffer_load_dword v12, v13, {DBG}, 0 offen sc1
s_waitcnt vmcnt(0)
v_readfirstlane_b32 s{SPAR}, v12
s_cmp_lg_u32 s{SPAR}, 0
s_cbranch_scc1 {L}_g
s_sleep 2
s_add_u32 s39, s39, 1
s_cmp_lt_u32 s39, s{SLIM}
s_cbranch_scc1 {L}
s_mov_b32 s{SLIM}, 0
{L}_g:
s_and_b32 s{SPAR}, s{SPAR}, 2
s_lshl_b32 s{SPAR}, s{SPAR}, 12
{D}:
s_xor_b32 s{SFL0}, s{SPAR}, 8192
s_add_u32 s{SFL1}, s{SFL0}, {FLG1}
s_add_u32 s{SFL0}, s{SFL0}, {FLG0}''')

L_KV, L_MEMF, L_RED = 0, 65536, 65536 + 10240
V_MF = 10
V_MW = 11
VLANE16 = 2
V_A3 = 3
V_A4 = 4
V_A5 = 5
V_A6 = 6
V_A7 = 7
V_A9 = 9
V_IDX = 15
WO, KXR, VXR, QK, VM, S0, S1, SM = 16, 80, 112, 144, 160, 168, 172, 176
PX, PM, PM2, O, OB, OA, NEG = 180, 184, 186, 192, 224, 144, 240
W1, MF, DA, DB = 16, 176, 216, 220
S_HEAD, S_M, S_I, S_G, S_GI = 41, 42, 43, 44, 45
S_MEMN, S_MEMN4, S_MEMN8, S_MEMZ = 46, 47, 48, 49
S_QC, S_QC4, S_QZ = 50, 51, 52
S_PC, S_PZ = 53, 54
S_KP = 55
S_KXN, S_VXN = 56, 57
S_AVAIL = 58
S_KP4 = 59
M_LO8, M_EVEN, M_ODD = 72, 74, 76
S_C, S_NC = 78, 79

def chain_offsets(k, part):
    if 'q' in part:
        k(f"""s_and_b32 s34, s{SSTEP}, 3
s_mul_i32 s{S_QC}, s34, 196608
s_add_u32 s{S_QC}, s{S_QC}, {QKVR}""")
    if 'r' in part:
        k(f"""s_and_b32 s34, s{SSTEP}, 3
s_add_u32 s{S_QC4}, s{S_QC}, 4096
s_mul_i32 s{S_PC}, s34, {8*3*16384}
s_add_u32 s{S_PC}, s{S_PC}, {PART}
s_add_u32 s{S_PC}, s{S_PC}, s{SPAR}
s_add_u32 s35, s{SSTEP}, 2
s_and_b32 s35, s35, 3
s_mul_i32 s{S_QZ}, s35, 196608
s_add_u32 s{S_QZ}, s{S_QZ}, {QKVR}
{'s_add_u32 s35, s' + str(SSTEP) + ', 1' if OPT['pce'] else ''}
{'s_and_b32 s35, s35, 3' if OPT['pce'] else ''}
s_mul_i32 s{S_PZ}, s35, {8*3*16384}
s_add_u32 s{S_PZ}, s{S_PZ}, {PART}
s_add_u32 s{S_PZ}, s{S_PZ}, s{SPAR}
s_mul_i32 s36, s{SX}, 10240
s_add_u32 s36, s36, {MEMR}
s_add_u32 s35, s{SSTEP}, 1
s_and_b32 s35, s35, 3
s_mul_i32 s{S_MEMN}, s35, 40960
s_add_u32 s{S_MEMN}, s{S_MEMN}, s36
s_add_u32 s{S_MEMN4}, s{S_MEMN}, 4096
s_add_u32 s{S_MEMN8}, s{S_MEMN}, 8192
s_add_u32 s35, s{SSTEP}, 3
s_and_b32 s35, s35, 3
s_mul_i32 s{S_MEMZ}, s35, 40960
s_add_u32 s{S_MEMZ}, s{S_MEMZ}, s36
s_mul_i32 s{S_KP}, s{SSTEP}, 196608
s_add_u32 s{S_KP}, s{S_KP}, {KVMP}
s_add_u32 s{S_KP4}, s{S_KP}, 4096
s_add_u32 s35, s{SSTEP}, 1
s_lshl_b32 s35, s35, 18
s_add_u32 s{S_KXN}, s35, {KX}
s_add_u32 s{S_VXN}, s35, {VX}""")

def kv_wait(k, need_sreg):
    D = k.lab('kvok')
    k(f's_cmp_ge_u32 s{S_AVAIL}, s{need_sreg}\ns_cbranch_scc1 {D}')
    L = k.lab('kvp')
    k(f"""s_mov_b32 s39, 0
{L}:
buffer_load_dword v13, v{V_A9}, {WS}, 0 offen sc1
s_waitcnt vmcnt(0)
v_readlane_b32 s34, v13, 0
v_readlane_b32 s35, v13, 1
s_min_u32 s{S_AVAIL}, s34, s35
s_cmp_ge_u32 s{S_AVAIL}, s{need_sreg}
s_cbranch_scc1 {D}
s_sleep 2
s_add_u32 s39, s39, 1
s_cmp_lt_u32 s39, s{SLIM}
s_cbranch_scc1 {L}
s_mov_b32 s{SLIM}, 0
{D}:""")

KVSC = ' sc1'
NOKV = False
def kv_loads(k, skx, svx):
    k(f's_add_u32 s34, s{skx}, 4096\ns_add_u32 s35, s{svx}, 4096')
    for i in range(8):
        k(f'buffer_load_dwordx4 {v(KXR+4*i,4)}, v{V_A4}, {WS}, s{skx if i < 4 else 34} offen offset:{(i%4)*1024}{KVSC}')
    for i in range(8):
        k(f'buffer_load_dwordx4 {v(VXR+4*i,4)}, v{V_A4}, {WS}, s{svx if i < 4 else 35} offen offset:{(i%4)*1024}{KVSC}')

def kv_dma(k, skx, svx, second=False):
    for part, sb in ((0, skx), (1, svx)):
        for hlf in range(2):
            k(f's_add_u32 m0, s60, {part*8192 + hlf*4096 - (16384 if second else 0)}' if not second else f's_sub_u32 m0, s60, {16384 - part*8192 - hlf*4096}')
            if second: k(f's_sub_u32 s34, s{sb}, {8192 - hlf*4096}')
            else: k(f's_add_u32 s34, s{sb}, {hlf*4096}')
            for i in range(4):
                k(f'buffer_load_dwordx4 v8, {WS}, s34 offen offset:{i*1024}{KVSC} lds')

def kv_copies(k, skx, svx):
    A, D = k.lab('kc'), k.lab('kd')
    k(f's_cmp_eq_u32 s{SW}, 6\ns_cbranch_scc1 {D}')
    kv_dma(k, skx, svx)
    k(f's_cmp_eq_u32 s{SW}, 7\ns_cbranch_scc0 {D}')
    kv_dma(k, skx, svx, second=True)
    k(f'{D}:')

def chain_selfproj(k):
    D, A, V_, E = k.lab('sp'), k.lab('spa'), k.lab('spv'), k.lab('spe')
    AC, XF = 176, 192
    k(f"""s_cmp_eq_u32 s{S_M}, 0
s_cbranch_scc1 {D}
s_cmp_lt_u32 s{SW}, 4
s_cbranch_scc1 {A}
v_and_b32 v10, 15, v1
v_mul_u32_u24 v10, 1296, v10
v_lshrrev_b32 v11, 4, v1
v_lshl_add_u32 v10, v11, 4, v10
v_add_u32 v10, 98304, v10
v_lshlrev_b32 v11, 4, v1
s_lshl_b32 s34, s{S_HEAD}, 13
v_add_u32 v11, s34, v11
s_sub_u32 s38, s{SW}, 4
s_cmp_eq_u32 s{S_M}, 2
s_cbranch_scc1 {V_}""")
    for typ in ('K', 'V'):
        if typ == 'V': k(f'{V_}:')
        for ks in range(20):
            b = XF + 8*(ks % 2)
            if ks == 0:
                for tt in range(2): k(f'ds_read_b128 {v(b+4*tt,4)}, v10 offset:{tt*16*1296}')
            if ks + 1 < 20:
                nb = XF + 8*((ks+1) % 2)
                for tt in range(2): k(f'ds_read_b128 {v(nb+4*tt,4)}, v10 offset:{tt*16*1296 + (ks+1)*64}')
            k(f's_waitcnt lgkmcnt({2 if ks + 1 < 20 else 0})')
            for t in range(2):
                for tt in range(2):
                    a = v(AC + 8*t + 4*tt, 4); w = v(W1 + 80*t + 4*ks, 4); x = v(b+4*tt, 4)
                    k(f'v_mfma_f32_16x16x32_bf16 {a}, {w if typ == "K" else x}, {x if typ == "K" else w}, {"0" if ks == 0 else a}')
        P = 208
        if typ == 'K':
            k(f's_lshl_b32 s34, s38, 10\ns_add_u32 s34, s34, {KX}')
            for tt in range(2):
                for t in range(2):
                    a = AC + 8*t + 4*tt
                    k(f'v_cvt_pk_bf16_f32 v{P+4*tt+2*t}, v{a}, v{a+1}\nv_cvt_pk_bf16_f32 v{P+4*tt+2*t+1}, v{a+2}, v{a+3}')
                k(f'v_permlane32_swap_b32 v{P+4*tt}, v{P+4*tt+2}\nv_permlane32_swap_b32 v{P+4*tt+1}, v{P+4*tt+3}')
                k(f'buffer_store_dwordx4 {v(P+4*tt,4)}, v11, {WS}, s34 offen sc1')
                if tt == 0: k('s_add_u32 s34, s34, 4096')
            k(f's_branch {E}')
        else:
            k(f's_lshl_b32 s34, s38, 11\ns_add_u32 s34, s34, {VX}')
            for t in range(2):
                for tt in range(2):
                    a = AC + 8*t + 4*tt
                    k(f'v_cvt_pk_bf16_f32 v{P+4*t+2*tt}, v{a}, v{a+1}\nv_cvt_pk_bf16_f32 v{P+4*t+2*tt+1}, v{a+2}, v{a+3}')
                k(f'buffer_store_dwordx4 {v(P+4*t,4)}, v11, {WS}, s34 offen offset:{t*1024} sc1')
    k(f"""{E}:
s_waitcnt vmcnt(0)
v_mov_b32 v10, 90112
v_mov_b32 v11, 1
s_mov_b64 exec, 1
ds_add_rtn_u32 v11, v10, v11
s_waitcnt lgkmcnt(0)
v_readfirstlane_b32 s35, v11
s_mov_b64 exec, -1
s_cmp_lg_u32 s35, 3
s_cbranch_scc1 {D}
s_lshl_b32 s34, s{S_HEAD}, 1
s_add_u32 s34, s34, s{S_M}
s_sub_u32 s34, s34, 1
s_lshl_b32 s34, s34, 2
s_add_u32 s34, s34, {F_KV0}
s_add_u32 s34, s34, s{SFL0}
v_mov_b32 v10, s34
v_mov_b32 v11, 1
s_mov_b64 exec, 1
buffer_store_dword v11, v10, {WS}, 0 offen sc1
s_mov_b64 exec, -1
s_branch {D}
{A}:
s_waitcnt vmcnt(0)
v_mov_b32 v10, 90112
{A}_w:
ds_read_b32 v11, v10
s_waitcnt lgkmcnt(0)
v_readfirstlane_b32 s35, v11
s_cmp_ge_u32 s35, 4
s_cbranch_scc1 {D}
s_sleep 1
s_branch {A}_w
{D}:""")

TLBW = f'''; first touch of the pages used by the first steps (lines that are written much later, so nothing stale can be read)
s_mov_b32 s34, {KX + 7*262144}
buffer_load_dword v224, v8, {WS}, s34 offen sc1
s_mov_b32 s34, {VX + 7*262144}
buffer_load_dword v225, v8, {WS}, s34 offen sc1
s_mov_b32 s34, {PART + 0x18C000}
buffer_load_dword v226, v2, {WS}, s34 offen sc1
s_mov_b32 s34, {KVMP + 9*196608}
buffer_load_dword v227, v2, {WS}, s34 offen sc1'''
def chain_prologue(k):
    k(f"""
L_chain:
; i = R % 12, gi = R / 12, hl = i / 3, m = i % 3
s_cmp_ge_u32 s{SR}, 12
s_cselect_b32 s{S_GI}, 1, 0
s_mul_i32 s34, s{S_GI}, 12
s_sub_u32 s{S_I}, s{SR}, s34
s_mul_i32 s34, s{S_I}, 11
s_lshr_b32 s34, s34, 5
s_mul_i32 s35, s34, 3
s_sub_u32 s{S_M}, s{S_I}, s35
s_lshl_b32 s{S_G}, s{SX}, 1
s_add_u32 s{S_G}, s{S_G}, s{S_GI}
s_lshl_b32 s35, s{S_G}, 2
s_add_u32 s{S_HEAD}, s35, s34
s_lshl_b32 s34, s{S_M}, 3
s_add_u32 s34, s34, 16
s_load_dwordx2 s[4:5], s[0:1], s34
s_load_dwordx2 s[6:7], s[0:1], 40
s_load_dwordx2 s[36:37], s[0:1], 8
s_waitcnt lgkmcnt(0)""")
    srd(k, 16, 4, 640*8192)
    srd(k, 20, 6, 4096*1280)
    srd(k, 24, 36, 8*1280)
    STG = 176
    k(f"""
v_lshlrev_b32 v{VLANE16}, 4, v1
s_mov_b32 s{M_LO8}, 0x00ff00ff
s_mov_b32 s{M_LO8+1}, 0x00ff00ff
s_mov_b32 s{M_EVEN}, 0x55555555
s_mov_b32 s{M_EVEN+1}, 0x55555555
s_mov_b32 s{M_ODD}, 0xaaaaaaaa
s_mov_b32 s{M_ODD+1}, 0xaaaaaaaa
s_mov_b32 s{S_C}, {f32bits(128**-0.5 * math.log2(math.e)):#x}
s_mov_b32 s{S_NC}, {f32bits(-(128**-0.5) * math.log2(math.e)):#x}
s_mov_b32 s66, s{S_C}
s_mov_b32 s67, s{S_C}
v_and_b32 v10, 8, v1
v_cmp_eq_u32 vcc, 0, v10
v_mov_b32 v10, 0xeeee
v_mov_b32 v11, 0x4444
v_cndmask_b32 v{V_IDX}, v10, v11, vcc
v_mov_b32 v10, 90112
v_mov_b32 v11, 0
ds_write_b32 v10, v11
s_cmp_ge_u32 s{SW}, 4
s_cbranch_scc1 L_ch_ldw""")
    for rnd in range(3):
        k(f"""v_add_u32 v10, {256*rnd}, v0
v_lshrrev_b32 v11, 6, v10
v_bfe_u32 v12, v10, 4, 2
v_and_b32 v13, 7, v10
v_bfe_u32 v14, v10, 3, 1
v_mul_u32_u24 v13, 1280, v13
v_lshl_add_u32 v13, v11, 7, v13
v_lshl_add_u32 v13, v12, 5, v13
v_lshl_add_u32 v13, v14, 2, v13
buffer_load_dword v{144+4*rnd}, v13, s[24:27], 0 offen
buffer_load_dword v{145+4*rnd}, v13, s[24:27], 0 offen offset:8
buffer_load_dword v{146+4*rnd}, v13, s[24:27], 0 offen offset:16
buffer_load_dword v{147+4*rnd}, v13, s[24:27], 0 offen offset:24""")
    if OPT['selfp']:
        k(f"""s_cmp_eq_u32 s{S_M}, 0
s_cbranch_scc1 L_ch_nox
s_load_dwordx2 s[4:5], s[0:1], 0
s_waitcnt lgkmcnt(0)""")
        srd(k, 24, 4, 2048*1280)
        k('v_lshlrev_b32 v10, 4, v0')
        for i in range(10): k(f's_mov_b32 s34, {i*4096}\nbuffer_load_dwordx4 {v(16+4*i,4)}, v10, s[24:27], s34 offen')
        k('L_ch_nox:')
    k(f"""L_ch_ldw:
v_lshrrev_b32 v10, 4, v0
v_and_b32 v11, 15, v0
v_lshlrev_b32 v12, 13, v10
v_lshl_add_u32 v12, v11, 4, v12
s_lshl_b32 s34, s{S_HEAD}, 8
v_add_u32 v12, s34, v12""")
    for c in range(5):
        for kk in range(4):
            k(f's_mov_b32 s34, {(128*c + 32*kk)*8192}\nbuffer_load_dwordx4 {v(STG+16*c+4*kk,4)}, v12, s[16:19], s34 offen')
    k(f's_mov_b32 s63, 0\ns_cmp_ge_u32 s{SW}, 4\ns_cbranch_scc1 L_ch_nowo_ld')
    k(f"""s_cmp_ge_u32 s{S_I}, 10
s_cbranch_scc1 L_ch_nowo_ld
v_lshrrev_b32 v4, 3, v1
v_and_b32 v5, 7, v1
v_mul_u32_u24 v6, 1280, v4
v_lshl_add_u32 v6, v5, 4, v6
s_lshl_b32 s34, s{S_G}, 2
s_add_u32 s34, s34, s{SW}
s_mul_i32 s34, s34, {128*1280}
s_lshl_b32 s35, s{S_I}, 7
s_add_u32 s34, s34, s35
v_add_u32 v6, s34, v6
s_mov_b32 s63, 1""")
    for i in range(16):
        k(f's_mov_b32 s34, {8*i*1280}\nbuffer_load_dwordx4 {v(80+4*i,4)}, v6, s[20:23], s34 offen')
    k('L_ch_nowo_ld:')
    k(f"""
; LDS write address: r*256 + ((c16/2 + f) % 8)*32 + (c16%2)*16, f = 2*(r%4) + ((r>>3)&1)
v_and_b32 v13, 3, v10
v_lshlrev_b32 v13, 1, v13
v_bfe_u32 v14, v10, 3, 1
v_add_u32 v13, v13, v14
v_lshrrev_b32 v14, 1, v11
v_add_u32 v13, v13, v14
v_and_b32 v13, 7, v13
v_lshlrev_b32 v13, 5, v13
v_and_b32 v14, 1, v11
v_lshl_add_u32 v13, v14, 4, v13
v_lshl_add_u32 v13, v10, 8, v13
; transposing read addresses (tiles 2sw, 2sw+1): (8g+rr)*256 + ((te + 2rr + (g&1)) % 8)*32 + 8*(i%4)
v_lshrrev_b32 v10, 4, v1
v_bfe_u32 v11, v1, 2, 2
v_lshl_add_u32 v14, v10, 3, v11
v_lshlrev_b32 v14, 8, v14
v_and_b32 v8, 3, v1
v_lshl_add_u32 v14, v8, 3, v14
v_and_b32 v10, 1, v10
v_lshl_add_u32 v10, v11, 1, v10
s_and_b32 s34, s{SW}, 3
s_lshl_b32 s34, s34, 1
v_add_u32 v10, s34, v10
v_add_u32 v11, 1, v10
v_and_b32 v10, 7, v10
v_and_b32 v11, 7, v11
v_lshl_add_u32 v8, v11, 5, v14
v_lshl_add_u32 v14, v10, 5, v14
v_lshrrev_b32 v10, 3, v1
v_and_b32 v11, 7, v1
v_lshrrev_b32 v4, 1, v11
v_lshrrev_b32 v5, 1, v10
v_add_u32 v4, v4, v5
v_and_b32 v4, 3, v4
v_lshlrev_b32 v4, 5, v4
v_and_b32 v5, 1, v11
v_lshl_add_u32 v4, v5, 4, v4
v_lshl_add_u32 v4, v10, 7, v4
s_lshl_b32 s34, s{SW}, 14
s_add_u32 s34, s34, 98304
v_add_u32 v4, s34, v4
v_lshrrev_b32 v10, 4, v1
v_bfe_u32 v11, v1, 2, 2
v_lshl_add_u32 v6, v10, 2, v11
v_lshlrev_b32 v5, 7, v6
v_add_u32 v5, s34, v5
v_and_b32 v10, 3, v1
v_lshl_add_u32 v5, v10, 3, v5
v_lshrrev_b32 v6, 1, v6""")
    for c in range(5):
        buf = (c % 2)*32768
        wa, wb_ = k.lab('wv'), k.lab('wv')
        k(f's_cmp_eq_u32 s63, 0\ns_cbranch_scc1 {wa}\ns_waitcnt vmcnt({32 - 4*c})\ns_branch {wb_}\n{wa}:\ns_waitcnt vmcnt({16 - 4*c})\n{wb_}:')
        for kk in range(4):
            k(f'ds_write_b128 v13, {v(STG+16*c+4*kk,4)} offset:{buf + kk*8192}')
        k('s_waitcnt lgkmcnt(0)\ns_barrier')
        sa, sk = k.lab('w1a'), k.lab('w1s')
        k(f's_cmp_lt_u32 s{SW}, 4\ns_cbranch_scc1 {sa}')
        for t, ad in ((0, 14), (1, 8)):
            for ksl in range(4):
                for hh in range(2):
                    k(f'ds_read_b64_tr_b16 {v(W1 + 80*t + 4*(4*c+ksl) + 2*hh, 2)}, v{ad} offset:{buf + ksl*8192 + hh*1024}')
            k('s_waitcnt lgkmcnt(0)')
        k(f's_branch {sk}\n{sa}:')
        if c == 0:
            for rnd in range(3):
                k(f'v_add_u32 v10, {256*rnd}, v0\nv_lshlrev_b32 v10, 4, v10\nv_add_u32 v10, {L_MEMF}, v10\nds_write_b128 v10, {v(144+4*rnd,4)}')
            k('s_waitcnt lgkmcnt(0)')
        if c == 0 and OPT['selfp']:
            k(f's_cmp_eq_u32 s{S_M}, 0\ns_cbranch_scc1 {sk}')
            for i in range(10):
                k(f"""v_add_u32 v10, {256*i}, v0
v_mul_u32_u24 v11, 52429, v10
v_lshrrev_b32 v11, 22, v11
v_add_u32 v11, v11, v10
v_lshlrev_b32 v11, 4, v11
v_add_u32 v11, 98304, v11
ds_write_b128 v11, {v(16+4*i,4)}""")
            k('s_waitcnt lgkmcnt(0)')
        k(f'{sk}:')
    k('s_barrier')
    validate(k)
    par_wait(k)
    if OPT['selfp']: chain_selfproj(k)
    if True:
        sk = k.lab('wo')
        k(f's_cmp_ge_u32 s{SW}, 4\ns_cbranch_scc1 {sk}\ns_cmp_ge_u32 s{S_I}, 10\ns_cbranch_scc1 {sk}\ns_waitcnt vmcnt(0)')
        for i in range(16): k(f'ds_write_b128 v4, {v(80+4*i,4)} offset:{i*1024}')
        k('s_waitcnt lgkmcnt(0)')
        for ct in range(4):
            k(f'v_add_u32 v10, {ct}, v6\nv_and_b32 v10, 3, v10\nv_lshl_add_u32 v10, v10, 5, v5')
            for ks in range(4):
                for hh in range(2):
                    k(f'ds_read_b64_tr_b16 {v(WO + 16*ct + 4*ks + 2*hh, 2)}, v10 offset:{(32*ks + 16*hh)*128}')
            k('s_waitcnt lgkmcnt(0)')
        k(f'{sk}:')
    k(f"""s_mov_b32 s68, {OPT['adp']}
s_mov_b32 s69, 0
s_mov_b32 s65, 0
s_mov_b32 s63, 0
s_mov_b32 s{SSTEP}, 0
s_mov_b32 s{S_AVAIL}, 0
s_cmp_ge_u32 s{SW}, 4
s_cbranch_scc1 L_ch_pS
s_lshl_b32 s34, s{S_G}, 2
s_add_u32 s34, s34, s{SW}
s_mul_i32 s35, s34, 6144
v_add_u32 v{V_A3}, s35, v{VLANE16}
s_lshl_b32 s35, s34, 13
v_add_u32 v{V_A4}, s35, v{VLANE16}
s_lshl_b32 s35, s{SW}, 11
s_add_u32 s35, s35, {L_RED}
v_add_u32 v{V_A5}, s35, v{VLANE16}
s_lshl_b32 s35, s{SW}, 14
s_add_u32 s35, s35, {L_KV}
s_lshr_b32 s34, s34, 1
v_and_b32 v10, 1, v1
v_lshlrev_b32 v10, 4, v10
v_add_u32 v10, s34, v10
v_add_u32 v10, 16, v10
v_lshlrev_b32 v{V_A9}, 7, v10
v_add_u32 v{V_A9}, {F_PROJ}, v{V_A9}
v_add_u32 v{V_A9}, s{SFL0}, v{V_A9}
v_cmp_gt_u32 vcc, 32, v1
v_mov_b32 v10, 0
v_mov_b32 v11, 0xf149f2ca
v_cndmask_b32 v{NEG}, v10, v11, vcc
v_mov_b32 v{NEG+1}, v{NEG}
v_mov_b32 v{NEG+2}, v{NEG}
v_mov_b32 v{NEG+3}, v{NEG}
v_add_u32 v14, s35, v{VLANE16}
s_branch L_ch_pD
L_ch_pS:
s_sub_u32 s38, s{SW}, 4               ; sw
s_lshl_b32 s34, s38, 10
v_add_u32 v{V_A3}, s34, v{VLANE16}
v_and_b32 v10, 15, v1                 ; e16
v_bfe_u32 v11, v1, 4, 1               ; gg
v_lshrrev_b32 v12, 5, v1              ; hi
s_mul_i32 s36, s{S_HEAD}, 6144
s_cmp_eq_u32 s{S_M}, 2
s_cbranch_scc1 L_ch_qst_v
; q/k unit: row = 4gg + hi + 2*(e16&1) (+8 for k); g = 2*(te%2) + (e16/4)%2; j0 = 4*(e16/8) + (e16 & 2)
v_lshl_add_u32 v13, v11, 2, v12
v_and_b32 v14, 1, v10
v_lshl_add_u32 v13, v14, 1, v13
s_lshl_b32 s34, s{S_M}, 3
v_add_u32 v13, s34, v13
v_bfe_u32 v14, v10, 2, 1
v_lshl_add_u32 v13, v14, 4, v13
v_lshlrev_b32 v13, 4, v13
v_lshrrev_b32 v14, 3, v10
v_lshl_add_u32 v13, v14, 3, v13
v_and_b32 v14, 2, v10
v_lshl_add_u32 v13, v14, 1, v13
s_lshl_b32 s34, s38, 10
s_add_u32 s34, s34, s36
v_add_u32 v{V_A4}, s34, v13
v_add_u32 v{V_A5}, 512, v{V_A4}
s_branch L_ch_qst_done
L_ch_qst_v:
; v unit: 4096 + u*1024 + clane*16 + (sw%2)*8 + hi*4; clane = 32 + gg*16 + e16 (even tile), gg*16 + e16 (odd tile)
v_lshl_add_u32 v13, v11, 4, v10
v_lshlrev_b32 v13, 4, v13
v_lshl_add_u32 v13, v12, 2, v13
s_and_b32 s34, s38, 1
s_lshl_b32 s34, s34, 3
s_lshr_b32 s35, s38, 1
s_lshl_b32 s35, s35, 10
s_add_u32 s34, s34, s35
s_add_u32 s34, s34, 4096
s_add_u32 s34, s34, s36
v_add_u32 v{V_A5}, s34, v13
v_add_u32 v{V_A4}, 512, v{V_A5}
L_ch_qst_done:
s_mov_b32 s34, 524288
buffer_load_dword v224, v{V_A4}, {WS}, s34 offen sc1
buffer_load_dword v225, v{V_A5}, {WS}, s34 offen sc1
s_mov_b32 s34, 720896
buffer_load_dword v224, v{V_A4}, {WS}, s34 offen sc1
buffer_load_dword v225, v{V_A5}, {WS}, s34 offen sc1
s_mov_b32 s34, 917504
buffer_load_dword v224, v{V_A4}, {WS}, s34 offen sc1
buffer_load_dword v225, v{V_A5}, {WS}, s34 offen sc1
s_mov_b32 s34, 1114112
buffer_load_dword v224, v{V_A4}, {WS}, s34 offen sc1
buffer_load_dword v225, v{V_A5}, {WS}, s34 offen sc1
v_mov_b32 v216, 0
v_mov_b32 v217, 0
v_mov_b32 v218, 0
v_mov_b32 v219, 0
v_mov_b32 v220, 0
v_mov_b32 v221, 0
v_mov_b32 v222, 0
v_mov_b32 v223, 0
v_bfe_u32 v10, v1, 2, 3               ; r
v_lshrrev_b32 v13, 5, v1              ; c / 4
v_and_b32 v12, 3, v1                  ; c % 4
v_lshl_add_u32 v11, v13, 2, v12       ; c
v_lshlrev_b32 v12, 4, v12
v_lshl_add_u32 v12, v13, 3, v12
v_add_u32 v12, v12, v10
v_lshlrev_b32 v12, 4, v12
s_and_b32 s35, s38, 1
s_lshl_b32 s36, s35, 10
s_add_u32 s36, s36, {L_RED}
v_add_u32 v{V_A6}, s36, v12
s_lshl_b32 s36, s{S_I}, 1
s_add_u32 s36, s36, s35               ; j = 2i + (wave&1)
s_lshr_b32 s37, s36, 3
s_lshl_b32 s37, s37, 14
s_add_u32 s36, s36, s{S_G}
s_and_b32 s36, s36, 7
s_lshl_b32 s36, s36, 10
s_add_u32 s36, s36, s37
s_mul_i32 s37, s{S_G}, 49152
s_add_u32 s36, s36, s37
v_add_u32 v{V_A7}, s36, v{VLANE16}
s_lshl_b32 s34, s{S_G}, 2
s_add_u32 s34, s34, s38
s_lshl_b32 s35, s34, 13
v_add_u32 v8, s35, v{VLANE16}
s_lshl_b32 s60, s38, 14
s_add_u32 s60, s60, {L_KV}
s_lshr_b32 s34, s34, 1
v_and_b32 v9, 1, v1
v_lshlrev_b32 v9, 4, v9
v_add_u32 v9, s34, v9
v_add_u32 v9, 16, v9
v_lshlrev_b32 v{V_A9}, 7, v9
v_add_u32 v{V_A9}, {F_PROJ}, v{V_A9}
v_add_u32 v{V_A9}, s{SFL0}, v{V_A9}
s_cmp_ge_u32 s{S_I}, 10
s_cbranch_scc1 L_ch_nok0
{TLBW if OPT['tlbw'] else ''}
s_mov_b32 s36, 1""")
    if OPT['selfp'] or OPT['mini']:
        from attout import flag_wait
        from layout import F_KV12
        k(f"""s_lshl_b32 s34, s{S_G}, 2
s_add_u32 s34, s34, s38
{'s_cmp_eq_u32 s' + str(SW) + ', 7'}
s_cselect_b32 s35, 1, 0
s_sub_u32 s34, s34, s35
s_lshl_b32 s34, s34, 3
s_add_u32 s34, s34, {F_KV12 if OPT['mini'] else F_KV0}
s_add_u32 s34, s34, s{SFL0}
v_lshlrev_b32 v12, 2, v1
v_add_u32 v12, s34, v12""")
        flag_wait(k, 'kv0', 12, 4, 36, tmp=13, sleep=1)
    else: kv_wait(k, 36)
    k(f's_mov_b32 s36, {KX}\ns_mov_b32 s37, {VX}')
    kv_copies(k, 36, 37)
    if OPT['mini']:
        from layout import F_KV12
        k('v_mov_b32 v238, v12')
    k(f"""s_waitcnt vmcnt(0)
L_ch_nok0:
s_cmp_lg_u32 s{SW}, 6
s_cbranch_scc1 L_ch_pD
s_mul_i32 s36, s{S_GI}, 10
s_add_u32 s36, s36, s{S_I}            ; j
s_lshr_b32 s37, s36, 3
s_lshl_b32 s37, s37, 14""")
    for g in range(8):
        k(f"""s_add_u32 s35, s36, {g}
s_and_b32 s35, s35, 7
s_lshl_b32 s35, s35, 10
s_add_u32 s35, s35, s37
s_add_u32 s35, s35, {g*49152}
v_add_u32 v{240+g}, s35, v{VLANE16}""")
    k(f"""
s_lshl_b32 s36, s36, 5                ; 32j
v_lshl_add_u32 v12, v11, 2, s36       ; d0
v_lshrrev_b32 v13, 6, v12
v_lshlrev_b32 v13, 10, v13
v_bfe_u32 v14, v12, 4, 2
v_lshl_add_u32 v14, v14, 4, v10
v_lshl_add_u32 v13, v14, 4, v13
v_bfe_u32 v14, v12, 2, 2
v_lshl_add_u32 v{V_A6}, v14, 2, v13
L_ch_pD:
v_add_u32 v{V_MF}, {L_MEMF}, v{VLANE16}
v_add_u32 v{V_MW}, {L_MEMF}, v{V_A3}""")
    k('s_waitcnt vmcnt(0) lgkmcnt(0)')

def delay(k, clks):
    if OPT['slp']:
        n = clks // 64
        while n > 0:
            m_ = min(n, 127); k(f's_sleep {m_}'); n -= m_
        clks = clks % 64
    n = clks // 4
    while n > 0:
        m_ = min(n, 16); k(f's_nop {m_-1}'); n -= m_

def vdelay(k, sreg):
    L = k.lab('vd')
    k(f's_mov_b32 s34, s{sreg}\n{L}:\ns_sleep 1\ns_sub_u32 s34, s34, 1\ns_cmp_lg_u32 s34, 0\ns_cbranch_scc1 {L}')

def adapt(k, sreg, scnt, sretry, lo, hi, up, every):
    A, D = k.lab('ad'), k.lab('add')
    k(f"""s_cmp_eq_u32 s{sretry}, 0
s_cbranch_scc1 {A}
s_add_u32 s{sreg}, s{sreg}, {up}
s_min_u32 s{sreg}, s{sreg}, {hi}
s_mov_b32 s{scnt}, 0
s_branch {D}
{A}:
s_add_u32 s{scnt}, s{scnt}, 1
s_cmp_lt_u32 s{scnt}, {every}
s_cbranch_scc1 {D}
s_mov_b32 s{scnt}, 0
s_sub_u32 s{sreg}, s{sreg}, 1
s_max_u32 s{sreg}, s{sreg}, {lo}
{D}:""")

OPT = dict(dq=256, dp=512, dm=128, warm=1, dd=320, dw=1024, da=192, clrlate=0, lite=0, bsleep=0, osleep=0, xwarm=0, ds1=2048, place=0, sx=0, sm=0, sq=0, so=64, la=8, lb=56, help=0, dk=1024, outsc=0, ncal=4, caldbg=0, calsleep=0, forcepar=0, dv=64, slp=0, p2=0, selfp=1, fakex=0, prio=1, p3=0, wnt=0, psleep=0, mini=1, two=0, ack=0, tlbw=0, adp=0, adlo=8, adhi=18, adup=2, adev=6, dpe=0, dpn=20, dqe=0, asy=0, osl=3, obsc=1, pce=0, cpf=0)
def interleave(k, mf, va, per=2):
    va = list(va)
    for m in mf:
        k(m)
        for _ in range(per):
            if va: k(va.pop(0))
    for x in va: k(x)

def chain_loop(k, sc, prof, tag, qdelay=0):
    T = tag
    late = []
    k(f'L_entry{T}:')
    NA = 4 if OPT['two'] else 0
    def s1_mfma(i):
        k(f'v_smfmac_f32_16x16x64_bf16 {v(DA,4)}, {v(MF+4*i,4)}, {v(W1+8*i,8)}, v{V_IDX}')
        k(f'v_smfmac_f32_16x16x64_bf16 {v(DB,4)}, {v(MF+4*i,4)}, {v(W1+80+8*i,8)}, v{V_IDX}')
    if OPT['two']:
        k(f's_barrier\ns_cmp_lt_u32 s{SW}, 4\ns_cbranch_scc1 L_step{T}')
        for i in range(NA): k(f'ds_read_b128 {v(MF+4*i,4)}, v{V_MF} offset:{i*1024}')
        k('s_waitcnt lgkmcnt(0)')
    k(f'L_step{T}:')
    k('s_barrier')
    k(f's_cmp_lt_u32 s{SW}, 4\ns_cbranch_scc1 L_aw{T}')
    if OPT['prio']: k('s_setprio 3')
    if OPT['p3']: k('s_memtime s[80:81]')
    for i in range(NA, 10): k(f'ds_read_b128 {v(MF+4*i,4)}, v{V_MF} offset:{i*1024}')
    for i in range(NA): s1_mfma(i)
    chain_offsets(k, 'q')
    for i in range(NA, 10):
        k(f's_waitcnt lgkmcnt({9-i})'); s1_mfma(i)
    if OPT['p3']: k('s_memtime s[82:83]')
    k(f"""s_cmp_eq_u32 s{S_M}, 2
s_mov_b64 vcc, s[{M_EVEN}:{M_EVEN+1}]
v_permlane32_swap_b32 v{DA}, v{DA+1}
v_permlane32_swap_b32 v{DA+2}, v{DA+3}
v_add_f32 v{DA}, v{DA}, v{DA+1}
v_add_f32 v{DA+2}, v{DA+2}, v{DA+3}
v_permlane32_swap_b32 v{DB}, v{DB+1}
v_permlane32_swap_b32 v{DB+2}, v{DB+3}
v_add_f32 v{DB}, v{DB}, v{DB+1}
v_add_f32 v{DB+2}, v{DB+2}, v{DB+3}
s_cbranch_scc1 L_s1v{T}
v_cndmask_b32_dpp v224, v{DA+2}, v{DA}, vcc quad_perm:[1,0,3,2] row_mask:0xf bank_mask:0xf
v_cndmask_b32_dpp v226, v{DB+2}, v{DB}, vcc quad_perm:[1,0,3,2] row_mask:0xf bank_mask:0xf
s_mov_b64 vcc, s[{M_ODD}:{M_ODD+1}]
v_cndmask_b32_dpp v225, v{DA}, v{DA+2}, vcc quad_perm:[1,0,3,2] row_mask:0xf bank_mask:0xf
v_cndmask_b32_dpp v227, v{DB}, v{DB+2}, vcc quad_perm:[1,0,3,2] row_mask:0xf bank_mask:0xf
v_cvt_pk_bf16_f32 v12, v224, v225
v_cvt_pk_bf16_f32 v13, v226, v227
s_branch L_s1s{T}
L_s1v{T}:
v_cvt_pk_bf16_f32 v12, v{DA}, v{DA+2}
v_cvt_pk_bf16_f32 v13, v{DB}, v{DB+2}
L_s1s{T}:
buffer_store_dword v12, v{V_A4}, {WS}, s{S_QC} offen{sc}
buffer_store_dword v13, v{V_A5}, {WS}, s{S_QC} offen{sc}""")
    if OPT['p3']: k('s_memtime s[84:85]')
    k(f"""s_cmp_eq_u32 s{SSTEP}, 63
s_cbranch_scc1 L_fin
s_cmp_ge_u32 s{S_I}, 10
s_cbranch_scc1 L_s1only{T}
{'s_waitcnt vmcnt(0)' if OPT['ack'] & 1 else ''}
s_barrier""")
    if OPT['prio']: k('s_setprio 0')
    chain_offsets(k, 'r')
    clr = f"""v_mov_b32 v14, -1
buffer_store_dword v14, v{V_A4}, {WS}, s{S_QZ} offen{sc}
buffer_store_dword v14, v{V_A5}, {WS}, s{S_QZ} offen{sc}"""
    k(clr)
    if OPT['pce']:
        pc = k.lab('pce')
        k(f"""s_cmp_ge_u32 s{SW}, 6
s_cbranch_scc1 {pc}
v_mov_b32 v180, -1
v_mov_b32 v181, -1
v_mov_b32 v182, -1
v_mov_b32 v183, -1
buffer_store_dwordx4 v[180:183], v{V_A7}, {WS}, s{S_PZ} offen sc1
{pc}:""")
    for i in range(8): k(f'v_mov_b32 v{DA+i}, 0')
    KL, KP = k.lab('kvl'), k.lab('kvq')
    if OPT['asy']:
        n1, n2 = k.lab('as'), k.lab('as')
        k(f"""s_cmp_eq_u32 s63, 0
s_cbranch_scc1 {n1}
v_readlane_b32 s34, v237, 0
v_readlane_b32 s35, v237, 1
s_min_u32 s34, s34, s35
s_max_u32 s{S_AVAIL}, s{S_AVAIL}, s34
s_mov_b32 s63, 0
{n1}:
s_add_u32 s34, s{SSTEP}, {OPT['asy']}
s_cmp_ge_u32 s{S_AVAIL}, s34
s_cbranch_scc1 {n2}
s_cmp_eq_u32 s{SW}, 6
s_cbranch_scc1 {n2}
buffer_load_dword v237, v{V_A9}, {WS}, 0 offen sc1
s_mov_b32 s63, 1
{n2}:""")
    k(f's_add_u32 s61, s{SSTEP}, 2\ns_mov_b32 s62, 1\ns_cmp_ge_u32 s{S_AVAIL}, s61\ns_cbranch_scc1 {KL}')
    if OPT['mini']:
        K12 = k.lab('k12')
        k(f"""s_cmp_gt_u32 s61, 3
s_cbranch_scc1 {K12}
buffer_load_dword v13, v238, {WS}, 0 offen sc1
s_waitcnt vmcnt(0)
v_readlane_b32 s34, v13, 0
v_readlane_b32 s35, v13, 1
s_min_u32 s34, s34, s35
v_readlane_b32 s35, v13, 2
s_min_u32 s34, s34, s35
v_readlane_b32 s35, v13, 3
s_min_u32 s34, s34, s35
s_mov_b32 s{S_AVAIL}, s34
s_cmp_ge_u32 s{S_AVAIL}, s61
s_cselect_b32 s62, 1, 0
s_branch {KP}
{K12}:""")
    k(f"""buffer_load_dword v13, v{V_A9}, {WS}, 0 offen sc1
s_waitcnt vmcnt(0)
v_readlane_b32 s34, v13, 0
v_readlane_b32 s35, v13, 1
s_min_u32 s{S_AVAIL}, s34, s35
s_cmp_ge_u32 s{S_AVAIL}, s61
s_cselect_b32 s62, 1, 0
s_branch {KP}
{KL}:""")
    delay(k, OPT['dd'])
    k(f'{KP}:')
    KS = k.lab('kvs')
    k(f's_cmp_eq_u32 s62, 0\ns_cbranch_scc1 {KS}')
    if not NOKV: kv_copies(k, S_KXN, S_VXN)
    k(f'{KS}:')
    if OPT['prio']: k('s_setprio 3')
    k('s_barrier')
    if OPT['p3']: k('s_memtime s[86:87]')
    k(f's_cmp_ge_u32 s{SW}, 6\ns_cbranch_scc1 L_bw6{T}')
    for w in range(4): k(f'ds_read_b128 {v(176+4*w,4)}, v{V_A6} offset:{w*2048}')
    k(f"""s_waitcnt lgkmcnt(2)
v_pk_add_f32 v[176:177], v[176:177], v[180:181]
v_pk_add_f32 v[178:179], v[178:179], v[182:183]
s_waitcnt lgkmcnt(0)
v_pk_add_f32 v[184:185], v[184:185], v[188:189]
v_pk_add_f32 v[186:187], v[186:187], v[190:191]
v_pk_add_f32 v[176:177], v[176:177], v[184:185]
v_pk_add_f32 v[178:179], v[178:179], v[186:187]
{'s_waitcnt vmcnt(16)' if OPT['pce'] else ''}
buffer_store_dwordx4 v[176:179], v{V_A7}, {WS}, s{S_PC} offen sc1
{'s_memtime s[88:89]' if OPT['p3'] else ''}
v_mov_b32 v180, -1
v_mov_b32 v181, -1
v_mov_b32 v182, -1
v_mov_b32 v183, -1
""")
    clrp = f'buffer_store_dwordx4 v[180:183], v{V_A7}, {WS}, s{S_PZ} offen sc1' if not OPT['pce'] else ''
    if OPT['ack'] & 4:
        k(f's_waitcnt vmcnt(0)\ns_barrier\n{clrp}')
        k(f's_branch L_b3{T}\nL_bw6{T}:\ns_barrier')
    else:
        k(clrp)
        k(f's_branch L_b3{T}\nL_bw6{T}:')
    k(f's_cmp_lg_u32 s{SW}, 6\ns_cbranch_scc1 L_b3{T}')
    if OPT['adp']: vdelay(k, 68)
    elif OPT['dpe']:
        e1, e2 = k.lab('dpe'), k.lab('dpf')
        k(f's_cmp_ge_u32 s{SSTEP}, {OPT["dpn"]}\ns_cbranch_scc1 {e1}')
        delay(k, OPT['dpe'])
        k(f's_branch {e2}\n{e1}:')
        delay(k, OPT['dp'])
        k(f'{e2}:')
    else: delay(k, OPT['dp'])
    if OPT['p3']: k('s_memtime s[88:89]')
    spins = []
    for g in range(8): k(f'buffer_load_dwordx4 {v(176+4*g,4)}, v{240+g}, {WS}, s{S_PC} offen sc1')
    PR, PC, PB = k.lab('pps'), k.lab('ppc'), k.lab('ppb')
    k(f's_mov_b32 s39, 0\n{PC}:')
    for g in range(8):
        k(f's_waitcnt vmcnt({7-g})')
        if g == 0: k('v_mov_b32 v224, v176')
        else:
            k(f'v_max_u32 v224, v224, v{176+4*g}')
            k(f'v_pk_add_f32 v[176:177], v[176:177], {v(176+4*g,2)}\nv_pk_add_f32 v[178:179], v[178:179], {v(178+4*g,2)}')
    k(f'v_cmp_eq_u32 vcc, -1, v224\ns_cbranch_vccnz {PR}\n{PB}:')
    spins.append((PR, PC, PB, [f'buffer_load_dwordx4 {v(176+4*gg,4)}, v{240+gg}, {WS}, s{S_PC} offen sc1' for gg in range(8)], OPT['sx']))
    if OPT['p3']: k('s_memtime s[90:91]')
    if OPT['adp']: k('s_mov_b32 s65, s39')
    k(f"""v_cvt_pk_bf16_f32 v176, v176, v177
v_cvt_pk_bf16_f32 v177, v178, v179
buffer_store_dword v176, v{V_A6}, {WS}, s{S_MEMN} offen{sc}
buffer_store_dword v177, v{V_A6}, {WS}, s{S_MEMN} offen offset:128{sc}
{'s_waitcnt vmcnt(0)' if OPT['ack'] & 2 else ''}
L_b3{T}:
{'s_memtime s[92:93]' if OPT['p3'] else ''}
s_barrier
{'s_memtime s[94:95]' if OPT['p3'] else ''}""")
    SG = 224
    def mem_poll(sleep):
        A, D = k.lab('mA'), k.lab('mD')
        k(f's_cmp_ge_u32 s{SW}, 6\ns_cbranch_scc1 {A}')
        for n in (3, 2):
            srcs = [S_MEMN, S_MEMN4, S_MEMN8][:n]
            for i, sr in enumerate(srcs): k(f'buffer_load_dwordx4 {v(SG+4*i,4)}, v{V_A3}, {WS}, s{sr} offen sc1')
            k('s_mov_b32 s39, 0')
            for i, sr in enumerate(srcs):
                R_, C_, B_ = k.lab('pms'), k.lab('pmc'), k.lab('pmb')
                k(f"""{C_}:
s_waitcnt vmcnt({n-1-i})
v_max3_u32 v236, v{SG+4*i}, v{SG+1+4*i}, v{SG+2+4*i}
v_max_u32 v236, v236, v{SG+3+4*i}
v_cmp_eq_u32 vcc, -1, v236
s_cbranch_vccnz {R_}
{B_}:
ds_write_b128 v{V_MW}, {v(SG+4*i,4)} offset:{i*4096}""")
                spins.append((R_, C_, B_, [f'buffer_load_dwordx4 {v(SG+4*ii,4)}, v{V_A3}, {WS}, s{srcs[ii]} offen sc1' for ii in range(i, n)], OPT['sm'] if sleep == 0 else OPT['so']))
                if i == 0 and OPT['two']:
                    k('s_waitcnt lgkmcnt(0)\ns_barrier')
                    for f in range(NA): k(f'ds_read_b128 {v(MF+4*f,4)}, v{V_MF} offset:{f*1024}')
            if n == 3: k(f's_branch {D}\n{A}:')
        k(f'{D}:')
    if prof: k('s_memrealtime s[94:95]')
    if OPT['adp']:
        nz = k.lab('adz')
        k(f's_cmp_lg_u32 s{SW}, 6\ns_cbranch_scc1 {nz}')
        adapt(k, 68, 69, 65, OPT['adlo'], OPT['adhi'], OPT['adup'], OPT['adev'])
        k(f'{nz}:')
    delay(k, OPT['dm'])
    mem_poll(0)
    if OPT['p3']: k('s_memtime s[96:97]')
    KZ = k.lab('kvz')
    k(f's_cmp_lg_u32 s62, 0\ns_cbranch_scc1 {KZ}')
    if OPT['mini']:
        from attout import flag_wait
        KA, KB_ = k.lab('k12a'), k.lab('k12b')
        k(f's_cmp_gt_u32 s61, 3\ns_cbranch_scc1 {KA}')
        flag_wait(k, 'k12w', 238, 4, 61, tmp=13, sleep=1)
        k(f's_mov_b32 s{S_AVAIL}, s61\ns_branch {KB_}\n{KA}:')
        kv_wait(k, 61)
        k(f'{KB_}:')
    else: kv_wait(k, 61)
    if not NOKV: kv_copies(k, S_KXN, S_VXN)
    k(f's_waitcnt vmcnt(0)\n{KZ}:')
    k(f"""s_cmp_lg_u32 s{SW}, 6
s_cbranch_scc1 L_next{T}
v_mov_b32 v14, -1
buffer_store_dword v14, v{V_A6}, {WS}, s{S_MEMZ} offen{sc}
buffer_store_dword v14, v{V_A6}, {WS}, s{S_MEMZ} offen offset:128{sc}
L_next{T}:""")
    if prof:
        k('s_memrealtime s[96:97]\ns_waitcnt lgkmcnt(0)\ns_mov_b32 m0, s40')
        pA, pD = k.lab('pfA'), k.lab('pfD')
        k(f's_cmp_lt_u32 s{SW}, 4\ns_cbranch_scc1 {pA}')
        for n, r in enumerate((80, 82, 88, 90, 92, 94, 96)): k(f'v_writelane_b32 v{248+n}, s{r}, m0')
        k('s_lshl_b32 s63, s63, 16\ns_or_b32 s63, s63, s64\nv_writelane_b32 v255, s63, m0')
        k(f's_branch {pD}\n{pA}:')
        for n, r in enumerate((80, 84, 86, 96)): k(f'v_writelane_b32 v{252+n}, s{r}, m0')
        pass
        k(f'{pD}:')
    if OPT['p3']:
        pz = k.lab('p3z')
        k(f's_cmp_lt_u32 s{SW}, 4\ns_cbranch_scc1 {pz}\ns_waitcnt lgkmcnt(0)\ns_memtime s[64:65]\ns_waitcnt lgkmcnt(0)\ns_mov_b32 m0, s40')
        for n in range(8): k(f's_sub_u32 s34, s{82+2*n}, s{80+2*n}\nv_writelane_b32 v{248+n}, s34, m0')
        k('s_sub_u32 s34, s64, s96\nv_writelane_b32 v239, s34, m0')
        k(f'{pz}:')
    if OPT['lite']:
        l1, l2 = k.lab('lt'), k.lab('lt')
        k(f"""s_cmp_eq_u32 s{SSTEP}, {OPT['la']}
s_cbranch_scc0 {l1}
s_memrealtime s[90:91]
s_memtime s[94:95]
{l1}:
s_cmp_eq_u32 s{SSTEP}, {OPT['lb']}
s_cbranch_scc0 {l2}
s_memrealtime s[92:93]
s_memtime s[96:97]
{l2}:""")
    if OPT['lite'] > 1:
        k(f's_memrealtime s[88:89]\ns_waitcnt lgkmcnt(0)\ns_mov_b32 m0, s{SSTEP}\nv_writelane_b32 v254, s88, m0')
    if DBGST:
        l4 = k.lab('d4')
        k(f's_cmp_lg_u32 s{SSTEP}, 4\ns_cbranch_scc1 {l4}')
        dstamp(k, 13, 0, 0, 6)
        k(f'{l4}:')
    k(f"""s_waitcnt lgkmcnt(0)
s_add_u32 s{SSTEP}, s{SSTEP}, 1
s_branch L_step{T}""")
    k(f'L_s1only{T}:')
    chain_offsets(k, 'r')
    k('s_mov_b32 s62, 1')
    k(f"""v_mov_b32 v14, -1
buffer_store_dword v14, v{V_A4}, {WS}, s{S_QZ} offen{sc}
buffer_store_dword v14, v{V_A5}, {WS}, s{S_QZ} offen{sc}""")
    for i in range(8): k(f'v_mov_b32 v{DA+i}, 0')
    delay(k, OPT['ds1'])
    mem_poll(1)
    k(f's_branch L_next{T}')
    k(f'L_aw{T}:')
    if OPT['prio']: k('s_setprio 2')
    chain_offsets(k, 'qr')
    k(f"""s_cmp_ge_u32 s{S_I}, 10
s_cbranch_scc1 L_aidle{T}
s_cmp_eq_u32 s{SSTEP}, 63
s_cbranch_scc1 L_fin""")
    if prof: k('s_memrealtime s[80:81]')
    delay(k, OPT['da'])
    for i in range(8): k(f'ds_read_b128 {v(KXR+4*i,4)}, v14 offset:{i*1024}')
    k('s_waitcnt lgkmcnt(0)')
    for i in range(8): k(f'ds_read_b128 {v(VXR+4*i,4)}, v14 offset:{8192 + i*1024}')
    k('s_waitcnt lgkmcnt(0)')
    k('s_barrier')
    if OPT['dqe']:
        e1, e2 = k.lab('dqe'), k.lab('dqf')
        k(f's_cmp_ge_u32 s{SSTEP}, {OPT["dpn"]}\ns_cbranch_scc1 {e1}')
        delay(k, OPT['dqe'])
        k(f's_branch {e2}\n{e1}:')
        delay(k, OPT['dq'])
        k(f'{e2}:')
    else: delay(k, OPT['dq'])
    k('s_mov_b32 s39, 0')
    for ks in range(4): k(f'buffer_load_dwordx4 {v(QK+4*ks,4)}, v{V_A3}, {WS}, s{S_QC} offen offset:{ks*1024} sc1')
    delay(k, OPT['dv'])
    for u in range(2): k(f'buffer_load_dwordx4 {v(VM+4*u,4)}, v{V_A3}, {WS}, s{S_QC4} offen offset:{u*1024} sc1')
    k('s_waitcnt vmcnt(2)')
    LQM = k.lab('pqm')
    k(f'{LQM}:')
    if OPT['p2']: k('s_memtime s[80:81]')
    mf = []
    for ks in range(4): mf.append(f'v_mfma_f32_16x16x32_bf16 {v(S0,4)}, {v(KXR+4*ks,4)}, {v(QK+4*ks,4)}, {"0" if ks == 0 else v(S0,4)}')
    for ks in range(4): mf.append(f'v_mfma_f32_16x16x32_bf16 {v(S1,4)}, {v(KXR+16+4*ks,4)}, {v(QK+4*ks,4)}, {"0" if ks == 0 else v(S1,4)}')
    for ks in range(4): mf.append(f'v_mfma_f32_16x16x32_bf16 {v(SM,4)}, {v(QK+4*ks,4)}, {v(QK+4*ks,4)}, {v(NEG,4) if ks == 0 else v(SM,4)}')
    chk = [f'v_max3_u32 v244, v{QK}, v{QK+1}, v{QK+2}'] + [f'v_max3_u32 v244, v244, v{QK+3+2*n}, v{QK+4+2*n}' for n in range(6)] + [f'v_max_u32 v244, v244, v{QK+15}']
    interleave(k, mf[:4], chk)
    k(mf[4]); k('v_cmp_eq_u32 vcc, -1, v244')
    QR = k.lab('pqr')
    k(mf[5]); k(f's_cbranch_vccnz {QR}')
    qspin = (QR, LQM)
    LQX = k.lab('pqx')
    k(f'{LQX}:')
    k(mf[6]); k(f'v_mov_b32 v{PM2}, 0\nv_mov_b32 v{PM2+1}, 0')
    k(mf[7])
    k(mf[8]); k(f'v_max3_f32 v244, v{S0}, v{S0+1}, v{S0+2}')
    k(mf[9]); k(mf[10])
    k(f'v_max3_f32 v244, v244, v{S0+3}, v{S1}')
    k(mf[11])
    if OPT['p2']: k('s_memtime s[82:83]')
    k(f"""v_max3_f32 v244, v244, v{S1+1}, v{S1+2}
v_max_f32 v244, v244, v{S1+3}""")
    if prof: k('s_memrealtime s[84:85]')
    k(f"""v_max3_f32 v244, v244, v{SM}, v{SM+1}
v_max3_f32 v244, v244, v{SM+2}, v{SM+3}
v_mov_b32 v245, v244
v_permlane16_swap_b32 v244, v245
v_max_f32 v244, v244, v245
v_mov_b32 v245, v244
v_permlane32_swap_b32 v244, v245
v_max_f32 v244, v244, v245
v_mul_f32 v244, s{S_NC}, v244
v_mul_f32 v245, 1.0, v244""")
    if OPT['p2']: k('s_memtime s[84:85]')
    for i in range(0, 12, 2): k(f'v_pk_fma_f32 {v(S0+i,2)}, {v(S0+i,2)}, s[66:67], v[244:245]')
    for i in range(8): k(f'v_exp_f32 v{S0+i}, v{S0+i}')
    k(f"""v_cvt_pk_bf16_f32 v{PX}, v{S0}, v{S0+1}
v_cvt_pk_bf16_f32 v{PX+1}, v{S0+2}, v{S0+3}
v_cvt_pk_bf16_f32 v{PX+2}, v{S1}, v{S1+1}
v_cvt_pk_bf16_f32 v{PX+3}, v{S1+2}, v{S1+3}""")
    VR, VB = k.lab('pvr'), k.lab('pvb')
    k('s_waitcnt vmcnt(0)')
    k(f'v_max3_u32 v247, v{VM}, v{VM+1}, v{VM+2}\nv_max3_u32 v247, v247, v{VM+3}, v{VM+4}')
    if OPT['p2']: k('s_memtime s[86:87]')
    mf = [f'v_mfma_f32_16x16x32_bf16 {v(O+4*te,4)}, {v(VXR+4*te,4)}, {v(PX,4)}, 0' for te in range(8)]
    k(mf[0]); k(f'v_exp_f32 v{SM}, v{SM}\nv_max3_u32 v247, v247, v{VM+5}, v{VM+6}')
    k(mf[1]); k(f'v_exp_f32 v{SM+1}, v{SM+1}\nv_max_u32 v247, v247, v{VM+7}')
    k(mf[2]); k(f'v_exp_f32 v{SM+2}, v{SM+2}\nv_add_f32 v245, v{S0}, v{S0+1}')
    k(mf[3]); k(f'v_exp_f32 v{SM+3}, v{SM+3}\nv_add_f32 v246, v{S0+2}, v{S0+3}')
    k(mf[4]); k(f'v_cvt_pk_bf16_f32 v{PM}, v{SM}, v{SM+2}\nv_cvt_pk_bf16_f32 v{PM+1}, v{SM+1}, v{SM+3}\nv_cmp_eq_u32 vcc, -1, v247')
    k(mf[5]); k(f'v_mov_b32 v188, v{PM}\nv_mov_b32 v189, v{PM+1}')
    k(mf[6]); k(f'v_add_f32 v245, v245, v{S1}\nv_add_f32 v246, v246, v{S1+1}')
    k(mf[7]); k(f'v_permlane32_swap_b32 v188, v{PM2}\nv_permlane32_swap_b32 v189, v{PM2+1}')
    k(f's_cbranch_vccnz {VR}\n{VB}:')
    mf = []
    for te in range(8):
        u, t4 = te // 4, te % 4
        a = VM + 4*u + 2*(t4 // 2); b = PM if t4 % 2 == 0 else PM2
        mf.append(f'v_mfma_f32_16x16x16_bf16 {v(O+4*te,4)}, {v(a,2)}, {v(b,2)}, {v(O+4*te,4)}')
    def cv(te): return [f'v_cvt_pk_bf16_f32 v{OB+4*(te//2)+2*(te%2)}, v{O+4*te}, v{O+4*te+1}', f'v_cvt_pk_bf16_f32 v{OB+4*(te//2)+2*(te%2)+1}, v{O+4*te+2}, v{O+4*te+3}']
    if OPT['p2']: k('s_memtime s[88:89]')
    k(mf[0]); k(f'v_add_f32 v245, v245, v{SM}\nv_add_f32 v246, v246, v{SM+1}')
    k(mf[1]); k(f'v_add_f32 v245, v245, v{SM+2}\nv_add_f32 v246, v246, v{SM+3}')
    k(mf[2]); k(f'v_add_f32 v245, v245, v{S1+2}\nv_add_f32 v246, v246, v{S1+3}')
    k(mf[3]); k('v_add_f32 v245, v245, v246\nv_mov_b32 v246, v245')
    for n in range(4):
        k(mf[4+n])
        for x in cv(n): k(x)
    mo = [[f'v_mfma_f32_16x16x32_bf16 {v(OA+4*ct,4)}, {v(WO+16*ct+4*ks,4)}, {v(OB+4*ks,4)}, {"0" if ks == 0 else v(OA+4*ct,4)}' for ct in range(4)] for ks in range(4)]
    if OPT['p2']: k('s_memtime s[90:91]')
    k(mo[0][0]); k('v_permlane16_swap_b32 v245, v246')
    k(mo[0][1]); k(cv(4)[0]); k(cv(4)[1])
    k(mo[0][2]); k(cv(5)[0]); k(cv(5)[1])
    k(mo[0][3]); k('v_add_f32 v245, v245, v246\nv_mov_b32 v246, v245')
    k(mo[1][0]); k(cv(6)[0]); k(cv(6)[1])
    k(mo[1][1]); k(cv(7)[0]); k(cv(7)[1])
    k(mo[1][2]); k('v_permlane32_swap_b32 v245, v246')
    k(mo[1][3]); k('v_add_f32 v245, v245, v246')
    k(mo[2][0]); k('v_rcp_f32 v245, v245')
    k(mo[3][0]); k(mo[2][1]); k('v_mov_b32 v244, v245')
    for x in (mo[3][1], mo[2][2], mo[3][2], mo[2][3], mo[3][3]): k(x)
    if OPT['p2']: k('s_memtime s[92:93]')
    for p in range(2):
        for i in range(0, 8, 2): k(f'v_pk_mul_f32 {v(OA+8*p+i,2)}, {v(OA+8*p+i,2)}, v[244:245]')
        for i in range(4):
            k(f'v_mov_b32_dpp v{OA+8*p+i}, v{OA+8*p+4+i} row_shr:8 row_mask:0xf bank_mask:0xc')
        k(f'ds_write_b128 v{V_A5}, {v(OA+8*p,4)} offset:{p*1024}')
    if OPT['p2']: k('s_memtime s[94:95]')
    k('s_waitcnt lgkmcnt(0)')
    if prof: k('s_memrealtime s[86:87]')
    if OPT['p2']:
        k('s_memtime s[96:97]\ns_waitcnt lgkmcnt(0)\ns_mov_b32 m0, s40')
        for n in range(8): k(f's_sub_u32 s34, s{82+2*n}, s{80+2*n}\nv_writelane_b32 v{248+n}, s34, m0')
    k('s_barrier')
    if OPT['ack'] & 4: k('s_barrier')
    k('s_barrier')
    if OPT['two']: k('s_barrier')
    k(f's_branch L_next{T}')
    def emit_spin(R_, C_, B_, loads, slp):
        k(f"""{R_}:
s_add_u32 s39, s39, 1
s_cmp_ge_u32 s39, s{SLIM}
s_cbranch_scc1 {R_}_t""")
        delay(k, slp)
        for x in loads: k(x)
        k(f's_branch {C_}\n{R_}_t:\ns_mov_b32 s{SLIM}, 0\ns_waitcnt vmcnt(0)\ns_branch {B_}')
    QR, LQM = qspin
    k(f"""{QR}:
s_add_u32 s39, s39, 1
s_cmp_ge_u32 s39, s{SLIM}
s_cbranch_scc1 {QR}_t""")
    delay(k, OPT['sq'])
    for ks in range(4): k(f'buffer_load_dwordx4 {v(QK+4*ks,4)}, v{V_A3}, {WS}, s{S_QC} offen offset:{ks*1024} sc1')
    k(f's_waitcnt vmcnt(0)\ns_branch {LQM}\n{QR}_t:\ns_mov_b32 s{SLIM}, 0\ns_branch {LQX}')
    k(f"""{VR}:
s_add_u32 s39, s39, 1
s_cmp_ge_u32 s39, s{SLIM}
s_cbranch_scc1 {VR}_t""")
    for u in range(2): k(f'buffer_load_dwordx4 {v(VM+4*u,4)}, v{V_A3}, {WS}, s{S_QC4} offen offset:{u*1024} sc1')
    k('s_waitcnt vmcnt(0)')
    umax_check(k, range(VM, VM+8), 247)
    k(f's_cbranch_vccnz {VR}\ns_branch {VB}\n{VR}_t:\ns_mov_b32 s{SLIM}, 0\ns_branch {VB}')
    late.append(lambda: [emit_spin(*x) for x in spins])
    k(f"""L_aidle{T}:
s_cmp_eq_u32 s{S_I}, 10
s_cbranch_scc0 L_awarm{T}""")
    def qloads():
        for ks in range(4): k(f'buffer_load_dwordx4 {v(QK+4*ks,4)}, v{V_A3}, {WS}, s{S_QC} offen offset:{ks*1024} sc1')
        for u in range(2): k(f'buffer_load_dwordx4 {v(VM+4*u,4)}, v{V_A3}, {WS}, s{S_QC4} offen offset:{u*1024} sc1')
    delay(k, OPT['dk'])
    poll(k, 'pk' + T, qloads, lambda: umax_check(k, list(range(QK, QK+16)) + list(range(VM, VM+8)), 244), sleep=2)
    for ks in range(4): k(f'buffer_store_dwordx4 {v(QK+4*ks,4)}, v{V_A3}, {WS}, s{S_KP} offen offset:{ks*1024} sc1')
    for u in range(2): k(f'buffer_store_dwordx4 {v(VM+4*u,4)}, v{V_A3}, {WS}, s{S_KP4} offen offset:{u*1024} sc1')
    k(f"""s_waitcnt vmcnt(0)
s_lshl_b32 s34, s{S_G}, 2
s_add_u32 s34, s34, s{SW}
s_lshl_b32 s34, s34, 7
s_add_u32 s34, s34, {F_KVM}
s_add_u32 s34, s34, s{SFL0}
s_add_u32 s35, s{SSTEP}, 1
v_mov_b32 v244, s34
v_mov_b32 v245, s35
s_mov_b64 exec, 1
buffer_store_dword v245, v244, {WS}, 0 offen sc1
s_mov_b64 exec, -1
s_cmp_eq_u32 s{SSTEP}, 63
s_cbranch_scc1 L_fin
{'s_barrier' if OPT['two'] else ''}
s_branch L_next{T}
L_awarm{T}:
s_cmp_eq_u32 s{SSTEP}, 63
s_cbranch_scc1 L_fin""")
    if OPT['warm']:
        W = k.lab('wsk')
        k(f's_add_u32 s36, s{SSTEP}, 3\ns_cmp_gt_u32 s36, 64\ns_cbranch_scc1 {W}')
        delay(k, OPT['dw'])
        k(f"""buffer_load_dword v13, v{V_A9}, {WS}, 0 offen sc1
s_waitcnt vmcnt(0)
v_readlane_b32 s34, v13, 0
v_readlane_b32 s35, v13, 1
s_min_u32 s34, s34, s35
s_cmp_lt_u32 s34, s36
s_cbranch_scc1 {W}
s_add_u32 s36, s{SSTEP}, 2
s_lshl_b32 s36, s36, 18
s_add_u32 s37, s36, {VX}
s_add_u32 s36, s36, {KX}""")
        kv_loads(k, 36, 37)
        k(f'{W}:')
    if OPT['two']: k('s_barrier')
    k(f's_branch L_next{T}')
    for f in late: f()

def chain_fin(k, prof):
    k('L_fin:')
    if OPT['p3']:
        k(f"""s_lshl_b32 s34, s{SX}, 5
s_add_u32 s34, s34, s{SR}
s_lshl_b32 s34, s34, 3
s_add_u32 s34, s34, s{SW}
s_mul_i32 s34, s34, 4096
s_add_u32 s34, s34, 0x8000000
v_lshlrev_b32 v10, 2, v1
v_add_u32 v10, s34, v10""")
        for n in range(9): k(f'buffer_store_dword v{248+n if n < 8 else 239}, v10, {WS}, 0 offen offset:{n*256}')
    if OPT['p2']:
        k(f"""s_lshl_b32 s34, s{SX}, 5
s_add_u32 s34, s34, s{SR}
s_lshl_b32 s34, s34, 3
s_add_u32 s34, s34, s{SW}
s_lshl_b32 s34, s34, 11
s_add_u32 s34, s34, 0x8000000
v_lshlrev_b32 v10, 2, v1
v_add_u32 v10, s34, v10""")
        for n in range(8): k(f'buffer_store_dword v{248+n}, v10, {WS}, 0 offen offset:{n*256}')
    dstamp(k, 5, 0, 0)
    if OPT['lite']:
        k(f"""s_sub_u32 s34, s92, s90
v_mov_b32 v12, s34
s_lshl_b32 s34, s{SX}, 5
s_add_u32 s34, s34, s{SR}
s_lshl_b32 s34, s34, 3
s_add_u32 s34, s34, s{SW}
s_lshl_b32 s34, s34, 2
s_add_u32 s34, s34, 0x8800000
v_mov_b32 v10, s34
buffer_store_dword v12, v10, {WS}, 0 offen
s_sub_u32 s34, s96, s94
v_mov_b32 v12, s34
v_add_u32 v10, 0x10000, v10
buffer_store_dword v12, v10, {WS}, 0 offen""")
    if OPT['lite'] > 1:
        k(f"""s_lshl_b32 s34, s{SX}, 5
s_add_u32 s34, s34, s{SR}
s_lshl_b32 s34, s34, 3
s_add_u32 s34, s34, s{SW}
s_lshl_b32 s34, s34, 8
s_add_u32 s34, s34, 0x8a00000
v_lshlrev_b32 v10, 2, v1
v_add_u32 v10, s34, v10
buffer_store_dword v254, v10, {WS}, 0 offen""")
    if prof:
        k(f"""s_lshl_b32 s34, s{SX}, 5
s_add_u32 s34, s34, s{SR}
s_lshl_b32 s34, s34, 3
s_add_u32 s34, s34, s{SW}
s_lshl_b32 s34, s34, 11
s_add_u32 s34, s34, 0x8000000
v_lshlrev_b32 v10, 2, v1
v_add_u32 v10, s34, v10
s_cmp_lt_u32 s{SW}, 4
s_cbranch_scc1 L_fin0""")
        for n in range(8): k(f'buffer_store_dword v{248+n}, v10, {WS}, 0 offen offset:{n*256}')
        k('s_branch L_end\nL_fin0:')
        for n in range(4): k(f'buffer_store_dword v{252+n}, v10, {WS}, 0 offen offset:{n*256}')
    k('s_branch L_end')

def build(prof=False, roles=('chain',), keepflags=False, qdelay=0):
    k = Kern()
    import brole, proj, attout
    def validate_par(k2):
        validate(k2); par_wait(k2)
    brole.validate = proj.validate = validate_par
    attout.validate = validate; attout.par_wait = par_wait
    attout.calibrate = calibrate
    attout.CALSLEEP = OPT['calsleep']
    brole.help_prefetch = attout.help_prefetch = help_prefetch if OPT['help'] else (lambda k: None)
    start_phase(k, keepflags)
    on = lambda r: r in roles
    R = lambda r, l: l if on(r) else 'L_end'
    PLACE_A = f'''; dies 4-7: every die gets 12 PROJ, 8 B, 10 OUT and 2 ATT units
s_sub_u32 s34, s{SX}, 4
s_mul_i32 s41, s34, 12
s_add_u32 s41, s41, s{SR}
s_cmp_lt_u32 s{SR}, 12
s_cbranch_scc1 {R('proj', 'L_proj')}
s_lshl_b32 s41, s34, 3
s_add_u32 s41, s41, s{SR}
s_sub_u32 s41, s41, 12
s_cmp_lt_u32 s{SR}, 20
s_cbranch_scc1 {R('b', 'L_brole')}
s_mul_i32 s41, s34, 10
s_add_u32 s41, s41, s{SR}
s_sub_u32 s41, s41, 20
s_cmp_lt_u32 s{SR}, 30
s_cbranch_scc1 {R('out', 'L_out')}
s_lshl_b32 s41, s34, 1
s_add_u32 s41, s41, s{SR}
s_sub_u32 s41, s41, 30
s_branch {R('att', 'L_att')}'''
    PLACE_B = f'''; dies 4, 5: 24 PROJ + 8 B each; dies 6, 7: 20 OUT + 8 B + 4 ATT each
s_sub_u32 s34, s{SX}, 4
s_lshl_b32 s41, s34, 3
s_add_u32 s41, s41, s{SR}
s_sub_u32 s41, s41, 24
s_cmp_ge_u32 s{SR}, 24
s_cbranch_scc1 {R('b', 'L_brole')}
s_cmp_ge_u32 s{SX}, 6
s_cbranch_scc1 L_hi2
s_mul_i32 s41, s34, 24
s_add_u32 s41, s41, s{SR}
s_branch {R('proj', 'L_proj')}
L_hi2:
s_sub_u32 s34, s{SX}, 6
s_mul_i32 s41, s34, 20
s_add_u32 s41, s41, s{SR}
s_cmp_lt_u32 s{SR}, 20
s_cbranch_scc1 {R('out', 'L_out')}
s_lshl_b32 s41, s34, 2
s_add_u32 s41, s41, s{SR}
s_sub_u32 s41, s41, 20
s_branch {R('att', 'L_att')}'''
    k(f'''s_cmp_ge_u32 s{SX}, 4
s_cbranch_scc1 L_hi
s_cmp_lt_u32 s{SR}, 24
s_cbranch_scc1 {R('chain', 'L_chain')}
s_lshl_b32 s41, s{SX}, 3
s_add_u32 s41, s41, s{SR}
s_add_u32 s41, s41, 8
s_branch {R('b', 'L_brole')}
L_hi:
{PLACE_B if OPT['place'] == 2 else PLACE_A}''')
    if on('proj'): proj_role(k)
    if on('att'): att_role(k)
    if on('out'): out_role(k)
    if on('b'): b_role(k)
    if on('chain'):
        chain_prologue(k)
        mark(k, 1)
        dstamp(k, 3, 0, 0)
        k(f's_cmp_lg_u32 s{SSLOW}, 0\ns_cbranch_scc1 L_entryS')
        chain_loop(k, '', prof, 'F', qdelay)
        chain_loop(k, ' sc1', False, 'S')
        chain_fin(k, prof)
    k('L_end:')
    dstamp(k, 9, 7, 20)
    dstamp(k, 11, 4, 12)
    dstamp(k, 7, 4, 0)
    if TL:
        k(f'''s_memrealtime s[82:83]
s_waitcnt lgkmcnt(0)
v_mov_b32 v20, s84
v_mov_b32 v21, s85
v_mov_b32 v22, s86
v_mov_b32 v23, s87
v_mov_b32 v24, s82
s_lshl_b32 s34, s{SX}, 5
s_add_u32 s34, s34, s{SR}
s_lshl_b32 s34, s34, 3
s_add_u32 s34, s34, s{SW}
s_lshl_b32 s34, s34, 5
s_add_u32 s34, s34, 0x8900000
v_mov_b32 v25, s34
s_mov_b64 exec, 1
buffer_store_dwordx4 v[20:23], v25, {WS}, 0 offen
buffer_store_dword v24, v25, {WS}, 0 offen offset:16''')
    k('L_exit:\ns_endpgm')
    body, nops = k.text()
    head = f'''; Kernarg layout (104 bytes, pointers only, base s[0:1]):
; @launch grid=(256,1,1) block=(512,1,1) lds=163840
;
.amdgcn_target "amdgcn-amd-amdhsa--gfx950"
.text
.globl {NAME}
.p2align 8
.type {NAME},@function
{NAME}:
'''
    tail = f'''
.section .rodata,"a"
.p2align 6
.amdhsa_kernel {NAME}
  .amdhsa_next_free_vgpr 256
  .amdhsa_next_free_sgpr 102
  .amdhsa_accum_offset 256
  .amdhsa_group_segment_fixed_size 0
  .amdhsa_kernarg_size 104
  .amdhsa_user_sgpr_count 2
  .amdhsa_user_sgpr_kernarg_segment_ptr 1
  .amdhsa_system_sgpr_workgroup_id_x 1
.end_amdhsa_kernel
'''
    return head + '\n'.join(body) + tail, nops

if __name__ == '__main__':
    out = sys.argv[1]
    opts = dict(a.split('=') for a in sys.argv[2:] if '=' in a)
    if 'kvsc' in opts: KVSC = {'p': '', 's': ' sc1', 'n': ' nt', '0': ' sc0'}[opts['kvsc']]
    NOKV = 'nokv' in sys.argv[2:]
    TL = 'tl' in sys.argv[2:]
    DBGST = 'dbgst' in sys.argv[2:]
    import brole, proj, attout
    brole.mark = proj.mark = attout.mark = mark
    brole.BMODE = int(opts.get('bmode', 0))
    for o in OPT:
        if o in opts: OPT[o] = int(opts[o])
    proj.MINI = OPT['mini']
    proj.SELFP = OPT['selfp']; proj.PSLEEP = OPT['psleep']
    proj.WNT = ' nt' if OPT['wnt'] else ''; proj.WNT2 = ' nt' if OPT['wnt'] > 1 else ''
    proj.LITE = OPT['lite']; proj.PMARK = int(opts.get('pmark', -1))
    brole.OUTSC = attout.OUTSC = {0: '', 1: ' sc1', 2: ' nt', 3: ' sc0 sc1'}[OPT['outsc']]
    brole.OBSC = ' sc1' if OPT['obsc'] else ''
    brole.SLEEP = OPT['bsleep']; attout.OSLEEP = OPT['osleep']; attout.XWARM = OPT['xwarm']; attout.OSL = OPT['osl']
    txt, nops = build(prof='prof' in sys.argv[2:], keepflags='keepflags' in sys.argv[2:], qdelay=int(opts.get('qdelay', 0)), roles=opts.get('roles', 'chain').split(','))
    open(out, 'w').write(txt)
    print('wrote', out, 'lines', txt.count('\n'), 'nop states', nops)
```
